```python
import torch

def _softmax(x, axis=-1):
    return torch.softmax(x, dim=axis)
def _gelu(x):
    return torch.nn.functional.gelu(x, approximate="tanh")
def _silu(x):
    return torch.nn.functional.silu(x)
def _sigmoid(x):
    return torch.sigmoid(x)
def _layernorm(x, axis=-1, eps=1e-5):
    m = x.mean(dim=axis, keepdim=True)
    v = x.var(dim=axis, keepdim=True, unbiased=False)
    return (x - m) / torch.sqrt(v + eps)
def _scatter_add(tgt, idx, src, axis=0):
    return tgt.clone().index_add_(axis, idx, src)
def _segment_sum(src, seg, n):
    out = torch.zeros((n,) + src.shape[1:], dtype=src.dtype)
    return out.index_add_(0, seg, src)
def _pad(x, pw):
    flat = tuple(v for pair in reversed(pw) for v in pair)
    return torch.nn.functional.pad(x, flat)

kernel_name = 'parallel_sum__linear_attn_block__dense_activation_mish__prompt'

def setup_inputs():

    _w = (lambda a: (lambda t: t.to(torch.bfloat16) if t.is_floating_point() else t)(torch.as_tensor(a)))
    def _A_setup():
        B, S, D = 1, 2048, 512
        return {
            "x": _w((lambda *s: torch.randn(*s, dtype=torch.bfloat16) * 0.05)(B, S, D)),
            "wqkv": _w((lambda *s: torch.randn(*s, dtype=torch.bfloat16) * 0.1)(D, 3 * D)),
            "wo": _w((lambda *s: torch.randn(*s, dtype=torch.bfloat16) * 0.05)(D, D)),
        }
    _A_in = _A_setup()

    def _B_setup():
        B, S, D, F = 1, 2048, 512, 1376
        return {
            "x": _w((lambda *s: torch.randn(*s, dtype=torch.bfloat16) * 0.05)(B, S, D)),
            "w1": _w((lambda *s: torch.randn(*s, dtype=torch.bfloat16) * 0.8)(D, F) * (D ** -0.5)),
            "b1": _w((lambda *s: torch.randn(*s, dtype=torch.bfloat16) * 0.4)(F)),
            "w2": _w((lambda *s: torch.randn(*s, dtype=torch.bfloat16) * 0.1)(F, D) * (F ** -0.5)),
        }
    _B_in = _B_setup()

    return {
        "A_x": _A_in["x"],
        "A_wqkv": _A_in["wqkv"],
        "A_wo": _A_in["wo"],
        "B_x": _B_in["x"],
        "B_w1": _B_in["w1"],
        "B_b1": _B_in["b1"],
        "B_w2": _B_in["w2"],
    }

def reference(A_x, A_wqkv, A_wo, B_x, B_w1, B_b1, B_w2):
    def _A_ref(x, wqkv, wo):
        B, S, D = x.shape
        H = 32; Dh = D // H
        qkv = (lambda x, *d: x.permute(*d))((x @ wqkv).reshape(B, S, 3, H, Dh), 2, 0, 3, 1, 4)
        q, k, v = qkv[0], qkv[1], qkv[2]
        phi = lambda t: torch.where(t > 0, t + 1, torch.exp(t)) + 1e-6
        pq, pk = phi(q), phi(k)
        kv = torch.einsum("bhsd,bhse->bhde", pk, v)
        z = torch.einsum("bhsd->bhd", pk)
        num = torch.einsum("bhqd,bhde->bhqe", pq, kv)
        den = torch.einsum("bhqd,bhd->bhq", pq, z)[..., None] + 1e-6
        o = num / den
        return (lambda x, *d: x.permute(*d))(o, 0, 2, 1, 3).reshape(B, S, D) @ wo

    def _B_ref(x, w1, b1, w2):
        h = torch.einsum("bsd,df->bsf", x, w1) + b1
        sp = torch.log1p(torch.exp(-torch.abs(h))) + torch.where(h > 0, h, torch.zeros_like(h))
        act = h * torch.tanh(sp)
        return torch.einsum("bsf,fd->bsd", act, w2)

    x = A_x
    xn = _layernorm(x, axis=-1)
    return x + _A_ref(xn, A_wqkv, A_wo) + _B_ref(xn, B_w1, B_b1, B_w2)
```

```python
NAME = "parallel_sum__linear_attn_block__dense_activation_mish__prompt"
HEADER = """; Kernarg layout for this problem (80 bytes, ptrs only, base s[0:1]):
"""
class Asm:
    def __init__(self):
        self.l = []
        self.uid = 0
    def __call__(self, s=""):
        for x in s.split("\n"):
            self.l.append(("    " + x.strip()) if not x.strip().endswith(":") else x.strip())
    def label(self, s):
        self.l.append(s + ":")
    def newlabel(self, p="L"):
        self.uid += 1
        return f"{p}_{self.uid}"
    def text(self):
        return "\n".join(self.l) + "\n"

def kernel_head(name):
    return f".globl {name}\n.p2align 8\n.type {name},@function\n{name}:\n"
def kernel_desc(name, vgpr, sgpr=102, accum=None, extra=""):
    if accum is None: accum = (vgpr + 3) // 4 * 4
    return f""".amdhsa_kernel {name}
  .amdhsa_next_free_vgpr {vgpr}
  .amdhsa_next_free_sgpr {sgpr}
  .amdhsa_accum_offset {accum}
  .amdhsa_group_segment_fixed_size 0
  .amdhsa_kernarg_size 80
  .amdhsa_user_sgpr_count 2
  .amdhsa_user_sgpr_kernarg_segment_ptr 1
  .amdhsa_system_sgpr_workgroup_id_x 1
{extra}.end_amdhsa_kernel
"""
def single(body, grid, block, lds, vgpr, sgpr=102, accum=None, extra=""):
    n = NAME + "_kernel"
    return (HEADER + f"; @launch grid=({grid},1,1) block=({block},1,1) lds={lds}\n"
            '.amdgcn_target "amdgcn-amd-amdhsa--gfx950"\n.text\n' + kernel_head(n) + body +
            '.section .rodata,"a"\n.p2align 6\n' + kernel_desc(n, vgpr, sgpr, accum, extra))
def multi(kernels):
    s = HEADER
    for k in kernels:
        s += f"; @launch kernel={k['name']} grid=({k['grid']},1,1) block=({k['block']},1,1) lds={k['lds']}\n"
    s += '.amdgcn_target "amdgcn-amd-amdhsa--gfx950"\n.text\n'
    seen = []
    for k in kernels:
        if k['name'] in seen: continue
        seen.append(k['name'])
        s += kernel_head(k['name']) + k['body']
    s += '.section .rodata,"a"\n'
    seen = []
    for k in kernels:
        if k['name'] in seen: continue
        seen.append(k['name'])
        s += '.p2align 6\n' + kernel_desc(k['name'], k['vgpr'], k.get('sgpr', 102), k.get('accum'), k.get('extra', ''))
    return s
```

```python
import sys, math, struct
from asmlib import *

def f2u(x): return struct.unpack("<I", struct.pack("<f", x))[0]
LOG2E = 1.4426950408889634
LN2 = 0.6931471805599453

WS_EPOCH = 0
WS_STATS = 0x1000
WS_CSP   = 0x10000
WS_KVP   = 0x60000
WS_FLAG  = 0x100000
WS_A2    = 0x200000
A2_RT    = 120 * 1024
WS_SIZE  = 0x1000000
WS_STAMP = 0xC00000
OOB      = 0x40000000

L_X    = 0
L_W    = 49152
L_MISC = 147456
L_KV   = L_MISC
L_SCR  = 9 * 8192
L_CSP  = L_MISC + 8192
L_CS   = L_CSP + 768
L_BT   = L_CS + 768
L_MT   = L_BT + 768
L_RT   = L_MT + 512
LDS_BYTES = 163840
RED_PITCH = 272
RED_Q = 64 * RED_PITCH

ROUND_OF_STEP = [15, 16, 17, 4, 5, 12, 13, 14, 0, 1, 6, 7, 8, 2, 3, 9, 10, 11]
NREG_STEPS = 12
def round_of(step):
    return ROUND_OF_STEP[step] if step < 18 else ROUND_OF_STEP[step - 18]

S_X, S_W, S_W2, S_WO, S_WS, S_OUT, S_B1 = 24, 28, 32, 36, 40, 44, 48
sW, sR, sC = 52, 53, 54
sRB, sG, sS0 = 55, 56, 57
sCT, sRT, sROT = 58, 59, 60
sTAG = 61
sXO, sWOF, sWSTEP, sWEND = 62, 63, 64, 65
sXB = 66
sPH = 67
sLX, sLW = 68, 69
sB2, sB2W, sB2L, sB2O = 70, 71, 72, 73
sA2, sA2W, sA2B = 74, 75, 76
sT0, sT1, sT2, sT3, sT4, sT5 = 77, 78, 79, 80, 81, 82
sMASK = 84
sEX = 86
sC0 = 88
sKQ = 89
sB2N = 91
sSPIN = 90
sSTAMP = 92
sPITCH = 94
sE = 95
sWD = 83
sWO1, sWO2 = 100, 101

vL = 0
vL16 = 1
vB2D = 2
vB2A = 3
vRW, vRR = 9, 10
vXO = 11
vM, vR = 12, 13
ACC = 16
XF = 64
WF = 72
vXA = 96
vWA = 100
vX0, vX1 = 104, 105
vW0 = 106
vG0 = 112
vG1 = 116
TMP = 120
A2R = 48
B2R = 136
BT = 232
XRES = 248

class VM:
    def __init__(self, a): self.a = a; self.q = []
    def issue(self, tag): self.q.append(tag)
    def count(self, *tags):
        idx = max((i for i, t in enumerate(self.q) if t in tags), default=-1)
        return len(self.q) - 1 - idx if idx >= 0 else None
    def wait(self, *tags, lgkm=None):
        n = self.count(*tags)
        s = []
        if n is not None:
            assert n <= 63, n
            s.append(f"vmcnt({n})")
            self.q = self.q[len(self.q) - n:] if n else []
        if lgkm is not None: s.append(f"lgkmcnt({lgkm})")
        if s: self.a("s_waitcnt " + " ".join(s))
    def drained(self): self.q = []
    def copy(self, a=None):
        v = VM(a or self.a); v.q = list(self.q); return v

class Gen:
    def __init__(self, stamps=False, opts=None):
        self.a = Asm(); self.stamps = stamps; self.nst = 0
        self.o = dict(codepf=True)
        if opts: self.o.update(opts)

    def srd(self, d, p, n):
        self.a(f"s_mov_b32 s{d}, s{p}\ns_mov_b32 s{d+1}, s{p+1}\ns_mov_b32 s{d+2}, {n}\ns_mov_b32 s{d+3}, 0x20000")
    def stamp(self, idx):
        if not self.stamps: return
        self.a(f"s_memtime s[{sSTAMP}:{sSTAMP+1}]\ns_waitcnt lgkmcnt(0)\nv_writelane_b32 v252, s{sSTAMP}, {idx}")
    def rstamp(self, idx):
        if not self.stamps: return
        self.a(f"s_memrealtime s[{sSTAMP}:{sSTAMP+1}]\ns_waitcnt lgkmcnt(0)\nv_writelane_b32 v252, s{sSTAMP}, {idx}")

    def prologue(self):
        a = self.a
        a("s_cmp_ge_u32 s2, 256\ns_cbranch_scc1 L_end")
        a("s_load_dwordx16 s[4:19], s[0:1], 0\ns_load_dwordx4 s[20:23], s[0:1], 64")
        if self.stamps:
            a("v_mov_b32 v252, 0")
            a(f"s_memrealtime s[96:97]\ns_memtime s[98:99]")
        a(f"v_lshrrev_b32 v1, 6, v0\nv_and_b32 v{vL}, 63, v0\nv_readfirstlane_b32 s{sW}, v1")
        a(f"s_and_b32 s{sT0}, s2, 7\ns_lshr_b32 s{sT1}, s2, 3")
        a(f"s_and_b32 s{sT2}, s{sT0}, 1\ns_lshr_b32 s{sT3}, s{sT0}, 1")
        a(f"s_and_b32 s{sT4}, s{sT1}, 7\ns_lshl_b32 s{sRB}, s{sT2}, 3\ns_add_u32 s{sRB}, s{sRB}, s{sT4}")
        a(f"s_lshr_b32 s{sT5}, s{sT1}, 3\ns_lshl_b32 s{sG}, s{sT5}, 2\ns_add_u32 s{sG}, s{sG}, s{sT3}")
        a(f"s_lshl_b32 s{sT5}, s{sT5}, 1\ns_add_u32 s{sS0}, s{sT4}, s{sT5}\ns_and_b32 s{sS0}, s{sS0}, 7")
        a(f"s_and_b32 s{sT4}, s{sT1}, 3\ns_lshl_b32 s{sCT}, s{sT2}, 2\ns_add_u32 s{sCT}, s{sCT}, s{sT4}")
        a(f"s_lshr_b32 s{sT5}, s{sT1}, 2\ns_lshl_b32 s{sRT}, s{sT3}, 3\ns_add_u32 s{sRT}, s{sRT}, s{sT5}")
        a(f"s_mul_i32 s{sROT}, s{sT5}, 3\ns_mul_i32 s{sT4}, s{sT4}, 6\ns_add_u32 s{sROT}, s{sROT}, s{sT4}")
        a(f"s_sub_u32 s{sT4}, s{sROT}, 22\ns_cmp_ge_u32 s{sROT}, 22\ns_cselect_b32 s{sROT}, s{sT4}, s{sROT}")
        a(f"s_and_b32 s{sR}, s{sW}, 3\ns_lshr_b32 s{sC}, s{sW}, 2\ns_lshr_b32 s{sKQ}, s{sW}, 1")
        a(f"s_sub_u32 s{sT0}, s{sG}, 8\ns_min_u32 s{sT1}, s{sT0}, 3\ns_mul_i32 s{sC0}, s{sT0}, 5\ns_add_u32 s{sC0}, s{sC0}, s{sT1}")
        a(f"s_movk_i32 s{sPITCH}, 2752\ns_cmp_lt_u32 s{sG}, 8\ns_cselect_b32 s{sPITCH}, 3072, s{sPITCH}")
        a(f"v_lshlrev_b32 v{vL16}, 4, v{vL}")
        a(f"v_lshrrev_b32 v14, 4, v{vL}\nv_and_b32 v15, 7, v{vL}\nv_xor_b32 v14, v14, v15\nv_lshlrev_b32 v14, 4, v14")
        a(f"v_lshrrev_b32 v15, 3, v{vL}\nv_lshl_add_u32 v{vX0}, v15, 10, v14")
        a(f"v_xor_b32 v{vX1}, 64, v{vX0}\nv_add_u32 v{vX1}, {8192-1024}, v{vX1}")
        a(f"v_lshrrev_b32 v14, 2, v{vL}\nv_and_b32 v14, 4, v14\nv_and_b32 v{vB2D}, 7, v{vL}\nv_xor_b32 v14, v14, v{vB2D}\nv_lshlrev_b32 v14, 4, v14")
        a(f"v_lshl_add_u32 v{vB2D}, v15, 10, v14")
        a(f"v_mad_u32_u24 v{vW0}, v15, s{sPITCH}, v14")
        a(f"s_cmp_ge_u32 s{sG}, 11\ns_cselect_b32 s{sT4}, 64, 128\nv_mov_b32 v{vW0+1}, {OOB}\nv_cmp_gt_u32 vcc, s{sT4}, v14")
        a(f"s_lshl_b32 s{sT0}, s{sG}, 7\ns_lshl_b32 s{sT1}, s{sC0}, 6\ns_add_u32 s{sT1}, s{sT1}, 2048\ns_cmp_lt_u32 s{sG}, 8\ns_cselect_b32 s{sT5}, s{sT0}, s{sT1}")
        a(f"s_cselect_b32 s{sWD}, 0, 896\nv_cndmask_b32 v{vW0+1}, v{vW0+1}, v{vW0}, vcc")
        a(f"s_lshl_b32 s{sXB}, s{sRB}, 17\ns_lshl_b32 s{sT0}, s{sW}, 14\ns_add_u32 s{sXB}, s{sXB}, s{sT0}")
        a(f"s_lshl_b32 s{sWSTEP}, s{sPITCH}, 6\ns_lshl_b32 s{sWEND}, s{sPITCH}, 9")
        a(f"s_lshl_b32 s{sT0}, s{sS0}, 3\ns_add_u32 s{sT0}, s{sT0}, s{sW}\ns_lshl_b32 s{sT0}, s{sT0}, 3\ns_mul_i32 s{sWOF}, s{sT0}, s{sPITCH}")
        a(f"s_add_u32 s{sWOF}, s{sWOF}, s{sT5}")
        a(f"s_mov_b32 s{sPH}, s{sS0}")
        a(f"s_lshl_b32 s{sLX}, s{sW}, 11\ns_mul_i32 s{sLW}, s{sW}, 3072\ns_add_u32 s{sLW}, s{sLW}, {L_W}")
        a("s_waitcnt lgkmcnt(0)")
        self.srd(S_X, 4, 2097152)
        a(f"s_sub_u32 s12, s12, 2048\ns_subb_u32 s13, s13, 0")
        a(f"s_cmp_lt_u32 s{sG}, 8\ns_cselect_b32 s{S_W}, s6, s12\ns_cselect_b32 s{S_W+1}, s7, s13\ns_cselect_b32 s{sT0}, 0, 2048\ns_add_u32 s{S_W+2}, s{sWEND}, s{sT0}\ns_mov_b32 s{S_W+3}, 0x20000")
        self.srd(S_WS, 22, WS_SIZE)

    def dma_stage(self, vm, t, part):
        a = self.a; slot = t % 3
        if part == 0:
            a(f"s_lshl_b32 s{sXO}, s{sPH}, 7\ns_add_u32 m0, s{sLX}, {L_X + slot*16384}\ns_add_u32 s{sXO}, s{sXO}, s{sXB}")
            a(f"buffer_load_dwordx4 v{vX0}, s[{S_X}:{S_X+3}], s{sXO} offen lds"); vm.issue(f"st{t}")
            a(f"buffer_load_dwordx4 v{vX1}, s[{S_X}:{S_X+3}], s{sXO} offen offset:1024 lds"); vm.issue(f"st{t}")
        else:
            a(f"s_add_u32 m0, s{sLW}, {slot*24576}\ns_sub_u32 s{sWO1}, s{sWOF}, s{sWD}")
            a(f"buffer_load_dwordx4 v{vW0}, s[{S_W}:{S_W+3}], s{sWOF} offen lds"); vm.issue(f"st{t}")
            a(f"s_sub_u32 s{sWO2}, s{sWO1}, s{sWD}")
            a(f"buffer_load_dwordx4 v{vW0}, s[{S_W}:{S_W+3}], s{sWO1} offen offset:1024 lds"); vm.issue(f"st{t}")
            a(f"s_add_u32 s{sWOF}, s{sWOF}, s{sWSTEP}")
            a(f"buffer_load_dwordx4 v{vW0+1}, s[{S_W}:{S_W+3}], s{sWO2} offen offset:2048 lds"); vm.issue(f"st{t}")
            if t < 7:
                a(f"s_add_u32 s{sPH}, s{sPH}, 1\ns_and_b32 s{sPH}, s{sPH}, 7\ns_cselect_b32 s{sT0}, 0, s{sWEND}\ns_sub_u32 s{sWOF}, s{sWOF}, s{sT0}")

    def b2_setup(self):
        a = self.a
        a(f"s_mul_i32 s{sB2}, s{sKQ}, 22\ns_add_u32 s{sB2}, s{sB2}, s{sROT}\ns_lshl_b32 s{sB2}, s{sB2}, 1\ns_and_b32 s{sT0}, s{sW}, 1")
        a(f"s_add_u32 s{sB2}, s{sB2}, s{sT0}\ns_lshl_b32 s{sB2}, s{sB2}, 13\ns_lshl_b32 s{sT1}, s{sCT}, 7\ns_add_u32 s{sB2}, s{sB2}, s{sT1}")
        a(f"s_sub_u32 s{sB2W}, 22, s{sROT}\ns_lshl_b32 s{sB2L}, s{sW}, 10\ns_mov_b32 s{sB2N}, {(-21*16384) & 0xffffffff}")
        a(f"s_lshl_b32 s{sB2O}, s{sKQ}, 4\ns_add_u32 s{sB2O}, s{sB2O}, s{sT0}\ns_lshl_b32 s{sB2O}, s{sB2O}, 13\ns_add_u32 s{sB2O}, s{sB2O}, s{sT1}")

    def b2_late(self, vm, step):
        a = self.a
        a(f"s_add_u32 m0, s{sB2L}, {8192*round_of(step)}\ns_nop 0")
        a(f"buffer_load_dwordx4 v{vB2D}, s[{S_W2}:{S_W2+3}], s{sWO1 + step - 15} offen lds"); vm.issue(f"b2_{step}")

    def b2_dma(self, vm, step, defer=False):
        a = self.a
        if defer:
            a(f"s_sub_u32 s{sB2W}, s{sB2W}, 1\ns_mov_b32 s{sWO1 + step - 15}, s{sB2}")
            a(f"s_cmp_eq_u32 s{sB2W}, 0\ns_cselect_b32 s{sT0}, s{sB2N}, 16384\ns_add_u32 s{sB2}, s{sB2}, s{sT0}")
            return
        a(f"s_add_u32 m0, s{sB2L}, {8192*round_of(step)}")
        if step < 22:
            a(f"s_sub_u32 s{sB2W}, s{sB2W}, 1")
            a(f"buffer_load_dwordx4 v{vB2D}, s[{S_W2}:{S_W2+3}], s{sB2} offen lds"); vm.issue(f"b2_{step}")
            a(f"s_cmp_eq_u32 s{sB2W}, 0\ns_cselect_b32 s{sT0}, s{sB2N}, 16384\ns_add_u32 s{sB2}, s{sB2}, s{sT0}")
        else:
            a(f"s_add_u32 s{sT0}, s{sB2O}, {(step-22)*16384}")
            a(f"buffer_load_dwordx4 v{vB2D}, s[{S_WO}:{S_WO+3}], s{sT0} offen lds"); vm.issue(f"b2_{step}")

    def prologue2(self, vm):
        a = self.a
        self.dma_stage(vm, 0, 0); self.dma_stage(vm, 0, 1)
        a(f"v_mov_b32 v14, 0\nbuffer_load_dword v{TMP+4}, v14, s[{S_WS}:{S_WS+3}], 0 offen sc1"); vm.issue("epoch")
        a(f"s_lshl_b32 s{sT0}, s{sRB}, 4\ns_add_u32 s{sT0}, s{sT0}, s{sG}\ns_lshl_b32 s{sT0}, s{sT0}, 3\ns_add_u32 s{sT5}, s{sT0}, s{sW}\ns_lshl_b32 s{sT0}, s{sT5}, 10")
        a(f"buffer_load_dwordx4 v[{TMP}:{TMP+3}], v{vL16}, s[{S_X}:{S_X+3}], s{sT0} offen"); vm.issue("xrow")
        a(f"s_lshl_b32 s{sE}, s{sT5}, 4\ns_add_u32 s{sE}, s{sE}, {WS_STATS}")
        self.dma_stage(vm, 1, 0); self.dma_stage(vm, 1, 1)
        self.srd(S_B1, 14, 2752)
        a(f"v_lshl_add_u32 v{TMP+6}, s{sW}, 6, v{vL}\nv_lshlrev_b32 v14, 1, v{TMP+6}")
        a(f"s_lshl_b32 s{sT0}, s{sC0}, 6\ns_cmp_lt_u32 s{sG}, 8\ns_cselect_b32 s{sT0}, {OOB}, s{sT0}")
        a(f"buffer_load_ushort v{TMP+5}, v14, s[{S_B1}:{S_B1+3}], s{sT0} offen"); vm.issue("bias")
        if self.o['codepf']:
            n = self.o.get('pf_lanes', 8)
            a(f"s_getpc_b64 s[{sT0+1}:{sT0+2}]")
            a.label("L_pc")
            a(f"s_lshr_b32 s{sT0}, s2, 3\ns_and_b32 s{sT0}, s{sT0}, 3\ns_lshl_b32 s{sT0}, s{sT0}, 3\ns_add_u32 s{sT0}, s{sT0}, s{sW}\ns_mul_i32 s{sT0}, s{sT0}, {n}")
            a(f"v_min_u32 v14, {n-1}, v{vL}\nv_add_u32 v14, s{sT0}, v14\nv_lshlrev_b32 v14, 7, v14\nv_min_u32 v14, L_codeend-L_pc-4, v14")
            a(f"global_load_dword v{TMP+7}, v14, s[{sT0+1}:{sT0+2}]"); vm.issue("codepf")
        self.srd(S_W2, 16, 1376*1024); self.srd(S_WO, 8, 512*1024); self.srd(S_OUT, 18, 2097152)
        a(f"s_lshl_b32 s{sT0}, s{sC}, 1\ns_add_u32 s{sT0}, s{sT0}, s{sR}")
        a(f"v_and_b32 v14, 31, v{vL}\nv_lshrrev_b32 v15, 5, v{vL}\nv_bfe_u32 v{TMP+8}, v{vL}, 1, 3\nv_xor_b32 v{TMP+8}, v{TMP+8}, v15")
        a(f"s_lshl_b32 s{sT1}, s{sR}, 12\nv_lshlrev_b32 v14, 7, v14\nv_lshl_add_u32 v14, v{TMP+8}, 4, v14\nv_add_u32 v14, s{sT1}, v14")
        a(f"v_bfe_u32 v{TMP+8}, v{vL}, 2, 2\nv_mul_u32_u24 v{TMP+9}, 3072, v15\nv_lshl_add_u32 v{TMP+9}, v{TMP+8}, 7, v{TMP+9}")
        a(f"v_lshrrev_b32 v{TMP+10}, 1, v{TMP+8}\nv_xor_b32 v{TMP+11}, s{sC}, v{TMP+10}\nv_lshl_add_u32 v{TMP+9}, v{TMP+11}, 6, v{TMP+9}")
        a(f"v_bfe_u32 v{TMP+11}, v{vL}, 4, 1\nv_and_b32 v{TMP+12}, 3, v{vL}\nv_lshlrev_b32 v{TMP+12}, 3, v{TMP+12}\nv_lshl_add_u32 v{TMP+12}, v{TMP+11}, 5, v{TMP+12}")
        a(f"v_add_u32 v{TMP+9}, v{TMP+9}, v{TMP+12}")
        for i in range(4):
            a(f"s_add_u32 s{sT1}, s{sT0}, {i}\ns_and_b32 s{sT1}, s{sT1}, 3\ns_lshl_b32 s{sT2}, s{sT1}, 5\ns_mul_i32 s{sT1}, s{sT1}, 6144\ns_add_u32 s{sT1}, s{sT1}, {L_W}")
            a(f"v_xor_b32 v{vXA+i}, s{sT2}, v14\nv_add_u32 v{vWA+i}, s{sT1}, v{TMP+9}")
        a(f"v_lshl_add_u32 v14, v15, 2, v{TMP+8}\nv_lshlrev_b32 v14, 7, v14\nv_lshl_add_u32 v14, v{TMP+10}, 6, v14\nv_add_u32 v14, v14, v{TMP+12}")
        a(f"s_lshl_b32 s{sT1}, s{sKQ}, 11\nv_add_u32 v{vB2A}, s{sT1}, v14\nv_xor_b32 v{vB2A+1}, 64, v{vB2A}")
        for hi in (1, 2):
            a(f"v_add_u32 v{vB2A+2*hi}, {65536*hi}, v{vB2A}\nv_add_u32 v{vB2A+2*hi+1}, {65536*hi}, v{vB2A+1}")
        a(f"s_mov_b32 s{sMASK}, 0x0000ffff\ns_mov_b32 s{sMASK+1}, 0x0000ffff")
        self.b2_setup()

    def row_stats(self, vm):
        a = self.a; T = TMP
        vm.wait("xrow")
        u = vG0
        for k in range(4):
            a(f"v_lshlrev_b32 v{u+2*k}, 16, v{T+k}\nv_and_b32 v{u+2*k+1}, 0xffff0000, v{T+k}")
        a(f"v_readfirstlane_b32 s{sTAG}, v{T+4}")
        a(f"v_add_f32 v14, v{u}, v{u+1}\nv_add_f32 v15, v{u+2}, v{u+3}\nv_add_f32 v{T}, v{u+4}, v{u+5}\nv_add_f32 v{T+1}, v{u+6}, v{u+7}")
        a(f"v_add_f32 v14, v14, v15\nv_add_f32 v{T}, v{T}, v{T+1}\ns_mul_i32 s{sTAG}, s{sTAG}, 0x9e3779b1\nv_add_f32 v14, v14, v{T}")
        a(f"s_add_u32 s{sTAG}, s{sTAG}, 0x7f4a7c15")
        self.wave_sum(14)
        a(f"v_mul_f32 v{T}, {f2u(1/512.):#x}, v14")
        for k in range(8): a(f"v_sub_f32 v{u+k}, v{u+k}, v{T}")
        a(f"v_mul_f32 v14, v{u}, v{u}\nv_mul_f32 v15, v{u+1}, v{u+1}")
        for k in range(2, 8): a(f"v_fmac_f32 v{14+(k&1)}, v{u+k}, v{u+k}")
        a(f"v_add_f32 v14, v14, v15")
        self.wave_sum(14)
        a(f"v_mov_b32 v15, {f2u(1e-5):#x}\nv_fmac_f32 v15, {f2u(1/512.):#x}, v14\nv_rsq_f32 v15, v15\nv_mov_b32 v{T+2}, 0\nv_mov_b32 v{T+3}, s{sTAG}")
        a(f"v_mul_f32 v{T+1}, {f2u(LOG2E):#x}, v15")
        a(f"v_cmp_eq_u32 vcc, 0, v{vL}\nv_mov_b32 v14, {OOB}\nv_mov_b32 v15, 0\nv_cndmask_b32 v14, v14, v15, vcc")
        a(f"buffer_store_dwordx4 v[{T}:{T+3}], v14, s[{S_WS}:{S_WS+3}], s{sE} offen sc1"); vm.issue("statst")
        vm.wait("bias")
        a(f"v_lshlrev_b32 v15, 16, v{T+5}\nv_mul_f32 v15, {f2u(LOG2E):#x}, v15\nv_lshlrev_b32 v14, 2, v{T+6}\nv_add_u32 v14, {L_BT}, v14")
        a(f"v_cmp_gt_u32 vcc, 192, v{T+6}\ns_and_saveexec_b64 s[{sEX}:{sEX+1}], vcc\nds_write_b32 v14, v15\ns_mov_b64 exec, s[{sEX}:{sEX+1}]")

    def wave_sum(self, v):
        a = self.a
        for m in ("quad_perm:[1,0,3,2]", "quad_perm:[2,3,0,1]", "row_half_mirror", "row_mirror"):
            a(f"s_nop 1\nv_add_f32_dpp v{v}, v{v}, v{v} {m} row_mask:0xf bank_mask:0xf")
        a(f"s_nop 0\nv_readlane_b32 s{sT0}, v{v}, 0\nv_readlane_b32 s{sT1}, v{v}, 16\nv_readlane_b32 s{sT2}, v{v}, 32\nv_readlane_b32 s{sT3}, v{v}, 48")
        a(f"v_mov_b32 v{v}, s{sT0}\nv_add_f32 v{v}, s{sT1}, v{v}\ns_nop 0\nv_add_f32 v{v}, s{sT2}, v{v}\nv_add_f32 v{v}, s{sT3}, v{v}")

    def reads(self, n):
        a = self.a; t, i = n // 4, n % 4; slot = t % 3; b = n & 1
        a(f"ds_read_b128 v[{XF+4*b}:{XF+4*b+3}], v{vXA+i} offset:{slot*16384}")
        for j in range(3):
            for rd in range(2):
                r = WF + 12*b + 4*j + 2*rd
                a(f"ds_read_b64_tr_b16 v[{r}:{r+1}], v{vWA+i} offset:{slot*24576 + 512*rd + 1024*j}")
    def mfmas(self, n, att):
        a = self.a; b = n & 1
        x = f"v[{XF+4*b}:{XF+4*b+3}]"
        for j in range(3):
            w = f"v[{WF+12*b+4*j}:{WF+12*b+4*j+3}]"
            acc = f"v[{ACC+16*j}:{ACC+16*j+15}]"
            c = "0" if n == 0 else acc
            if att and j > 0: a(f"v_mfma_f32_32x32x16_bf16 {acc}, {x}, {w}, {c}")
            else:             a(f"v_mfma_f32_32x32x16_bf16 {acc}, {w}, {x}, {c}")

    def colsum_partial(self):
        a = self.a; T = TMP + 8
        a(f"s_mov_b32 s{sT0}, 0x3f803f80")
        for j in range(3): a(f"v_mov_b32 v{T+j}, 0")
        for k in range(4):
            for j in range(3): a(f"v_dot2c_f32_bf16 v{T+j}, s{sT0}, v{WF+4*j+k}")
        a(f"s_mul_i32 s{sT1}, s{sR}, 1536\ns_lshl_b32 s{sT2}, s{sC}, 7\ns_add_u32 s{sT1}, s{sT1}, s{sT2}\ns_add_u32 s{sT1}, s{sT1}, {L_KV}")
        a(f"v_and_b32 v14, 31, v{vL}\nv_lshl_add_u32 v14, v14, 2, s{sT1}\nv_lshrrev_b32 v15, 5, v{vL}\nv_mul_u32_u24 v15, 768, v15\nv_add_u32 v14, v14, v15")
        a(f"ds_write2st64_b32 v14, v{T}, v{T+1} offset1:1\nds_write_b32 v14, v{T+2} offset:512")

    def colsum_publish(self, vm, sfx):
        a = self.a; T = TMP + 8; U = B2R
        a(f"s_mov_b32 s{sT0}, {OOB}\ns_cmp_lg_u32 s{sW}, 0\ns_cbranch_scc1 L_nocsp{sfx}")
        a(f"v_lshlrev_b32 v14, 2, v{vL}\nv_add_u32 v14, {L_KV}, v14")
        for k in range(0, 24, 2): a(f"ds_read2st64_b32 v[{U+k}:{U+k+1}], v14 offset0:{k} offset1:{k+1}")
        a(f"v_mov_b32 v{T+3}, s{sTAG}")
        a(f"s_lshl_b32 s{sT0}, s{sG}, 4\ns_add_u32 s{sT0}, s{sT0}, s{sRB}\ns_lshl_b32 s{sT0}, s{sT0}, 10\ns_add_u32 s{sT0}, s{sT0}, {WS_CSP}")
        a("s_waitcnt lgkmcnt(0)")
        for sl in range(1, 7):
            for u in range(3): a(f"v_add_f32 v{U+u}, v{U+u}, v{U+3*sl+u}")
        for u in range(3): a(f"v_add_f32 v{T+u}, v{U+u}, v{U+21+u}")
        a.label(f"L_nocsp{sfx}")
        a(f"buffer_store_dwordx4 v[{T}:{T+3}], v{vL16}, s[{S_WS}:{S_WS+3}], s{sT0} offen sc1"); vm.issue("cspst")

    def gather_addr(self):
        a = self.a
        a(f"s_lshl_b32 s{sT4}, s{sRB}, 2\ns_add_u32 s{sT4}, s{sT4}, s{sR}\ns_lshl_b32 s{sT4}, s{sT4}, 9\ns_add_u32 s{sT4}, s{sT4}, {WS_STATS}")
        a(f"s_and_b32 s{sT5}, s{sRB}, 8\ns_lshl4_add_u32 s{sT5}, s{sG}, s{sT5}\ns_lshl3_add_u32 s{sT5}, s{sT5}, s{sW}\ns_lshl_b32 s{sT5}, s{sT5}, 7\ns_add_u32 s{sT5}, s{sT5}, {WS_CSP}")
        a(f"v_and_b32 v15, 0x1f0, v{vL16}\nv_lshrrev_b32 v14, 3, v{vL}\nv_lshlrev_b32 v14, 10, v14\nv_and_or_b32 v14, v{vL16}, s{sT0}, v14".replace("v_lshrrev", f"s_movk_i32 s{sT0}, 0x70\nv_lshrrev", 1))
    def gather_issue(self, vm):
        a = self.a
        a(f"buffer_load_dwordx4 v[{vG0}:{vG0+3}], v15, s[{S_WS}:{S_WS+3}], s{sT4} offen sc1"); vm.issue("gath")
        a(f"buffer_load_dwordx4 v[{vG1}:{vG1+3}], v14, s[{S_WS}:{S_WS+3}], s{sT5} offen sc1"); vm.issue("gath")
    def gather_check(self, vm, sfx):
        a = self.a
        vm.wait("gath")
        a(f"s_mov_b32 s{sSPIN}, 0")
        a.label(f"L_gchk{sfx}")
        a(f"v_cmp_ne_u32 vcc, s{sTAG}, v{vG0+3}\nv_cmp_ne_u32 s[{sEX}:{sEX+1}], s{sTAG}, v{vG1+3}\ns_nop 1\ns_or_b64 vcc, vcc, s[{sEX}:{sEX+1}]")
        a(f"s_cbranch_vccz L_gok{sfx}")
        a(f"s_add_u32 s{sSPIN}, s{sSPIN}, 1\ns_cmp_gt_u32 s{sSPIN}, 0x8000\ns_cbranch_scc1 L_gok{sfx}")
        self.gather_addr()
        v2 = VM(a); self.gather_issue(v2)
        a(f"s_waitcnt vmcnt(0)\ns_branch L_gchk{sfx}")
        a.label(f"L_gok{sfx}")
        a(f"v_mov_b32 v{vM}, v{vG0}\nv_mov_b32 v{vR}, v{vG0+1}")
        T = TMP + 8
        for k in range(3): a(f"v_add_f32_dpp v{vG1+k}, v{vG1+k}, v{vG1+k} row_ror:8 row_mask:0xf bank_mask:0xf")
        for op in ("v_permlane16_swap_b32", "v_permlane32_swap_b32"):
            for k in range(3): a(f"v_mov_b32 v{T+k}, v{vG1+k}")
            a("s_nop 0")
            for k in range(3): a(f"{op} v{T+k}, v{vG1+k}")
            a("s_nop 0")
            for k in range(3): a(f"v_add_f32 v{vG1+k}, v{vG1+k}, v{T+k}")
        a(f"s_lshl_b32 s{sT0}, s{sW}, 5\ns_add_u32 s{sT0}, s{sT0}, {L_CS}\nv_lshl_add_u32 v14, v{vL}, 2, s{sT0}\ns_mov_b64 exec, 0xff")
        a(f"ds_write2st64_b32 v14, v{vG1}, v{vG1+1} offset1:1\nds_write_b32 v14, v{vG1+2} offset:512\ns_mov_b64 exec, -1")
        a(f"s_lshl_b32 s{sT0}, s{sR}, 7\ns_add_u32 s{sT0}, s{sT0}, {L_MT}\nv_and_b32 v14, 31, v{vL}\nv_lshl_add_u32 v14, v14, 2, s{sT0}")
        a(f"ds_write_b32 v14, v{vM}\nds_write_b32 v14, v{vR} offset:512")

    def kloop(self, vm, att):
        a = self.a; sfx = "A" if att else "M"
        for t in range(8):
            vm.wait(f"st{t}", lgkm=0)
            a("s_barrier")
            self.stamp(2 + t)
            for i in range(4):
                n = 4*t + i
                self.reads(n)
                if t == 0 and i == 0:
                    continue
                if i > 0:
                    a("s_waitcnt lgkmcnt(7)")
                self.mfmas(n - 1, att)
                if t == 0 and i == 1: self.colsum_partial()
                if t + 2 < 8:
                    if i == 0 or (t == 0 and i == 1): self.dma_stage(vm, t + 2, 0)
                    if i == 1 and t > 0 or (t == 0 and i == 2): self.dma_stage(vm, t + 2, 1)
                else:
                    st = {6: [[0, 1], [2], [3], [4]], 7: [[5, 6], [7, 8], [9, 10], [11, 12]]}[t][i]
                    for s in st: self.b2_dma(vm, s)
                if t == 0 and i == 3: self.row_stats(vm)
                if t == 1 and i == 2: self.colsum_publish(vm, sfx)
                if t == 4 and i == 2: self.gather_addr(); self.gather_issue(vm)
                if t == 6 and i == 2: self.gather_check(vm, sfx)
        a("s_waitcnt lgkmcnt(0)")
        self.mfmas(31, att)
        a("s_barrier")
        self.stamp(10)
        for s in range(13, 18):
            if att and s in (15, 16): self.b2_dma(vm, s, defer=True)
            else: self.b2_dma(vm, s)

    def consts(self):
        a = self.a
        T = TMP
        a(f"v_mov_b32 v{T}, 2.0\nv_mov_b32 v{T+2}, {f2u(-2*LN2):#x}\nv_mov_b32 v{T+4}, {f2u(LN2):#x}\nv_mov_b32 v{T+6}, 1.0\nv_mov_b32 v{T+8}, {f2u(1e-6):#x}")

    def a2_store_base(self):
        a = self.a
        a(f"s_lshl_b32 s{sA2B}, s{sRB}, 2\ns_add_u32 s{sA2B}, s{sA2B}, s{sR}\ns_mul_i32 s{sA2B}, s{sA2B}, {A2_RT}\ns_add_u32 s{sA2B}, s{sA2B}, {WS_A2}")

    def table_reads(self, dst, base, j):
        for q in range(4):
            self.a(f"ds_read_b128 v[{dst+4*q}:{dst+4*q+3}], v14 offset:{base - L_CSP + 256*j + 32*q}")

    def epi_mlp(self, vm):
        a = self.a; T = TMP
        CS, BB, U = 64, 80, 96
        self.consts(); self.a2_store_base()
        a(f"v_lshrrev_b32 v14, 5, v{vL}\ns_lshl_b32 s{sT0}, s{sC}, 7\ns_add_u32 s{sT0}, s{sT0}, {L_CSP}\nv_lshl_add_u32 v14, v14, 4, s{sT0}")
        a(f"v_mul_f32 v{T+10}, v{vM}, v{vR}\nv_mov_b32 v{T+12}, v{vR}")
        a(f"s_add_u32 s{sT1}, s{sC0}, s{sC}\ns_lshl_b32 s{sT1}, s{sT1}, 11\ns_add_u32 s{sA2B}, s{sA2B}, s{sT1}")
        for j in range(3):
            self.table_reads(CS, L_CS, j); self.table_reads(BB, L_BT, j)
            A = ACC + 16*j
            a("s_waitcnt lgkmcnt(0)")
            P = range(0, 16, 2)
            for k in P: a(f"v_pk_fma_f32 v[{CS+k}:{CS+k+1}], v[{T+10}:{T+11}], v[{CS+k}:{CS+k+1}], v[{BB+k}:{BB+k+1}] op_sel_hi:[0,1,1] neg_lo:[1,0,0] neg_hi:[1,0,0]")
            for k in P: a(f"v_pk_fma_f32 v[{A+k}:{A+k+1}], v[{A+k}:{A+k+1}], v[{T+12}:{T+13}], v[{CS+k}:{CS+k+1}] op_sel_hi:[1,0,1]")
            for k in range(16): a(f"v_exp_f32 v{U+k}, v{A+k}")
            for k in P: a(f"v_pk_add_f32 v[{CS+k}:{CS+k+1}], v[{U+k}:{U+k+1}], v[{T}:{T+1}] op_sel_hi:[1,0]")
            for k in P: a(f"v_pk_fma_f32 v[{U+k}:{U+k+1}], v[{U+k}:{U+k+1}], v[{CS+k}:{CS+k+1}], v[{T}:{T+1}] op_sel_hi:[1,1,0]")
            for k in range(16): a(f"v_rcp_f32 v{U+k}, v{U+k}")
            for k in P: a(f"v_pk_fma_f32 v[{U+k}:{U+k+1}], v[{U+k}:{U+k+1}], v[{T+2}:{T+3}], v[{T+4}:{T+5}] op_sel_hi:[1,0,0]")
            for k in P: a(f"v_pk_mul_f32 v[{U+k}:{U+k+1}], v[{U+k}:{U+k+1}], v[{A+k}:{A+k+1}]")
            for k in P: a(f"v_cvt_pk_bf16_f32 v{A+k//2}, v{U+k}, v{U+k+1}")
            if j == 2:
                a(f"s_cmp_ge_u32 s{sG}, 11\ns_cselect_b32 s{sT0}, s{sC}, 0\ns_cmp_eq_u32 s{sT0}, 1\ns_cselect_b32 s{sA2B}, {OOB}, s{sA2B}")
            a(f"s_add_u32 s{sT0}, s{sA2B}, {4096*j}")
            a(f"buffer_store_dwordx4 v[{A}:{A+3}], v{vL16}, s[{S_WS}:{S_WS+3}], s{sT0} offen sc1"); vm.issue("act")
            a(f"buffer_store_dwordx4 v[{A+4}:{A+7}], v{vL16}, s[{S_WS}:{S_WS+3}], s{sT0} offen offset:1024 sc1"); vm.issue("act")
        self.stamp(11)
        self.park_b2(vm, "act")
        self.flag_store(vm, 0)
        for s in range(18, 30): self.b2_dma(vm, s)

    def flag_store(self, vm, off):
        a = self.a
        a(f"s_lshl_b32 s{sT0}, s{sRB}, 4\ns_add_u32 s{sT0}, s{sT0}, s{sG}\ns_lshl_b32 s{sT0}, s{sT0}, 8\ns_add_u32 s{sT0}, s{sT0}, {WS_FLAG + off}")
        a(f"s_cmp_eq_u32 s{sW}, 0\ns_cselect_b32 s{sT0}, s{sT0}, {OOB}")
        a(f"v_cmp_eq_u32 vcc, 0, v{vL}\nv_mov_b32 v14, {OOB}\nv_mov_b32 v15, 0\nv_cndmask_b32 v14, v14, v15, vcc\nv_mov_b32 v15, s{sTAG}")
        a(f"buffer_store_dword v15, v14, s[{S_WS}:{S_WS+3}], s{sT0} offen sc1"); vm.issue("flag")

    def park_b2(self, vm, drain):
        a = self.a
        vm.wait(*[f"b2_{s}" for s in range(NREG_STEPS)])
        a("s_barrier")
        for s in range(NREG_STEPS):
            self.b2_reads(s, B2R + 8*s)
            if s > 1: a("s_waitcnt lgkmcnt(8)")
        vm.wait(drain, lgkm=0)
        a("s_barrier")

    def b2_reads(self, s, dst):
        rnd = round_of(s); hi, lo = rnd // 8, rnd % 8
        for cc in range(2):
            for rd in range(2):
                r = dst + 4*cc + 2*rd
                self.a(f"ds_read_b64_tr_b16 v[{r}:{r+1}], v{vB2A + 2*hi + cc} offset:{8192*lo + 1024*rd}")

    def poll(self, name, nl, base_expr_emit, lane_shift):
        a = self.a
        a(f"s_cmp_lg_u32 s{sW}, 0\ns_cbranch_scc1 L_pd{name}")
        base_expr_emit()
        a(f"v_min_u32 v14, {nl-1}, v{vL}\nv_lshlrev_b32 v14, {lane_shift}, v14\ns_mov_b32 s{sSPIN}, 0")
        a.label(f"L_pl{name}")
        a(f"buffer_load_dword v15, v14, s[{S_WS}:{S_WS+3}], s{sT0} offen sc1\ns_add_u32 s{sSPIN}, s{sSPIN}, 1\ns_waitcnt vmcnt(0)")
        a(f"v_cmp_ne_u32 vcc, s{sTAG}, v15\ns_cmp_gt_u32 s{sSPIN}, 0x8000\ns_cbranch_scc1 L_pd{name}\ns_cbranch_vccnz L_pl{name}")
        a.label(f"L_pd{name}")
        a("s_barrier")

    def phi(self, A, Y, E):
        a = self.a; T = TMP; P = range(0, 16, 2)
        for k in range(16): a(f"v_exp_f32 v{E+k}, v{Y+k}")
        for k in P: a(f"v_pk_fma_f32 v[{Y+k}:{Y+k+1}], v[{Y+k}:{Y+k+1}], v[{T+4}:{T+5}], v[{T+6}:{T+7}] op_sel_hi:[1,0,0]")
        for k in range(16): a(f"v_med3_f32 v{E+k}, v{Y+k}, v{E+k}, 1.0")
        for k in P: a(f"v_pk_add_f32 v[{E+k}:{E+k+1}], v[{E+k}:{E+k+1}], v[{T+8}:{T+9}] op_sel_hi:[1,0]")
        for k in P: a(f"v_cvt_pk_bf16_f32 v{A+k//2}, v{E+k}, v{E+k+1}")

    def kv_write(self, KV, Z):
        a = self.a; T = TMP
        a(f"ds_write_b128 v{T+14}, v[{KV}:{KV+3}]\nds_write_b128 v{T+14}, v[{KV+4}:{KV+7}] offset:1024")
        a(f"s_mov_b32 exec_lo, 0x00010001\ns_mov_b32 exec_hi, 0x00010001")
        a(f"ds_write_b128 v{T+15}, v[{Z}:{Z+3}]\nds_write_b128 v{T+15}, v[{Z+4}:{Z+7}] offset:16\ns_mov_b64 exec, -1")
    def kv_read(self, D):
        a = self.a
        a(f"s_lshl_b32 s{sT0}, s{sC}, 13\ns_add_u32 s{sT0}, s{sT0}, {L_SCR}\nv_add_u32 v14, s{sT0}, v{vL16}")
        a(f"s_lshl_b32 s{sT0}, s{sC}, 9\ns_add_u32 s{sT0}, s{sT0}, {L_KV}\nv_and_b32 v15, 48, v{vL}\nv_lshl_add_u32 v15, v15, 1, s{sT0}")
        for r in range(4):
            B = D + 16*r
            a(f"ds_read_b128 v[{B}:{B+3}], v14 offset:{2048*r}\nds_read_b128 v[{B+4}:{B+7}], v14 offset:{2048*r+1024}")
            a(f"ds_read_b128 v[{B+8}:{B+11}], v15 offset:{128*r}\nds_read_b128 v[{B+12}:{B+15}], v15 offset:{128*r+16}")
        for r in range(1, 4):
            a(f"s_waitcnt lgkmcnt({12-4*r})")
            for k in range(0, 16, 2): a(f"v_pk_add_f32 v[{D+k}:{D+k+1}], v[{D+k}:{D+k+1}], v[{D+16*r+k}:{D+16*r+k+1}]")

    def epi_att(self, vm):
        a = self.a; T = TMP; P = range(0, 16, 2)
        MT, RT, U = 64, 80, 96
        Q, K, V = ACC, ACC + 16, ACC + 32
        msk = f"s[{sMASK}:{sMASK+1}]"
        self.consts(); self.a2_store_base()
        a(f"v_lshrrev_b32 v14, 5, v{vL}\ns_lshl_b32 s{sT0}, s{sR}, 7\ns_add_u32 s{sT0}, s{sT0}, {L_CSP}\nv_lshl_add_u32 v14, v14, 4, s{sT0}")
        self.table_reads(MT, L_MT, 0); self.table_reads(RT, L_RT, 0)
        a(f"v_and_b32 v15, 31, v{vL}\ns_lshl_b32 s{sT0}, s{sC}, 7\ns_add_u32 s{sT0}, s{sT0}, {L_CS}\nv_lshl_add_u32 v15, v15, 2, s{sT0}")
        a(f"ds_read_b32 v{T+10}, v15 offset:256\nds_read_b32 v{T+12}, v15 offset:512")
        a(f"s_lshl_b32 s{sT0}, s{sW}, 11\ns_add_u32 s{sT0}, s{sT0}, {L_SCR}\nv_add_u32 v{T+14}, s{sT0}, v{vL16}")
        a(f"s_lshl_b32 s{sT0}, s{sW}, 7\ns_add_u32 s{sT0}, s{sT0}, {L_KV}\nv_lshl_add_u32 v{T+15}, v{vL}, 1, s{sT0}")
        a("s_waitcnt lgkmcnt(0)")
        for (A, cs) in ((K, T+10), (V, T+12)):
            for k in P: a(f"v_pk_fma_f32 v[{A+k}:{A+k+1}], v[{MT+k}:{MT+k+1}], v[{cs}:{cs+1}], v[{A+k}:{A+k+1}] op_sel_hi:[1,0,1] neg_lo:[1,0,0] neg_hi:[1,0,0]")
            for k in P: a(f"v_pk_mul_f32 v[{A+k}:{A+k+1}], v[{A+k}:{A+k+1}], v[{RT+k}:{RT+k+1}]")
        a(f"v_lshrrev_b32 v14, 5, v{vL}\ns_lshl_b32 s{sT0}, s{sC}, 7\ns_add_u32 s{sT0}, s{sT0}, {L_CSP}\nv_lshl_add_u32 v14, v14, 4, s{sT0}")
        self.table_reads(MT, L_CS, 0)
        self.phi(K, K, U)
        for k in P: a(f"v_cvt_pk_bf16_f32 v{V+k//2}, v{V+k}, v{V+k+1}")
        a(f"v_mov_b32 v15, 0x3f803f80")
        B0, B1 = K + 8, V + 8
        for k in range(8): a(f"v_cndmask_b32 v{B0+k}, v15, v{V+k}, {msk}")
        for k in range(8): a(f"v_cndmask_b32 v{B1+k}, v{V+k}, v15, {msk}")
        D0, D1 = RT, U
        a("s_nop 1")
        a(f"v_mfma_f32_32x32x16_bf16 v[{D0}:{D0+15}], v[{K}:{K+3}], v[{B0}:{B0+3}], 0")
        a(f"v_mfma_f32_32x32x16_bf16 v[{D1}:{D1+15}], v[{K}:{K+3}], v[{B1}:{B1+3}], 0")
        a(f"v_mfma_f32_32x32x16_bf16 v[{D0}:{D0+15}], v[{K+4}:{K+7}], v[{B0+4}:{B0+7}], v[{D0}:{D0+15}]")
        a(f"v_mfma_f32_32x32x16_bf16 v[{D1}:{D1+15}], v[{K+4}:{K+7}], v[{B1+4}:{B1+7}], v[{D1}:{D1+15}]")
        a(f"v_mov_b32 v{T+10}, v{vM}\nv_mov_b32 v{T+12}, v{vR}\ns_waitcnt lgkmcnt(0)")
        for k in P: a(f"v_pk_fma_f32 v[{Q+k}:{Q+k+1}], v[{T+10}:{T+11}], v[{MT+k}:{MT+k+1}], v[{Q+k}:{Q+k+1}] op_sel_hi:[0,1,1] neg_lo:[1,0,0] neg_hi:[1,0,0]")
        for k in P: a(f"v_pk_mul_f32 v[{Q+k}:{Q+k+1}], v[{Q+k}:{Q+k+1}], v[{T+12}:{T+13}] op_sel_hi:[1,0]")
        for k in range(8): a(f"v_cndmask_b32 v{K+k}, v{D1+8+k}, v{D0+k}, {msk}")
        for k in range(8): a(f"v_cndmask_b32 v{K+8+k}, v{D0+k}, v{D1+8+k}, {msk}")
        self.kv_write(K, K + 8)
        a("s_waitcnt lgkmcnt(0)\ns_barrier")
        a(f"s_lshl_b32 s{sT1}, s{sG}, 1\ns_add_u32 s{sT1}, s{sT1}, s{sC}\ns_lshl_b32 s{sT1}, s{sT1}, 15\ns_add_u32 s{sT1}, s{sT1}, {WS_KVP}")
        a(f"s_lshl_b32 s{sT2}, s{sRB}, 11\ns_add_u32 s{sT2}, s{sT2}, s{sT1}")
        a(f"s_cmp_lg_u32 s{sR}, 0\ns_cbranch_scc1 L_nokvp")
        self.kv_read(B2R)
        for k in P: a(f"v_cvt_pk_bf16_f32 v{MT+k//2}, v{B2R+k}, v{B2R+k+1}")
        a(f"v_and_b32 v14, 15, v{vL}\nv_cmp_eq_u32 vcc, 0, v14\nv_mov_b32 v14, {OOB}\nv_add_u32 v15, 1024, v{vL}\nv_cndmask_b32 v14, v14, v15, vcc")
        a(f"buffer_store_dwordx4 v[{MT}:{MT+3}], v{vL16}, s[{S_WS}:{S_WS+3}], s{sT2} offen sc1")
        a(f"buffer_store_dwordx4 v[{MT+4}:{MT+7}], v14, s[{S_WS}:{S_WS+3}], s{sT2} offen sc1")
        a.label("L_nokvp")
        self.phi(Q, Q, U)
        a("s_waitcnt vmcnt(0) lgkmcnt(0)\ns_barrier"); vm.drained()
        self.flag_store(vm, 128)
        self.stamp(11)
        self.park_b2(vm, "none")
        for s in range(18, 24): self.b2_dma(vm, s)
        def base():
            a(f"s_lshl_b32 s{sT0}, s{sG}, 8\ns_add_u32 s{sT0}, s{sT0}, {WS_FLAG + 128}")
        self.poll("kv", 16, base, 12)
        self.stamp(12)
        a(f"s_lshl_b32 s{sT2}, s{sR}, 13\ns_add_u32 s{sT2}, s{sT2}, s{sT1}\nv_and_b32 v14, 48, v{vL}\nv_add_u32 v14, 1024, v14")
        G = 64
        for p in range(4):
            a(f"s_add_u32 s{sT3}, s{sT2}, {2048*p}")
            a(f"buffer_load_dwordx4 v[{G+8*p}:{G+8*p+3}], v{vL16}, s[{S_WS}:{S_WS+3}], s{sT3} offen sc1"); vm.issue("kvg")
            a(f"buffer_load_dwordx4 v[{G+8*p+4}:{G+8*p+7}], v14, s[{S_WS}:{S_WS+3}], s{sT3} offen sc1"); vm.issue("kvg")
        for s in range(24, 30): self.b2_dma(vm, s)
        vm.wait("kvg")
        S_ = U
        for k in range(8):
            a(f"v_lshlrev_b32 v{S_+2*k}, 16, v{G+k}\nv_and_b32 v{S_+2*k+1}, 0xffff0000, v{G+k}")
        for p in range(1, 4):
            for k in range(8):
                a(f"v_lshlrev_b32 v{K+2*k}, 16, v{G+8*p+k}\nv_and_b32 v{K+2*k+1}, 0xffff0000, v{G+8*p+k}")
            for k in range(8):
                a(f"v_pk_add_f32 v[{S_+2*k}:{S_+2*k+1}], v[{S_+2*k}:{S_+2*k+1}], v[{K+2*k}:{K+2*k+1}]")
        self.kv_write(S_, S_ + 8)
        a("s_waitcnt lgkmcnt(0)\ns_barrier")
        D = 48
        self.kv_read(D)
        for k in P: a(f"v_cvt_pk_bf16_f32 v{K+k//2}, v{D+k}, v{D+k+1}")
        for k in range(4): a(f"v_cndmask_b32 v{K+8+k}, v{K+4+k}, v{K+k}, {msk}")
        for k in range(4): a(f"v_cndmask_b32 v{K+12+k}, v{K+k}, v{K+4+k}, {msk}")
        O0, O1 = RT, U
        a("s_nop 1")
        a(f"v_mfma_f32_32x32x16_bf16 v[{O0}:{O0+15}], v[{K+8}:{K+11}], v[{Q}:{Q+3}], 0")
        a(f"v_mfma_f32_32x32x16_bf16 v[{O1}:{O1+15}], v[{K+12}:{K+15}], v[{Q+4}:{Q+7}], 0")
        a(f"s_lshl_b32 s{sT0}, s{sG}, 1\ns_add_u32 s{sT0}, s{sT0}, s{sC}\ns_lshl_b32 s{sT0}, s{sT0}, 11\ns_add_u32 s{sT0}, s{sT0}, {88*1024}\ns_add_u32 s{sT0}, s{sT0}, s{sA2B}")
        a("s_nop 7")
        a(f"v_add_f32 v{T+10}, v{T+8}, v{O0+8}\nv_add_f32 v{T+12}, v{T+8}, v{O1}\nv_rcp_f32 v{T+10}, v{T+10}\nv_rcp_f32 v{T+12}, v{T+12}\ns_nop 0")
        a(f"v_mul_f32 v{T+10}, v{T+4}, v{T+10}\nv_mul_f32 v{T+12}, v{T+4}, v{T+12}")
        for k in range(0, 8, 2): a(f"v_pk_mul_f32 v[{O0+k}:{O0+k+1}], v[{O0+k}:{O0+k+1}], v[{T+10}:{T+11}] op_sel_hi:[1,0]")
        for k in range(8, 16, 2): a(f"v_pk_mul_f32 v[{O1+k}:{O1+k+1}], v[{O1+k}:{O1+k+1}], v[{T+12}:{T+13}] op_sel_hi:[1,0]")
        for k in range(0, 8, 2): a(f"v_cvt_pk_bf16_f32 v{K+k//2}, v{O0+k}, v{O0+k+1}")
        for k in range(8, 16, 2): a(f"v_cvt_pk_bf16_f32 v{K+k//2}, v{O1+k}, v{O1+k+1}")
        a(f"buffer_store_dwordx4 v[{K}:{K+3}], v{vL16}, s[{S_WS}:{S_WS+3}], s{sT0} offen sc1"); vm.issue("o")
        a(f"buffer_store_dwordx4 v[{K+4}:{K+7}], v{vL16}, s[{S_WS}:{S_WS+3}], s{sT0} offen offset:1024 sc1"); vm.issue("o")
        vm.wait("o")
        a("s_barrier")
        self.flag_store(vm, 0)
        self.b2_late(vm, 15); self.b2_late(vm, 16)

    def phase2(self):
        a = self.a
        vm = VM(a)
        self.stamp(13)
        a(f"s_cmp_lg_u32 s2, 0\ns_cbranch_scc1 L_noep\ns_cmp_lt_u32 s{sW}, 4\ns_cbranch_scc0 L_noep")
        a(f"v_lshl_add_u32 v14, s{sW}, 6, v{vL}\nv_lshlrev_b32 v14, 7, v14\ns_mov_b32 s{sSPIN}, 0\ns_mov_b32 s{sT0}, {WS_STATS}")
        a.label("L_eppoll")
        a(f"buffer_load_dword v15, v14, s[{S_WS}:{S_WS+3}], s{sT0} offen offset:12 sc1\ns_add_u32 s{sSPIN}, s{sSPIN}, 1\ns_waitcnt vmcnt(0)")
        a(f"v_cmp_ne_u32 vcc, s{sTAG}, v15\ns_cmp_gt_u32 s{sSPIN}, 0x8000\ns_cbranch_scc1 L_noep\ns_cbranch_vccnz L_eppoll")
        a.label("L_noep")
        a(f"v_lshrrev_b32 v14, 3, v{vL}\nv_and_b32 v15, 7, v{vL}\nv_lshlrev_b32 v{vXO}, 10, v14\nv_lshl_add_u32 v{vXO}, v15, 4, v{vXO}")
        a(f"s_lshl_b32 s{sT5}, s{sRT}, 3\ns_add_u32 s{sT5}, s{sT5}, s{sW}\ns_lshl_b32 s{sT5}, s{sT5}, 13\ns_lshl_b32 s{sT0}, s{sCT}, 7\ns_add_u32 s{sXB}, s{sT5}, s{sT0}")
        a(f"buffer_load_dwordx4 v[{XRES}:{XRES+3}], v{vXO}, s[{S_X}:{S_X+3}], s{sXB} offen")
        a(f"s_lshl_b32 s{sT0}, s{sW}, 3\nv_add_u32 v14, s{sT0}, v14\nv_mul_u32_u24 v{vRR}, {RED_PITCH}, v14\nv_lshl_add_u32 v{vRR}, v15, 5, v{vRR}")
        a(f"s_and_b32 s{sT1}, s{sW}, 1\ns_lshl_b32 s{sT0}, s{sT1}, 5\nv_and_b32 v14, 31, v{vL}\nv_add_u32 v14, s{sT0}, v14\nv_mul_u32_u24 v{vRW}, {RED_PITCH}, v14")
        a(f"v_lshrrev_b32 v14, 5, v{vL}\nv_lshl_add_u32 v{vRW}, v14, 4, v{vRW}\ns_mul_i32 s{sT0}, s{sKQ}, {RED_Q}\nv_add_u32 v{vRW}, s{sT0}, v{vRW}")
        a(f"s_lshl_b32 s{sA2B}, s{sRT}, 1\ns_add_u32 s{sA2B}, s{sA2B}, s{sT1}\ns_mul_i32 s{sA2B}, s{sA2B}, {A2_RT}\ns_add_u32 s{sA2B}, s{sA2B}, {WS_A2}")
        a(f"s_mul_i32 s{sA2}, s{sKQ}, 22\ns_add_u32 s{sA2}, s{sA2}, s{sROT}\ns_sub_u32 s{sA2W}, 22, s{sROT}")
        def base_act():
            a(f"s_lshr_b32 s{sT0}, s{sRT}, 1\ns_lshl_b32 s{sT0}, s{sT0}, 12\ns_add_u32 s{sT0}, s{sT0}, {WS_FLAG + 8*256}")
        self.poll("act", 8, base_act, 8)
        a(f"s_cmp_lg_u32 s2, 0\ns_cbranch_scc1 L_noep2\ns_cmp_lg_u32 s{sW}, 0\ns_cbranch_scc1 L_noep2")
        a(f"v_mov_b32 v14, 0\nv_mov_b32 v15, s{sTAG}\nbuffer_store_dword v15, v14, s[{S_WS}:{S_WS+3}], 0 offen sc1")
        a.label("L_noep2")
        self.stamp(14)
        for i in range(22):
            a(f"s_lshl_b32 s{sT0}, s{sA2}, 10\ns_add_u32 s{sT0}, s{sT0}, s{sA2B}\ns_cmp_ge_u32 s{sA2}, 86\ns_cselect_b32 s{sT0}, {OOB}, s{sT0}")
            a(f"buffer_load_dwordx4 v[{A2R+4*i}:{A2R+4*i+3}], v{vL16}, s[{S_WS}:{S_WS+3}], s{sT0} offen sc1"); vm.issue(f"a{i}")
            a(f"s_sub_u32 s{sA2W}, s{sA2W}, 1\ns_cmp_eq_u32 s{sA2W}, 0\ns_cselect_b32 s{sT1}, -21, 1\ns_add_u32 s{sA2}, s{sA2}, s{sT1}")
        def areg(i): return A2R + 4*(i if i < 22 else i - 22)
        def breg(i): return B2R + 8*i if i < NREG_STEPS else BT + 8*(i & 1)
        def mf(i):
            A, B = areg(i), breg(i)
            for cc in range(2):
                acc = f"v[{ACC+16*cc}:{ACC+16*cc+15}]"
                a(f"v_mfma_f32_32x32x16_bf16 {acc}, v[{B+4*cc}:{B+4*cc+3}], v[{A}:{A+3}], {'0' if i == 0 else acc}")
        PO = self.o.get('poll_o_at', 12)
        for i in range(30):
            if i == PO:
                def base_o():
                    a(f"s_lshr_b32 s{sT0}, s{sRT}, 1\ns_lshl_b32 s{sT0}, s{sT0}, 12\ns_add_u32 s{sT0}, s{sT0}, {WS_FLAG}")
                self.poll("o", 8, base_o, 8)
                self.stamp(15)
                a(f"s_lshl_b32 s{sT0}, s{sKQ}, 13\ns_add_u32 s{sT0}, s{sT0}, s{sA2B}\ns_add_u32 s{sT0}, s{sT0}, {88*1024}")
                for q in range(8):
                    if q == 4: a(f"s_add_u32 s{sT0}, s{sT0}, 4096")
                    a(f"buffer_load_dwordx4 v[{A2R+4*q}:{A2R+4*q+3}], v{vL16}, s[{S_WS}:{S_WS+3}], s{sT0} offen offset:{1024*(q%4)} sc1"); vm.issue(f"a{22+q}")
                self.b2_reads(PO, breg(PO))
            if i + 1 > NREG_STEPS and i + 1 < 30 and i + 1 > PO: self.b2_reads(i + 1, breg(i + 1))
            lg = None
            if i >= NREG_STEPS: lg = 4 if i + 1 < 30 else 0
            vm.wait(f"a{i}", lgkm=lg)
            mf(i)
        self.stamp(16)
        a("s_barrier")
        a("s_nop 7\ns_nop 3")
        for cc in range(2):
            for q in range(4):
                r = ACC + 16*cc + 4*q
                a(f"ds_write_b128 v{vRW}, v[{r}:{r+3}] offset:{128*cc + 32*q}")
        a("s_waitcnt lgkmcnt(0)\ns_barrier")
        R = 64
        for kq in range(4):
            a(f"ds_read_b128 v[{R+8*kq}:{R+8*kq+3}], v{vRR} offset:{RED_Q*kq}\nds_read_b128 v[{R+8*kq+4}:{R+8*kq+7}], v{vRR} offset:{RED_Q*kq+16}")
        X = 100
        for k in range(4):
            a(f"v_lshlrev_b32 v{X+2*k}, 16, v{XRES+k}\nv_and_b32 v{X+2*k+1}, 0xffff0000, v{XRES+k}")
        for kq in range(4):
            a(f"s_waitcnt lgkmcnt({6-2*kq})")
            for k in range(0, 8, 2): a(f"v_pk_add_f32 v[{X+k}:{X+k+1}], v[{X+k}:{X+k+1}], v[{R+8*kq+k}:{R+8*kq+k+1}]")
        for k in range(0, 8, 2): a(f"v_cvt_pk_bf16_f32 v{R+k//2}, v{X+k}, v{X+k+1}")
        a(f"buffer_store_dwordx4 v[{R}:{R+3}], v{vXO}, s[{S_OUT}:{S_OUT+3}], s{sXB} offen")
        if self.stamps:
            a("s_waitcnt vmcnt(0)")
            self.stamp(17); self.rstamp(19)
            a(f"v_writelane_b32 v252, s98, 0\nv_writelane_b32 v252, s96, 18")
            a(f"s_lshl_b32 s{sT0}, s2, 3\ns_add_u32 s{sT0}, s{sT0}, s{sW}\ns_lshl_b32 s{sT0}, s{sT0}, 8\ns_add_u32 s{sT0}, s{sT0}, {WS_STAMP}")
            a(f"v_lshlrev_b32 v14, 2, v{vL}\nbuffer_store_dword v252, v14, s[{S_WS}:{S_WS+3}], s{sT0} offen")

    def build(self):
        a = self.a
        self.prologue()
        vm = VM(a)
        self.stamp(1)
        self.prologue2(vm)
        a(f"s_cmp_lt_u32 s{sG}, 8\ns_cbranch_scc0 L_mlp")
        v1 = vm.copy(); self.kloop(v1, True); self.epi_att(v1)
        a("s_branch L_ph2")
        a.label("L_mlp")
        v2 = vm.copy(); self.kloop(v2, False); self.epi_mlp(v2)
        a.label("L_ph2")
        self.phase2()
        a.label("L_end")
        a("s_endpgm")
        a.label("L_codeend")
        return single(a.text(), 256, 512, LDS_BYTES, 256, 102, 256)

if __name__ == "__main__":
    out = sys.argv[1] if len(sys.argv) > 1 else "k.s"
    stamps = len(sys.argv) > 2 and sys.argv[2] == "stamps"
    open(out, "w").write(Gen(stamps).build())
```

```python
import sys, math, struct
from asmlib import *

def f2u(x): return struct.unpack("<I", struct.pack("<f", x))[0]
LOG2E = 1.4426950408889634
LN2 = 0.6931471805599453

WS_EPOCH = 0
WS_STATS = 0x1000
WS_CSP   = 0x10000
WS_KVP   = 0x60000
WS_FLAG  = 0x100000
WS_A2    = 0x200000
A2_RT    = 120 * 1024
WS_SIZE  = 0x1000000
WS_STAMP = 0xC00000
OOB      = 0x40000000

L_X    = 0
L_W    = 49152
L_MISC = 147456
L_KV   = L_MISC
L_SCR  = 9 * 8192
L_CSP  = L_MISC + 8192
L_CS   = L_CSP + 768
L_BT   = L_CS + 768
L_MT   = L_BT + 768
L_RT   = L_MT + 512
LDS_BYTES = 163840
RED_PITCH = 272
RED_Q = 64 * RED_PITCH

ROUND_OF_STEP = [15, 16, 17, 4, 5, 12, 13, 14, 0, 1, 6, 7, 8, 2, 3, 9, 10, 11]
NREG_STEPS = 12
def round_of(step):
    return ROUND_OF_STEP[step] if step < 18 else ROUND_OF_STEP[step - 18]

S_X, S_W, S_W2, S_WO, S_WS, S_OUT, S_B1 = 24, 28, 32, 36, 40, 44, 48
sW, sR, sC = 52, 53, 54
sRB, sG, sS0 = 55, 56, 57
sCT, sRT, sROT = 58, 59, 60
sTAG = 61
sXO, sWOF, sWSTEP, sWEND = 62, 63, 64, 65
sXB = 66
sPH = 67
sLX, sLW = 68, 69
sB2, sB2W, sB2L, sB2O = 70, 71, 72, 73
sA2, sA2W, sA2B = 74, 75, 76
sT0, sT1, sT2, sT3, sT4, sT5 = 77, 78, 79, 80, 81, 82
sMASK = 84
sEX = 86
sC0 = 88
sKQ = 89
sB2N = 91
sSPIN = 90
sSTAMP = 92
sPITCH = 94
sE = 95
sWD = 83
sWO1, sWO2 = 100, 101

vL = 0
vL16 = 1
vB2D = 2
vB2A = 3
vRW, vRR = 9, 10
vXO = 11
vM, vR = 12, 13
ACC = 16
XF = 64
WF = 72
vXA = 96
vWA = 100
vX0, vX1 = 104, 105
vW0 = 106
vG0 = 112
vG1 = 116
TMP = 120
A2R = 48
B2R = 136
BT = 232
XRES = 248

class VM:
    def __init__(self, a): self.a = a; self.q = []
    def issue(self, tag): self.q.append(tag)
    def count(self, *tags):
        idx = max((i for i, t in enumerate(self.q) if t in tags), default=-1)
        return len(self.q) - 1 - idx if idx >= 0 else None
    def wait(self, *tags, lgkm=None):
        n = self.count(*tags)
        s = []
        if n is not None:
            assert n <= 63, n
            s.append(f"vmcnt({n})")
            self.q = self.q[len(self.q) - n:] if n else []
        if lgkm is not None: s.append(f"lgkmcnt({lgkm})")
        if s: self.a("s_waitcnt " + " ".join(s))
    def drained(self): self.q = []
    def copy(self, a=None):
        v = VM(a or self.a); v.q = list(self.q); return v

class Gen:
    def __init__(self, stamps=False, opts=None):
        self.a = Asm(); self.stamps = stamps; self.nst = 0
        self.o = dict(codepf=True)
        if opts: self.o.update(opts)

    def srd(self, d, p, n):
        self.a(f"s_mov_b32 s{d}, s{p}\ns_mov_b32 s{d+1}, s{p+1}\ns_mov_b32 s{d+2}, {n}\ns_mov_b32 s{d+3}, 0x20000")
    def stamp(self, idx):
        if not self.stamps: return
        self.a(f"s_memtime s[{sSTAMP}:{sSTAMP+1}]\ns_waitcnt lgkmcnt(0)\nv_writelane_b32 v252, s{sSTAMP}, {idx}")
    def rstamp(self, idx):
        if not self.stamps: return
        self.a(f"s_memrealtime s[{sSTAMP}:{sSTAMP+1}]\ns_waitcnt lgkmcnt(0)\nv_writelane_b32 v252, s{sSTAMP}, {idx}")

    def prologue(self):
        a = self.a
        a("s_cmp_ge_u32 s2, 256\ns_cbranch_scc1 L_end")
        a("s_load_dwordx16 s[4:19], s[0:1], 0\ns_load_dwordx4 s[20:23], s[0:1], 64")
        if self.stamps:
            a("v_mov_b32 v252, 0")
            a(f"s_memrealtime s[96:97]\ns_memtime s[98:99]")
        a(f"v_lshrrev_b32 v1, 6, v0\nv_and_b32 v{vL}, 63, v0\nv_readfirstlane_b32 s{sW}, v1")
        a(f"s_and_b32 s{sT0}, s2, 7\ns_lshr_b32 s{sT1}, s2, 3")
        a(f"s_and_b32 s{sT2}, s{sT0}, 1\ns_lshr_b32 s{sT3}, s{sT0}, 1")
        a(f"s_and_b32 s{sT4}, s{sT1}, 7\ns_lshl_b32 s{sRB}, s{sT2}, 3\ns_add_u32 s{sRB}, s{sRB}, s{sT4}")
        a(f"s_lshr_b32 s{sT5}, s{sT1}, 3\ns_lshl_b32 s{sG}, s{sT5}, 2\ns_add_u32 s{sG}, s{sG}, s{sT3}")
        a(f"s_lshl_b32 s{sT5}, s{sT5}, 1\ns_add_u32 s{sS0}, s{sT4}, s{sT5}\ns_and_b32 s{sS0}, s{sS0}, 7")
        a(f"s_and_b32 s{sT4}, s{sT1}, 3\ns_lshl_b32 s{sCT}, s{sT2}, 2\ns_add_u32 s{sCT}, s{sCT}, s{sT4}")
        a(f"s_lshr_b32 s{sT5}, s{sT1}, 2\ns_lshl_b32 s{sRT}, s{sT3}, 3\ns_add_u32 s{sRT}, s{sRT}, s{sT5}")
        a(f"s_mul_i32 s{sROT}, s{sT5}, 3\ns_mul_i32 s{sT4}, s{sT4}, 6\ns_add_u32 s{sROT}, s{sROT}, s{sT4}")
        a(f"s_sub_u32 s{sT4}, s{sROT}, 22\ns_cmp_ge_u32 s{sROT}, 22\ns_cselect_b32 s{sROT}, s{sT4}, s{sROT}")
        a(f"s_and_b32 s{sR}, s{sW}, 3\ns_lshr_b32 s{sC}, s{sW}, 2\ns_lshr_b32 s{sKQ}, s{sW}, 1")
        a(f"s_sub_u32 s{sT0}, s{sG}, 8\ns_min_u32 s{sT1}, s{sT0}, 3\ns_mul_i32 s{sC0}, s{sT0}, 5\ns_add_u32 s{sC0}, s{sC0}, s{sT1}")
        a(f"s_movk_i32 s{sPITCH}, 2752\ns_cmp_lt_u32 s{sG}, 8\ns_cselect_b32 s{sPITCH}, 3072, s{sPITCH}")
        a(f"v_lshlrev_b32 v{vL16}, 4, v{vL}")
        a(f"v_lshrrev_b32 v14, 4, v{vL}\nv_and_b32 v15, 7, v{vL}\nv_xor_b32 v14, v14, v15\nv_lshlrev_b32 v14, 4, v14")
        a(f"v_lshrrev_b32 v15, 3, v{vL}\nv_lshl_add_u32 v{vX0}, v15, 10, v14")
        a(f"v_xor_b32 v{vX1}, 64, v{vX0}\nv_add_u32 v{vX1}, {8192-1024}, v{vX1}")
        a(f"v_lshrrev_b32 v14, 2, v{vL}\nv_and_b32 v14, 4, v14\nv_and_b32 v{vB2D}, 7, v{vL}\nv_xor_b32 v14, v14, v{vB2D}\nv_lshlrev_b32 v14, 4, v14")
        a(f"v_lshl_add_u32 v{vB2D}, v15, 10, v14")
        a(f"v_mad_u32_u24 v{vW0}, v15, s{sPITCH}, v14")
        a(f"s_cmp_ge_u32 s{sG}, 11\ns_cselect_b32 s{sT4}, 64, 128\nv_mov_b32 v{vW0+1}, {OOB}\nv_cmp_gt_u32 vcc, s{sT4}, v14")
        a(f"s_lshl_b32 s{sT0}, s{sG}, 7\ns_lshl_b32 s{sT1}, s{sC0}, 6\ns_add_u32 s{sT1}, s{sT1}, 2048\ns_cmp_lt_u32 s{sG}, 8\ns_cselect_b32 s{sT5}, s{sT0}, s{sT1}")
        a(f"s_cselect_b32 s{sWD}, 0, 896\nv_cndmask_b32 v{vW0+1}, v{vW0+1}, v{vW0}, vcc")
        a(f"s_lshl_b32 s{sXB}, s{sRB}, 17\ns_lshl_b32 s{sT0}, s{sW}, 14\ns_add_u32 s{sXB}, s{sXB}, s{sT0}")
        a(f"s_lshl_b32 s{sWSTEP}, s{sPITCH}, 6\ns_lshl_b32 s{sWEND}, s{sPITCH}, 9")
        a(f"s_lshl_b32 s{sT0}, s{sS0}, 3\ns_add_u32 s{sT0}, s{sT0}, s{sW}\ns_lshl_b32 s{sT0}, s{sT0}, 3\ns_mul_i32 s{sWOF}, s{sT0}, s{sPITCH}")
        a(f"s_add_u32 s{sWOF}, s{sWOF}, s{sT5}")
        a(f"s_mov_b32 s{sPH}, s{sS0}")
        a(f"s_lshl_b32 s{sLX}, s{sW}, 11\ns_mul_i32 s{sLW}, s{sW}, 3072\ns_add_u32 s{sLW}, s{sLW}, {L_W}")
        a("s_waitcnt lgkmcnt(0)")
        self.srd(S_X, 4, 2097152)
        a(f"s_sub_u32 s12, s12, 2048\ns_subb_u32 s13, s13, 0")
        a(f"s_cmp_lt_u32 s{sG}, 8\ns_cselect_b32 s{S_W}, s6, s12\ns_cselect_b32 s{S_W+1}, s7, s13\ns_cselect_b32 s{sT0}, 0, 2048\ns_add_u32 s{S_W+2}, s{sWEND}, s{sT0}\ns_mov_b32 s{S_W+3}, 0x20000")
        self.srd(S_WS, 22, WS_SIZE)

    def dma_stage(self, vm, t, part):
        a = self.a; slot = t % 3
        if part == 0:
            a(f"s_lshl_b32 s{sXO}, s{sPH}, 7\ns_add_u32 m0, s{sLX}, {L_X + slot*16384}\ns_add_u32 s{sXO}, s{sXO}, s{sXB}")
            a(f"buffer_load_dwordx4 v{vX0}, s[{S_X}:{S_X+3}], s{sXO} offen lds"); vm.issue(f"st{t}")
            a(f"buffer_load_dwordx4 v{vX1}, s[{S_X}:{S_X+3}], s{sXO} offen offset:1024 lds"); vm.issue(f"st{t}")
        else:
            a(f"s_add_u32 m0, s{sLW}, {slot*24576}\ns_sub_u32 s{sWO1}, s{sWOF}, s{sWD}")
            a(f"buffer_load_dwordx4 v{vW0}, s[{S_W}:{S_W+3}], s{sWOF} offen lds"); vm.issue(f"st{t}")
            a(f"s_sub_u32 s{sWO2}, s{sWO1}, s{sWD}")
            a(f"buffer_load_dwordx4 v{vW0}, s[{S_W}:{S_W+3}], s{sWO1} offen offset:1024 lds"); vm.issue(f"st{t}")
            a(f"s_add_u32 s{sWOF}, s{sWOF}, s{sWSTEP}")
            a(f"buffer_load_dwordx4 v{vW0+1}, s[{S_W}:{S_W+3}], s{sWO2} offen offset:2048 lds"); vm.issue(f"st{t}")
            if t < 7:
                a(f"s_add_u32 s{sPH}, s{sPH}, 1\ns_and_b32 s{sPH}, s{sPH}, 7\ns_cselect_b32 s{sT0}, 0, s{sWEND}\ns_sub_u32 s{sWOF}, s{sWOF}, s{sT0}")

    def b2_setup(self):
        a = self.a
        a(f"s_mul_i32 s{sB2}, s{sKQ}, 22\ns_add_u32 s{sB2}, s{sB2}, s{sROT}\ns_lshl_b32 s{sB2}, s{sB2}, 1\ns_and_b32 s{sT0}, s{sW}, 1")
        a(f"s_add_u32 s{sB2}, s{sB2}, s{sT0}\ns_lshl_b32 s{sB2}, s{sB2}, 13\ns_lshl_b32 s{sT1}, s{sCT}, 7\ns_add_u32 s{sB2}, s{sB2}, s{sT1}")
        a(f"s_sub_u32 s{sB2W}, 22, s{sROT}\ns_lshl_b32 s{sB2L}, s{sW}, 10\ns_mov_b32 s{sB2N}, {(-21*16384) & 0xffffffff}")
        a(f"s_lshl_b32 s{sB2O}, s{sKQ}, 4\ns_add_u32 s{sB2O}, s{sB2O}, s{sT0}\ns_lshl_b32 s{sB2O}, s{sB2O}, 13\ns_add_u32 s{sB2O}, s{sB2O}, s{sT1}")

    def b2_late(self, vm, step):
        a = self.a
        a(f"s_add_u32 m0, s{sB2L}, {8192*round_of(step)}\ns_nop 0")
        a(f"buffer_load_dwordx4 v{vB2D}, s[{S_W2}:{S_W2+3}], s{sWO1 + step - 15} offen lds"); vm.issue(f"b2_{step}")

    def b2_dma(self, vm, step, defer=False):
        a = self.a
        if defer:
            a(f"s_sub_u32 s{sB2W}, s{sB2W}, 1\ns_mov_b32 s{sWO1 + step - 15}, s{sB2}")
            a(f"s_cmp_eq_u32 s{sB2W}, 0\ns_cselect_b32 s{sT0}, s{sB2N}, 16384\ns_add_u32 s{sB2}, s{sB2}, s{sT0}")
            return
        a(f"s_add_u32 m0, s{sB2L}, {8192*round_of(step)}")
        if step < 22:
            a(f"s_sub_u32 s{sB2W}, s{sB2W}, 1")
            a(f"buffer_load_dwordx4 v{vB2D}, s[{S_W2}:{S_W2+3}], s{sB2} offen lds"); vm.issue(f"b2_{step}")
            a(f"s_cmp_eq_u32 s{sB2W}, 0\ns_cselect_b32 s{sT0}, s{sB2N}, 16384\ns_add_u32 s{sB2}, s{sB2}, s{sT0}")
        else:
            a(f"s_add_u32 s{sT0}, s{sB2O}, {(step-22)*16384}")
            a(f"buffer_load_dwordx4 v{vB2D}, s[{S_WO}:{S_WO+3}], s{sT0} offen lds"); vm.issue(f"b2_{step}")

    def prologue2(self, vm):
        a = self.a
        self.dma_stage(vm, 0, 0); self.dma_stage(vm, 0, 1)
        a(f"v_mov_b32 v14, 0\nbuffer_load_dword v{TMP+4}, v14, s[{S_WS}:{S_WS+3}], 0 offen sc1"); vm.issue("epoch")
        a(f"s_lshl_b32 s{sT0}, s{sRB}, 4\ns_add_u32 s{sT0}, s{sT0}, s{sG}\ns_lshl_b32 s{sT0}, s{sT0}, 3\ns_add_u32 s{sT5}, s{sT0}, s{sW}\ns_lshl_b32 s{sT0}, s{sT5}, 10")
        a(f"buffer_load_dwordx4 v[{TMP}:{TMP+3}], v{vL16}, s[{S_X}:{S_X+3}], s{sT0} offen"); vm.issue("xrow")
        a(f"s_lshl_b32 s{sE}, s{sT5}, 4\ns_add_u32 s{sE}, s{sE}, {WS_STATS}")
        self.dma_stage(vm, 1, 0); self.dma_stage(vm, 1, 1)
        self.srd(S_B1, 14, 2752)
        a(f"v_lshl_add_u32 v{TMP+6}, s{sW}, 6, v{vL}\nv_lshlrev_b32 v14, 1, v{TMP+6}")
        a(f"s_lshl_b32 s{sT0}, s{sC0}, 6\ns_cmp_lt_u32 s{sG}, 8\ns_cselect_b32 s{sT0}, {OOB}, s{sT0}")
        a(f"buffer_load_ushort v{TMP+5}, v14, s[{S_B1}:{S_B1+3}], s{sT0} offen"); vm.issue("bias")
        if self.o['codepf']:
            n = self.o.get('pf_lanes', 8)
            a(f"s_getpc_b64 s[{sT0+1}:{sT0+2}]")
            a.label("L_pc")
            a(f"s_lshr_b32 s{sT0}, s2, 3\ns_and_b32 s{sT0}, s{sT0}, 3\ns_lshl_b32 s{sT0}, s{sT0}, 3\ns_add_u32 s{sT0}, s{sT0}, s{sW}\ns_mul_i32 s{sT0}, s{sT0}, {n}")
            a(f"v_min_u32 v14, {n-1}, v{vL}\nv_add_u32 v14, s{sT0}, v14\nv_lshlrev_b32 v14, 7, v14\nv_min_u32 v14, L_codeend-L_pc-4, v14")
            a(f"global_load_dword v{TMP+7}, v14, s[{sT0+1}:{sT0+2}]"); vm.issue("codepf")
        self.srd(S_W2, 16, 1376*1024); self.srd(S_WO, 8, 512*1024); self.srd(S_OUT, 18, 2097152)
        a(f"s_lshl_b32 s{sT0}, s{sC}, 1\ns_add_u32 s{sT0}, s{sT0}, s{sR}")
        a(f"v_and_b32 v14, 31, v{vL}\nv_lshrrev_b32 v15, 5, v{vL}\nv_bfe_u32 v{TMP+8}, v{vL}, 1, 3\nv_xor_b32 v{TMP+8}, v{TMP+8}, v15")
        a(f"s_lshl_b32 s{sT1}, s{sR}, 12\nv_lshlrev_b32 v14, 7, v14\nv_lshl_add_u32 v14, v{TMP+8}, 4, v14\nv_add_u32 v14, s{sT1}, v14")
        a(f"v_bfe_u32 v{TMP+8}, v{vL}, 2, 2\nv_mul_u32_u24 v{TMP+9}, 3072, v15\nv_lshl_add_u32 v{TMP+9}, v{TMP+8}, 7, v{TMP+9}")
        a(f"v_lshrrev_b32 v{TMP+10}, 1, v{TMP+8}\nv_xor_b32 v{TMP+11}, s{sC}, v{TMP+10}\nv_lshl_add_u32 v{TMP+9}, v{TMP+11}, 6, v{TMP+9}")
        a(f"v_bfe_u32 v{TMP+11}, v{vL}, 4, 1\nv_and_b32 v{TMP+12}, 3, v{vL}\nv_lshlrev_b32 v{TMP+12}, 3, v{TMP+12}\nv_lshl_add_u32 v{TMP+12}, v{TMP+11}, 5, v{TMP+12}")
        a(f"v_add_u32 v{TMP+9}, v{TMP+9}, v{TMP+12}")
        for i in range(4):
            a(f"s_add_u32 s{sT1}, s{sT0}, {i}\ns_and_b32 s{sT1}, s{sT1}, 3\ns_lshl_b32 s{sT2}, s{sT1}, 5\ns_mul_i32 s{sT1}, s{sT1}, 6144\ns_add_u32 s{sT1}, s{sT1}, {L_W}")
            a(f"v_xor_b32 v{vXA+i}, s{sT2}, v14\nv_add_u32 v{vWA+i}, s{sT1}, v{TMP+9}")
        a(f"v_lshl_add_u32 v14, v15, 2, v{TMP+8}\nv_lshlrev_b32 v14, 7, v14\nv_lshl_add_u32 v14, v{TMP+10}, 6, v14\nv_add_u32 v14, v14, v{TMP+12}")
        a(f"s_lshl_b32 s{sT1}, s{sKQ}, 11\nv_add_u32 v{vB2A}, s{sT1}, v14\nv_xor_b32 v{vB2A+1}, 64, v{vB2A}")
        for hi in (1, 2):
            a(f"v_add_u32 v{vB2A+2*hi}, {65536*hi}, v{vB2A}\nv_add_u32 v{vB2A+2*hi+1}, {65536*hi}, v{vB2A+1}")
        a(f"s_mov_b32 s{sMASK}, 0x0000ffff\ns_mov_b32 s{sMASK+1}, 0x0000ffff")
        self.b2_setup()

    def row_stats(self, vm):
        a = self.a; T = TMP
        vm.wait("xrow")
        u = vG0
        for k in range(4):
            a(f"v_lshlrev_b32 v{u+2*k}, 16, v{T+k}\nv_and_b32 v{u+2*k+1}, 0xffff0000, v{T+k}")
        a(f"v_readfirstlane_b32 s{sTAG}, v{T+4}")
        a(f"v_add_f32 v14, v{u}, v{u+1}\nv_add_f32 v15, v{u+2}, v{u+3}\nv_add_f32 v{T}, v{u+4}, v{u+5}\nv_add_f32 v{T+1}, v{u+6}, v{u+7}")
        a(f"v_add_f32 v14, v14, v15\nv_add_f32 v{T}, v{T}, v{T+1}\ns_mul_i32 s{sTAG}, s{sTAG}, 0x9e3779b1\nv_add_f32 v14, v14, v{T}")
        a(f"s_add_u32 s{sTAG}, s{sTAG}, 0x7f4a7c15")
        self.wave_sum(14)
        a(f"v_mul_f32 v{T}, {f2u(1/512.):#x}, v14")
        for k in range(8): a(f"v_sub_f32 v{u+k}, v{u+k}, v{T}")
        a(f"v_mul_f32 v14, v{u}, v{u}\nv_mul_f32 v15, v{u+1}, v{u+1}")
        for k in range(2, 8): a(f"v_fmac_f32 v{14+(k&1)}, v{u+k}, v{u+k}")
        a(f"v_add_f32 v14, v14, v15")
        self.wave_sum(14)
        a(f"v_mov_b32 v15, {f2u(1e-5):#x}\nv_fmac_f32 v15, {f2u(1/512.):#x}, v14\nv_rsq_f32 v15, v15\nv_mov_b32 v{T+2}, 0\nv_mov_b32 v{T+3}, s{sTAG}")
        a(f"v_mul_f32 v{T+1}, {f2u(LOG2E):#x}, v15")
        a(f"v_cmp_eq_u32 vcc, 0, v{vL}\nv_mov_b32 v14, {OOB}\nv_mov_b32 v15, 0\nv_cndmask_b32 v14, v14, v15, vcc")
        a(f"buffer_store_dwordx4 v[{T}:{T+3}], v14, s[{S_WS}:{S_WS+3}], s{sE} offen sc1"); vm.issue("statst")
        vm.wait("bias")
        a(f"v_lshlrev_b32 v15, 16, v{T+5}\nv_mul_f32 v15, {f2u(LOG2E):#x}, v15\nv_lshlrev_b32 v14, 2, v{T+6}\nv_add_u32 v14, {L_BT}, v14")
        a(f"v_cmp_gt_u32 vcc, 192, v{T+6}\ns_and_saveexec_b64 s[{sEX}:{sEX+1}], vcc\nds_write_b32 v14, v15\ns_mov_b64 exec, s[{sEX}:{sEX+1}]")

    def wave_sum(self, v):
        a = self.a
        for m in ("quad_perm:[1,0,3,2]", "quad_perm:[2,3,0,1]", "row_half_mirror", "row_mirror"):
            a(f"s_nop 1\nv_add_f32_dpp v{v}, v{v}, v{v} {m} row_mask:0xf bank_mask:0xf")
        a(f"s_nop 0\nv_readlane_b32 s{sT0}, v{v}, 0\nv_readlane_b32 s{sT1}, v{v}, 16\nv_readlane_b32 s{sT2}, v{v}, 32\nv_readlane_b32 s{sT3}, v{v}, 48")
        a(f"v_mov_b32 v{v}, s{sT0}\nv_add_f32 v{v}, s{sT1}, v{v}\ns_nop 0\nv_add_f32 v{v}, s{sT2}, v{v}\nv_add_f32 v{v}, s{sT3}, v{v}")

    def reads(self, n):
        a = self.a; t, i = n // 4, n % 4; slot = t % 3; b = n & 1
        a(f"ds_read_b128 v[{XF+4*b}:{XF+4*b+3}], v{vXA+i} offset:{slot*16384}")
        for j in range(3):
            for rd in range(2):
                r = WF + 12*b + 4*j + 2*rd
                a(f"ds_read_b64_tr_b16 v[{r}:{r+1}], v{vWA+i} offset:{slot*24576 + 512*rd + 1024*j}")
    def mfmas(self, n, att):
        a = self.a; b = n & 1
        x = f"v[{XF+4*b}:{XF+4*b+3}]"
        for j in range(3):
            w = f"v[{WF+12*b+4*j}:{WF+12*b+4*j+3}]"
            acc = f"v[{ACC+16*j}:{ACC+16*j+15}]"
            c = "0" if n == 0 else acc
            if att and j > 0: a(f"v_mfma_f32_32x32x16_bf16 {acc}, {x}, {w}, {c}")
            else:             a(f"v_mfma_f32_32x32x16_bf16 {acc}, {w}, {x}, {c}")

    def colsum_partial(self):
        a = self.a; T = TMP + 8
        a(f"s_mov_b32 s{sT0}, 0x3f803f80")
        for j in range(3): a(f"v_mov_b32 v{T+j}, 0")
        for k in range(4):
            for j in range(3): a(f"v_dot2c_f32_bf16 v{T+j}, s{sT0}, v{WF+4*j+k}")
        a(f"s_mul_i32 s{sT1}, s{sR}, 1536\ns_lshl_b32 s{sT2}, s{sC}, 7\ns_add_u32 s{sT1}, s{sT1}, s{sT2}\ns_add_u32 s{sT1}, s{sT1}, {L_KV}")
        a(f"v_and_b32 v14, 31, v{vL}\nv_lshl_add_u32 v14, v14, 2, s{sT1}\nv_lshrrev_b32 v15, 5, v{vL}\nv_mul_u32_u24 v15, 768, v15\nv_add_u32 v14, v14, v15")
        a(f"ds_write2st64_b32 v14, v{T}, v{T+1} offset1:1\nds_write_b32 v14, v{T+2} offset:512")

    def colsum_publish(self, vm, sfx):
        a = self.a; T = TMP + 8; U = B2R
        a(f"s_mov_b32 s{sT0}, {OOB}\ns_cmp_lg_u32 s{sW}, 0\ns_cbranch_scc1 L_nocsp{sfx}")
        a(f"v_lshlrev_b32 v14, 2, v{vL}\nv_add_u32 v14, {L_KV}, v14")
        for k in range(0, 24, 2): a(f"ds_read2st64_b32 v[{U+k}:{U+k+1}], v14 offset0:{k} offset1:{k+1}")
        a(f"v_mov_b32 v{T+3}, s{sTAG}")
        a(f"s_lshl_b32 s{sT0}, s{sG}, 4\ns_add_u32 s{sT0}, s{sT0}, s{sRB}\ns_lshl_b32 s{sT0}, s{sT0}, 10\ns_add_u32 s{sT0}, s{sT0}, {WS_CSP}")
        a("s_waitcnt lgkmcnt(0)")
        for sl in range(1, 7):
            for u in range(3): a(f"v_add_f32 v{U+u}, v{U+u}, v{U+3*sl+u}")
        for u in range(3): a(f"v_add_f32 v{T+u}, v{U+u}, v{U+21+u}")
        a.label(f"L_nocsp{sfx}")
        a(f"buffer_store_dwordx4 v[{T}:{T+3}], v{vL16}, s[{S_WS}:{S_WS+3}], s{sT0} offen sc1"); vm.issue("cspst")

    def gather_addr(self):
        a = self.a
        a(f"s_lshl_b32 s{sT4}, s{sRB}, 2\ns_add_u32 s{sT4}, s{sT4}, s{sR}\ns_lshl_b32 s{sT4}, s{sT4}, 9\ns_add_u32 s{sT4}, s{sT4}, {WS_STATS}")
        a(f"s_and_b32 s{sT5}, s{sRB}, 8\ns_lshl4_add_u32 s{sT5}, s{sG}, s{sT5}\ns_lshl3_add_u32 s{sT5}, s{sT5}, s{sW}\ns_lshl_b32 s{sT5}, s{sT5}, 7\ns_add_u32 s{sT5}, s{sT5}, {WS_CSP}")
        a(f"v_and_b32 v15, 0x1f0, v{vL16}\nv_lshrrev_b32 v14, 3, v{vL}\nv_lshlrev_b32 v14, 10, v14\nv_and_or_b32 v14, v{vL16}, s{sT0}, v14".replace("v_lshrrev", f"s_movk_i32 s{sT0}, 0x70\nv_lshrrev", 1))
    def gather_issue(self, vm):
        a = self.a
        a(f"buffer_load_dwordx4 v[{vG0}:{vG0+3}], v15, s[{S_WS}:{S_WS+3}], s{sT4} offen sc1"); vm.issue("gath")
        a(f"buffer_load_dwordx4 v[{vG1}:{vG1+3}], v14, s[{S_WS}:{S_WS+3}], s{sT5} offen sc1"); vm.issue("gath")
    def gather_check(self, vm, sfx):
        a = self.a
        vm.wait("gath")
        a(f"s_mov_b32 s{sSPIN}, 0")
        a.label(f"L_gchk{sfx}")
        a(f"v_cmp_ne_u32 vcc, s{sTAG}, v{vG0+3}\nv_cmp_ne_u32 s[{sEX}:{sEX+1}], s{sTAG}, v{vG1+3}\ns_nop 1\ns_or_b64 vcc, vcc, s[{sEX}:{sEX+1}]")
        a(f"s_cbranch_vccz L_gok{sfx}")
        a(f"s_add_u32 s{sSPIN}, s{sSPIN}, 1\ns_cmp_gt_u32 s{sSPIN}, 0x8000\ns_cbranch_scc1 L_gok{sfx}")
        self.gather_addr()
        v2 = VM(a); self.gather_issue(v2)
        a(f"s_waitcnt vmcnt(0)\ns_branch L_gchk{sfx}")
        a.label(f"L_gok{sfx}")
        a(f"v_mov_b32 v{vM}, v{vG0}\nv_mov_b32 v{vR}, v{vG0+1}")
        T = TMP + 8
        for k in range(3): a(f"v_add_f32_dpp v{vG1+k}, v{vG1+k}, v{vG1+k} row_ror:8 row_mask:0xf bank_mask:0xf")
        for op in ("v_permlane16_swap_b32", "v_permlane32_swap_b32"):
            for k in range(3): a(f"v_mov_b32 v{T+k}, v{vG1+k}")
            a("s_nop 0")
            for k in range(3): a(f"{op} v{T+k}, v{vG1+k}")
            a("s_nop 0")
            for k in range(3): a(f"v_add_f32 v{vG1+k}, v{vG1+k}, v{T+k}")
        a(f"s_lshl_b32 s{sT0}, s{sW}, 5\ns_add_u32 s{sT0}, s{sT0}, {L_CS}\nv_lshl_add_u32 v14, v{vL}, 2, s{sT0}\ns_mov_b64 exec, 0xff")
        a(f"ds_write2st64_b32 v14, v{vG1}, v{vG1+1} offset1:1\nds_write_b32 v14, v{vG1+2} offset:512\ns_mov_b64 exec, -1")
        a(f"s_lshl_b32 s{sT0}, s{sR}, 7\ns_add_u32 s{sT0}, s{sT0}, {L_MT}\nv_and_b32 v14, 31, v{vL}\nv_lshl_add_u32 v14, v14, 2, s{sT0}")
        a(f"ds_write_b32 v14, v{vM}\nds_write_b32 v14, v{vR} offset:512")

    def kloop(self, vm, att):
        a = self.a; sfx = "A" if att else "M"
        for t in range(8):
            vm.wait(f"st{t}", lgkm=0)
            a("s_barrier")
            self.stamp(2 + t)
            for i in range(4):
                n = 4*t + i
                self.reads(n)
                if t == 0 and i == 0:
                    continue
                if i > 0:
                    a("s_waitcnt lgkmcnt(7)")
                self.mfmas(n - 1, att)
                if t == 0 and i == 1: self.colsum_partial()
                if t + 2 < 8:
                    if i == 0 or (t == 0 and i == 1): self.dma_stage(vm, t + 2, 0)
                    if i == 1 and t > 0 or (t == 0 and i == 2): self.dma_stage(vm, t + 2, 1)
                else:
                    st = {6: [[0, 1], [2], [3], [4]], 7: [[5, 6], [7, 8], [9, 10], [11, 12]]}[t][i]
                    for s in st: self.b2_dma(vm, s)
                if t == 0 and i == 3: self.row_stats(vm)
                if t == 1 and i == 2: self.colsum_publish(vm, sfx)
                if t == 4 and i == 2: self.gather_addr(); self.gather_issue(vm)
                if t == 6 and i == 2: self.gather_check(vm, sfx)
        a("s_waitcnt lgkmcnt(0)")
        self.mfmas(31, att)
        a("s_barrier")
        self.stamp(10)
        for s in range(13, 18):
            if att and s in (15, 16): self.b2_dma(vm, s, defer=True)
            else: self.b2_dma(vm, s)

    def consts(self):
        a = self.a
        T = TMP
        a(f"v_mov_b32 v{T}, 2.0\nv_mov_b32 v{T+2}, {f2u(-2*LN2):#x}\nv_mov_b32 v{T+4}, {f2u(LN2):#x}\nv_mov_b32 v{T+6}, 1.0\nv_mov_b32 v{T+8}, {f2u(1e-6):#x}")

    def a2_store_base(self):
        a = self.a
        a(f"s_lshl_b32 s{sA2B}, s{sRB}, 2\ns_add_u32 s{sA2B}, s{sA2B}, s{sR}\ns_mul_i32 s{sA2B}, s{sA2B}, {A2_RT}\ns_add_u32 s{sA2B}, s{sA2B}, {WS_A2}")

    def table_reads(self, dst, base, j):
        for q in range(4):
            self.a(f"ds_read_b128 v[{dst+4*q}:{dst+4*q+3}], v14 offset:{base - L_CSP + 256*j + 32*q}")

    def epi_mlp(self, vm):
        a = self.a; T = TMP
        CS, BB, U = 64, 80, 96
        self.consts(); self.a2_store_base()
        a(f"v_lshrrev_b32 v14, 5, v{vL}\ns_lshl_b32 s{sT0}, s{sC}, 7\ns_add_u32 s{sT0}, s{sT0}, {L_CSP}\nv_lshl_add_u32 v14, v14, 4, s{sT0}")
        a(f"v_mul_f32 v{T+10}, v{vM}, v{vR}\nv_mov_b32 v{T+12}, v{vR}")
        a(f"s_add_u32 s{sT1}, s{sC0}, s{sC}\ns_lshl_b32 s{sT1}, s{sT1}, 11\ns_add_u32 s{sA2B}, s{sA2B}, s{sT1}")
        for j in range(3):
            self.table_reads(CS, L_CS, j); self.table_reads(BB, L_BT, j)
            A = ACC + 16*j
            a("s_waitcnt lgkmcnt(0)")
            P = range(0, 16, 2)
            for k in P: a(f"v_pk_fma_f32 v[{CS+k}:{CS+k+1}], v[{T+10}:{T+11}], v[{CS+k}:{CS+k+1}], v[{BB+k}:{BB+k+1}] op_sel_hi:[0,1,1] neg_lo:[1,0,0] neg_hi:[1,0,0]")
            for k in P: a(f"v_pk_fma_f32 v[{A+k}:{A+k+1}], v[{A+k}:{A+k+1}], v[{T+12}:{T+13}], v[{CS+k}:{CS+k+1}] op_sel_hi:[1,0,1]")
            for k in range(16): a(f"v_exp_f32 v{U+k}, v{A+k}")
            for k in P: a(f"v_pk_add_f32 v[{CS+k}:{CS+k+1}], v[{U+k}:{U+k+1}], v[{T}:{T+1}] op_sel_hi:[1,0]")
            for k in P: a(f"v_pk_fma_f32 v[{U+k}:{U+k+1}], v[{U+k}:{U+k+1}], v[{CS+k}:{CS+k+1}], v[{T}:{T+1}] op_sel_hi:[1,1,0]")
            for k in range(16): a(f"v_rcp_f32 v{U+k}, v{U+k}")
            for k in P: a(f"v_pk_fma_f32 v[{U+k}:{U+k+1}], v[{U+k}:{U+k+1}], v[{T+2}:{T+3}], v[{T+4}:{T+5}] op_sel_hi:[1,0,0]")
            for k in P: a(f"v_pk_mul_f32 v[{U+k}:{U+k+1}], v[{U+k}:{U+k+1}], v[{A+k}:{A+k+1}]")
            for k in P: a(f"v_cvt_pk_bf16_f32 v{A+k//2}, v{U+k}, v{U+k+1}")
            if j == 2:
                a(f"s_cmp_ge_u32 s{sG}, 11\ns_cselect_b32 s{sT0}, s{sC}, 0\ns_cmp_eq_u32 s{sT0}, 1\ns_cselect_b32 s{sA2B}, {OOB}, s{sA2B}")
            a(f"s_add_u32 s{sT0}, s{sA2B}, {4096*j}")
            a(f"buffer_store_dwordx4 v[{A}:{A+3}], v{vL16}, s[{S_WS}:{S_WS+3}], s{sT0} offen sc1"); vm.issue("act")
            a(f"buffer_store_dwordx4 v[{A+4}:{A+7}], v{vL16}, s[{S_WS}:{S_WS+3}], s{sT0} offen offset:1024 sc1"); vm.issue("act")
        self.stamp(11)
        self.park_b2(vm, "act")
        self.flag_store(vm, 0)
        for s in range(18, 30): self.b2_dma(vm, s)

    def flag_store(self, vm, off):
        a = self.a
        a(f"s_lshl_b32 s{sT0}, s{sRB}, 4\ns_add_u32 s{sT0}, s{sT0}, s{sG}\ns_lshl_b32 s{sT0}, s{sT0}, 8\ns_add_u32 s{sT0}, s{sT0}, {WS_FLAG + off}")
        a(f"s_cmp_eq_u32 s{sW}, 0\ns_cselect_b32 s{sT0}, s{sT0}, {OOB}")
        a(f"v_cmp_eq_u32 vcc, 0, v{vL}\nv_mov_b32 v14, {OOB}\nv_mov_b32 v15, 0\nv_cndmask_b32 v14, v14, v15, vcc\nv_mov_b32 v15, s{sTAG}")
        a(f"buffer_store_dword v15, v14, s[{S_WS}:{S_WS+3}], s{sT0} offen sc1"); vm.issue("flag")

    def park_b2(self, vm, drain):
        a = self.a
        vm.wait(*[f"b2_{s}" for s in range(NREG_STEPS)])
        a("s_barrier")
        for s in range(NREG_STEPS):
            self.b2_reads(s, B2R + 8*s)
            if s > 1: a("s_waitcnt lgkmcnt(8)")
        vm.wait(drain, lgkm=0)
        a("s_barrier")

    def b2_reads(self, s, dst):
        rnd = round_of(s); hi, lo = rnd // 8, rnd % 8
        for cc in range(2):
            for rd in range(2):
                r = dst + 4*cc + 2*rd
                self.a(f"ds_read_b64_tr_b16 v[{r}:{r+1}], v{vB2A + 2*hi + cc} offset:{8192*lo + 1024*rd}")

    def poll(self, name, nl, base_expr_emit, lane_shift):
        a = self.a
        a(f"s_cmp_lg_u32 s{sW}, 0\ns_cbranch_scc1 L_pd{name}")
        base_expr_emit()
        a(f"v_min_u32 v14, {nl-1}, v{vL}\nv_lshlrev_b32 v14, {lane_shift}, v14\ns_mov_b32 s{sSPIN}, 0")
        a.label(f"L_pl{name}")
        a(f"buffer_load_dword v15, v14, s[{S_WS}:{S_WS+3}], s{sT0} offen sc1\ns_add_u32 s{sSPIN}, s{sSPIN}, 1\ns_waitcnt vmcnt(0)")
        a(f"v_cmp_ne_u32 vcc, s{sTAG}, v15\ns_cmp_gt_u32 s{sSPIN}, 0x8000\ns_cbranch_scc1 L_pd{name}\ns_cbranch_vccnz L_pl{name}")
        a.label(f"L_pd{name}")
        a("s_barrier")

    def phi(self, A, Y, E):
        a = self.a; T = TMP; P = range(0, 16, 2)
        for k in range(16): a(f"v_exp_f32 v{E+k}, v{Y+k}")
        for k in P: a(f"v_pk_fma_f32 v[{Y+k}:{Y+k+1}], v[{Y+k}:{Y+k+1}], v[{T+4}:{T+5}], v[{T+6}:{T+7}] op_sel_hi:[1,0,0]")
        for k in range(16): a(f"v_med3_f32 v{E+k}, v{Y+k}, v{E+k}, 1.0")
        for k in P: a(f"v_pk_add_f32 v[{E+k}:{E+k+1}], v[{E+k}:{E+k+1}], v[{T+8}:{T+9}] op_sel_hi:[1,0]")
        for k in P: a(f"v_cvt_pk_bf16_f32 v{A+k//2}, v{E+k}, v{E+k+1}")

    def kv_write(self, KV, Z):
        a = self.a; T = TMP
        a(f"ds_write_b128 v{T+14}, v[{KV}:{KV+3}]\nds_write_b128 v{T+14}, v[{KV+4}:{KV+7}] offset:1024")
        a(f"s_mov_b32 exec_lo, 0x00010001\ns_mov_b32 exec_hi, 0x00010001")
        a(f"ds_write_b128 v{T+15}, v[{Z}:{Z+3}]\nds_write_b128 v{T+15}, v[{Z+4}:{Z+7}] offset:16\ns_mov_b64 exec, -1")
    def kv_read(self, D):
        a = self.a
        a(f"s_lshl_b32 s{sT0}, s{sC}, 13\ns_add_u32 s{sT0}, s{sT0}, {L_SCR}\nv_add_u32 v14, s{sT0}, v{vL16}")
        a(f"s_lshl_b32 s{sT0}, s{sC}, 9\ns_add_u32 s{sT0}, s{sT0}, {L_KV}\nv_and_b32 v15, 48, v{vL}\nv_lshl_add_u32 v15, v15, 1, s{sT0}")
        for r in range(4):
            B = D + 16*r
            a(f"ds_read_b128 v[{B}:{B+3}], v14 offset:{2048*r}\nds_read_b128 v[{B+4}:{B+7}], v14 offset:{2048*r+1024}")
            a(f"ds_read_b128 v[{B+8}:{B+11}], v15 offset:{128*r}\nds_read_b128 v[{B+12}:{B+15}], v15 offset:{128*r+16}")
        for r in range(1, 4):
            a(f"s_waitcnt lgkmcnt({12-4*r})")
            for k in range(0, 16, 2): a(f"v_pk_add_f32 v[{D+k}:{D+k+1}], v[{D+k}:{D+k+1}], v[{D+16*r+k}:{D+16*r+k+1}]")

    def epi_att(self, vm):
        a = self.a; T = TMP; P = range(0, 16, 2)
        MT, RT, U = 64, 80, 96
        Q, K, V = ACC, ACC + 16, ACC + 32
        msk = f"s[{sMASK}:{sMASK+1}]"
        self.consts(); self.a2_store_base()
        a(f"v_lshrrev_b32 v14, 5, v{vL}\ns_lshl_b32 s{sT0}, s{sR}, 7\ns_add_u32 s{sT0}, s{sT0}, {L_CSP}\nv_lshl_add_u32 v14, v14, 4, s{sT0}")
        self.table_reads(MT, L_MT, 0); self.table_reads(RT, L_RT, 0)
        a(f"v_and_b32 v15, 31, v{vL}\ns_lshl_b32 s{sT0}, s{sC}, 7\ns_add_u32 s{sT0}, s{sT0}, {L_CS}\nv_lshl_add_u32 v15, v15, 2, s{sT0}")
        a(f"ds_read_b32 v{T+10}, v15 offset:256\nds_read_b32 v{T+12}, v15 offset:512")
        a(f"s_lshl_b32 s{sT0}, s{sW}, 11\ns_add_u32 s{sT0}, s{sT0}, {L_SCR}\nv_add_u32 v{T+14}, s{sT0}, v{vL16}")
        a(f"s_lshl_b32 s{sT0}, s{sW}, 7\ns_add_u32 s{sT0}, s{sT0}, {L_KV}\nv_lshl_add_u32 v{T+15}, v{vL}, 1, s{sT0}")
        a("s_waitcnt lgkmcnt(0)")
        for (A, cs) in ((K, T+10), (V, T+12)):
            for k in P: a(f"v_pk_fma_f32 v[{A+k}:{A+k+1}], v[{MT+k}:{MT+k+1}], v[{cs}:{cs+1}], v[{A+k}:{A+k+1}] op_sel_hi:[1,0,1] neg_lo:[1,0,0] neg_hi:[1,0,0]")
            for k in P: a(f"v_pk_mul_f32 v[{A+k}:{A+k+1}], v[{A+k}:{A+k+1}], v[{RT+k}:{RT+k+1}]")
        a(f"v_lshrrev_b32 v14, 5, v{vL}\ns_lshl_b32 s{sT0}, s{sC}, 7\ns_add_u32 s{sT0}, s{sT0}, {L_CSP}\nv_lshl_add_u32 v14, v14, 4, s{sT0}")
        self.table_reads(MT, L_CS, 0)
        self.phi(K, K, U)
        for k in P: a(f"v_cvt_pk_bf16_f32 v{V+k//2}, v{V+k}, v{V+k+1}")
        a(f"v_mov_b32 v15, 0x3f803f80")
        B0, B1 = K + 8, V + 8
        for k in range(8): a(f"v_cndmask_b32 v{B0+k}, v15, v{V+k}, {msk}")
        for k in range(8): a(f"v_cndmask_b32 v{B1+k}, v{V+k}, v15, {msk}")
        D0, D1 = RT, U
        a("s_nop 1")
        a(f"v_mfma_f32_32x32x16_bf16 v[{D0}:{D0+15}], v[{K}:{K+3}], v[{B0}:{B0+3}], 0")
        a(f"v_mfma_f32_32x32x16_bf16 v[{D1}:{D1+15}], v[{K}:{K+3}], v[{B1}:{B1+3}], 0")
        a(f"v_mfma_f32_32x32x16_bf16 v[{D0}:{D0+15}], v[{K+4}:{K+7}], v[{B0+4}:{B0+7}], v[{D0}:{D0+15}]")
        a(f"v_mfma_f32_32x32x16_bf16 v[{D1}:{D1+15}], v[{K+4}:{K+7}], v[{B1+4}:{B1+7}], v[{D1}:{D1+15}]")
        a(f"v_mov_b32 v{T+10}, v{vM}\nv_mov_b32 v{T+12}, v{vR}\ns_waitcnt lgkmcnt(0)")
        for k in P: a(f"v_pk_fma_f32 v[{Q+k}:{Q+k+1}], v[{T+10}:{T+11}], v[{MT+k}:{MT+k+1}], v[{Q+k}:{Q+k+1}] op_sel_hi:[0,1,1] neg_lo:[1,0,0] neg_hi:[1,0,0]")
        for k in P: a(f"v_pk_mul_f32 v[{Q+k}:{Q+k+1}], v[{Q+k}:{Q+k+1}], v[{T+12}:{T+13}] op_sel_hi:[1,0]")
        for k in range(8): a(f"v_cndmask_b32 v{K+k}, v{D1+8+k}, v{D0+k}, {msk}")
        for k in range(8): a(f"v_cndmask_b32 v{K+8+k}, v{D0+k}, v{D1+8+k}, {msk}")
        self.kv_write(K, K + 8)
        a("s_waitcnt lgkmcnt(0)\ns_barrier")
        a(f"s_lshl_b32 s{sT1}, s{sG}, 1\ns_add_u32 s{sT1}, s{sT1}, s{sC}\ns_lshl_b32 s{sT1}, s{sT1}, 15\ns_add_u32 s{sT1}, s{sT1}, {WS_KVP}")
        a(f"s_lshl_b32 s{sT2}, s{sRB}, 11\ns_add_u32 s{sT2}, s{sT2}, s{sT1}")
        a(f"s_cmp_lg_u32 s{sR}, 0\ns_cbranch_scc1 L_nokvp")
        self.kv_read(B2R)
        for k in P: a(f"v_cvt_pk_bf16_f32 v{MT+k//2}, v{B2R+k}, v{B2R+k+1}")
        a(f"v_and_b32 v14, 15, v{vL}\nv_cmp_eq_u32 vcc, 0, v14\nv_mov_b32 v14, {OOB}\nv_add_u32 v15, 1024, v{vL}\nv_cndmask_b32 v14, v14, v15, vcc")
        a(f"buffer_store_dwordx4 v[{MT}:{MT+3}], v{vL16}, s[{S_WS}:{S_WS+3}], s{sT2} offen sc1")
        a(f"buffer_store_dwordx4 v[{MT+4}:{MT+7}], v14, s[{S_WS}:{S_WS+3}], s{sT2} offen sc1")
        a.label("L_nokvp")
        self.phi(Q, Q, U)
        a("s_waitcnt vmcnt(0) lgkmcnt(0)\ns_barrier"); vm.drained()
        self.flag_store(vm, 128)
        self.stamp(11)
        self.park_b2(vm, "none")
        for s in range(18, 24): self.b2_dma(vm, s)
        def base():
            a(f"s_lshl_b32 s{sT0}, s{sG}, 8\ns_add_u32 s{sT0}, s{sT0}, {WS_FLAG + 128}")
        self.poll("kv", 16, base, 12)
        self.stamp(12)
        a(f"s_lshl_b32 s{sT2}, s{sR}, 13\ns_add_u32 s{sT2}, s{sT2}, s{sT1}\nv_and_b32 v14, 48, v{vL}\nv_add_u32 v14, 1024, v14")
        G = 64
        for p in range(4):
            a(f"s_add_u32 s{sT3}, s{sT2}, {2048*p}")
            a(f"buffer_load_dwordx4 v[{G+8*p}:{G+8*p+3}], v{vL16}, s[{S_WS}:{S_WS+3}], s{sT3} offen sc1"); vm.issue("kvg")
            a(f"buffer_load_dwordx4 v[{G+8*p+4}:{G+8*p+7}], v14, s[{S_WS}:{S_WS+3}], s{sT3} offen sc1"); vm.issue("kvg")
        for s in range(24, 30): self.b2_dma(vm, s)
        vm.wait("kvg")
        S_ = U
        for k in range(8):
            a(f"v_lshlrev_b32 v{S_+2*k}, 16, v{G+k}\nv_and_b32 v{S_+2*k+1}, 0xffff0000, v{G+k}")
        for p in range(1, 4):
            for k in range(8):
                a(f"v_lshlrev_b32 v{K+2*k}, 16, v{G+8*p+k}\nv_and_b32 v{K+2*k+1}, 0xffff0000, v{G+8*p+k}")
            for k in range(8):
                a(f"v_pk_add_f32 v[{S_+2*k}:{S_+2*k+1}], v[{S_+2*k}:{S_+2*k+1}], v[{K+2*k}:{K+2*k+1}]")
        self.kv_write(S_, S_ + 8)
        a("s_waitcnt lgkmcnt(0)\ns_barrier")
        D = 48
        self.kv_read(D)
        for k in P: a(f"v_cvt_pk_bf16_f32 v{K+k//2}, v{D+k}, v{D+k+1}")
        for k in range(4): a(f"v_cndmask_b32 v{K+8+k}, v{K+4+k}, v{K+k}, {msk}")
        for k in range(4): a(f"v_cndmask_b32 v{K+12+k}, v{K+k}, v{K+4+k}, {msk}")
        O0, O1 = RT, U
        a("s_nop 1")
        a(f"v_mfma_f32_32x32x16_bf16 v[{O0}:{O0+15}], v[{K+8}:{K+11}], v[{Q}:{Q+3}], 0")
        a(f"v_mfma_f32_32x32x16_bf16 v[{O1}:{O1+15}], v[{K+12}:{K+15}], v[{Q+4}:{Q+7}], 0")
        a(f"s_lshl_b32 s{sT0}, s{sG}, 1\ns_add_u32 s{sT0}, s{sT0}, s{sC}\ns_lshl_b32 s{sT0}, s{sT0}, 11\ns_add_u32 s{sT0}, s{sT0}, {88*1024}\ns_add_u32 s{sT0}, s{sT0}, s{sA2B}")
        a("s_nop 7")
        a(f"v_add_f32 v{T+10}, v{T+8}, v{O0+8}\nv_add_f32 v{T+12}, v{T+8}, v{O1}\nv_rcp_f32 v{T+10}, v{T+10}\nv_rcp_f32 v{T+12}, v{T+12}\ns_nop 0")
        a(f"v_mul_f32 v{T+10}, v{T+4}, v{T+10}\nv_mul_f32 v{T+12}, v{T+4}, v{T+12}")
        for k in range(0, 8, 2): a(f"v_pk_mul_f32 v[{O0+k}:{O0+k+1}], v[{O0+k}:{O0+k+1}], v[{T+10}:{T+11}] op_sel_hi:[1,0]")
        for k in range(8, 16, 2): a(f"v_pk_mul_f32 v[{O1+k}:{O1+k+1}], v[{O1+k}:{O1+k+1}], v[{T+12}:{T+13}] op_sel_hi:[1,0]")
        for k in range(0, 8, 2): a(f"v_cvt_pk_bf16_f32 v{K+k//2}, v{O0+k}, v{O0+k+1}")
        for k in range(8, 16, 2): a(f"v_cvt_pk_bf16_f32 v{K+k//2}, v{O1+k}, v{O1+k+1}")
        a(f"buffer_store_dwordx4 v[{K}:{K+3}], v{vL16}, s[{S_WS}:{S_WS+3}], s{sT0} offen sc1"); vm.issue("o")
        a(f"buffer_store_dwordx4 v[{K+4}:{K+7}], v{vL16}, s[{S_WS}:{S_WS+3}], s{sT0} offen offset:1024 sc1"); vm.issue("o")
        vm.wait("o")
        a("s_barrier")
        self.flag_store(vm, 0)
        self.b2_late(vm, 15); self.b2_late(vm, 16)

    def phase2(self):
        a = self.a
        vm = VM(a)
        self.stamp(13)
        a(f"s_cmp_lg_u32 s2, 0\ns_cbranch_scc1 L_noep\ns_cmp_lt_u32 s{sW}, 4\ns_cbranch_scc0 L_noep")
        a(f"v_lshl_add_u32 v14, s{sW}, 6, v{vL}\nv_lshlrev_b32 v14, 7, v14\ns_mov_b32 s{sSPIN}, 0\ns_mov_b32 s{sT0}, {WS_STATS}")
        a.label("L_eppoll")
        a(f"buffer_load_dword v15, v14, s[{S_WS}:{S_WS+3}], s{sT0} offen offset:12 sc1\ns_add_u32 s{sSPIN}, s{sSPIN}, 1\ns_waitcnt vmcnt(0)")
        a(f"v_cmp_ne_u32 vcc, s{sTAG}, v15\ns_cmp_gt_u32 s{sSPIN}, 0x8000\ns_cbranch_scc1 L_noep\ns_cbranch_vccnz L_eppoll")
        a.label("L_noep")
        a(f"v_lshrrev_b32 v14, 3, v{vL}\nv_and_b32 v15, 7, v{vL}\nv_lshlrev_b32 v{vXO}, 10, v14\nv_lshl_add_u32 v{vXO}, v15, 4, v{vXO}")
        a(f"s_lshl_b32 s{sT5}, s{sRT}, 3\ns_add_u32 s{sT5}, s{sT5}, s{sW}\ns_lshl_b32 s{sT5}, s{sT5}, 13\ns_lshl_b32 s{sT0}, s{sCT}, 7\ns_add_u32 s{sXB}, s{sT5}, s{sT0}")
        a(f"buffer_load_dwordx4 v[{XRES}:{XRES+3}], v{vXO}, s[{S_X}:{S_X+3}], s{sXB} offen")
        a(f"s_lshl_b32 s{sT0}, s{sW}, 3\nv_add_u32 v14, s{sT0}, v14\nv_mul_u32_u24 v{vRR}, {RED_PITCH}, v14\nv_lshl_add_u32 v{vRR}, v15, 5, v{vRR}")
        a(f"s_and_b32 s{sT1}, s{sW}, 1\ns_lshl_b32 s{sT0}, s{sT1}, 5\nv_and_b32 v14, 31, v{vL}\nv_add_u32 v14, s{sT0}, v14\nv_mul_u32_u24 v{vRW}, {RED_PITCH}, v14")
        a(f"v_lshrrev_b32 v14, 5, v{vL}\nv_lshl_add_u32 v{vRW}, v14, 4, v{vRW}\ns_mul_i32 s{sT0}, s{sKQ}, {RED_Q}\nv_add_u32 v{vRW}, s{sT0}, v{vRW}")
        a(f"s_lshl_b32 s{sA2B}, s{sRT}, 1\ns_add_u32 s{sA2B}, s{sA2B}, s{sT1}\ns_mul_i32 s{sA2B}, s{sA2B}, {A2_RT}\ns_add_u32 s{sA2B}, s{sA2B}, {WS_A2}")
        a(f"s_mul_i32 s{sA2}, s{sKQ}, 22\ns_add_u32 s{sA2}, s{sA2}, s{sROT}\ns_sub_u32 s{sA2W}, 22, s{sROT}")
        def base_act():
            a(f"s_lshr_b32 s{sT0}, s{sRT}, 1\ns_lshl_b32 s{sT0}, s{sT0}, 12\ns_add_u32 s{sT0}, s{sT0}, {WS_FLAG + 8*256}")
        self.poll("act", 8, base_act, 8)
        a(f"s_cmp_lg_u32 s2, 0\ns_cbranch_scc1 L_noep2\ns_cmp_lg_u32 s{sW}, 0\ns_cbranch_scc1 L_noep2")
        a(f"v_mov_b32 v14, 0\nv_mov_b32 v15, s{sTAG}\nbuffer_store_dword v15, v14, s[{S_WS}:{S_WS+3}], 0 offen sc1")
        a.label("L_noep2")
        self.stamp(14)
        for i in range(22):
            a(f"s_lshl_b32 s{sT0}, s{sA2}, 10\ns_add_u32 s{sT0}, s{sT0}, s{sA2B}\ns_cmp_ge_u32 s{sA2}, 86\ns_cselect_b32 s{sT0}, {OOB}, s{sT0}")
            a(f"buffer_load_dwordx4 v[{A2R+4*i}:{A2R+4*i+3}], v{vL16}, s[{S_WS}:{S_WS+3}], s{sT0} offen sc1"); vm.issue(f"a{i}")
            a(f"s_sub_u32 s{sA2W}, s{sA2W}, 1\ns_cmp_eq_u32 s{sA2W}, 0\ns_cselect_b32 s{sT1}, -21, 1\ns_add_u32 s{sA2}, s{sA2}, s{sT1}")
        def areg(i): return A2R + 4*(i if i < 22 else i - 22)
        def breg(i): return B2R + 8*i if i < NREG_STEPS else BT + 8*(i & 1)
        def mf(i):
            A, B = areg(i), breg(i)
            for cc in range(2):
                acc = f"v[{ACC+16*cc}:{ACC+16*cc+15}]"
                a(f"v_mfma_f32_32x32x16_bf16 {acc}, v[{B+4*cc}:{B+4*cc+3}], v[{A}:{A+3}], {'0' if i == 0 else acc}")
        PO = self.o.get('poll_o_at', 12)
        for i in range(30):
            if i == PO:
                def base_o():
                    a(f"s_lshr_b32 s{sT0}, s{sRT}, 1\ns_lshl_b32 s{sT0}, s{sT0}, 12\ns_add_u32 s{sT0}, s{sT0}, {WS_FLAG}")
                self.poll("o", 8, base_o, 8)
                self.stamp(15)
                a(f"s_lshl_b32 s{sT0}, s{sKQ}, 13\ns_add_u32 s{sT0}, s{sT0}, s{sA2B}\ns_add_u32 s{sT0}, s{sT0}, {88*1024}")
                for q in range(8):
                    if q == 4: a(f"s_add_u32 s{sT0}, s{sT0}, 4096")
                    a(f"buffer_load_dwordx4 v[{A2R+4*q}:{A2R+4*q+3}], v{vL16}, s[{S_WS}:{S_WS+3}], s{sT0} offen offset:{1024*(q%4)} sc1"); vm.issue(f"a{22+q}")
                self.b2_reads(PO, breg(PO))
            if i + 1 > NREG_STEPS and i + 1 < 30 and i + 1 > PO: self.b2_reads(i + 1, breg(i + 1))
            lg = None
            if i >= NREG_STEPS: lg = 4 if i + 1 < 30 else 0
            vm.wait(f"a{i}", lgkm=lg)
            mf(i)
        self.stamp(16)
        a("s_barrier")
        a("s_nop 7\ns_nop 3")
        for cc in range(2):
            for q in range(4):
                r = ACC + 16*cc + 4*q
                a(f"ds_write_b128 v{vRW}, v[{r}:{r+3}] offset:{128*cc + 32*q}")
        a("s_waitcnt lgkmcnt(0)\ns_barrier")
        R = 64
        for kq in range(4):
            a(f"ds_read_b128 v[{R+8*kq}:{R+8*kq+3}], v{vRR} offset:{RED_Q*kq}\nds_read_b128 v[{R+8*kq+4}:{R+8*kq+7}], v{vRR} offset:{RED_Q*kq+16}")
        X = 100
        for k in range(4):
            a(f"v_lshlrev_b32 v{X+2*k}, 16, v{XRES+k}\nv_and_b32 v{X+2*k+1}, 0xffff0000, v{XRES+k}")
        for kq in range(4):
            a(f"s_waitcnt lgkmcnt({6-2*kq})")
            for k in range(0, 8, 2): a(f"v_pk_add_f32 v[{X+k}:{X+k+1}], v[{X+k}:{X+k+1}], v[{R+8*kq+k}:{R+8*kq+k+1}]")
        for k in range(0, 8, 2): a(f"v_cvt_pk_bf16_f32 v{R+k//2}, v{X+k}, v{X+k+1}")
        a(f"buffer_store_dwordx4 v[{R}:{R+3}], v{vXO}, s[{S_OUT}:{S_OUT+3}], s{sXB} offen")
        if self.stamps:
            a("s_waitcnt vmcnt(0)")
            self.stamp(17); self.rstamp(19)
            a(f"v_writelane_b32 v252, s98, 0\nv_writelane_b32 v252, s96, 18")
            a(f"s_lshl_b32 s{sT0}, s2, 3\ns_add_u32 s{sT0}, s{sT0}, s{sW}\ns_lshl_b32 s{sT0}, s{sT0}, 8\ns_add_u32 s{sT0}, s{sT0}, {WS_STAMP}")
            a(f"v_lshlrev_b32 v14, 2, v{vL}\nbuffer_store_dword v252, v14, s[{S_WS}:{S_WS+3}], s{sT0} offen")
            if self.o.get('dbgout'):
                a(f"s_cmp_lg_u32 s{sW}, 0\ns_cbranch_scc1 L_end\ns_mov_b32 s{sT2}, 0\ns_cmp_eq_u32 s2, 0\ns_cbranch_scc1 L_dbg\ns_mov_b32 s{sT2}, 32\ns_cmp_eq_u32 s2, 255\ns_cbranch_scc0 L_end")
                a.label("L_dbg")
                for i, (k, b) in enumerate([(1, 0), (2, 0), (10, 0), (13, 0), (14, 0), (15, 0), (17, 0), (19, 18)]):
                    a(f"v_readlane_b32 s{sT0}, v252, {k}\nv_readlane_b32 s{sT1}, v252, {b}\ns_nop 3\ns_sub_u32 s{sT0}, s{sT0}, s{sT1}\nv_mov_b32 v15, s{sT0}\nv_mov_b32 v14, s{sT2}\nglobal_store_dword v14, v15, s[20:21] offset:{4*i}")

    def build(self):
        a = self.a
        self.prologue()
        vm = VM(a)
        self.stamp(1)
        self.prologue2(vm)
        a(f"s_cmp_lt_u32 s{sG}, 8\ns_cbranch_scc0 L_mlp")
        v1 = vm.copy(); self.kloop(v1, True); self.epi_att(v1)
        a("s_branch L_ph2")
        a.label("L_mlp")
        v2 = vm.copy(); self.kloop(v2, False); self.epi_mlp(v2)
        a.label("L_ph2")
        self.phase2()
        a.label("L_end")
        a("s_endpgm")
        a.label("L_codeend")
        return single(a.text(), 256, 512, LDS_BYTES, 256, 102, 256)

if __name__ == "__main__":
    out = sys.argv[1] if len(sys.argv) > 1 else "k.s"
    stamps = "stamps" in sys.argv[2:]
    opts = {}
    for kv in sys.argv[2:]:
        if "=" in kv:
            k, v = kv.split("="); opts[k] = eval(v)
    open(out, "w").write(Gen(stamps, opts).build())
```

```python
import sys, math, struct
from asmlib import *

def f2u(x): return struct.unpack("<I", struct.pack("<f", x))[0]
LOG2E = 1.4426950408889634
LN2 = 0.6931471805599453

WS_EPOCH = 0
WS_STATS = 0x1000
WS_CSP   = 0x10000
WS_KVP   = 0x60000
WS_FLAG  = 0x100000
WS_KVF   = 0x140000
WS_A2    = 0x200000
A2_RT    = 120 * 1024
WS_SIZE  = 0x1000000
WS_STAMP = 0xC00000
OOB      = 0x40000000

L_X    = 0
L_W    = 49152
L_MISC = 147456
L_KV   = L_MISC
L_Z    = L_MISC + 8192
L_TAB  = L_Z + 512
L_CS   = L_TAB
L_BT   = L_CS + 768
L_MT   = L_BT + 768
L_RT   = L_MT + 512
L_FL   = L_RT + 512
LDS_BYTES = 163840

ROUND_OF_STEP = [15, 16, 17, 4, 5, 12, 13, 14, 0, 1, 6, 7, 8, 2, 3, 9, 10, 11]
NREG = 12
ARING = 6
def round_of(step):
    return ROUND_OF_STEP[step] if step < 18 else ROUND_OF_STEP[step - 18]

S_X, S_W, S_W2, S_WO, S_WS, S_OUT, S_B1 = 24, 28, 32, 36, 40, 44, 48
sW, sLW = 52, 53
sR2, sC = 53, 54
sRB, sG, sPH = 55, 56, 57
sCT, sRT, sROT = 58, 59, 60
sTAG = 61
sXO, sWOF, sWSTEP, sWEND = 62, 63, 64, 65
sXB, sLX, sLWB, sWD = 66, 67, 68, 69
sWO1, sWO2 = 70, 71
sB2L, sB2C, sB2C2, sA2B = 72, 73, 74, 75
sC0, sPITCH, sE = 76, 83, 84
sT0, sT1, sT2, sT3, sT4, sT5 = 77, 78, 79, 80, 81, 82
sSPIN = 85
sEX = 86
sMASK = 62
sFL, sKB = 64, 65
sRES = 3
sSTAMP = 92
SP = list(range(4, 24)) + [48, 49, 50, 51, 88, 89, 90, 91, 100, 101]

vL, vL16 = 0, 1
vRR, vXO = 17, 18
XRES = 244
vX, vWv, vB2D, vB2A = 2, 6, 10, 12
vB2AL = [12, 13, 14, 15, 16, 19]
ACC2, AR, BT, B2R = 20, 84, 132, 148
vL16B = 248
vRW = 2
vXA, vWA = 2, 6
ACC, XF, WF = 20, 116, 132
CT = 212

class VM:
    def __init__(self, a): self.a = a; self.q = []
    def issue(self, tag): self.q.append(tag)
    def count(self, *tags):
        idx = max((i for i, t in enumerate(self.q) if t in tags), default=-1)
        return len(self.q) - 1 - idx if idx >= 0 else None
    def wait(self, *tags, lgkm=None):
        n = self.count(*tags)
        s = []
        if n is not None:
            assert n <= 63, n
            s.append(f"vmcnt({n})")
            self.q = self.q[len(self.q) - n:] if n else []
        if lgkm is not None: s.append(f"lgkmcnt({lgkm})")
        if s: self.a("s_waitcnt " + " ".join(s))
    def depth(self, n):
        if len(self.q) > n:
            self.a(f"s_waitcnt vmcnt({n})")
            self.q = self.q[len(self.q) - n:] if n else []
    def drained(self): self.q = []
    def copy(self):
        v = VM(self.a); v.q = list(self.q); return v

class Gen:
    def __init__(self, stamps=False, opts=None):
        self.a = Asm(); self.stamps = stamps
        self.o = dict(pf_lanes=15, pace=8, kstamps=True, cprio=1)
        if opts: self.o.update(opts)

    def srd(self, d, p, n):
        self.a(f"s_mov_b32 s{d}, s{p}\ns_mov_b32 s{d+1}, s{p+1}\ns_mov_b32 s{d+2}, {n}\ns_mov_b32 s{d+3}, 0x20000")
    def stamp(self, idx):
        if not self.stamps: return
        self.a(f"s_memtime s[{sSTAMP}:{sSTAMP+1}]\ns_waitcnt lgkmcnt(0)\nv_writelane_b32 v252, s{sSTAMP}, {idx}")
    def rstamp(self, idx):
        if not self.stamps: return
        self.a(f"s_memrealtime s[{sSTAMP}:{sSTAMP+1}]\ns_waitcnt lgkmcnt(0)\nv_writelane_b32 v252, s{sSTAMP}, {idx}")
    def lane0(self, v):
        self.a(f"v_cmp_eq_u32 vcc, 0, v{vL}\nv_mov_b32 v{v}, {OOB}\ns_nop 0\nv_cndmask_b32 v{v}, v{v}, 0, vcc")
    def tag(self):
        self.a(f"s_mul_i32 s{sTAG}, s{sTAG}, 0x9e3779b1\ns_add_u32 s{sTAG}, s{sTAG}, 0x7f4a7c15")
    def decode2(self):
        a = self.a
        a(f"s_and_b32 s{sT0}, s2, 7\ns_lshr_b32 s{sT1}, s2, 3\ns_and_b32 s{sCT}, s{sT1}, 7\ns_lshr_b32 s{sT1}, s{sT1}, 3")
        a(f"s_lshl2_add_u32 s{sRT}, s{sT0}, s{sT1}\ns_lshl1_add_u32 s{sROT}, s{sT1}, s{sCT}\ns_and_b32 s{sROT}, s{sROT}, 7")
    def final_addr(self, vm, t0, t1):
        a = self.a
        a(f"v_lshrrev_b32 v{t0}, 3, v{vL}\nv_and_b32 v{t1}, 7, v{vL}\nv_lshlrev_b32 v{vXO}, 10, v{t0}\nv_lshl_add_u32 v{vXO}, v{t1}, 4, v{vXO}")
        a(f"s_lshl3_add_u32 s{sT0}, s{sRT}, s{sW}\ns_lshl_b32 s{sT0}, s{sT0}, 13\ns_lshl_b32 s{sT1}, s{sCT}, 7\ns_add_u32 s{sRES}, s{sT0}, s{sT1}")
        a(f"buffer_load_dwordx4 v[{XRES}:{XRES+3}], v{vXO}, s[{S_X}:{S_X+3}], s{sRES} offen"); vm.issue("xres")
        a(f"v_lshlrev_b32 v{t1}, 1, v{t1}\nv_xor_b32 v{t1}, v{t1}, v{t0}\nv_lshlrev_b32 v{t1}, 4, v{t1}\nv_lshl_add_u32 v{vRR}, v{t0}, 8, v{t1}")
        a(f"s_lshl_b32 s{sT0}, s{sW}, 13\nv_add_u32 v{vRR}, s{sT0}, v{vRR}")

    def spin_global(self, name, vaddr, vtmp, soff, imm=0, srd=S_WS):
        a = self.a
        off = f" offset:{imm}" if imm else ""
        a(f"s_mov_b32 s{sSPIN}, 0")
        a.label(f"L_sp{name}")
        a(f"buffer_load_dword v{vtmp}, v{vaddr}, s[{srd}:{srd+3}], s{soff} offen{off} sc1\ns_add_u32 s{sSPIN}, s{sSPIN}, 1\ns_waitcnt vmcnt(0)")
        a(f"v_cmp_ne_u32 vcc, s{sTAG}, v{vtmp}\ns_cmp_gt_u32 s{sSPIN}, 0x8000\ns_cbranch_scc1 L_sd{name}\ns_cbranch_vccnz L_sp{name}")
        a.label(f"L_sd{name}")
    def spin_lds(self, name, vaddr, vtmp, off):
        a = self.a
        a(f"s_mov_b32 s{sSPIN}, 0")
        a.label(f"L_sp{name}")
        a(f"ds_read_b32 v{vtmp}, v{vaddr} offset:{off}\ns_add_u32 s{sSPIN}, s{sSPIN}, 1\ns_waitcnt lgkmcnt(0)")
        a(f"v_cmp_ne_u32 vcc, 1, v{vtmp}\ns_cmp_gt_u32 s{sSPIN}, 0x40000\ns_cbranch_scc1 L_sd{name}\ns_cbranch_vccnz L_sp{name}")
        a.label(f"L_sd{name}")

    def entry(self):
        a = self.a
        a("s_cmp_ge_u32 s2, 256\ns_cbranch_scc1 L_end")
        a("s_load_dwordx16 s[4:19], s[0:1], 0\ns_load_dwordx4 s[20:23], s[0:1], 64")
        if self.stamps:
            a("v_mov_b32 v252, 0\ns_memrealtime s[96:97]\ns_memtime s[98:99]")
        a(f"v_lshrrev_b32 v1, 6, v0\nv_and_b32 v{vL}, 63, v0\nv_readfirstlane_b32 s{sW}, v1")
        a(f"s_bfe_u32 s{sT0}, s2, 0x30003\ns_and_b32 s{sT1}, s2, 1\ns_lshl3_add_u32 s{sRB}, s{sT1}, s{sT0}")
        a(f"s_lshr_b32 s{sT1}, s2, 6\ns_bfe_u32 s{sT2}, s2, 0x20001\ns_lshl2_add_u32 s{sG}, s{sT1}, s{sT2}")
        a(f"s_lshl1_add_u32 s{sPH}, s{sT1}, s{sT0}\ns_and_b32 s{sPH}, s{sPH}, 7")
        a(f"s_sub_u32 s{sT0}, s{sG}, 8\ns_min_u32 s{sT1}, s{sT0}, 3\ns_mul_i32 s{sC0}, s{sT0}, 5\ns_add_u32 s{sC0}, s{sC0}, s{sT1}")
        a(f"v_lshlrev_b32 v{vL16}, 4, v{vL}")
        a(f"s_cmp_lt_u32 s{sW}, 4\ns_cbranch_scc1 L_C")

    def l_stage(self, vm, t):
        a = self.a; slot = t % 3
        a(f"s_add_u32 m0, s{sLX}, {L_X + slot*16384}\ns_lshl_b32 s{sXO}, s{sPH}, 7\ns_add_u32 s{sXO}, s{sXO}, s{sXB}")
        for ii in range(4):
            off = f" offset:{1024*ii}" if ii else ""
            a(f"buffer_load_dwordx4 v{vX+ii}, s[{S_X}:{S_X+3}], s{sXO} offen{off} lds"); vm.issue(f"st{t}")
        a(f"s_add_u32 m0, s{sLWB}, {slot*24576}\ns_sub_u32 s{sWO1}, s{sWOF}, s{sWD}\ns_sub_u32 s{sWO2}, s{sWO1}, s{sWD}")
        for rg in range(2):
            if rg: a(f"s_add_u32 m0, s{sLWB}, {slot*24576 + 3072}\ns_nop 0")
            a(f"buffer_load_dwordx4 v{vWv+2*rg}, s[{S_W}:{S_W+3}], s{sWOF} offen lds"); vm.issue(f"st{t}")
            a(f"buffer_load_dwordx4 v{vWv+2*rg}, s[{S_W}:{S_W+3}], s{sWO1} offen offset:1024 lds"); vm.issue(f"st{t}")
            a(f"buffer_load_dwordx4 v{vWv+2*rg+1}, s[{S_W}:{S_W+3}], s{sWO2} offen offset:2048 lds"); vm.issue(f"st{t}")
        if t < 7:
            a(f"s_add_u32 s{sWOF}, s{sWOF}, s{sWSTEP}\ns_add_u32 s{sPH}, s{sPH}, 1\ns_and_b32 s{sPH}, s{sPH}, 7\ns_cselect_b32 s{sT0}, 0, s{sWEND}\ns_sub_u32 s{sWOF}, s{sWOF}, s{sT0}")

    def l_prologue(self, vm):
        a = self.a; T = ACC2
        a(f"s_sub_u32 s{sLW}, s{sW}, 4\ns_movk_i32 s{sPITCH}, 2752\ns_cmp_lt_u32 s{sG}, 8\ns_cselect_b32 s{sPITCH}, 3072, s{sPITCH}")
        a(f"s_cselect_b32 s{sWD}, 0, 896\ns_cselect_b32 s{sT3}, 0, 2048")
        a(f"s_lshl_b32 s{sT0}, s{sG}, 7\ns_lshl_b32 s{sT1}, s{sC0}, 6\ns_cmp_lt_u32 s{sG}, 8\ns_cselect_b32 s{sT5}, s{sT0}, s{sT1}\ns_add_u32 s{sT5}, s{sT5}, s{sT3}")
        a(f"v_lshrrev_b32 v{T}, 4, v{vL}\nv_and_b32 v{T+1}, 7, v{vL}\nv_xor_b32 v{T}, v{T}, v{T+1}\nv_lshlrev_b32 v{T}, 4, v{T}\nv_lshrrev_b32 v{T+2}, 3, v{vL}")
        a(f"v_lshl_add_u32 v{vX}, v{T+2}, 10, v{T}\nv_xor_b32 v{vX+1}, 64, v{vX}\nv_add_u32 v{vX+1}, 7168, v{vX+1}\nv_add_u32 v{vX+2}, 14336, v{vX}\nv_add_u32 v{vX+3}, 14336, v{vX+1}")
        a(f"v_lshrrev_b32 v{T}, 2, v{vL}\nv_and_b32 v{T}, 4, v{T}\nv_xor_b32 v{T}, v{T}, v{T+1}\nv_lshlrev_b32 v{T}, 4, v{T}")
        a(f"s_cmp_ge_u32 s{sG}, 11\ns_cselect_b32 s{sT4}, 64, 128\nv_mad_u32_u24 v{vWv}, v{T+2}, s{sPITCH}, v{T}\nv_cmp_gt_u32 vcc, s{sT4}, v{T}\nv_mov_b32 v{vWv+1}, {OOB}")
        a(f"s_lshl_b32 s{sT0}, s{sPITCH}, 3\nv_cndmask_b32 v{vWv+1}, v{vWv+1}, v{vWv}, vcc\nv_add_u32 v{vWv+2}, s{sT0}, v{vWv}\nv_add_u32 v{vWv+3}, s{sT0}, v{vWv+1}")
        a(f"s_lshl2_add_u32 s{sXB}, s{sRB}, s{sLW}\ns_lshl_b32 s{sXB}, s{sXB}, 15\ns_lshl_b32 s{sWSTEP}, s{sPITCH}, 6\ns_lshl_b32 s{sWEND}, s{sPITCH}, 9")
        a(f"s_lshl2_add_u32 s{sT0}, s{sPH}, s{sLW}\ns_lshl_b32 s{sT0}, s{sT0}, 4\ns_mul_i32 s{sWOF}, s{sT0}, s{sPITCH}\ns_add_u32 s{sWOF}, s{sWOF}, s{sT5}")
        a(f"s_lshl_b32 s{sLX}, s{sLW}, 12\ns_mul_i32 s{sLWB}, s{sLW}, 6144\ns_add_u32 s{sLWB}, s{sLWB}, {L_W}")
        a(f"s_mov_b32 s{S_X+2}, 2097152\ns_mov_b32 s{S_X+3}, 0x20000\ns_add_u32 s{S_W+2}, s{sWEND}, s{sT3}\ns_mov_b32 s{S_W+3}, 0x20000")
        a("s_waitcnt lgkmcnt(0)")
        self.stamp(1)
        a(f"s_load_dword s{sTAG}, s[22:23], {WS_EPOCH}")
        a(f"s_mov_b32 s{S_X}, s4\ns_mov_b32 s{S_X+1}, s5\ns_sub_u32 s12, s12, 2048\ns_subb_u32 s13, s13, 0")
        a(f"s_cmp_lt_u32 s{sG}, 8\ns_cselect_b32 s{S_W}, s6, s12\ns_cselect_b32 s{S_W+1}, s7, s13")
        self.l_stage(vm, 0)
        a(f"v_lshl_add_u32 v{vB2D}, v{T+2}, 10, v{T}\nv_add_u32 v{vB2D+1}, 7168, v{vB2D}")
        a(f"s_lshl4_add_u32 s{sT0}, s{sRB}, s{sG}\ns_lshl2_add_u32 s{sT5}, s{sT0}, s{sLW}\ns_lshl_b32 s{sT0}, s{sT5}, 11")
        a(f"buffer_load_dwordx4 v[{T+4}:{T+7}], v{vL16}, s[{S_X}:{S_X+3}], s{sT0} offen"); vm.issue("xrow")
        a(f"buffer_load_dwordx4 v[{T+8}:{T+11}], v{vL16}, s[{S_X}:{S_X+3}], s{sT0} offen offset:1024"); vm.issue("xrow")
        a(f"s_lshl_b32 s{sE}, s{sT5}, 5\ns_add_u32 s{sE}, s{sE}, {WS_STATS}")
        self.l_stage(vm, 1)
        self.srd(S_B1, 14, 2752)
        a(f"v_lshl_add_u32 v{T+13}, s{sLW}, 6, v{vL}\nv_lshlrev_b32 v{T+3}, 1, v{T+13}")
        a(f"s_lshl_b32 s{sT0}, s{sC0}, 6\ns_cmp_lt_u32 s{sG}, 8\ns_cselect_b32 s{sT0}, {OOB}, s{sT0}")
        a(f"buffer_load_ushort v{T+12}, v{T+3}, s[{S_B1}:{S_B1+3}], s{sT0} offen"); vm.issue("bias")
        self.srd(S_WS, 22, WS_SIZE); self.srd(S_W2, 16, 1376*1024); self.srd(S_WO, 8, 512*1024); self.srd(S_OUT, 18, 2097152)
        self.decode2()
        a(f"v_bfe_u32 v{T}, v{vL}, 2, 2\nv_lshrrev_b32 v{T+1}, 1, v{T}\nv_lshlrev_b32 v{T}, 7, v{T}\nv_lshl_add_u32 v{T}, v{T+1}, 6, v{T}")
        a(f"v_bfe_u32 v{T+1}, v{vL}, 4, 1\nv_lshl_add_u32 v{T}, v{T+1}, 5, v{T}\nv_and_b32 v{T+1}, 3, v{vL}\nv_lshl_add_u32 v{T+14}, v{T+1}, 3, v{T}\nv_lshrrev_b32 v{T+15}, 5, v{vL}")
        a(f"s_lshl_b32 s{sB2L}, s{sLW}, 11\nv_lshl_add_u32 v{vB2AL[0]}, v{T+15}, 9, v{T+14}\nv_add_u32 v{vB2AL[0]}, s{sB2L}, v{vB2AL[0]}\nv_xor_b32 v{vB2AL[1]}, 64, v{vB2AL[0]}")
        for hi in (1, 2):
            a(f"v_add_u32 v{vB2AL[2*hi]}, {65536*hi}, v{vB2AL[0]}\nv_add_u32 v{vB2AL[2*hi+1]}, {65536*hi}, v{vB2AL[1]}")
        a(f"v_and_b32 v{T}, 15, v{vL}\nv_lshlrev_b32 v{T}, 2, v{T}\nv_add_u32 v{T}, {L_FL}, v{T}\nv_mov_b32 v{T+1}, 0\nds_write_b32 v{T}, v{T+1}")

    def l_colsum(self):
        a = self.a; T = ACC2; F = AR; S = T + 16
        a(f"s_mul_i32 s{sT0}, s{sLW}, 6144\ns_add_u32 s{sT0}, s{sT0}, {L_W}\nv_mul_u32_u24 v{T}, 3072, v{T+15}\nv_add3_u32 v{T}, v{T}, v{T+14}, s{sT0}\nv_xor_b32 v{T+1}, 64, v{T}")
        for u in range(3):
            for c in range(2):
                for rd in range(2):
                    r = F + 8*u + 4*c + 2*rd
                    a(f"ds_read_b64_tr_b16 v[{r}:{r+1}], v{T+c} offset:{1024*u + 512*rd}")
        a(f"s_mov_b32 s{sT0}, 0x3f803f80")
        for k in range(6): a(f"v_mov_b32 v{S+k}, 0")
        a(f"s_mul_i32 s{sT1}, s{sLW}, 1536\ns_add_u32 s{sT1}, s{sT1}, {L_KV}\nv_and_b32 v{T+2}, 31, v{vL}\nv_lshl_add_u32 v{T+2}, v{T+2}, 2, s{sT1}\nv_mul_u32_u24 v{T+3}, 768, v{T+15}\nv_add_u32 v{T+2}, v{T+2}, v{T+3}")
        a("s_waitcnt lgkmcnt(0)")
        for k in range(4):
            for uc in range(6): a(f"v_dot2c_f32_bf16 v{S+uc}, s{sT0}, v{F+4*uc+k}")
        a("s_nop 2")
        for uc in range(6): a(f"ds_write_b32 v{T+2}, v{S+uc} offset:{128*uc}")

    def wave_sum2(self, v0, v1):
        a = self.a
        for m in ("quad_perm:[1,0,3,2]", "quad_perm:[2,3,0,1]", "row_half_mirror", "row_mirror"):
            a(f"s_nop 0\nv_add_f32_dpp v{v0}, v{v0}, v{v0} {m} row_mask:0xf bank_mask:0xf\nv_add_f32_dpp v{v1}, v{v1}, v{v1} {m} row_mask:0xf bank_mask:0xf")
        t0, t1 = AR + 40, AR + 41
        for op in ("v_permlane16_swap_b32", "v_permlane32_swap_b32"):
            a(f"v_mov_b32 v{t0}, v{v0}\nv_mov_b32 v{t1}, v{v1}\ns_nop 1\n{op} v{t0}, v{v0}\n{op} v{t1}, v{v1}\ns_nop 0\nv_add_f32 v{v0}, v{v0}, v{t0}\nv_add_f32 v{v1}, v{v1}, v{t1}")

    def l_stats(self, vm):
        a = self.a; T = ACC2; u = AR
        vm.wait("xrow")
        for r in range(2):
            for k in range(4):
                a(f"v_lshlrev_b32 v{u+8*r+2*k}, 16, v{T+4+4*r+k}\nv_and_b32 v{u+8*r+2*k+1}, 0xffff0000, v{T+4+4*r+k}")
        s0, s1 = u + 16, u + 17
        for r, s in ((0, s0), (1, s1)): a(f"v_add_f32 v{s}, v{u+8*r}, v{u+8*r+1}")
        for k in range(2, 8):
            for r, s in ((0, s0), (1, s1)): a(f"v_add_f32 v{s}, v{s}, v{u+8*r+k}")
        self.wave_sum2(s0, s1)
        G0, G1 = u + 20, u + 24
        a(f"v_mul_f32 v{G0}, {f2u(1/512.):#x}, v{s0}\nv_mul_f32 v{G1}, {f2u(1/512.):#x}, v{s1}")
        for k in range(8):
            a(f"v_sub_f32 v{u+k}, v{u+k}, v{G0}\nv_sub_f32 v{u+8+k}, v{u+8+k}, v{G1}")
        a(f"v_mul_f32 v{s0}, v{u}, v{u}\nv_mul_f32 v{s1}, v{u+8}, v{u+8}")
        for k in range(1, 8): a(f"v_fmac_f32 v{s0}, v{u+k}, v{u+k}\nv_fmac_f32 v{s1}, v{u+8+k}, v{u+8+k}")
        self.wave_sum2(s0, s1)
        a(f"v_mov_b32 v{u}, {f2u(1e-5):#x}\nv_mov_b32 v{u+1}, {f2u(1e-5):#x}\nv_fmac_f32 v{u}, {f2u(1/512.):#x}, v{s0}\nv_fmac_f32 v{u+1}, {f2u(1/512.):#x}, v{s1}")
        a(f"v_rsq_f32 v{u}, v{u}\nv_rsq_f32 v{u+1}, v{u+1}\nv_mov_b32 v{G0+2}, 0\nv_mov_b32 v{G0+3}, s{sTAG}\nv_mov_b32 v{G1+2}, 0\nv_mov_b32 v{G1+3}, s{sTAG}")
        a(f"v_mul_f32 v{G0+1}, {f2u(LOG2E):#x}, v{u}\nv_mul_f32 v{G1+1}, {f2u(LOG2E):#x}, v{u+1}")
        self.lane0(u + 2)
        a(f"buffer_store_dwordx4 v[{G0}:{G0+3}], v{u+2}, s[{S_WS}:{S_WS+3}], s{sE} offen sc1"); vm.issue("statst")
        a(f"buffer_store_dwordx4 v[{G1}:{G1+3}], v{u+2}, s[{S_WS}:{S_WS+3}], s{sE} offen offset:16 sc1"); vm.issue("statst")
        vm.wait("bias")
        a(f"v_lshlrev_b32 v{u+3}, 16, v{T+12}\nv_mul_f32 v{u+3}, {f2u(LOG2E):#x}, v{u+3}\nv_lshlrev_b32 v{u+4}, 2, v{T+13}\nv_add_u32 v{u+4}, {L_BT}, v{u+4}")
        a(f"s_cmp_eq_u32 s{sLW}, 3\ns_cbranch_scc1 L_nobt\nds_write_b32 v{u+4}, v{u+3}")
        a.label("L_nobt")

    def l_cspub(self, vm):
        a = self.a; T = ACC2 + 24; U = B2R
        a(f"s_mov_b32 s{sT0}, {OOB}\ns_cmp_lg_u32 s{sLW}, 0\ns_cbranch_scc1 L_nocsp")
        a(f"v_lshlrev_b32 v{T}, 2, v{vL}\nv_add_u32 v{T}, {L_KV}, v{T}")
        for k in range(0, 24, 2): a(f"ds_read2st64_b32 v[{U+k}:{U+k+1}], v{T} offset0:{k} offset1:{k+1}")
        a(f"v_mov_b32 v{T+3}, s{sTAG}")
        a(f"s_lshl4_add_u32 s{sT0}, s{sG}, s{sRB}\ns_lshl_b32 s{sT0}, s{sT0}, 10\ns_add_u32 s{sT0}, s{sT0}, {WS_CSP}")
        a("s_waitcnt lgkmcnt(0)")
        for sl in range(1, 7):
            for u in range(3): a(f"v_add_f32 v{U+u}, v{U+u}, v{U+3*sl+u}")
        for u in range(3): a(f"v_add_f32 v{T+u}, v{U+u}, v{U+21+u}")
        a.label("L_nocsp")
        a(f"buffer_store_dwordx4 v[{T}:{T+3}], v{vL16}, s[{S_WS}:{S_WS+3}], s{sT0} offen sc1"); vm.issue("cspst")

    def l_steptable(self):
        a = self.a
        for k, d in ((0, sT4), (1, sT5)):
            a(f"s_lshl_b32 s{sT0}, s{sLW}, 1\ns_add_u32 s{sT0}, s{sT0}, {k}\ns_min_u32 s{sT1}, s{sT0}, 3\ns_mul_i32 s{sT0}, s{sT0}, 5\ns_add_u32 s{sT0}, s{sT0}, s{sT1}\ns_lshl_b32 s{d}, s{sT0}, 1")
        a(f"s_lshl_b32 s{sT3}, s{sLW}, 3\ns_add_u32 s{sT3}, s{sT3}, 88")
        for i in range(8):
            a(f"s_add_u32 s{sT0}, s{sROT}, {i}\ns_and_b32 s{sT2}, s{sT0}, 7\ns_and_b32 s{sT1}, s{sT0}, 3\ns_bitcmp1_b32 s{sT0}, 2\ns_cselect_b32 s{sT0}, s{sT5}, s{sT4}")
            a(f"s_add_u32 s{sT0}, s{sT0}, s{sT1}\ns_lshl_b32 s{SP[i]}, s{sT0}, 10\ns_add_u32 s{SP[8+i]}, s{SP[i]}, 4096")
            a(f"s_add_u32 s{sT2}, s{sT2}, s{sT3}\ns_lshl_b32 s{SP[22+i]}, s{sT2}, 10")
        tab = [[4, 5, 10], [11, 16, 17], [22, 27, 32], [37, 42, 43]]
        a(f"s_lshl_b32 s{sT0}, s{sLW}, 3\ns_or_b32 s{sT0}, s{sT0}, 0x80000")
        for k, d in ((0, sT3), (1, sT4), (2, sT5)):
            c = sum(tab[q][k] << (8*q) for q in range(4))
            a(f"s_bfe_u32 s{d}, {c:#x}, s{sT0}\ns_lshl_b32 s{d}, s{d}, 11")
        a(f"s_cmp_eq_u32 s{sLW}, 3\ns_cselect_b32 s{sT5}, {WS_SIZE}, s{sT5}")
        a(f"s_sub_u32 s{sT0}, s{sROT}, 6\ns_cmp_ge_u32 s{sROT}, 6\ns_cselect_b32 s{sT0}, s{sT0}, s{sROT}")
        for i in range(6):
            a(f"s_cmp_ge_u32 s{sT0}, 2\ns_cselect_b32 s{sT1}, s{sT4}, s{sT3}\ns_cmp_ge_u32 s{sT0}, 4\ns_cselect_b32 s{sT1}, s{sT5}, s{sT1}")
            a(f"s_and_b32 s{sT2}, s{sT0}, 1\ns_lshl_b32 s{sT2}, s{sT2}, 10\ns_add_u32 s{SP[16+i]}, s{sT1}, s{sT2}")
            if i < 5: a(f"s_add_u32 s{sT0}, s{sT0}, 1\ns_cmp_eq_u32 s{sT0}, 6\ns_cselect_b32 s{sT0}, 0, s{sT0}")
        a(f"s_lshl_b32 s{sB2C}, s{sCT}, 7\ns_sub_u32 s{sB2C2}, s{sB2C}, {88*16384}")
        a(f"s_mul_i32 s{sA2B}, s{sRT}, {2*A2_RT}\ns_add_u32 s{sA2B}, s{sA2B}, {WS_A2}\nv_add_u32 v{vL16B}, {A2_RT}, v{vL16}")

    def l_gather_issue(self, vm):
        a = self.a; T = ACC2; G = AR
        a(f"s_lshl2_add_u32 s{sT4}, s{sRB}, s{sLW}\ns_lshl_b32 s{sT4}, s{sT4}, 9\ns_add_u32 s{sT4}, s{sT4}, {WS_STATS}")
        a(f"s_and_b32 s{sT5}, s{sRB}, 8\ns_lshl4_add_u32 s{sT5}, s{sG}, s{sT5}\ns_lshl2_add_u32 s{sT5}, s{sT5}, s{sLW}\ns_lshl_b32 s{sT5}, s{sT5}, 8\ns_add_u32 s{sT5}, s{sT5}, {WS_CSP}")
        a(f"v_and_b32 v{T}, 0x1f0, v{vL16}\nv_lshrrev_b32 v{T+1}, 4, v{vL}\nv_lshlrev_b32 v{T+1}, 10, v{T+1}\nv_and_b32 v{T+2}, 0xf0, v{vL16}\nv_or_b32 v{T+1}, v{T+1}, v{T+2}\nv_add_u32 v{T+2}, 4096, v{T+1}")
        a(f"buffer_load_dwordx4 v[{G}:{G+3}], v{T}, s[{S_WS}:{S_WS+3}], s{sT4} offen sc1"); vm.issue("gath")
        a(f"buffer_load_dwordx4 v[{G+4}:{G+7}], v{T+1}, s[{S_WS}:{S_WS+3}], s{sT5} offen sc1"); vm.issue("gath")
        a(f"buffer_load_dwordx4 v[{G+8}:{G+11}], v{T+2}, s[{S_WS}:{S_WS+3}], s{sT5} offen sc1"); vm.issue("gath")
    def l_gather_check(self, vm):
        a = self.a; T = ACC2; G = AR
        vm.wait("gath")
        a(f"s_mov_b32 s{sSPIN}, 0")
        a.label("L_gchk")
        a(f"v_cmp_ne_u32 vcc, s{sTAG}, v{G+3}\nv_cmp_ne_u32 s[{sEX}:{sEX+1}], s{sTAG}, v{G+7}\ns_nop 1\ns_or_b64 s[{sEX}:{sEX+1}], vcc, s[{sEX}:{sEX+1}]")
        a(f"v_cmp_ne_u32 vcc, s{sTAG}, v{G+11}\ns_nop 1\ns_or_b64 vcc, vcc, s[{sEX}:{sEX+1}]")
        a(f"s_cbranch_vccz L_gok")
        a(f"s_add_u32 s{sSPIN}, s{sSPIN}, 1\ns_cmp_gt_u32 s{sSPIN}, 0x8000\ns_cbranch_scc1 L_gok")
        self.l_gather_issue(VM(a))
        a(f"s_waitcnt vmcnt(0)\ns_branch L_gchk")
        a.label("L_gok")
        a(f"s_lshl_b32 s{sT0}, s{sLW}, 7\ns_add_u32 s{sT0}, s{sT0}, {L_MT}\nv_and_b32 v{T}, 31, v{vL}\nv_lshl_add_u32 v{T}, v{T}, 2, s{sT0}")
        a(f"ds_write_b32 v{T}, v{G}\nds_write_b32 v{T}, v{G+1} offset:512")
        for k in range(3): a(f"v_add_f32 v{G+4+k}, v{G+4+k}, v{G+8+k}")
        for op in ("v_permlane16_swap_b32", "v_permlane32_swap_b32"):
            for k in range(3): a(f"v_mov_b32 v{G+8+k}, v{G+4+k}")
            a("s_nop 0")
            for k in range(3): a(f"{op} v{G+8+k}, v{G+4+k}")
            a("s_nop 0")
            for k in range(3): a(f"v_add_f32 v{G+4+k}, v{G+4+k}, v{G+8+k}")
        a(f"s_lshl_b32 s{sT0}, s{sLW}, 6\ns_add_u32 s{sT0}, s{sT0}, {L_CS}\nv_lshl_add_u32 v{T+1}, v{vL}, 2, s{sT0}\ns_mov_b64 exec, 0xffff")
        a(f"ds_write2st64_b32 v{T+1}, v{G+4}, v{G+5} offset1:1\nds_write_b32 v{T+1}, v{G+6} offset:512\ns_mov_b64 exec, -1")

    def b2_dma(self, vm, step, pace=True):
        a = self.a
        if pace: vm.depth(self.o['pace'] - 2)
        srd, base = (S_W2, sB2C) if step < 22 else (S_WO, sB2C2)
        a(f"s_add_u32 m0, s{sB2L}, {8192*round_of(step)}\ns_lshl4_add_u32 s{sT0}, s{SP[step]}, s{base}")
        a(f"buffer_load_dwordx4 v{vB2D}, s[{srd}:{srd+3}], s{sT0} offen lds"); vm.issue(f"b2_{step}")
        a(f"buffer_load_dwordx4 v{vB2D+1}, s[{srd}:{srd+3}], s{sT0} offen offset:1024 lds"); vm.issue(f"b2_{step}")
    def b2_reads(self, s, dst):
        rnd = round_of(s); hi, lo = rnd // 8, rnd % 8
        for cc in range(2):
            for rd in range(2):
                r = dst + 4*cc + 2*rd
                self.a(f"ds_read_b64_tr_b16 v[{r}:{r+1}], v{vB2AL[2*hi + cc]} offset:{8192*lo + 1024*rd}")

    def l_main(self):
        a = self.a; vm = VM(a); T = ACC2
        self.l_prologue(vm)
        for t in range(8):
            vm.wait(f"st{t}", lgkm=0)
            a("s_barrier")
            if self.o['kstamps'] or t in (0, 7): self.stamp(2 + t)
            if t == 0: self.tag()
            if t + 2 < 8: self.l_stage(vm, t + 2)
            if t == 0: self.l_colsum(); self.l_stats(vm)
            if t == 1: self.l_cspub(vm)
            if t == 2: self.l_steptable(); self.final_addr(vm, T, T + 1)
            if t == 3: self.l_gather_issue(vm)
            if t == 5: self.l_gather_check(vm)
            if t == 6:
                for s in range(4): self.b2_dma(vm, s, pace=False)
        a(f"v_and_b32 v{T}, 7, v{vL}\nv_lshrrev_b32 v{T+1}, 5, v{vL}\nv_xor_b32 v{T+1}, v{T+1}, v{T}\nv_lshlrev_b32 v{T+1}, 4, v{T+1}\nv_lshl_add_u32 v{T+1}, v{T}, 8, v{T+1}")
        a(f"v_bfe_u32 v{T}, v{vL}, 3, 2\nv_lshl_add_u32 v{T+1}, v{T}, 13, v{T+1}\nv_add_u32 v{vRW}, s{sB2L}, v{T+1}")
        for q in range(1, 4): a(f"v_xor_b32 v{vRW+q}, {32*q}, v{vRW}")
        for s in range(4, 13): self.b2_dma(vm, s)
        def park(k):
            vm.wait(f"b2_{k}")
            self.b2_reads(k, B2R + 8*k)
        park(0)
        for k in range(1, 4):
            park(k); a("s_waitcnt lgkmcnt(4)"); self.b2_dma(vm, 17 + k)
        a(f"v_and_b32 v{T}, 3, v{vL}\nv_lshlrev_b32 v{T}, 2, v{T}\nv_add_u32 v{T}, {L_FL}, v{T}")
        self.spin_lds("ring", T, T + 1, 0)
        self.stamp(10)
        for s in range(13, 18): self.b2_dma(vm, s)
        for k in range(4, 12):
            park(k); a("s_waitcnt lgkmcnt(4)"); self.b2_dma(vm, 17 + k)
        a("s_waitcnt lgkmcnt(0)"); self.b2_dma(vm, 29)
        self.stamp(11)
        vP0, vP2, vPT = 249, 250, 251
        a(f"s_lshl_b32 s{sXO}, s{sRT}, 12\ns_add_u32 s{sXO}, s{sXO}, {WS_FLAG}")
        a(f"v_and_b32 v{vP0}, 3, v{vL}\nv_min_u32 v{vP2}, 2, v{vP0}\ns_lshl_b32 s{sT0}, s{sLW}, 2\nv_add_u32 v{vP0}, s{sT0}, v{vP0}\nv_lshlrev_b32 v{vP0}, 7, v{vP0}")
        a(f"s_mul_i32 s{sT0}, s{sLW}, 3\ns_mul_i32 s{sT1}, s{sLW}, 6\ns_sub_u32 s{sT1}, s{sT1}, 6\ns_cmp_lt_u32 s{sLW}, 2\ns_cselect_b32 s{sT0}, s{sT0}, s{sT1}\ns_cselect_b32 s{sT1}, 0, 1")
        a(f"v_lshlrev_b32 v{vP2}, s{sT1}, v{vP2}\nv_add_u32 v{vP2}, s{sT0}, v{vP2}\nv_min_u32 v{vP2}, 14, v{vP2}\nv_lshlrev_b32 v{vP2}, 7, v{vP2}")
        polls = {0: (vP0, 2048), 8: (vP0, 2052), 16: (vP2, 2056), 22: (vP0, 0)}
        def a_load(i):
            r = AR + 8*(i % ARING)
            a(f"s_add_u32 s{sT0}, s{sA2B}, s{SP[i]}")
            a(f"buffer_load_dwordx4 v[{r}:{r+3}], v{vL16}, s[{S_WS}:{S_WS+3}], s{sT0} offen sc1"); vm.issue(f"a{i}")
            a(f"buffer_load_dwordx4 v[{r+4}:{r+7}], v{vL16B}, s[{S_WS}:{S_WS+3}], s{sT0} offen sc1"); vm.issue(f"a{i}")
        def poll_issue(c):
            v, imm = polls[c]
            off = f" offset:{imm}" if imm else ""
            a(f"buffer_load_dword v{vPT}, v{v}, s[{S_WS}:{S_WS+3}], s{sXO} offen{off} sc1"); vm.issue(f"p{c}")
        def poll_check(c):
            v, imm = polls[c]
            vm.wait(f"p{c}")
            a(f"v_cmp_ne_u32 vcc, s{sTAG}, v{vPT}\ns_cbranch_vccz L_pok{c}")
            self.spin_global(f"p{c}", v, vPT, sXO, imm)
            a.label(f"L_pok{c}")
            self.stamp({0: 12, 8: 13, 16: 14, 22: 15}[c])
        LEAD = self.o.get('lead', 3)
        poll_issue(0); poll_check(0)
        a("s_setprio 1")
        def issue_a(n):
            if n in polls and n > 0: poll_check(n)
            a_load(n)
            if n + LEAD in polls: poll_issue(n + LEAD)
        for i in range(ARING): issue_a(i)
        def breg(i): return B2R + 8*i if i < NREG else BT + 8*(i & 1)
        for i in range(30):
            if i + 1 >= NREG and i + 1 < 30: self.b2_reads(i + 1, breg(i + 1))
            lg = None
            if i >= NREG: lg = 4 if i + 1 < 30 else 0
            vm.wait(f"a{i}", lgkm=lg)
            A, B = AR + 8*(i % ARING), breg(i)
            for cc in range(2):
                for t in range(2):
                    acc = f"v[{ACC2+16*(2*t+cc)}:{ACC2+16*(2*t+cc)+15}]"
                    a(f"v_mfma_f32_32x32x16_bf16 {acc}, v[{B+4*cc}:{B+4*cc+3}], v[{A+4*t}:{A+4*t+3}], {'0' if i == 0 else acc}")
            n = i + ARING
            if n < 30: issue_a(n)
        self.stamp(16)
        a("s_nop 7\ns_nop 3")
        for t in range(2):
            for cc in range(2):
                for q in range(4):
                    r = ACC2 + 16*(2*t+cc) + 4*q
                    a(f"ds_write_b128 v{vRW+q}, v[{r}:{r+3}] offset:{32768*t + 128*cc}")
        a("s_branch L_final")

    def c_prologue(self, vm):
        a = self.a; T = CT
        n = self.o['pf_lanes']
        if n:
            a(f"s_getpc_b64 s[{sT0+1}:{sT0+2}]")
            a.label("L_pc")
            a(f"s_sub_u32 s{sT0+1}, s{sT0+1}, L_pc-L_code0\ns_subb_u32 s{sT0+2}, s{sT0+2}, 0")
            a(f"s_bfe_u32 s{sT0}, s2, 0x20003\ns_lshl2_add_u32 s{sT0}, s{sT0}, s{sW}\ns_mul_i32 s{sT0}, s{sT0}, {n}")
            a(f"v_min_u32 v{T}, {n-1}, v{vL}\nv_add_u32 v{T}, s{sT0}, v{T}\nv_lshlrev_b32 v{T}, 7, v{T}\nv_min_u32 v{T}, L_codeend-L_code0-4, v{T}")
            a(f"global_load_dword v{T+1}, v{T}, s[{sT0+1}:{sT0+2}]"); vm.issue("codepf")
        a(f"s_and_b32 s{sR2}, s{sW}, 1\ns_lshr_b32 s{sC}, s{sW}, 1")
        a(f"v_and_b32 v{T+2}, 31, v{vL}\nv_lshrrev_b32 v{T+3}, 5, v{vL}\nv_bfe_u32 v{T+4}, v{vL}, 1, 3\nv_xor_b32 v{T+4}, v{T+4}, v{T+3}")
        a(f"s_lshl_b32 s{sT3}, s{sR2}, 13\nv_lshlrev_b32 v{T+2}, 7, v{T+2}\nv_lshl_add_u32 v{T+2}, v{T+4}, 4, v{T+2}\nv_add_u32 v{vXA}, s{sT3}, v{T+2}")
        for kk in range(1, 4): a(f"v_xor_b32 v{vXA+kk}, {32*kk}, v{vXA}")
        a(f"v_bfe_u32 v{T+2}, v{vL}, 2, 2\nv_mul_u32_u24 v{T+4}, 3072, v{T+3}\nv_lshl_add_u32 v{T+4}, v{T+2}, 7, v{T+4}")
        a(f"v_lshrrev_b32 v{T+2}, 1, v{T+2}\nv_xor_b32 v{T+2}, s{sC}, v{T+2}\nv_lshl_add_u32 v{T+4}, v{T+2}, 6, v{T+4}")
        a(f"v_bfe_u32 v{T+2}, v{vL}, 4, 1\nv_lshl_add_u32 v{T+4}, v{T+2}, 5, v{T+4}\nv_and_b32 v{T+2}, 3, v{vL}\nv_lshl_add_u32 v{T+4}, v{T+2}, 3, v{T+4}")
        for sl in range(3): a(f"v_add_u32 v{vWA+sl}, {L_W + 24576*sl}, v{T+4}")
        self.decode2()
        a("s_waitcnt lgkmcnt(0)")
        a(f"s_load_dword s{sTAG}, s[22:23], {WS_EPOCH}")
        self.srd(S_X, 4, 2097152); self.srd(S_WS, 22, WS_SIZE); self.srd(S_OUT, 18, 2097152)
        a(f"s_mov_b32 s{sMASK}, 0x0000ffff\ns_mov_b32 s{sMASK+1}, 0x0000ffff")
        a(f"s_lshl1_add_u32 s{sT0}, s{sRB}, s{sR2}\ns_mul_i32 s{sA2B}, s{sT0}, {2*A2_RT}\ns_add_u32 s{sA2B}, s{sA2B}, {WS_A2}")
        a(f"s_lshl4_add_u32 s{sT0}, s{sT0}, s{sG}\ns_lshl1_add_u32 s{sT0}, s{sT0}, s{sC}\ns_lshl_b32 s{sFL}, s{sT0}, 7\ns_add_u32 s{sFL}, s{sFL}, {WS_FLAG}")
        a(f"v_add_u32 v{vL16B}, {A2_RT}, v{vL16}")
        if self.o['cprio']: a(f"s_setprio {self.o['cprio']}")

    def c_read_list(self, n):
        t, kk = n // 4, n % 4; slot = t % 3; b = n & 1
        def x(a_): return f"ds_read_b128 v[{XF+8*b+4*a_}:{XF+8*b+4*a_+3}], v{vXA+kk} offset:{slot*16384 + 4096*a_}"
        def w(u, rd):
            r = WF + 12*b + 4*u + 2*rd
            return f"ds_read_b64_tr_b16 v[{r}:{r+1}], v{vWA+slot} offset:{6144*kk + 1024*u + 512*rd}"
        return [x(0), w(0, 0), w(0, 1), x(1), w(1, 0), w(1, 1), w(2, 0), w(2, 1)]
    def c_mfma(self, n, u, t_, att):
        b = n & 1
        x = f"v[{XF+8*b+4*t_}:{XF+8*b+4*t_+3}]"; w = f"v[{WF+12*b+4*u}:{WF+12*b+4*u+3}]"
        A = ACC + 16*(2*u + t_); acc = f"v[{A}:{A+15}]"; c = "0" if n == 0 else acc
        if att and u > 0: return f"v_mfma_f32_32x32x16_bf16 {acc}, {x}, {w}, {c}"
        return f"v_mfma_f32_32x32x16_bf16 {acc}, {w}, {x}, {c}"

    def c_kloop(self, att):
        a = self.a
        a("s_waitcnt lgkmcnt(0)\ns_barrier")
        self.stamp(2)
        self.tag()
        for r in self.c_read_list(0): a(r)
        for n in range(32):
            boundary = (n % 4 == 3)
            if boundary:
                a("s_waitcnt lgkmcnt(0)")
                if n < 31:
                    a("s_barrier")
                    if self.o['kstamps'] or n == 27: self.stamp(3 + n // 4)
                else:
                    a(f"s_lshl_b32 s{sT0}, s{sW}, 2\ns_add_u32 s{sT0}, s{sT0}, {L_FL}\nv_mov_b32 v{CT}, s{sT0}\nv_mov_b32 v{CT+1}, 1\nds_write_b32 v{CT}, v{CT+1}")
            R = self.c_read_list(n + 1) if n < 31 else [None]*8
            M = [self.c_mfma(n, u, t_, att) for u in range(3) for t_ in range(2)]
            waits = {0: 5, 1: 6, 2: 6, 4: 8}
            for k in range(6):
                if not boundary and k in waits: a(f"s_waitcnt lgkmcnt({waits[k]})")
                a(M[k])
                if k < 4 and R[0]: a(R[2*k]); a(R[2*k+1])
        self.stamp(10)

    def consts(self):
        T = CT
        self.a(f"v_mov_b32 v{T}, 2.0\nv_mov_b32 v{T+2}, {f2u(-2*LN2):#x}\nv_mov_b32 v{T+4}, {f2u(LN2):#x}\nv_mov_b32 v{T+6}, 1.0\nv_mov_b32 v{T+8}, {f2u(1e-6):#x}")
    def table_reads(self, dst, vaddr, off):
        for q in range(4):
            self.a(f"ds_read_b128 v[{dst+4*q}:{dst+4*q+3}], v{vaddr} offset:{off + 32*q}")
    def lane_stats(self):
        a = self.a; T = CT
        a(f"s_lshl_b32 s{sT0}, s{sR2}, 8\ns_add_u32 s{sT0}, s{sT0}, {L_MT}\nv_and_b32 v{T+22}, 31, v{vL}\nv_lshl_add_u32 v{T+23}, v{T+22}, 2, s{sT0}")
        a(f"ds_read_b32 v{T+10}, v{T+23}\nds_read_b32 v{T+12}, v{T+23} offset:512\nds_read_b32 v{T+14}, v{T+23} offset:128\nds_read_b32 v{T+16}, v{T+23} offset:640")
    def flag(self, vm, soff, imm):
        a = self.a; T = CT
        off = f" offset:{imm}" if imm else ""
        a(f"buffer_store_dword v{T+21}, v{T+20}, s[{S_WS}:{S_WS+3}], s{soff} offen{off} sc1"); vm.issue("flag")
    def flag_regs(self):
        self.lane0(CT + 20); self.a(f"v_mov_b32 v{CT+21}, s{sTAG}")

    def c_epi_mlp(self, vm):
        a = self.a; T = CT; P = range(0, 16, 2)
        CS, BB, CP, U = [116, 132], [148, 164], 180, 196
        a(f"v_lshrrev_b32 v{T+18}, 5, v{vL}\ns_lshl_b32 s{sT0}, s{sC}, 7\ns_add_u32 s{sT0}, s{sT0}, {L_TAB}\nv_lshl_add_u32 v{T+18}, v{T+18}, 4, s{sT0}")
        self.lane_stats()
        self.table_reads(CS[0], T+18, L_CS - L_TAB); self.table_reads(BB[0], T+18, L_BT - L_TAB)
        self.consts(); self.flag_regs()
        self.final_addr(vm, T+22, T+23)
        a(f"s_add_u32 s{sT1}, s{sC0}, s{sC}\ns_lshl_b32 s{sT1}, s{sT1}, 11\ns_add_u32 s{sA2B}, s{sA2B}, s{sT1}")
        a("s_waitcnt lgkmcnt(8)")
        a(f"v_mul_f32 v{T+10}, v{T+10}, v{T+12}\nv_mul_f32 v{T+14}, v{T+14}, v{T+16}")
        for u in range(3):
            cs, bb = CS[u & 1], BB[u & 1]
            if u == 2:
                a(f"s_cmp_ge_u32 s{sG}, 11\ns_cselect_b32 s{sT0}, s{sC}, 0\ns_cmp_eq_u32 s{sT0}, 1\ns_cbranch_scc1 L_mlp_short")
            a("s_waitcnt lgkmcnt(0)")
            if u < 2:
                self.table_reads(CS[(u+1) & 1], T+18, L_CS - L_TAB + 256*(u+1)); self.table_reads(BB[(u+1) & 1], T+18, L_BT - L_TAB + 256*(u+1))
            for t in range(2):
                A = ACC + 16*(2*u + t); mr, rs = T + 10 + 4*t, T + 12 + 4*t
                for k in P: a(f"v_pk_fma_f32 v[{CP+k}:{CP+k+1}], v[{mr}:{mr+1}], v[{cs+k}:{cs+k+1}], v[{bb+k}:{bb+k+1}] op_sel_hi:[0,1,1] neg_lo:[1,0,0] neg_hi:[1,0,0]")
                for k in P: a(f"v_pk_fma_f32 v[{A+k}:{A+k+1}], v[{A+k}:{A+k+1}], v[{rs}:{rs+1}], v[{CP+k}:{CP+k+1}] op_sel_hi:[1,0,1]")
                for k in range(16): a(f"v_exp_f32 v{U+k}, v{A+k}")
                for k in P: a(f"v_pk_add_f32 v[{CP+k}:{CP+k+1}], v[{U+k}:{U+k+1}], v[{T}:{T+1}] op_sel_hi:[1,0]")
                for k in P: a(f"v_pk_fma_f32 v[{U+k}:{U+k+1}], v[{U+k}:{U+k+1}], v[{CP+k}:{CP+k+1}], v[{T}:{T+1}] op_sel_hi:[1,1,0]")
                for k in range(16): a(f"v_rcp_f32 v{U+k}, v{U+k}")
                for k in P: a(f"v_pk_fma_f32 v[{U+k}:{U+k+1}], v[{U+k}:{U+k+1}], v[{T+2}:{T+3}], v[{T+4}:{T+5}] op_sel_hi:[1,0,0]")
                for k in P: a(f"v_pk_mul_f32 v[{U+k}:{U+k+1}], v[{U+k}:{U+k+1}], v[{A+k}:{A+k+1}]")
                for k in P: a(f"v_cvt_pk_bf16_f32 v{A+k//2}, v{U+k}, v{U+k+1}")
                if t == 0: a(f"s_add_u32 s{sT0}, s{sA2B}, {4096*u}")
                vo = vL16B if t else vL16
                a(f"buffer_store_dwordx4 v[{A}:{A+3}], v{vo}, s[{S_WS}:{S_WS+3}], s{sT0} offen sc1"); vm.issue(f"act{u}")
                a(f"buffer_store_dwordx4 v[{A+4}:{A+7}], v{vo}, s[{S_WS}:{S_WS+3}], s{sT0} offen offset:1024 sc1"); vm.issue(f"act{u}")
                if t == 0 and u > 0:
                    vm.wait(f"act{u-1}"); self.flag(vm, sFL, 4*(u-1))
            self.stamp(11 + u)
        vm.wait("act2"); self.flag(vm, sFL, 8)
        a("s_branch L_cdone")
        a.label("L_mlp_short")
        a("s_waitcnt vmcnt(0)"); self.flag(VM(a), sFL, 4)
        a("s_branch L_cdone")

    def phi(self, A, E, dst):
        a = self.a; T = CT; P = range(0, 16, 2)
        for k in range(16): a(f"v_exp_f32 v{E+k}, v{A+k}")
        for k in P: a(f"v_pk_fma_f32 v[{A+k}:{A+k+1}], v[{A+k}:{A+k+1}], v[{T+4}:{T+5}], v[{T+6}:{T+7}] op_sel_hi:[1,0,0]")
        for k in range(16): a(f"v_med3_f32 v{E+k}, v{A+k}, v{E+k}, 1.0")
        for k in P: a(f"v_pk_add_f32 v[{E+k}:{E+k+1}], v[{E+k}:{E+k+1}], v[{T+8}:{T+9}] op_sel_hi:[1,0]")
        for k in P: a(f"v_cvt_pk_bf16_f32 v{dst+k//2}, v{E+k}, v{E+k+1}")

    def kv_write(self, S, flagoff):
        a = self.a; T = CT
        a(f"ds_write_b128 v2, v[{S}:{S+3}]\nds_write_b128 v2, v[{S+4}:{S+7}] offset:1024")
        a(f"s_mov_b32 exec_lo, 0x00010001\ns_mov_b32 exec_hi, 0x00010001")
        a(f"ds_write_b128 v3, v[{S+8}:{S+11}]\nds_write_b128 v3, v[{S+12}:{S+15}] offset:16\ns_mov_b64 exec, -1")
        a(f"v_mov_b32 v7, 1\ns_waitcnt lgkmcnt(0)\nds_write_b32 v6, v7 offset:{flagoff}")
    def kv_add(self, S, D):
        a = self.a
        a(f"ds_read_b128 v[{D}:{D+3}], v4\nds_read_b128 v[{D+4}:{D+7}], v4 offset:1024\nds_read_b128 v[{D+8}:{D+11}], v5\nds_read_b128 v[{D+12}:{D+15}], v5 offset:16")
        a("s_waitcnt lgkmcnt(0)")
        for k in range(0, 16, 2): a(f"v_pk_add_f32 v[{S+k}:{S+k+1}], v[{S+k}:{S+k+1}], v[{D+k}:{D+k+1}]")

    def c_epi_att(self, vm):
        a = self.a; T = CT; P = range(0, 16, 2)
        MT, RT, U, D0, D1 = [116, 132], [148, 164], 180, 116, 132
        Q = [ACC, ACC + 16]; K = [ACC + 32, ACC + 48]; V = [ACC + 64, ACC + 80]
        msk = f"s[{sMASK}:{sMASK+1}]"
        a(f"v_lshrrev_b32 v{T+18}, 5, v{vL}\ns_lshl_b32 s{sT0}, s{sR2}, 8\ns_add_u32 s{sT0}, s{sT0}, {L_MT}\nv_lshl_add_u32 v{T+19}, v{T+18}, 4, s{sT0}")
        self.table_reads(MT[0], T+19, 0); self.table_reads(RT[0], T+19, 512)
        a(f"v_and_b32 v{T+22}, 31, v{vL}\ns_lshl_b32 s{sT0}, s{sC}, 7\ns_add_u32 s{sT0}, s{sT0}, {L_CS}\nv_lshl_add_u32 v{T+22}, v{T+22}, 2, s{sT0}")
        a(f"ds_read_b32 v8, v{T+22} offset:256\nds_read_b32 v10, v{T+22} offset:512")
        a(f"v_lshl_add_u32 v{T+18}, v{T+18}, 4, s{sT0}")
        self.consts(); self.flag_regs()
        a("s_waitcnt lgkmcnt(0)")
        self.table_reads(MT[1], T+19, 128); self.table_reads(RT[1], T+19, 640)
        for t in range(2):
            if t: a("s_waitcnt lgkmcnt(0)"); self.lane_stats()
            for (A, cs) in ((K[t], 8), (V[t], 10)):
                for k in P: a(f"v_pk_fma_f32 v[{A+k}:{A+k+1}], v[{MT[t]+k}:{MT[t]+k+1}], v[{cs}:{cs+1}], v[{A+k}:{A+k+1}] op_sel_hi:[1,0,1] neg_lo:[1,0,0] neg_hi:[1,0,0]")
                for k in P: a(f"v_pk_mul_f32 v[{A+k}:{A+k+1}], v[{A+k}:{A+k+1}], v[{RT[t]+k}:{RT[t]+k+1}]")
        self.table_reads(RT[1], T+18, 0)
        a(f"v_mov_b32 v12, 0x3f803f80")
        for t in range(2):
            self.phi(K[t], U, K[t])
            for k in P: a(f"v_cvt_pk_bf16_f32 v{V[t]+k//2}, v{V[t]+k}, v{V[t]+k+1}")
            for k in range(8): a(f"v_cndmask_b32 v{K[t]+8+k}, v12, v{V[t]+k}, {msk}")
            for k in range(8): a(f"v_cndmask_b32 v{V[t]+8+k}, v{V[t]+k}, v12, {msk}")
        a("s_nop 1")
        first = True
        for t in range(2):
            for hf in range(2):
                for (D, B) in ((D0, K[t] + 8), (D1, V[t] + 8)):
                    c = "0" if (t == 0 and hf == 0) else f"v[{D}:{D+15}]"
                    a(f"v_mfma_f32_32x32x16_bf16 v[{D}:{D+15}], v[{K[t]+4*hf}:{K[t]+4*hf+3}], v[{B+4*hf}:{B+4*hf+3}], {c}")
        a(f"s_lshl1_add_u32 s{sT0}, s{sC}, s{sR2}\ns_xor_b32 s{sT1}, s{sT0}, 1")
        a(f"s_lshl_b32 s{sT2}, s{sT0}, 11\ns_add_u32 s{sT2}, s{sT2}, {L_KV}\nv_add_u32 v2, s{sT2}, v{vL16}")
        a(f"s_lshl_b32 s{sT2}, s{sT1}, 11\ns_add_u32 s{sT2}, s{sT2}, {L_KV}\nv_add_u32 v4, s{sT2}, v{vL16}")
        a(f"s_lshl_b32 s{sT2}, s{sT0}, 7\ns_add_u32 s{sT2}, s{sT2}, {L_Z}\nv_lshl_add_u32 v3, v{vL}, 1, s{sT2}")
        a(f"s_lshl_b32 s{sT2}, s{sT1}, 7\ns_add_u32 s{sT2}, s{sT2}, {L_Z}\nv_and_b32 v5, 48, v{vL}\nv_lshl_add_u32 v5, v5, 1, s{sT2}")
        a(f"s_lshl_b32 s{sT2}, s{sT0}, 2\ns_add_u32 s{sT2}, s{sT2}, {L_FL}\nv_mov_b32 v6, s{sT2}\nv_xor_b32 v13, 4, v6")
        a(f"s_lshl1_add_u32 s{sT0}, s{sG}, s{sC}\ns_lshl_b32 s{sKB}, s{sT0}, 15\ns_add_u32 s{sKB}, s{sKB}, {WS_KVP}")
        a(f"s_lshl_b32 s{sT5}, s{sT0}, 11\ns_add_u32 s{sT5}, s{sT5}, {WS_KVF}")
        S = K[0]
        for k in range(8): a(f"v_cndmask_b32 v{S+k}, v{D1+8+k}, v{D0+k}, {msk}")
        for k in range(8): a(f"v_cndmask_b32 v{S+8+k}, v{D0+k}, v{D1+8+k}, {msk}")
        a(f"s_cmp_eq_u32 s{sR2}, 0\ns_cbranch_scc1 L_kv_pub")
        self.kv_write(S, 16)
        a("s_branch L_kv_q")
        a.label("L_kv_pub")
        self.spin_lds("kv1", 13, 7, 16)
        self.kv_add(S, 116)
        for k in P: a(f"v_cvt_pk_bf16_f32 v{K[1]+k//2}, v{S+k}, v{S+k+1}")
        a(f"v_and_b32 v7, 15, v{vL}\nv_cmp_eq_u32 vcc, 0, v7\nv_mov_b32 v7, {OOB}\nv_add_u32 v9, 1024, v{vL}\nv_cndmask_b32 v7, v7, v9, vcc")
        a(f"s_lshl_b32 s{sT2}, s{sRB}, 11\ns_add_u32 s{sT2}, s{sT2}, s{sKB}")
        a(f"buffer_store_dwordx4 v[{K[1]}:{K[1]+3}], v{vL16}, s[{S_WS}:{S_WS+3}], s{sT2} offen sc1")
        a(f"buffer_store_dwordx4 v[{K[1]+4}:{K[1]+7}], v7, s[{S_WS}:{S_WS+3}], s{sT2} offen sc1")
        a.label("L_kv_q")
        self.stamp(11)
        QCS = RT[1]
        a("s_waitcnt lgkmcnt(0)")
        for t in range(2):
            m, rs = T + 10 + 4*t, T + 12 + 4*t
            for k in P: a(f"v_pk_fma_f32 v[{Q[t]+k}:{Q[t]+k+1}], v[{m}:{m+1}], v[{QCS+k}:{QCS+k+1}], v[{Q[t]+k}:{Q[t]+k+1}] op_sel_hi:[0,1,1] neg_lo:[1,0,0] neg_hi:[1,0,0]")
            for k in P: a(f"v_pk_mul_f32 v[{Q[t]+k}:{Q[t]+k+1}], v[{Q[t]+k}:{Q[t]+k+1}], v[{rs}:{rs+1}] op_sel_hi:[1,0]")
            self.phi(Q[t], U, Q[t])
            if t == 0:
                a(f"s_lshl_b32 s{sT2}, s{sRB}, 7\ns_add_u32 s{sT2}, s{sT2}, s{sT5}\ns_cmp_eq_u32 s{sR2}, 0\ns_cselect_b32 s{sT2}, s{sT2}, {OOB}")
                a("s_waitcnt vmcnt(0)"); vm.drained()
                self.flag(vm, sT2, 0)
        self.final_addr(vm, T+22, T+23)
        a(f"v_and_b32 v7, 15, v{vL}\nv_lshlrev_b32 v7, 7, v7")
        self.spin_global("kv", 7, 9, sT5); vm.drained()
        self.stamp(12)
        a(f"s_lshl_b32 s{sT2}, s{sR2}, 14\ns_add_u32 s{sT2}, s{sT2}, s{sKB}\nv_and_b32 v7, 48, v{vL}\nv_add_u32 v7, 1024, v7")
        G = 116
        for p in range(8):
            if p: a(f"s_add_u32 s{sT2}, s{sT2}, 2048")
            a(f"buffer_load_dwordx4 v[{G+8*p}:{G+8*p+3}], v{vL16}, s[{S_WS}:{S_WS+3}], s{sT2} offen sc1"); vm.issue(f"kvg{p}")
            a(f"buffer_load_dwordx4 v[{G+8*p+4}:{G+8*p+7}], v7, s[{S_WS}:{S_WS+3}], s{sT2} offen sc1"); vm.issue(f"kvg{p}")
        for p in range(8):
            vm.wait(f"kvg{p}")
            d = S if p == 0 else U
            for k in range(8): a(f"v_lshlrev_b32 v{d+2*k}, 16, v{G+8*p+k}\nv_and_b32 v{d+2*k+1}, 0xffff0000, v{G+8*p+k}")
            if p:
                for k in P: a(f"v_pk_add_f32 v[{S+k}:{S+k+1}], v[{S+k}:{S+k+1}], v[{U+k}:{U+k+1}]")
        self.kv_write(S, 32)
        self.spin_lds("kv2", 13, 7, 32)
        self.kv_add(S, 116)
        W = K[1]
        for k in P: a(f"v_cvt_pk_bf16_f32 v{W+k//2}, v{S+k}, v{S+k+1}")
        for k in range(4): a(f"v_cndmask_b32 v{W+8+k}, v{W+4+k}, v{W+k}, {msk}")
        for k in range(4): a(f"v_cndmask_b32 v{W+12+k}, v{W+k}, v{W+4+k}, {msk}")
        O = [[116, 132], [148, 164]]
        a("s_nop 1")
        for t in range(2):
            for hd in range(2):
                a(f"v_mfma_f32_32x32x16_bf16 v[{O[t][hd]}:{O[t][hd]+15}], v[{W+8+4*hd}:{W+11+4*hd}], v[{Q[t]+4*hd}:{Q[t]+4*hd+3}], 0")
        a(f"s_lshl1_add_u32 s{sT0}, s{sG}, s{sC}\ns_lshl_b32 s{sT0}, s{sT0}, 11\ns_add_u32 s{sT0}, s{sT0}, {88*1024}\ns_add_u32 s{sT0}, s{sT0}, s{sA2B}")
        a("s_nop 7")
        R = U
        for t in range(2):
            a(f"v_add_f32 v{R+4*t}, v{T+8}, v{O[t][0]+8}\nv_add_f32 v{R+4*t+2}, v{T+8}, v{O[t][1]}")
        for k in range(4): a(f"v_rcp_f32 v{R+2*k}, v{R+2*k}")
        for k in range(4): a(f"v_mul_f32 v{R+2*k}, v{T+4}, v{R+2*k}")
        for t in range(2):
            for hd in range(2):
                N = O[t][hd] + 8*hd; r = R + 4*t + 2*hd
                for k in range(0, 8, 2): a(f"v_pk_mul_f32 v[{N+k}:{N+k+1}], v[{N+k}:{N+k+1}], v[{r}:{r+1}] op_sel_hi:[1,0]")
                d = V[0] + 8*t + 4*hd
                for k in range(0, 8, 2): a(f"v_cvt_pk_bf16_f32 v{d+k//2}, v{N+k}, v{N+k+1}")
                vo = vL16B if t else vL16
                off = " offset:1024" if hd else ""
                a(f"buffer_store_dwordx4 v[{d}:{d+3}], v{vo}, s[{S_WS}:{S_WS+3}], s{sT0} offen{off} sc1"); vm.issue("o")
        vm.wait("o")
        self.flag(vm, sFL, 0)
        self.stamp(13)

    def c_main(self):
        a = self.a; vm = VM(a)
        a.label("L_C")
        self.c_prologue(vm)
        self.stamp(1)
        a(f"s_cmp_lt_u32 s{sG}, 8\ns_cbranch_scc1 L_Catt")
        self.c_kloop(False); self.c_epi_mlp(vm.copy())
        a.label("L_Catt")
        self.c_kloop(True); self.c_epi_att(vm.copy())
        a(f"s_cmp_lg_u32 s2, 0\ns_cbranch_scc1 L_cdone\ns_cmp_lg_u32 s{sW}, 0\ns_cbranch_scc1 L_cdone")
        a(f"v_lshlrev_b32 v7, 10, v{vL}")
        for k in range(4):
            a(f"s_mov_b32 s{sT0}, {WS_CSP + 65536*k}")
            self.spin_global(f"ep{k}", 7, 9, sT0, 12)
        a(f"s_mov_b32 s{sT0}, {WS_EPOCH}")
        self.flag(VM(a), sT0, 0)
        a.label("L_cdone")
        self.stamp(14)

    def final(self):
        a = self.a
        a.label("L_final")
        a("s_waitcnt vmcnt(0) lgkmcnt(0)\ns_barrier")
        R, X = 20, 60
        a(f"v_xor_b32 v19, 16, v{vRR}")
        for kq in range(4):
            a(f"ds_read_b128 v[{R+8*kq}:{R+8*kq+3}], v{vRR} offset:{2048*kq}\nds_read_b128 v[{R+8*kq+4}:{R+8*kq+7}], v19 offset:{2048*kq}")
        for k in range(4):
            a(f"v_lshlrev_b32 v{X+2*k}, 16, v{XRES+k}\nv_and_b32 v{X+2*k+1}, 0xffff0000, v{XRES+k}")
        for kq in range(4):
            a(f"s_waitcnt lgkmcnt({6-2*kq})")
            for k in range(0, 8, 2): a(f"v_pk_add_f32 v[{X+k}:{X+k+1}], v[{X+k}:{X+k+1}], v[{R+8*kq+k}:{R+8*kq+k+1}]")
        for k in range(0, 8, 2): a(f"v_cvt_pk_bf16_f32 v{R+k//2}, v{X+k}, v{X+k+1}")
        a(f"buffer_store_dwordx4 v[{R}:{R+3}], v{vXO}, s[{S_OUT}:{S_OUT+3}], s{sRES} offen {self.o.get('outsc', '')}")
        if self.stamps:
            a("s_waitcnt vmcnt(0)")
            self.stamp(17); self.rstamp(19)
            a(f"v_writelane_b32 v252, s98, 0\nv_writelane_b32 v252, s96, 18")
            a(f"s_lshl_b32 s{sT0}, s2, 3\ns_add_u32 s{sT0}, s{sT0}, s{sW}\ns_lshl_b32 s{sT0}, s{sT0}, 8\ns_add_u32 s{sT0}, s{sT0}, {WS_STAMP}")
            a(f"v_lshlrev_b32 v14, 2, v{vL}\nbuffer_store_dword v252, v14, s[{S_WS}:{S_WS+3}], s{sT0} offen")

    def build(self):
        a = self.a
        a.label("L_code0")
        self.entry()
        self.l_main()
        self.c_main()
        self.final()
        a.label("L_end")
        a("s_endpgm")
        a.label("L_codeend")
        return single(a.text(), 256, 512, LDS_BYTES, 256, 102, 256)

if __name__ == "__main__":
    out = sys.argv[1] if len(sys.argv) > 1 else "k.s"
    stamps = "stamps" in sys.argv[2:]
    opts = {}
    for kv in sys.argv[2:]:
        if "=" in kv:
            k, v = kv.split("="); opts[k] = eval(v)
    open(out, "w").write(Gen(stamps, opts).build())
```

```python
import sys, math, struct
from asmlib import *

def f2u(x): return struct.unpack("<I", struct.pack("<f", x))[0]
LOG2E = 1.4426950408889634
LN2 = 0.6931471805599453

WS_EPOCH = 0
WS_STATS = 0x1000
WS_CSP   = 0x10000
WS_KVP   = 0x60000
WS_FLAG  = 0x100000
WS_KVF   = 0x140000
WS_A2    = 0x200000
A2_RT    = 120 * 1024
WS_SIZE  = 0x1000000
WS_STAMP = 0xC00000
OOB      = 0x40000000

L_X    = 0
L_W    = 49152
L_MISC = 147456
L_KV   = L_MISC
L_TAB  = L_MISC + 12288
L_CS   = L_TAB
L_BT   = L_CS + 768
L_MT   = L_BT + 768
L_RT   = L_MT + 512
L_FL   = L_RT + 512
LDS_BYTES = 163840

ROUND_OF_STEP = [15, 16, 17, 4, 5, 12, 13, 14, 0, 1, 6, 7, 8, 2, 3, 9, 10, 11]
NREG = 12
ARING = 6
def round_of(step):
    return ROUND_OF_STEP[step] if step < 18 else ROUND_OF_STEP[step - 18]

S_X, S_W, S_W2, S_WO, S_WS, S_OUT, S_B1 = 24, 28, 32, 36, 40, 44, 48
sW, sLW = 52, 53
sR2, sC = 53, 54
sRB, sG, sPH = 55, 56, 57
sCT, sRT, sROT = 58, 59, 60
sTAG = 61
sXO, sWOF, sWSTEP, sWEND = 62, 63, 64, 65
sXB, sLX, sLWB, sWD = 66, 67, 68, 69
sWO1, sWO2 = 70, 71
sB2L, sB2C, sB2C2, sA2B = 72, 73, 74, 75
sC0, sPITCH, sE = 76, 83, 84
sT0, sT1, sT2, sT3, sT4, sT5 = 77, 78, 79, 80, 81, 82
sSPIN = 85
sEX = 86
sMASK = 62
sFL, sKB = 64, 65
sRES = 3
sSTAMP = 92
SP = list(range(4, 24)) + [48, 49, 50, 51, 88, 89, 90, 91, 100, 101]

vL, vL16 = 0, 1
vRR, vXO = 17, 18
XRES = 244
vX, vWv, vB2D, vB2A = 2, 6, 10, 12
vB2AL = [12, 13, 14, 15, 16, 19]
ACC2, AR, BT, B2R = 20, 84, 132, 148
vL16B = 248
vRW = 2
vXA, vWA = 2, 6
ACC, XF, WF = 20, 116, 132
CT = 220

class VM:
    def __init__(self, a): self.a = a; self.q = []
    def issue(self, tag): self.q.append(tag)
    def count(self, *tags):
        idx = max((i for i, t in enumerate(self.q) if t in tags), default=-1)
        return len(self.q) - 1 - idx if idx >= 0 else None
    def wait(self, *tags, lgkm=None):
        n = self.count(*tags)
        s = []
        if n is not None:
            assert n <= 63, n
            s.append(f"vmcnt({n})")
            self.q = self.q[len(self.q) - n:] if n else []
        if lgkm is not None: s.append(f"lgkmcnt({lgkm})")
        if s: self.a("s_waitcnt " + " ".join(s))
    def depth(self, n):
        if len(self.q) > n:
            self.a(f"s_waitcnt vmcnt({n})")
            self.q = self.q[len(self.q) - n:] if n else []
    def drained(self): self.q = []
    def copy(self):
        v = VM(self.a); v.q = list(self.q); return v

class Gen:
    def __init__(self, stamps=False, opts=None):
        self.a = Asm(); self.stamps = stamps
        self.o = dict(pf=1, hold=1, map2=0, classes=0, n0=3, spf=0, xloc=1, g3=1, pace=8, rel_mlp=1, rel_att=0, pollwait=5, hold2=1, kstamps=False, cprio=1, w2pf=5, p0_at=27, rot=8)
        if opts: self.o.update(opts)

    def srd(self, d, p, n):
        self.a(f"s_mov_b32 s{d}, s{p}\ns_mov_b32 s{d+1}, s{p+1}\ns_mov_b32 s{d+2}, {n}\ns_mov_b32 s{d+3}, 0x20000")
    def stamp(self, idx):
        if not self.stamps: return
        self.rstamp(idx)
    def rstamp(self, idx):
        if not self.stamps: return
        if 'only' in self.o and idx not in self.o['only']: return
        self.a(f"s_memrealtime s[{sSTAMP}:{sSTAMP+1}]\ns_waitcnt lgkmcnt(0)\nv_writelane_b32 v252, s{sSTAMP}, {idx}")
    def lane0(self, v):
        self.a(f"v_cmp_eq_u32 vcc, 0, v{vL}\nv_mov_b32 v{v}, {OOB}\ns_nop 0\nv_cndmask_b32 v{v}, v{v}, 0, vcc")
    def tag(self):
        self.a(f"s_mul_i32 s{sTAG}, s{sTAG}, 0x9e3779b1\ns_add_u32 s{sTAG}, s{sTAG}, 0x7f4a7c15")
    def decode2(self):
        a = self.a
        if self.o['map2'] == 0:
            a(f"s_and_b32 s{sT0}, s2, 7\ns_lshr_b32 s{sT1}, s2, 3\ns_and_b32 s{sCT}, s{sT1}, 7\ns_lshr_b32 s{sT1}, s{sT1}, 3")
            if self.o.get('ctmap', 1):
                a(f"s_xor_b32 s{sT1}, s{sT1}, 2\ns_and_b32 s{sROT}, s{sCT}, 1\ns_lshl1_add_u32 s{sROT}, s{sT1}, s{sROT}\ns_lshr_b32 s{sT1}, s{sCT}, 1\ns_mov_b32 s{sCT}, s{sROT}")
            if self.o['xloc']: a(f"s_lshr_b32 s{sRT}, s{sT0}, 1\ns_and_b32 s{sT0}, s{sT0}, 1\ns_lshl2_add_u32 s{sT0}, s{sT0}, s{sRT}")
            a(f"s_lshl2_add_u32 s{sRT}, s{sT0}, s{sT1}\ns_lshl1_add_u32 s{sROT}, s{sT1}, s{sCT}")
        else:
            a(f"s_and_b32 s{sT0}, s2, 1\ns_bfe_u32 s{sT1}, s2, 0x20003\ns_lshl2_add_u32 s{sCT}, s{sT0}, s{sT1}")
            a(f"s_bfe_u32 s{sT0}, s2, 0x20001\ns_lshr_b32 s{sROT}, s2, 5\ns_lshl3_add_u32 s{sRT}, s{sT0}, s{sROT}\ns_lshl1_add_u32 s{sROT}, s{sT1}, s{sROT}")
    def final_addr(self, vm, t0, t1):
        a = self.a
        a(f"v_lshrrev_b32 v{t0}, 3, v{vL}\nv_and_b32 v{t1}, 7, v{vL}\nv_lshlrev_b32 v{vXO}, 10, v{t0}\nv_lshl_add_u32 v{vXO}, v{t1}, 4, v{vXO}")
        a(f"s_lshl3_add_u32 s{sT0}, s{sRT}, s{sW}\ns_lshl_b32 s{sT0}, s{sT0}, 13\ns_lshl_b32 s{sT1}, s{sCT}, 7\ns_add_u32 s{sRES}, s{sT0}, s{sT1}")
        a(f"buffer_load_dwordx4 v[{XRES}:{XRES+3}], v{vXO}, s[{S_X}:{S_X+3}], s{sRES} offen"); vm.issue("xres")
        a(f"v_lshlrev_b32 v{t1}, 1, v{t1}\nv_xor_b32 v{t1}, v{t1}, v{t0}\nv_lshlrev_b32 v{t1}, 4, v{t1}\nv_lshl_add_u32 v{vRR}, v{t0}, 8, v{t1}")
        a(f"s_lshl_b32 s{sT0}, s{sW}, 13\nv_add_u32 v{vRR}, s{sT0}, v{vRR}")

    def spin_global(self, name, vaddr, vtmp, soff, imm=0, srd=S_WS):
        a = self.a
        off = f" offset:{imm}" if imm else ""
        a(f"s_mov_b32 s{sSPIN}, 0")
        a.label(f"L_sp{name}")
        a(f"buffer_load_dword v{vtmp}, v{vaddr}, s[{srd}:{srd+3}], s{soff} offen{off} sc1\ns_add_u32 s{sSPIN}, s{sSPIN}, 1\ns_waitcnt vmcnt(0)")
        a(f"v_cmp_ne_u32 vcc, s{sTAG}, v{vtmp}\ns_cmp_gt_u32 s{sSPIN}, 0x8000\ns_cbranch_scc1 L_sd{name}\ns_cbranch_vccz L_sd{name}\ns_sleep {self.o.get('sleep', 2)}\ns_branch L_sp{name}")
        a.label(f"L_sd{name}")
    def spin_lds(self, name, vaddr, vtmp, off):
        a = self.a
        a(f"s_mov_b32 s{sSPIN}, 0")
        a.label(f"L_sp{name}")
        a(f"ds_read_b32 v{vtmp}, v{vaddr} offset:{off}\ns_add_u32 s{sSPIN}, s{sSPIN}, 1\ns_waitcnt lgkmcnt(0)")
        a(f"v_cmp_ne_u32 vcc, 1, v{vtmp}\ns_cmp_gt_u32 s{sSPIN}, 0x40000\ns_cbranch_scc1 L_sd{name}\ns_cbranch_vccnz L_sp{name}")
        a.label(f"L_sd{name}")

    def entry(self):
        a = self.a
        a("s_cmp_ge_u32 s2, 256\ns_cbranch_scc1 L_end")
        a("s_load_dwordx16 s[4:19], s[0:1], 0\ns_load_dwordx4 s[20:23], s[0:1], 64")
        if self.o['pf']:
            a(f"s_getpc_b64 s[{sT0+1}:{sT0+2}]\ns_bfe_u32 s{sT0}, s2, 0x20003\ns_lshl_b32 s{sT0}, s{sT0}, 13\nv_lshlrev_b32 v2, 4, v0\nv_add_u32 v2, s{sT0}, v2")
            a.label("L_pc")
            a(f"v_min_u32 v2, L_codeend-L_pc, v2\ns_mov_b32 exec_lo, 0x01010101\ns_mov_b32 exec_hi, 0x01010101\nglobal_load_dword v253, v2, s[{sT0+1}:{sT0+2}]\ns_mov_b64 exec, -1")
        if self.stamps:
            a("v_mov_b32 v252, 0\ns_memrealtime s[96:97]")
        a(f"v_lshrrev_b32 v1, 6, v0\nv_and_b32 v{vL}, 63, v0\nv_readfirstlane_b32 s{sW}, v1")
        a(f"s_bfe_u32 s{sT0}, s2, 0x30003\ns_and_b32 s{sT1}, s2, 1\ns_lshl3_add_u32 s{sRB}, s{sT1}, s{sT0}")
        a(f"s_lshr_b32 s{sT1}, s2, 6\ns_bfe_u32 s{sT2}, s2, 0x20001")
        if self.o['g3']: a(f"s_xor_b32 s{sT2}, s{sT2}, 3")
        a(f"s_lshl2_add_u32 s{sG}, s{sT1}, s{sT2}")
        a(f"s_sub_u32 s{sT0}, s{sG}, 8\ns_min_u32 s{sT1}, s{sT0}, 3\ns_mul_i32 s{sC0}, s{sT0}, 5\ns_add_u32 s{sC0}, s{sC0}, s{sT1}")
        a(f"v_lshlrev_b32 v{vL16}, 4, v{vL}")
        a(f"s_cmp_lt_u32 s{sW}, 4\ns_cbranch_scc1 L_C")

    def l_stage(self, vm, t):
        a = self.a; slot = t % 3
        def xpart():
            a(f"s_add_u32 m0, s{sLX}, {L_X + slot*16384}\ns_lshl_b32 s{sXO}, s{sPH}, 7\ns_add_u32 s{sXO}, s{sXO}, s{sXB}")
            for ii in range(4):
                off = f" offset:{1024*ii}" if ii else ""
                a(f"buffer_load_dwordx4 v{vX+ii}, s[{S_X}:{S_X+3}], s{sXO} offen{off} lds"); vm.issue(f"st{t}")
        if t > 0: xpart()
        a(f"s_add_u32 m0, s{sLWB}, {slot*24576}\ns_sub_u32 s{sWO1}, s{sWOF}, s{sWD}\ns_sub_u32 s{sWO2}, s{sWO1}, s{sWD}")
        for rg in range(2):
            if rg: a(f"s_add_u32 m0, s{sLWB}, {slot*24576 + 3072}\ns_nop 0")
            a(f"buffer_load_dwordx4 v{vWv+2*rg}, s[{S_W}:{S_W+3}], s{sWOF} offen lds"); vm.issue(f"st{t}")
            a(f"buffer_load_dwordx4 v{vWv+2*rg}, s[{S_W}:{S_W+3}], s{sWO1} offen offset:1024 lds"); vm.issue(f"st{t}")
            a(f"buffer_load_dwordx4 v{vWv+2*rg+1}, s[{S_W}:{S_W+3}], s{sWO2} offen offset:2048 lds"); vm.issue(f"st{t}")
        if t == 0: xpart()
        if t < 7:
            a(f"s_add_u32 s{sWOF}, s{sWOF}, s{sWSTEP}\ns_add_u32 s{sPH}, s{sPH}, 1\ns_and_b32 s{sPH}, s{sPH}, 7\ns_cselect_b32 s{sT0}, 0, s{sWEND}\ns_sub_u32 s{sWOF}, s{sWOF}, s{sT0}")

    def l_prologue(self, vm):
        a = self.a; T = ACC2
        pm = self.o.get('phmode', 0)
        if pm == 0: a(f"s_bfe_u32 s{sT0}, s2, 0x30003\ns_lshr_b32 s{sT1}, s2, 6\ns_lshl1_add_u32 s{sPH}, s{sT1}, s{sT0}\ns_and_b32 s{sPH}, s{sPH}, 7")
        elif pm == 1: a(f"s_bfe_u32 s{sT0}, s2, 0x30003\ns_bfe_u32 s{sT1}, s2, 0x10006\ns_lshl2_add_u32 s{sPH}, s{sT1}, s{sT0}\ns_and_b32 s{sPH}, s{sPH}, 7")
        elif pm in (2, 3):
            a(f"s_bfe_u32 s{sT0}, s2, 0x30003\ns_bfe_u32 s{sT1}, s2, 0x10006\ns_lshl2_add_u32 s{sPH}, s{sT1}, s{sT0}\ns_lshr_b32 s{sT1}, s2, 7")
            if pm == 3: a(f"s_xor_b32 s{sT1}, s{sT1}, 1")
            a(f"s_add_u32 s{sPH}, s{sPH}, s{sT1}\ns_and_b32 s{sPH}, s{sPH}, 7")
        a(f"s_sub_u32 s{sLW}, s{sW}, 4\ns_movk_i32 s{sPITCH}, 2752\ns_cmp_lt_u32 s{sG}, 8\ns_cselect_b32 s{sPITCH}, 3072, s{sPITCH}")
        a(f"s_cselect_b32 s{sWD}, 0, 896\ns_cselect_b32 s{sT3}, 0, 2048")
        a(f"s_lshl_b32 s{sT0}, s{sG}, 7\ns_lshl_b32 s{sT1}, s{sC0}, 6\ns_cmp_lt_u32 s{sG}, 8\ns_cselect_b32 s{sT5}, s{sT0}, s{sT1}\ns_add_u32 s{sT5}, s{sT5}, s{sT3}")
        a(f"v_lshrrev_b32 v{T}, 4, v{vL}\nv_and_b32 v{T+1}, 7, v{vL}\nv_xor_b32 v{T}, v{T}, v{T+1}\nv_lshlrev_b32 v{T}, 4, v{T}\nv_lshrrev_b32 v{T+2}, 3, v{vL}")
        a(f"v_lshl_add_u32 v{vX}, v{T+2}, 10, v{T}\nv_xor_b32 v{vX+1}, 64, v{vX}\nv_add_u32 v{vX+1}, 7168, v{vX+1}\nv_add_u32 v{vX+2}, 14336, v{vX}\nv_add_u32 v{vX+3}, 14336, v{vX+1}")
        a(f"v_lshrrev_b32 v{T}, 2, v{vL}\nv_and_b32 v{T}, 4, v{T}\nv_xor_b32 v{T}, v{T}, v{T+1}\nv_lshlrev_b32 v{T}, 4, v{T}")
        a(f"s_cmp_ge_u32 s{sG}, 11\ns_cselect_b32 s{sT4}, 64, 128\nv_mad_u32_u24 v{vWv}, v{T+2}, s{sPITCH}, v{T}\nv_cmp_gt_u32 vcc, s{sT4}, v{T}\nv_mov_b32 v{vWv+1}, {OOB}")
        a(f"s_lshl_b32 s{sT0}, s{sPITCH}, 3\nv_cndmask_b32 v{vWv+1}, v{vWv+1}, v{vWv}, vcc\nv_add_u32 v{vWv+2}, s{sT0}, v{vWv}\nv_add_u32 v{vWv+3}, s{sT0}, v{vWv+1}")
        a(f"s_lshl2_add_u32 s{sXB}, s{sRB}, s{sLW}\ns_lshl_b32 s{sXB}, s{sXB}, 15\ns_lshl_b32 s{sWSTEP}, s{sPITCH}, 6\ns_lshl_b32 s{sWEND}, s{sPITCH}, 9")
        a(f"s_lshl2_add_u32 s{sT0}, s{sPH}, s{sLW}\ns_lshl_b32 s{sT0}, s{sT0}, 4\ns_mul_i32 s{sWOF}, s{sT0}, s{sPITCH}\ns_add_u32 s{sWOF}, s{sWOF}, s{sT5}")
        a(f"s_lshl_b32 s{sLX}, s{sLW}, 12\ns_mul_i32 s{sLWB}, s{sLW}, 6144\ns_add_u32 s{sLWB}, s{sLWB}, {L_W}")
        a(f"s_mov_b32 s{S_X+2}, 2097152\ns_mov_b32 s{S_X+3}, 0x20000\ns_add_u32 s{S_W+2}, s{sWEND}, s{sT3}\ns_mov_b32 s{S_W+3}, 0x20000")
        a("s_waitcnt lgkmcnt(0)")
        self.stamp(1)
        a(f"s_load_dword s{sTAG}, s[22:23], {WS_EPOCH}")
        a(f"s_mov_b32 s{S_X}, s4\ns_mov_b32 s{S_X+1}, s5\ns_sub_u32 s12, s12, 2048\ns_subb_u32 s13, s13, 0")
        a(f"s_cmp_lt_u32 s{sG}, 8\ns_cselect_b32 s{S_W}, s6, s12\ns_cselect_b32 s{S_W+1}, s7, s13")
        self.l_stage(vm, 0)
        if self.o.get('pst'): self.stamp(40)
        a(f"v_lshl_add_u32 v{vB2D}, v{T+2}, 10, v{T}\nv_add_u32 v{vB2D+1}, 7168, v{vB2D}")
        self.srd(S_WS, 22, WS_SIZE); self.srd(S_W2, 16, 1376*1024); self.srd(S_WO, 8, 512*1024); self.srd(S_OUT, 18, 2097152)
        self.decode2()
        a(f"v_bfe_u32 v{T}, v{vL}, 2, 2\nv_lshrrev_b32 v{T+1}, 1, v{T}\nv_lshlrev_b32 v{T}, 7, v{T}\nv_lshl_add_u32 v{T}, v{T+1}, 6, v{T}")
        a(f"v_bfe_u32 v{T+1}, v{vL}, 4, 1\nv_lshl_add_u32 v{T}, v{T+1}, 5, v{T}\nv_and_b32 v{T+1}, 3, v{vL}\nv_lshl_add_u32 v{T+14}, v{T+1}, 3, v{T}\nv_lshrrev_b32 v{T+15}, 5, v{vL}")
        a(f"s_lshl_b32 s{sB2L}, s{sLW}, 11\nv_lshl_add_u32 v{vB2AL[0]}, v{T+15}, 9, v{T+14}\nv_add_u32 v{vB2AL[0]}, s{sB2L}, v{vB2AL[0]}\nv_xor_b32 v{vB2AL[1]}, 64, v{vB2AL[0]}")
        for hi in (1, 2):
            a(f"v_add_u32 v{vB2AL[2*hi]}, {65536*hi}, v{vB2AL[0]}\nv_add_u32 v{vB2AL[2*hi+1]}, {65536*hi}, v{vB2AL[1]}")
        a(f"v_and_b32 v{T}, 31, v{vL}\nv_lshlrev_b32 v{T}, 2, v{T}\nv_add_u32 v{T}, {L_FL}, v{T}\nv_mov_b32 v{T+1}, 0\nds_write_b32 v{T}, v{T+1}")

    def l_colsum(self):
        a = self.a; T = ACC2; F = AR; S = T + 16
        a(f"s_mul_i32 s{sT0}, s{sLW}, 6144\ns_add_u32 s{sT0}, s{sT0}, {L_W}\nv_mul_u32_u24 v{T}, 3072, v{T+15}\nv_add3_u32 v{T}, v{T}, v{T+14}, s{sT0}\nv_xor_b32 v{T+1}, 64, v{T}")
        for u in range(3):
            for c in range(2):
                for rd in range(2):
                    r = F + 8*u + 4*c + 2*rd
                    a(f"ds_read_b64_tr_b16 v[{r}:{r+1}], v{T+c} offset:{1024*u + 512*rd}")
        a(f"s_mov_b32 s{sT0}, 0x3f803f80")
        for k in range(6): a(f"v_mov_b32 v{S+k}, 0")
        a(f"s_mul_i32 s{sT1}, s{sLW}, 1536\ns_add_u32 s{sT1}, s{sT1}, {L_KV}\nv_and_b32 v{T+2}, 31, v{vL}\nv_lshl_add_u32 v{T+2}, v{T+2}, 2, s{sT1}\nv_mul_u32_u24 v{T+3}, 768, v{T+15}\nv_add_u32 v{T+2}, v{T+2}, v{T+3}")
        a("s_waitcnt lgkmcnt(0)")
        for k in range(4):
            for uc in range(6): a(f"v_dot2c_f32_bf16 v{S+uc}, s{sT0}, v{F+4*uc+k}")
        a("s_nop 2")
        for uc in range(6): a(f"ds_write_b32 v{T+2}, v{S+uc} offset:{128*uc}")

    def wave_sum2(self, v0, v1, t0, t1):
        a = self.a
        for m in ("quad_perm:[1,0,3,2]", "quad_perm:[2,3,0,1]", "row_half_mirror", "row_mirror"):
            a(f"s_nop 0\nv_add_f32_dpp v{v0}, v{v0}, v{v0} {m} row_mask:0xf bank_mask:0xf\nv_add_f32_dpp v{v1}, v{v1}, v{v1} {m} row_mask:0xf bank_mask:0xf")
        for op in ("v_permlane16_swap_b32", "v_permlane32_swap_b32"):
            a(f"v_mov_b32 v{t0}, v{v0}\nv_mov_b32 v{t1}, v{v1}\ns_nop 1\n{op} v{t0}, v{v0}\n{op} v{t1}, v{v1}\ns_nop 0\nv_add_f32 v{v0}, v{v0}, v{t0}\nv_add_f32 v{v1}, v{v1}, v{t1}")

    def c_stats(self, vm):
        a = self.a; T = 160; u = 116
        vm.wait("xrow", lgkm=0)
        if self.o.get('pst'): self.stamp(42)
        self.tag()
        for r in range(2):
            for k in range(4):
                a(f"v_lshlrev_b32 v{u+8*r+2*k}, 16, v{T+4+4*r+k}\nv_and_b32 v{u+8*r+2*k+1}, 0xffff0000, v{T+4+4*r+k}")
        s0, s1 = u + 16, u + 17
        for r, s in ((0, s0), (1, s1)): a(f"v_add_f32 v{s}, v{u+8*r}, v{u+8*r+1}")
        for k in range(2, 8):
            for r, s in ((0, s0), (1, s1)): a(f"v_add_f32 v{s}, v{s}, v{u+8*r+k}")
        self.wave_sum2(s0, s1, u + 40, u + 41)
        G0, G1 = u + 20, u + 24
        a(f"v_mul_f32 v{G0}, {f2u(1/512.):#x}, v{s0}\nv_mul_f32 v{G1}, {f2u(1/512.):#x}, v{s1}")
        for k in range(8):
            a(f"v_sub_f32 v{u+k}, v{u+k}, v{G0}\nv_sub_f32 v{u+8+k}, v{u+8+k}, v{G1}")
        a(f"v_mul_f32 v{s0}, v{u}, v{u}\nv_mul_f32 v{s1}, v{u+8}, v{u+8}")
        for k in range(1, 8): a(f"v_fmac_f32 v{s0}, v{u+k}, v{u+k}\nv_fmac_f32 v{s1}, v{u+8+k}, v{u+8+k}")
        self.wave_sum2(s0, s1, u + 40, u + 41)
        a(f"v_mov_b32 v{u}, {f2u(1e-5):#x}\nv_mov_b32 v{u+1}, {f2u(1e-5):#x}\nv_fmac_f32 v{u}, {f2u(1/512.):#x}, v{s0}\nv_fmac_f32 v{u+1}, {f2u(1/512.):#x}, v{s1}")
        a(f"v_rsq_f32 v{u}, v{u}\nv_rsq_f32 v{u+1}, v{u+1}\nv_mov_b32 v{G0+2}, 0\nv_mov_b32 v{G0+3}, s{sTAG}\nv_mov_b32 v{G1+2}, 0\nv_mov_b32 v{G1+3}, s{sTAG}")
        a(f"v_mul_f32 v{G0+1}, {f2u(LOG2E):#x}, v{u}\nv_mul_f32 v{G1+1}, {f2u(LOG2E):#x}, v{u+1}")
        self.lane0(u + 2)
        a(f"buffer_store_dwordx4 v[{G0}:{G0+3}], v{u+2}, s[{S_WS}:{S_WS+3}], s{sE} offen sc1"); vm.issue("statst")
        a(f"buffer_store_dwordx4 v[{G1}:{G1+3}], v{u+2}, s[{S_WS}:{S_WS+3}], s{sE} offen offset:16 sc1"); vm.issue("statst")
        if self.o.get('pst'): self.stamp(43)
        vm.wait("bias")
        a(f"v_lshlrev_b32 v{u+3}, 16, v{T+12}\nv_mul_f32 v{u+3}, {f2u(LOG2E):#x}, v{u+3}\nv_lshlrev_b32 v{u+4}, 2, v{T+13}\nv_add_u32 v{u+4}, {L_BT}, v{u+4}")
        a(f"s_cmp_eq_u32 s{sW}, 3\ns_cbranch_scc1 L_nobt\nds_write_b32 v{u+4}, v{u+3}")
        a.label("L_nobt")

    def l_cspub(self, vm, vi):
        a = self.a; T = ACC2 + 24; U = B2R
        a(f"s_mov_b32 s{sT0}, {OOB}\ns_cmp_lg_u32 s{sLW}, 0\ns_cbranch_scc1 L_nocsp{vi}")
        a(f"v_lshlrev_b32 v{T}, 2, v{vL}\nv_add_u32 v{T}, {L_KV}, v{T}")
        for k in range(0, 24, 2): a(f"ds_read2st64_b32 v[{U+k}:{U+k+1}], v{T} offset0:{k} offset1:{k+1}")
        a(f"v_mov_b32 v{T+3}, s{sTAG}")
        a(f"s_lshl4_add_u32 s{sT0}, s{sG}, s{sRB}\ns_lshl_b32 s{sT0}, s{sT0}, 10\ns_add_u32 s{sT0}, s{sT0}, {WS_CSP}")
        a("s_waitcnt lgkmcnt(0)")
        for sl in range(1, 7):
            for u in range(3): a(f"v_add_f32 v{U+u}, v{U+u}, v{U+3*sl+u}")
        for u in range(3): a(f"v_add_f32 v{T+u}, v{U+u}, v{U+21+u}")
        a.label(f"L_nocsp{vi}")
        a(f"buffer_store_dwordx4 v[{T}:{T+3}], v{vL16}, s[{S_WS}:{S_WS+3}], s{sT0} offen sc1"); vm.issue("cspst")

    def l_steptable(self):
        a = self.a
        a("s_waitcnt lgkmcnt(0)")
        if not self.o['classes']:
            a(f"s_mul_i32 s{sT0}, s{sROT}, 3\ns_lshr_b32 s{sT0}, s{sT0}, {0 if self.o['map2'] == 0 else 1}")
            a(f"s_sub_u32 s{sT1}, s{sT0}, 22\ns_cmp_ge_u32 s{sT0}, 22\ns_cselect_b32 s{sT0}, s{sT1}, s{sT0}")
            a(f"s_mul_i32 s{sT3}, s{sLW}, 22\ns_add_u32 s{sT4}, s{sT3}, 22\ns_add_u32 s{sT0}, s{sT0}, s{sT3}")
            for i in range(22):
                a(f"s_lshl_b32 s{SP[i]}, s{sT0}, 10\ns_cmp_ge_u32 s{sT0}, 86\ns_cselect_b32 s{SP[i]}, {WS_SIZE}, s{SP[i]}")
                if i < 21: a(f"s_add_u32 s{sT0}, s{sT0}, 1\ns_cmp_eq_u32 s{sT0}, s{sT4}\ns_cselect_b32 s{sT0}, s{sT3}, s{sT0}")
        else:
            for k, d in ((0, sT4), (1, sT5)):
                a(f"s_lshl_b32 s{sT0}, s{sLW}, 1\ns_add_u32 s{sT0}, s{sT0}, {k}\ns_min_u32 s{sT1}, s{sT0}, 3\ns_mul_i32 s{sT0}, s{sT0}, 5\ns_add_u32 s{sT0}, s{sT0}, s{sT1}\ns_lshl_b32 s{d}, s{sT0}, 1")
            a(f"s_lshl_b32 s{sT3}, s{sROT}, 1")
            for i in range(16):
                a(f"s_add_u32 s{sT0}, s{sT3}, {i}\ns_and_b32 s{sT1}, s{sT0}, 7\ns_bitcmp1_b32 s{sT0}, 3\ns_cselect_b32 s{sT0}, s{sT5}, s{sT4}\ns_add_u32 s{sT0}, s{sT0}, s{sT1}\ns_lshl_b32 s{SP[i]}, s{sT0}, 10")
            tab = [[4, 5, 10], [11, 16, 17], [22, 27, 32], [37, 42, 43]]
            a(f"s_lshl_b32 s{sT0}, s{sLW}, 3\ns_or_b32 s{sT0}, s{sT0}, 0x80000")
            for k, d in ((0, sT3), (1, sT4), (2, sT5)):
                c = sum(tab[q][k] << (8*q) for q in range(4))
                a(f"s_bfe_u32 s{d}, {c:#x}, s{sT0}\ns_lshl_b32 s{d}, s{d}, 11")
            a(f"s_cmp_eq_u32 s{sLW}, 3\ns_cselect_b32 s{sT5}, {WS_SIZE}, s{sT5}")
            a(f"s_mov_b32 s{sT0}, s{sROT}")
            for r in range(2): a(f"s_sub_u32 s{sT1}, s{sT0}, 6\ns_cmp_ge_u32 s{sT0}, 6\ns_cselect_b32 s{sT0}, s{sT1}, s{sT0}")
            for i in range(6):
                a(f"s_cmp_ge_u32 s{sT0}, 2\ns_cselect_b32 s{sT1}, s{sT4}, s{sT3}\ns_cmp_ge_u32 s{sT0}, 4\ns_cselect_b32 s{sT1}, s{sT5}, s{sT1}")
                a(f"s_and_b32 s{sT2}, s{sT0}, 1\ns_lshl_b32 s{sT2}, s{sT2}, 10\ns_add_u32 s{SP[16+i]}, s{sT1}, s{sT2}")
                if i < 5: a(f"s_add_u32 s{sT0}, s{sT0}, 1\ns_cmp_eq_u32 s{sT0}, 6\ns_cselect_b32 s{sT0}, 0, s{sT0}")
        a(f"s_lshl_b32 s{sT3}, s{sLW}, 3\ns_add_u32 s{sT3}, s{sT3}, 88")
        for i in range(8):
            a(f"s_add_u32 s{sT0}, s{sROT}, {i}\ns_and_b32 s{sT0}, s{sT0}, 7\ns_add_u32 s{sT0}, s{sT0}, s{sT3}\ns_lshl_b32 s{SP[22+i]}, s{sT0}, 10")
        a(f"s_lshl_b32 s{sB2C}, s{sCT}, 7\ns_sub_u32 s{sB2C2}, s{sB2C}, {88*16384}")
        a(f"s_mul_i32 s{sA2B}, s{sRT}, {2*A2_RT}\ns_add_u32 s{sA2B}, s{sA2B}, {WS_A2}\nv_add_u32 v{vL16B}, {A2_RT}, v{vL16}")

    def l_gather_addr(self):
        a = self.a; T = ACC2 + 40; sT4, sT5 = 86, 87
        a(f"s_lshl2_add_u32 s{sT4}, s{sRB}, s{sLW}\ns_lshl_b32 s{sT4}, s{sT4}, 9\ns_add_u32 s{sT4}, s{sT4}, {WS_STATS}")
        a(f"s_and_b32 s{sT5}, s{sRB}, 8\ns_lshl4_add_u32 s{sT5}, s{sG}, s{sT5}\ns_lshl2_add_u32 s{sT5}, s{sT5}, s{sLW}\ns_lshl_b32 s{sT5}, s{sT5}, 8\ns_add_u32 s{sT5}, s{sT5}, {WS_CSP}")
        a(f"v_and_b32 v{T}, 0x1f0, v{vL16}\nv_lshrrev_b32 v{T+1}, 4, v{vL}\nv_lshlrev_b32 v{T+1}, 10, v{T+1}\nv_and_b32 v{T+2}, 0xf0, v{vL16}\nv_or_b32 v{T+1}, v{T+1}, v{T+2}\nv_add_u32 v{T+2}, 4096, v{T+1}")
    def l_gather_issue(self, vm):
        a = self.a; T = ACC2 + 40; G = AR; sT4, sT5 = 86, 87
        a(f"buffer_load_dwordx4 v[{G}:{G+3}], v{T}, s[{S_WS}:{S_WS+3}], s{sT4} offen sc1"); vm.issue("gath")
        a(f"buffer_load_dwordx4 v[{G+4}:{G+7}], v{T+1}, s[{S_WS}:{S_WS+3}], s{sT5} offen sc1"); vm.issue("gath")
        a(f"buffer_load_dwordx4 v[{G+8}:{G+11}], v{T+2}, s[{S_WS}:{S_WS+3}], s{sT5} offen sc1"); vm.issue("gath")
    def l_gather_check(self, vm, vi):
        a = self.a; T = ACC2; G = AR
        vm.wait("gath")
        a(f"s_mov_b32 s{sSPIN}, 0")
        a.label(f"L_gchk{vi}")
        a(f"v_cmp_ne_u32 vcc, s{sTAG}, v{G+3}\nv_cmp_ne_u32 s[70:71], s{sTAG}, v{G+7}\ns_nop 1\ns_or_b64 s[70:71], vcc, s[70:71]")
        a(f"v_cmp_ne_u32 vcc, s{sTAG}, v{G+11}\ns_nop 1\ns_or_b64 vcc, vcc, s[70:71]")
        a(f"s_cbranch_vccz L_gok{vi}")
        a(f"s_add_u32 s{sSPIN}, s{sSPIN}, 1\ns_cmp_gt_u32 s{sSPIN}, 0x8000\ns_cbranch_scc1 L_gok{vi}")
        self.l_gather_issue(VM(a))
        a(f"s_waitcnt vmcnt(0)\ns_branch L_gchk{vi}")
        a.label(f"L_gok{vi}")
        a(f"s_lshl_b32 s{sT0}, s{sLW}, 7\ns_add_u32 s{sT0}, s{sT0}, {L_MT}\nv_and_b32 v{T}, 31, v{vL}\nv_lshl_add_u32 v{T}, v{T}, 2, s{sT0}")
        a(f"ds_write_b32 v{T}, v{G}\nds_write_b32 v{T}, v{G+1} offset:512")
    def l_w2touch(self, vm):
        a = self.a; T = ACC2
        a(f"s_lshl2_add_u32 s{sT0}, s2, s{sLW}\ns_lshl_b32 s{sT1}, s{sT0}, 9\ns_mul_i32 s{sT0}, s{sT0}, 1408\nv_lshlrev_b32 v{T}, 7, v{vL}\ns_mov_b64 exec, 0x7ff")
        a(f"buffer_load_dword v{T+31}, v{T}, s[{S_W2}:{S_W2+3}], s{sT0} offen\ns_mov_b64 exec, 0xf"); vm.issue("w2t")
        a(f"buffer_load_dword v{T+30}, v{T}, s[{S_WO}:{S_WO+3}], s{sT1} offen\ns_mov_b64 exec, -1"); vm.issue("w2t")
    def l_gather_cs(self):
        a = self.a; T = ACC2; G = AR
        for k in range(3): a(f"v_add_f32 v{G+4+k}, v{G+4+k}, v{G+8+k}")
        for op in ("v_permlane16_swap_b32", "v_permlane32_swap_b32"):
            for k in range(3): a(f"v_mov_b32 v{G+8+k}, v{G+4+k}")
            a("s_nop 0")
            for k in range(3): a(f"{op} v{G+8+k}, v{G+4+k}")
            a("s_nop 0")
            for k in range(3): a(f"v_add_f32 v{G+4+k}, v{G+4+k}, v{G+8+k}")
        a(f"s_lshl_b32 s{sT0}, s{sLW}, 6\ns_add_u32 s{sT0}, s{sT0}, {L_CS}\nv_lshl_add_u32 v{T+1}, v{vL}, 2, s{sT0}\ns_mov_b64 exec, 0xffff")
        a(f"ds_write2st64_b32 v{T+1}, v{G+4}, v{G+5} offset1:1\nds_write_b32 v{T+1}, v{G+6} offset:512\ns_mov_b64 exec, -1")

    def b2_dma(self, vm, step, pace=True):
        a = self.a
        if pace: vm.depth((self.o['pace'] if pace is True else pace) - 2)
        srd, base = (S_W2, sB2C) if step < 22 else (S_WO, sB2C2)
        a(f"s_add_u32 m0, s{sB2L}, {8192*round_of(step)}\ns_lshl4_add_u32 s{sT0}, s{SP[step]}, s{base}")
        a(f"buffer_load_dwordx4 v{vB2D}, s[{srd}:{srd+3}], s{sT0} offen lds"); vm.issue(f"b2_{step}")
        a(f"buffer_load_dwordx4 v{vB2D+1}, s[{srd}:{srd+3}], s{sT0} offen offset:1024 lds"); vm.issue(f"b2_{step}")
        if self.o.get('b2stamps'): self.stamp(20 + step)
    def b2_reads(self, s, dst):
        rnd = round_of(s); hi, lo = rnd // 8, rnd % 8
        for cc in range(2):
            for rd in range(2):
                r = dst + 4*cc + 2*rd
                self.a(f"ds_read_b64_tr_b16 v[{r}:{r+1}], v{vB2AL[2*hi + cc]} offset:{8192*lo + 1024*rd}")

    def l_main(self):
        a = self.a; vm = VM(a); T = ACC2
        if self.o['pf']: vm.issue("codepf")
        self.l_prologue(vm)
        if self.o['spf']:
            a(f"s_lshr_b32 s{sT0}, s2, 3\ns_lshl2_add_u32 s{sT0}, s{sT0}, s{sLW}\ns_mul_i32 s{sT0}, s{sT0}, {64*self.o['spf']}\ns_add_u32 s94, s16, s{sT0}\ns_addc_u32 s95, s17, 0\ns_and_b32 s84, s2, 7")
        self.l_steptable()
        if self.o.get('pst'): self.stamp(41)
        assert self.o.get('st1_at', 4) <= 4
        vm.depth(self.o.get('st1_at', 4))
        if self.o.get('pst'): self.stamp(42)
        self.l_stage(vm, 1)
        if self.o.get('pst'): self.stamp(43)
        if self.o.get('w2pf', -1) == -1: self.l_w2touch(vm)
        self.tag(); self.l_colsum(); self.l_gather_addr()
        CL = self.o.get('cl') or [{}]
        TV = B2R + 40
        if len(CL) > 1 or CL[0]:
            a(f"s_lshr_b32 s{sT0}, s2, 3\ns_lshl2_add_u32 s{sT0}, s{sT0}, s{sLW}\ns_mul_i32 s{sT0}, s{sT0}, 118")
            a(f"v_min_u32 v{TV}, 58, v{vL}\nv_add_u32 v{TV}, s{sT0}, v{TV}\nv_lshlrev_b32 v{TV}, 7, v{TV}\nv_add_u32 v{TV+1}, {59*128}, v{TV}")
            a(f"v_subrev_u32 v{TV+2}, {1376*1024}, v{TV}\nv_subrev_u32 v{TV+3}, {1376*1024}, v{TV+1}\ns_and_b32 s84, s{sCT}, {len(CL)-1}")
        def touch(vm, k):
            a(f"buffer_load_dword v{TV+4}, v{TV+k}, s[{S_W2}:{S_W2+3}], 0 offen"); vm.issue("tch")
            a(f"buffer_load_dword v{TV+5}, v{TV+2+k}, s[{S_WO}:{S_WO+3}], 0 offen"); vm.issue("tch")
        base = vm; ends = []
        for vi, var in enumerate(CL):
            vm = base.copy()
            if vi + 1 < len(CL): a(f"s_cmp_lg_u32 s84, {vi}\ns_cbranch_scc1 L_var{vi}")
            for t in range(8):
                vm.wait(f"st{t}", lgkm=None if (self.o['spf'] and 1 <= t <= 6) else 0)
                if self.o.get('pst') and t < 2: self.stamp(44 + t)
                a("s_barrier")
                if self.o['kstamps'] or t in (0, 7): self.stamp(2 + t)
                if t + 2 < 8: self.l_stage(vm, t + 2)
                for k in var.get(t, []): touch(vm, k)
                if t == 0: self.l_cspub(vm, vi)
                if self.o['spf'] and t in self.o.get('spf_t', range(0, 6)):
                    n = self.o['spf']; assert 128*64*n <= 234752
                    a(f"s_add_u32 s84, s84, 1\ns_sub_u32 s{sT0}, s84, 6\ns_cmp_ge_u32 s84, 6\ns_cselect_b32 s84, s{sT0}, s84\ns_mul_i32 s{sT0}, s84, 234752\ns_add_u32 s98, s94, s{sT0}\ns_addc_u32 s99, s95, 0")
                    for k in range(n): a(f"s_load_dword s54, s[98:99], {64*k}")
                if t == 5: self.l_gather_issue(vm)
                if t == self.o.get('w2pf', -1): self.l_w2touch(vm)
                if t == 6:
                    for s in range(self.o['n0']): self.b2_dma(vm, s, pace=False)
                    self.l_gather_check(vm, vi); self.l_gather_cs()
            ends.append(list(vm.q))
            if vi + 1 < len(CL):
                a("s_branch L_varend"); a.label(f"L_var{vi}")
        assert all(e == ends[0] for e in ends)
        a.label("L_varend")
        for s in range(self.o['n0'], 7): self.b2_dma(vm, s, pace=False)
        a(f"v_and_b32 v{T}, 7, v{vL}\nv_lshrrev_b32 v{T+1}, 5, v{vL}\nv_xor_b32 v{T+1}, v{T+1}, v{T}\nv_lshlrev_b32 v{T+1}, 4, v{T+1}\nv_lshl_add_u32 v{T+1}, v{T}, 8, v{T+1}")
        a(f"v_bfe_u32 v{T}, v{vL}, 3, 2\nv_lshl_add_u32 v{T+1}, v{T}, 13, v{T+1}\nv_add_u32 v{vRW}, s{sB2L}, v{T+1}")
        for q in range(1, 4): a(f"v_xor_b32 v{vRW+q}, {32*q}, v{vRW}")
        vP0, vP2, vPT = 249, 250, 251
        a(f"s_lshl_b32 s{sXO}, s{sRT}, 12\ns_add_u32 s{sXO}, s{sXO}, {WS_FLAG}")
        a(f"v_and_b32 v{vP0}, 3, v{vL}\ns_lshl_b32 s{sT0}, s{sLW}, 2\nv_add_u32 v{vP0}, s{sT0}, v{vP0}\nv_lshlrev_b32 v{vP0}, 7, v{vP0}")
        if not self.o['classes']:
            a(f"v_and_b32 v{vP2}, 15, v{vL}\nv_lshlrev_b32 v{vP2}, 7, v{vP2}")
        else:
            a(f"v_and_b32 v{vP2}, 3, v{vL}\nv_min_u32 v{vP2}, 2, v{vP2}")
            a(f"s_mul_i32 s{sT0}, s{sLW}, 3\ns_mul_i32 s{sT1}, s{sLW}, 6\ns_sub_u32 s{sT1}, s{sT1}, 6\ns_cmp_lt_u32 s{sLW}, 2\ns_cselect_b32 s{sT0}, s{sT0}, s{sT1}\ns_cselect_b32 s{sT1}, 0, 1")
            a(f"v_lshlrev_b32 v{vP2}, s{sT1}, v{vP2}\nv_add_u32 v{vP2}, s{sT0}, v{vP2}\nv_min_u32 v{vP2}, 14, v{vP2}\nv_lshlrev_b32 v{vP2}, 7, v{vP2}")
        vA = vP0 if self.o['classes'] else vP2
        self.final_addr(vm, T, T + 1)
        for s in range(4 + self.o.get('pre7', 3), 13): self.b2_dma(vm, s)
        def park(k):
            vm.wait(f"b2_{k}")
            self.b2_reads(k, B2R + 8*k)
        a(f"v_and_b32 v{T}, 3, v{vL}\nv_lshlrev_b32 v{T}, 2, v{T}\nv_add_u32 v{T}, {L_FL}, v{T}")
        self.spin_lds("ring", T, T + 1, 0)
        for s in range(13, 18): self.b2_dma(vm, s)
        self.stamp(10)
        for k in range(12):
            park(k)
            if k > 1: a("s_waitcnt lgkmcnt(8)")
        if self.o['hold']: self.spin_lds("hold", T, T + 1, 64)
        else: a("s_waitcnt lgkmcnt(0)")
        self.stamp(13)
        def poll0():
            a(f"buffer_load_dword v{vPT}, v{vA}, s[{S_WS}:{S_WS+3}], s{sXO} offen offset:2048 sc1"); vm.issue("p0")
        for s in range(18, 30):
            self.b2_dma(vm, s, pace=self.o.get('pace2', 10))
            if s == self.o['p0_at'] and not self.o.get('hold2'): poll0()
        if self.o.get('pollwait'):
            vm.depth(self.o['pollwait'] - 1)
            a(f"s_lshl_b32 s{sT0}, s{sLW}, 2\ns_add_u32 s{sT0}, s{sT0}, {L_FL + 96}\nv_mov_b32 v{T}, s{sT0}\nv_mov_b32 v{T+1}, 1\nds_write_b32 v{T}, v{T+1}")
        if self.o.get('hold2'):
            a(f"v_and_b32 v{T}, 3, v{vL}\nv_lshlrev_b32 v{T}, 2, v{T}\nv_add_u32 v{T}, {L_FL}, v{T}")
            self.spin_lds("hold2", T, T + 1, 112)
            poll0()
        self.stamp(11)
        polls = {0: (vA, 2048), 22: (vP0, 0)}
        if self.o['classes']: polls[16] = (vP2, 2052)
        def a_load(i):
            r = AR + 8*(i % ARING)
            a(f"s_add_u32 s{sT0}, s{sA2B}, s{SP[i]}")
            a(f"buffer_load_dwordx4 v[{r}:{r+3}], v{vL16}, s[{S_WS}:{S_WS+3}], s{sT0} offen sc1"); vm.issue(f"a{i}")
            a(f"buffer_load_dwordx4 v[{r+4}:{r+7}], v{vL16B}, s[{S_WS}:{S_WS+3}], s{sT0} offen sc1"); vm.issue(f"a{i}")
        def poll_issue(c):
            v, imm = polls[c]
            off = f" offset:{imm}" if imm else ""
            a(f"buffer_load_dword v{vPT}, v{v}, s[{S_WS}:{S_WS+3}], s{sXO} offen{off} sc1"); vm.issue(f"p{c}")
        def poll_check(c):
            v, imm = polls[c]
            vm.wait(f"p{c}")
            a(f"v_cmp_ne_u32 vcc, s{sTAG}, v{vPT}\ns_cbranch_vccz L_pok{c}")
            self.spin_global(f"p{c}", v, vPT, sXO, imm)
            a.label(f"L_pok{c}")
            self.stamp({0: 12, 16: 14, 22: 15}[c])
        LEAD = self.o.get('lead', 3)
        poll_check(0)
        a("s_setprio 1")
        def issue_a(n):
            if n in polls and n > 0: poll_check(n)
            a_load(n)
            if n + LEAD in polls: poll_issue(n + LEAD)
        for i in range(ARING): issue_a(i)
        def breg(i): return B2R + 8*i if i < NREG else BT + 8*(i & 1)
        for i in range(30):
            if i + 1 >= NREG and i + 1 < 30: self.b2_reads(i + 1, breg(i + 1))
            lg = None
            if i >= NREG: lg = 4 if i + 1 < 30 else 0
            vm.wait(f"a{i}", lgkm=lg)
            if self.o.get('astamps'): self.stamp(20 + i)
            A, B = AR + 8*(i % ARING), breg(i)
            for cc in range(2):
                for t in range(2):
                    acc = f"v[{ACC2+16*(2*t+cc)}:{ACC2+16*(2*t+cc)+15}]"
                    a(f"v_mfma_f32_32x32x16_bf16 {acc}, v[{B+4*cc}:{B+4*cc+3}], v[{A+4*t}:{A+4*t+3}], {'0' if i == 0 else acc}")
            n = i + ARING
            if n < 30: issue_a(n)
        self.stamp(16)
        a("s_nop 7\ns_nop 3")
        for t in range(2):
            for cc in range(2):
                for q in range(4):
                    r = ACC2 + 16*(2*t+cc) + 4*q
                    a(f"ds_write_b128 v{vRW+q}, v[{r}:{r+3}] offset:{32768*t + 128*cc}")
        a("s_branch L_final")

    def c_prologue(self, vm):
        a = self.a; T = CT
        a("s_waitcnt lgkmcnt(0)")
        if self.o.get('pst'): self.stamp(40)
        a(f"s_load_dword s{sTAG}, s[22:23], {WS_EPOCH}")
        self.srd(S_X, 4, 2097152)
        X = 160
        a(f"s_lshl4_add_u32 s{sT0}, s{sRB}, s{sG}\ns_lshl2_add_u32 s{sT5}, s{sT0}, s{sW}\ns_lshl_b32 s{sT0}, s{sT5}, 11")
        a(f"buffer_load_dwordx4 v[{X+4}:{X+7}], v{vL16}, s[{S_X}:{S_X+3}], s{sT0} offen"); vm.issue("xrow")
        a(f"buffer_load_dwordx4 v[{X+8}:{X+11}], v{vL16}, s[{S_X}:{S_X+3}], s{sT0} offen offset:1024"); vm.issue("xrow")
        a(f"s_lshl_b32 s{sE}, s{sT5}, 5\ns_add_u32 s{sE}, s{sE}, {WS_STATS}")
        self.srd(S_B1, 14, 2752)
        a(f"v_lshl_add_u32 v{X+13}, s{sW}, 6, v{vL}\nv_lshlrev_b32 v{X+3}, 1, v{X+13}")
        a(f"s_lshl_b32 s{sT0}, s{sC0}, 6\ns_cmp_lt_u32 s{sG}, 8\ns_cselect_b32 s{sT0}, {OOB}, s{sT0}")
        a(f"buffer_load_ushort v{X+12}, v{X+3}, s[{S_B1}:{S_B1+3}], s{sT0} offen"); vm.issue("bias")
        a(f"s_and_b32 s{sR2}, s{sW}, 1\ns_lshr_b32 s{sC}, s{sW}, 1")
        a(f"v_and_b32 v{T+2}, 31, v{vL}\nv_lshrrev_b32 v{T+3}, 5, v{vL}\nv_bfe_u32 v{T+4}, v{vL}, 1, 3\nv_xor_b32 v{T+4}, v{T+4}, v{T+3}")
        a(f"s_lshl_b32 s{sT3}, s{sR2}, 13\nv_lshlrev_b32 v{T+2}, 7, v{T+2}\nv_lshl_add_u32 v{T+2}, v{T+4}, 4, v{T+2}\nv_add_u32 v{vXA}, s{sT3}, v{T+2}")
        for kk in range(1, 4): a(f"v_xor_b32 v{vXA+kk}, {32*kk}, v{vXA}")
        a(f"v_bfe_u32 v{T+2}, v{vL}, 2, 2\nv_mul_u32_u24 v{T+4}, 3072, v{T+3}\nv_lshl_add_u32 v{T+4}, v{T+2}, 7, v{T+4}")
        a(f"v_lshrrev_b32 v{T+2}, 1, v{T+2}\nv_xor_b32 v{T+2}, s{sC}, v{T+2}\nv_lshl_add_u32 v{T+4}, v{T+2}, 6, v{T+4}")
        a(f"v_bfe_u32 v{T+2}, v{vL}, 4, 1\nv_lshl_add_u32 v{T+4}, v{T+2}, 5, v{T+4}\nv_and_b32 v{T+2}, 3, v{vL}\nv_lshl_add_u32 v{T+4}, v{T+2}, 3, v{T+4}")
        for sl in range(3): a(f"v_add_u32 v{vWA+sl}, {L_W + 24576*sl}, v{T+4}")
        self.decode2()
        self.srd(S_WS, 22, WS_SIZE); self.srd(S_OUT, 18, 2097152)
        a(f"s_mov_b32 s{sMASK}, 0x0000ffff\ns_mov_b32 s{sMASK+1}, 0x0000ffff")
        a(f"s_lshl1_add_u32 s{sT0}, s{sRB}, s{sR2}\ns_mul_i32 s{sA2B}, s{sT0}, {2*A2_RT}\ns_add_u32 s{sA2B}, s{sA2B}, {WS_A2}")
        a(f"s_lshl4_add_u32 s{sT0}, s{sT0}, s{sG}\ns_lshl1_add_u32 s{sT0}, s{sT0}, s{sC}\ns_lshl_b32 s{sFL}, s{sT0}, 7\ns_add_u32 s{sFL}, s{sFL}, {WS_FLAG}")
        a(f"v_add_u32 v{vL16B}, {A2_RT}, v{vL16}")
        self.table_addr(); self.consts()
        if self.o.get('pst'): self.stamp(41)
        self.c_stats(vm)
        self.flag_regs()
        if self.o['cprio']: a(f"s_setprio {self.o['cprio']}")

    def c_read_list(self, n):
        t, kk = n // 4, n % 4; slot = t % 3; b = n & 1
        def x(a_): return f"ds_read_b128 v[{XF+8*b+4*a_}:{XF+8*b+4*a_+3}], v{vXA+kk} offset:{slot*16384 + 4096*a_}"
        def w(u, rd):
            r = WF + 12*b + 4*u + 2*rd
            return f"ds_read_b64_tr_b16 v[{r}:{r+1}], v{vWA+slot} offset:{6144*kk + 1024*u + 512*rd}"
        return [x(0), w(0, 0), w(0, 1), x(1), w(1, 0), w(1, 1), w(2, 0), w(2, 1)]
    def c_mfma(self, n, u, t_, att):
        b = n & 1
        x = f"v[{XF+8*b+4*t_}:{XF+8*b+4*t_+3}]"; w = f"v[{WF+12*b+4*u}:{WF+12*b+4*u+3}]"
        A = ACC + 16*(2*u + t_); acc = f"v[{A}:{A+15}]"; c = "0" if n == 0 else acc
        if att and u > 0: return f"v_mfma_f32_32x32x16_bf16 {acc}, {x}, {w}, {c}"
        return f"v_mfma_f32_32x32x16_bf16 {acc}, {w}, {x}, {c}"

    def c_kloop(self, att):
        a = self.a
        a("s_waitcnt lgkmcnt(0)\ns_barrier")
        self.stamp(2)
        for r in self.c_read_list(0): a(r)
        for n in range(32):
            boundary = (n % 4 == 3)
            if boundary:
                a("s_waitcnt lgkmcnt(0)")
                if n < 31:
                    a("s_barrier")
                    if self.o['kstamps'] == 2: self.stamp(3 + n // 4)
                else:
                    a(f"s_lshl_b32 s{sT0}, s{sW}, 2\ns_add_u32 s{sT0}, s{sT0}, {L_FL}\nv_mov_b32 v14, s{sT0}\nv_mov_b32 v15, 1\nds_write_b32 v14, v15")
            R = self.c_read_list(n + 1) if n < 31 else (self.att_pre if att else self.mlp_pre)()
            M = [self.c_mfma(n, u, t_, att) for u in range(3) for t_ in range(2)]
            place = self.o.get('rplace', [2, 2, 2, 2, 0, 0]) if n < 31 else [3, 3, 3, 3, 3, 3]
            need = {0: 3, 1: 4, 2: 6, 4: 8}
            issued = 0
            for k in range(6):
                if not boundary and k in need: a(f"s_waitcnt lgkmcnt({min(15, 8 - need[k] + issued)})")
                a(M[k])
                if R[0]:
                    for r in R[issued:issued + place[k]]: a(r)
                    issued += place[k]
        self.stamp(10)

    def consts(self):
        T = CT
        self.a(f"v_mov_b32 v{T}, 2.0\nv_mov_b32 v{T+2}, {f2u(-2*LN2):#x}\nv_mov_b32 v{T+4}, {f2u(LN2):#x}\nv_mov_b32 v{T+6}, 1.0\nv_mov_b32 v{T+8}, {f2u(1e-6):#x}")
    def table_list(self, dst, vaddr, off):
        return [f"ds_read_b128 v[{dst+4*q}:{dst+4*q+3}], v{vaddr} offset:{off + 32*q}" for q in range(4)]
    def table_reads(self, dst, vaddr, off):
        for r in self.table_list(dst, vaddr, off): self.a(r)
    def table_addr(self):
        a = self.a; T = CT
        a(f"v_lshrrev_b32 v{T+18}, 5, v{vL}\ns_lshl_b32 s{sT0}, s{sR2}, 8\ns_add_u32 s{sT0}, s{sT0}, {L_MT}\nv_lshl_add_u32 v{T+19}, v{T+18}, 4, s{sT0}")
        a(f"v_and_b32 v{T+22}, 31, v{vL}\nv_lshl_add_u32 v{T+23}, v{T+22}, 2, s{sT0}")
        a(f"s_lshl_b32 s{sT0}, s{sC}, 7\ns_add_u32 s{sT0}, s{sT0}, {L_TAB}\nv_lshl_add_u32 v{T+18}, v{T+18}, 4, s{sT0}\nv_lshl_add_u32 v{T+22}, v{T+22}, 2, s{sT0}")
    def lane_stats_list(self):
        T = CT
        return [f"ds_read_b32 v{T+10}, v{T+23}", f"ds_read_b32 v{T+12}, v{T+23} offset:512", f"ds_read_b32 v{T+14}, v{T+23} offset:128", f"ds_read_b32 v{T+16}, v{T+23} offset:640"]
    def flag(self, vm, soff, imm):
        a = self.a; T = CT
        off = f" offset:{imm}" if imm else ""
        a(f"buffer_store_dword v{T+21}, v{T+20}, s[{S_WS}:{S_WS+3}], s{soff} offen{off} sc1"); vm.issue("flag")
    def release(self, off=64):
        a = self.a
        a(f"s_lshl_b32 s{sT0}, s{sW}, 2\ns_add_u32 s{sT0}, s{sT0}, {L_FL + off}\nv_mov_b32 v14, s{sT0}\nv_mov_b32 v15, 1\nds_write_b32 v14, v15")
    def flag_regs(self):
        self.lane0(CT + 20); self.a(f"v_mov_b32 v{CT+21}, s{sTAG}")

    def mlp_pre(self):
        T = CT
        return self.lane_stats_list() + self.table_list(156, T+18, L_CS - L_TAB) + self.table_list(172, T+18, L_BT - L_TAB)
    def att_pre(self):
        T = CT
        return ([f"ds_read_b32 v8, v{T+22} offset:256", f"ds_read_b32 v10, v{T+22} offset:512"] + self.table_list(156, T+19, 0) + self.table_list(172, T+19, 512)
                + self.table_list(188, T+19, 128) + self.table_list(204, T+19, 640))
    def c_epi_mlp(self, vm):
        a = self.a; T = CT; P = range(0, 16, 2)
        CS, BB, CP, U = [156, 116], [172, 132], 188, 204
        a(f"s_add_u32 s{sT1}, s{sC0}, s{sC}\ns_lshl_b32 s{sT1}, s{sT1}, 11\ns_add_u32 s{sA2B}, s{sA2B}, s{sT1}")
        a("s_waitcnt lgkmcnt(8)")
        a(f"v_mul_f32 v{T+10}, v{T+10}, v{T+12}\nv_mul_f32 v{T+14}, v{T+14}, v{T+16}")
        for u in range(3):
            cs, bb = CS[u & 1], BB[u & 1]
            if u == 2:
                a(f"s_cmp_ge_u32 s{sG}, 11\ns_cselect_b32 s{sT0}, s{sC}, 0\ns_cmp_eq_u32 s{sT0}, 1\ns_cbranch_scc1 L_mlp_short")
            a("s_waitcnt lgkmcnt(0)")
            if u < 2:
                self.table_reads(CS[(u+1) & 1], T+18, L_CS - L_TAB + 256*(u+1)); self.table_reads(BB[(u+1) & 1], T+18, L_BT - L_TAB + 256*(u+1))
            for t in range(2):
                A = ACC + 16*(2*u + t); mr, rs = T + 10 + 4*t, T + 12 + 4*t
                for k in P: a(f"v_pk_fma_f32 v[{CP+k}:{CP+k+1}], v[{mr}:{mr+1}], v[{cs+k}:{cs+k+1}], v[{bb+k}:{bb+k+1}] op_sel_hi:[0,1,1] neg_lo:[1,0,0] neg_hi:[1,0,0]")
                for k in P: a(f"v_pk_fma_f32 v[{A+k}:{A+k+1}], v[{A+k}:{A+k+1}], v[{rs}:{rs+1}], v[{CP+k}:{CP+k+1}] op_sel_hi:[1,0,1]")
                for k in range(16): a(f"v_exp_f32 v{U+k}, v{A+k}")
                for k in P: a(f"v_pk_add_f32 v[{CP+k}:{CP+k+1}], v[{U+k}:{U+k+1}], v[{T}:{T+1}] op_sel_hi:[1,0]")
                for k in P: a(f"v_pk_fma_f32 v[{U+k}:{U+k+1}], v[{U+k}:{U+k+1}], v[{CP+k}:{CP+k+1}], v[{T}:{T+1}] op_sel_hi:[1,1,0]")
                for k in range(16): a(f"v_rcp_f32 v{U+k}, v{U+k}")
                for k in P: a(f"v_pk_fma_f32 v[{U+k}:{U+k+1}], v[{U+k}:{U+k+1}], v[{T+2}:{T+3}], v[{T+4}:{T+5}] op_sel_hi:[1,0,0]")
                for k in P: a(f"v_pk_mul_f32 v[{U+k}:{U+k+1}], v[{U+k}:{U+k+1}], v[{A+k}:{A+k+1}]")
                for k in P: a(f"v_cvt_pk_bf16_f32 v{A+k//2}, v{U+k}, v{U+k+1}")
                if t == 0: a(f"s_add_u32 s{sT0}, s{sA2B}, {4096*u}")
                vo = vL16B if t else vL16
                sc = self.o.get('actsc', 'sc1')
                if sc == 'none': continue
                a(f"buffer_store_dwordx4 v[{A}:{A+3}], v{vo}, s[{S_WS}:{S_WS+3}], s{sT0} offen {sc}"); vm.issue(f"act{u}")
                a(f"buffer_store_dwordx4 v[{A+4}:{A+7}], v{vo}, s[{S_WS}:{S_WS+3}], s{sT0} offen offset:1024 {sc}"); vm.issue(f"act{u}")
                if self.o['classes'] and u == 2 and t == self.o.get('fa_at', 0):
                    vm.wait("act1"); self.flag(vm, sFL, 0)
            if u == 1 and self.o.get('rel_mlp', 0) == -1: self.release()
            self.stamp(11 + u)
        if self.o['classes']:
            if self.o.get('rel_mlp', 0) == 0: self.release()
            vm.wait("act2"); self.flag(vm, sFL, 4)
            if self.o.get('rel_mlp', 0) == 1: self.release()
            if self.o.get('hold2'): self.release(112)
            a("s_branch L_cdone")
        a.label("L_mlp_short")
        if self.o.get('rel_mlp', 0) == 0: self.release()
        a("s_waitcnt vmcnt(0)"); self.flag(VM(a), sFL, 0)
        if self.o.get('rel_mlp', 0) == 1: self.release()
        if self.o.get('hold2'): self.release(112)
        a("s_branch L_cdone")

    def phi(self, A, E, dst):
        a = self.a; T = CT; P = range(0, 16, 2)
        for k in range(16): a(f"v_exp_f32 v{E+k}, v{A+k}")
        for k in P: a(f"v_pk_fma_f32 v[{A+k}:{A+k+1}], v[{A+k}:{A+k+1}], v[{T+4}:{T+5}], v[{T+6}:{T+7}] op_sel_hi:[1,0,0]")
        for k in range(16): a(f"v_med3_f32 v{E+k}, v{A+k}, v{E+k}, 1.0")
        for k in P: a(f"v_pk_add_f32 v[{E+k}:{E+k+1}], v[{E+k}:{E+k+1}], v[{T+8}:{T+9}] op_sel_hi:[1,0]")
        for k in P: a(f"v_cvt_pk_bf16_f32 v{dst+k//2}, v{E+k}, v{E+k+1}")

    def kv_write(self, S, flagoff):
        a = self.a
        for k in range(3): a(f"ds_write_b128 v2, v[{S+4*k}:{S+4*k+3}] offset:{1024*k}")
        a(f"v_mov_b32 v7, 1\ns_waitcnt lgkmcnt(0)\nds_write_b32 v6, v7 offset:{flagoff}")
    def kv_add(self, S, D):
        a = self.a
        for k in range(3): a(f"ds_read_b128 v[{D+4*k}:{D+4*k+3}], v4 offset:{1024*k}")
        a("s_waitcnt lgkmcnt(0)")
        for k in range(0, 12, 2): a(f"v_pk_add_f32 v[{S+k}:{S+k+1}], v[{S+k}:{S+k+1}], v[{D+k}:{D+k+1}]")

    def c_epi_att(self, vm):
        a = self.a; T = CT; P = range(0, 16, 2)
        MT, RT, U, D0, D1 = [156, 188], [172, 204], 116, 132, 156
        Q = [ACC, ACC + 16]; K = [ACC + 32, ACC + 48]; V = [ACC + 64, ACC + 80]
        msk = f"s[{sMASK}:{sMASK+1}]"
        a("s_nop 3")
        for t in range(2):
            a(f"s_waitcnt lgkmcnt({8 - 8*t})")
            for (A, cs) in ((K[t], 8), (V[t], 10)):
                for k in P: a(f"v_pk_fma_f32 v[{A+k}:{A+k+1}], v[{MT[t]+k}:{MT[t]+k+1}], v[{cs}:{cs+1}], v[{A+k}:{A+k+1}] op_sel_hi:[1,0,1] neg_lo:[1,0,0] neg_hi:[1,0,0]")
                for k in P: a(f"v_pk_mul_f32 v[{A+k}:{A+k+1}], v[{A+k}:{A+k+1}], v[{RT[t]+k}:{RT[t]+k+1}]")
        self.table_reads(RT[1], T+18, L_CS - L_TAB)
        for r in self.lane_stats_list(): a(r)
        if self.o.get('cst'): self.stamp(21)
        a(f"v_mov_b32 v12, 0x3f803f80")
        for t in range(2):
            self.phi(K[t], U, K[t])
            for k in P: a(f"v_cvt_pk_bf16_f32 v{V[t]+k//2}, v{V[t]+k}, v{V[t]+k+1}")
            for k in range(8): a(f"v_cndmask_b32 v{K[t]+8+k}, v12, v{V[t]+k}, {msk}")
            for k in range(8): a(f"v_cndmask_b32 v{V[t]+8+k}, v{V[t]+k}, v12, {msk}")
        a("s_nop 1")
        first = True
        for t in range(2):
            for hf in range(2):
                for (D, B) in ((D0, K[t] + 8), (D1, V[t] + 8)):
                    c = "0" if (t == 0 and hf == 0) else f"v[{D}:{D+15}]"
                    a(f"v_mfma_f32_32x32x16_bf16 v[{D}:{D+15}], v[{K[t]+4*hf}:{K[t]+4*hf+3}], v[{B+4*hf}:{B+4*hf+3}], {c}")
        if self.o.get('cst'): self.stamp(22)
        a(f"s_lshl1_add_u32 s{sT0}, s{sC}, s{sR2}\ns_xor_b32 s{sT1}, s{sT0}, 1")
        a(f"s_mul_i32 s{sT2}, s{sT0}, 3072\ns_add_u32 s{sT2}, s{sT2}, {L_KV}\nv_add_u32 v2, s{sT2}, v{vL16}")
        a(f"s_mul_i32 s{sT2}, s{sT1}, 3072\ns_add_u32 s{sT2}, s{sT2}, {L_KV}\nv_add_u32 v4, s{sT2}, v{vL16}")
        a(f"s_lshl_b32 s{sT2}, s{sT0}, 2\ns_add_u32 s{sT2}, s{sT2}, {L_FL}\nv_mov_b32 v6, s{sT2}\nv_xor_b32 v13, 4, v6")
        a(f"s_lshl1_add_u32 s{sT0}, s{sG}, s{sC}\ns_lshl_b32 s{sKB}, s{sT0}, 15\ns_add_u32 s{sKB}, s{sKB}, {WS_KVP}")
        a(f"s_mov_b32 s{sEX}, 0x55555555\ns_mov_b32 s{sEX+1}, 0x55555555")
        even = f"s[{sEX}:{sEX+1}]"
        S = K[0]; Z = K[1]
        for k in range(8): a(f"v_cndmask_b32 v{S+k}, v{D1+8+k}, v{D0+k}, {msk}")
        for k in range(8): a(f"v_cndmask_b32 v{Z+k}, v{D0+k}, v{D1+8+k}, {msk}")
        for k in range(4): a(f"v_cndmask_b32 v{S+8+k}, v{Z+4+k}, v{Z+k}, {even}")
        if self.o.get('cst'): self.stamp(23)
        a(f"s_cmp_eq_u32 s{sR2}, 0\ns_cbranch_scc1 L_kv_pub")
        self.kv_write(S, 16)
        a("s_branch L_kv_q")
        a.label("L_kv_pub")
        self.spin_lds("kv1", 13, 7, 16)
        self.kv_add(S, 132)
        for k in range(6): a(f"v_cvt_pk_bf16_f32 v{Z+k+k//3}, v{S+2*k}, v{S+2*k+1}")
        a(f"v_mov_b32 v{Z+3}, s{sTAG}\nv_mov_b32 v{Z+7}, s{sTAG}\ns_lshl_b32 s{sT2}, s{sRB}, 11\ns_add_u32 s{sT2}, s{sT2}, s{sKB}")
        a(f"buffer_store_dwordx4 v[{Z}:{Z+3}], v{vL16}, s[{S_WS}:{S_WS+3}], s{sT2} offen sc1")
        a(f"buffer_store_dwordx4 v[{Z+4}:{Z+7}], v{vL16}, s[{S_WS}:{S_WS+3}], s{sT2} offen offset:1024 sc1")
        a.label("L_kv_q")
        self.stamp(11)
        if self.o.get('rel_att', 1) == 0: self.release()
        QCS = RT[1]
        a("s_waitcnt lgkmcnt(0)")
        for t in range(2):
            m, rs = T + 10 + 4*t, T + 12 + 4*t
            for k in P: a(f"v_pk_fma_f32 v[{Q[t]+k}:{Q[t]+k+1}], v[{m}:{m+1}], v[{QCS+k}:{QCS+k+1}], v[{Q[t]+k}:{Q[t]+k+1}] op_sel_hi:[0,1,1] neg_lo:[1,0,0] neg_hi:[1,0,0]")
            for k in P: a(f"v_pk_mul_f32 v[{Q[t]+k}:{Q[t]+k+1}], v[{Q[t]+k}:{Q[t]+k+1}], v[{rs}:{rs+1}] op_sel_hi:[1,0]")
        for t in range(2): self.phi(Q[t], U, Q[t])
        if self.o.get('rel_att', 1) == 1: self.release()
        if self.o.get('cst'): self.stamp(24)
        G = 132
        a(f"s_lshl_b32 s{sT4}, s{sR2}, 14\ns_add_u32 s{sT4}, s{sT4}, s{sKB}\ns_mov_b32 s{sT5}, 0\nv_and_b32 v7, 15, v{vL}\nv_lshlrev_b32 v7, 10, v7")
        if self.o.get('pollwait'):
            a(f"v_and_b32 v11, 3, v{vL}\nv_lshlrev_b32 v11, 2, v11\nv_add_u32 v11, {L_FL}, v11")
            self.spin_lds("b2d", 11, 9, 96)
        a.label("L_kv_gather")
        self.spin_global("kv", 7, 9, sT4, 12)
        if self.o.get('cst'): self.stamp(28)
        vg = VM(a)
        for p in range(8):
            a(f"s_add_u32 s{sT2}, s{sRB}, {p}\ns_and_b32 s{sT2}, s{sT2}, 7\ns_lshl_b32 s{sT2}, s{sT2}, 11\ns_add_u32 s{sT2}, s{sT2}, s{sT4}")
            for hf in range(2):
                off = " offset:1024" if hf else ""
                a(f"buffer_load_dwordx4 v[{G+8*p+4*hf}:{G+8*p+4*hf+3}], v{vL16}, s[{S_WS}:{S_WS+3}], s{sT2} offen{off} sc1"); vg.issue(f"kvg{p}")
        if self.o.get('rel_att', 1) == 3: self.release()
        if self.o.get('hold2') == 1: self.release(112)
        for p in range(8):
            vg.wait(f"kvg{p}")
            d = S if p == 0 else U
            src = [G+8*p, G+8*p+1, G+8*p+2, G+8*p+4, G+8*p+5, G+8*p+6]
            for k in range(6): a(f"v_lshlrev_b32 v{d+2*k}, 16, v{src[k]}\nv_and_b32 v{d+2*k+1}, 0xffff0000, v{src[k]}")
            if p:
                for k in range(0, 12, 2): a(f"v_pk_add_f32 v[{S+k}:{S+k+1}], v[{S+k}:{S+k+1}], v[{U+k}:{U+k+1}]")
                a(f"v_bfi_b32 v3, v{G+8*p+3}, v{G+8*p+7}, 0\nv_or3_b32 v5, v5, v{G+8*p+3}, v{G+8*p+7}\nv_and_b32 v9, v9, v3")
            else:
                a(f"v_and_b32 v9, v{G+3}, v{G+7}\nv_or_b32 v5, v{G+3}, v{G+7}")
        if self.o.get('cst'): self.stamp(25); a(f"v_writelane_b32 v252, s{sT5}, 30")
        a(f"v_cmp_ne_u32 vcc, s{sTAG}, v9\nv_cmp_ne_u32 s[{sT2+1}:{sT2+2}], s{sTAG}, v5\ns_nop 1\ns_or_b64 vcc, vcc, s[{sT2+1}:{sT2+2}]".replace(f"s[{sT2+1}:{sT2+2}]", "s[66:67]"))
        a(f"s_cbranch_vccz L_kv_ok\ns_add_u32 s{sT5}, s{sT5}, 1\ns_cmp_gt_u32 s{sT5}, 64\ns_cbranch_scc0 L_kv_gather")
        a.label("L_kv_ok")
        vm.drained()
        if self.o.get('hold2') == 2: self.release(112)
        self.stamp(12)
        self.kv_write(S, 32)
        self.spin_lds("kv2", 13, 7, 32)
        self.kv_add(S, 132)
        if self.o.get('cst'): self.stamp(26)
        W = K[1]
        for k in range(6): a(f"v_cvt_pk_bf16_f32 v{W+k}, v{S+2*k}, v{S+2*k+1}")
        a("s_nop 1")
        for k in range(2): a(f"v_mov_b32_dpp v{W+6+k}, v{W+4+k} quad_perm:[1,0,3,2] row_mask:0xf bank_mask:0xf")
        for k in range(2): a(f"v_cndmask_b32 v{S+k}, v{W+6+k}, v{W+4+k}, {even}\nv_cndmask_b32 v{S+2+k}, v{W+4+k}, v{W+6+k}, {even}")
        for k in range(4): a(f"v_cndmask_b32 v{W+8+k}, v{S+k}, v{W+k}, {msk}")
        for k in range(4): a(f"v_cndmask_b32 v{W+12+k}, v{W+k}, v{S+k}, {msk}")
        O = [[132, 148], [164, 180]]
        a("s_nop 1")
        for t in range(2):
            for hd in range(2):
                a(f"v_mfma_f32_32x32x16_bf16 v[{O[t][hd]}:{O[t][hd]+15}], v[{W+8+4*hd}:{W+11+4*hd}], v[{Q[t]+4*hd}:{Q[t]+4*hd+3}], 0")
        a(f"s_lshl1_add_u32 s{sT0}, s{sG}, s{sC}\ns_lshl_b32 s{sT0}, s{sT0}, 11\ns_add_u32 s{sT0}, s{sT0}, {88*1024}\ns_add_u32 s{sT0}, s{sT0}, s{sA2B}")
        a("s_nop 7")
        R = U
        for t in range(2):
            a(f"v_add_f32 v{R+4*t}, v{T+8}, v{O[t][0]+8}\nv_add_f32 v{R+4*t+2}, v{T+8}, v{O[t][1]}")
        for k in range(4): a(f"v_rcp_f32 v{R+2*k}, v{R+2*k}")
        for k in range(4): a(f"v_mul_f32 v{R+2*k}, v{T+4}, v{R+2*k}")
        for t in range(2):
            for hd in range(2):
                N = O[t][hd] + 8*hd; r = R + 4*t + 2*hd
                for k in range(0, 8, 2): a(f"v_pk_mul_f32 v[{N+k}:{N+k+1}], v[{N+k}:{N+k+1}], v[{r}:{r+1}] op_sel_hi:[1,0]")
                d = V[0] + 8*t + 4*hd
                for k in range(0, 8, 2): a(f"v_cvt_pk_bf16_f32 v{d+k//2}, v{N+k}, v{N+k+1}")
                vo = vL16B if t else vL16
                off = " offset:1024" if hd else ""
                a(f"buffer_store_dwordx4 v[{d}:{d+3}], v{vo}, s[{S_WS}:{S_WS+3}], s{sT0} offen{off} sc1"); vm.issue("o")
        if self.o.get('cst'): self.stamp(27)
        vm.wait("o")
        self.flag(vm, sFL, 0)
        self.stamp(13)

    def c_main(self):
        a = self.a; vm = VM(a)
        a.label("L_C")
        if self.o['pf']: vm.issue("codepf")
        self.c_prologue(vm)
        self.stamp(1)
        a(f"s_cmp_lt_u32 s{sG}, 8\ns_cbranch_scc1 L_Catt")
        self.c_kloop(False); self.c_epi_mlp(vm.copy())
        a.label("L_Catt")
        self.c_kloop(True); self.c_epi_att(vm.copy())
        a(f"s_cmp_lg_u32 s2, 0\ns_cbranch_scc1 L_cdone\ns_cmp_lg_u32 s{sW}, 0\ns_cbranch_scc1 L_cdone")
        a(f"v_lshlrev_b32 v7, 10, v{vL}")
        for k in range(4):
            a(f"s_mov_b32 s{sT0}, {WS_CSP + 65536*k}")
            self.spin_global(f"ep{k}", 7, 9, sT0, 12)
        a(f"s_mov_b32 s{sT0}, {WS_EPOCH}")
        self.flag(VM(a), sT0, 0)
        a.label("L_cdone")
        self.stamp(14)
        self.final_addr(VM(a), 14, 15)

    def final(self):
        a = self.a
        a.label("L_final")
        a("s_waitcnt vmcnt(0) lgkmcnt(0)")
        if self.o.get('tst'): self.stamp(46)
        a("s_barrier")
        if self.o.get('tst'): self.stamp(47)
        R, X = 20, 60
        a(f"v_xor_b32 v19, 16, v{vRR}")
        for kq in range(4):
            a(f"ds_read_b128 v[{R+8*kq}:{R+8*kq+3}], v{vRR} offset:{2048*kq}\nds_read_b128 v[{R+8*kq+4}:{R+8*kq+7}], v19 offset:{2048*kq}")
        for k in range(4):
            a(f"v_lshlrev_b32 v{X+2*k}, 16, v{XRES+k}\nv_and_b32 v{X+2*k+1}, 0xffff0000, v{XRES+k}")
        for kq in range(4):
            a(f"s_waitcnt lgkmcnt({6-2*kq})")
            for k in range(0, 8, 2): a(f"v_pk_add_f32 v[{X+k}:{X+k+1}], v[{X+k}:{X+k+1}], v[{R+8*kq+k}:{R+8*kq+k+1}]")
        for k in range(0, 8, 2): a(f"v_cvt_pk_bf16_f32 v{R+k//2}, v{X+k}, v{X+k+1}")
        a(f"buffer_store_dwordx4 v[{R}:{R+3}], v{vXO}, s[{S_OUT}:{S_OUT+3}], s{sRES} offen {self.o.get('outsc', '')}")
        if self.stamps:
            if self.o.get('tst'): self.stamp(48)
            a("s_waitcnt vmcnt(0)")
            self.stamp(17); self.rstamp(19)
            a(f"v_writelane_b32 v252, s96, 0\nv_writelane_b32 v252, s96, 18")
            a(f"s_lshl_b32 s{sT0}, s2, 3\ns_add_u32 s{sT0}, s{sT0}, s{sW}\ns_lshl_b32 s{sT0}, s{sT0}, 8\ns_add_u32 s{sT0}, s{sT0}, {WS_STAMP}")
            a(f"v_lshlrev_b32 v14, 2, v{vL}\nbuffer_store_dword v252, v14, s[{S_WS}:{S_WS+3}], s{sT0} offen")

    def build(self):
        a = self.a
        a.label("L_code0")
        self.entry()
        self.l_main()
        self.c_main()
        self.final()
        a.label("L_end")
        a("s_endpgm")
        a.label("L_codeend")
        return single(a.text(), 256, 512, LDS_BYTES, 256, 102, 256)

if __name__ == "__main__":
    out = sys.argv[1] if len(sys.argv) > 1 else "k.s"
    stamps = "stamps" in sys.argv[2:]
    opts = {}
    for kv in sys.argv[2:]:
        if "=" in kv:
            k, v = kv.split("="); opts[k] = eval(v)
    open(out, "w").write(Gen(stamps, opts).build())
```

```python
import sys, math, struct
from asmlib import *

def f2u(x): return struct.unpack("<I", struct.pack("<f", x))[0]
LOG2E = 1.4426950408889634
LN2 = 0.6931471805599453

WS_EPOCH = 0
WS_STATS = 0x1000
WS_CSP   = 0x10000
WS_KVP   = 0x60000
WS_FLAG  = 0x100000
WS_KVF   = 0x140000
WS_A2    = 0x200000
A2_RT    = 120 * 1024
WS_SIZE  = 0x1000000
WS_STAMP = 0xC00000
OOB      = 0x40000000

L_X    = 0
L_W    = 49152
L_MISC = 147456
L_KV   = L_MISC
L_TAB  = L_MISC + 12288
L_CS   = L_TAB
L_BT   = L_CS + 768
L_MT   = L_BT + 768
L_RT   = L_MT + 512
L_FL   = L_RT + 512
LDS_BYTES = 163840

ROUND_OF_STEP = [15, 16, 17, 4, 5, 12, 13, 14, 0, 1, 6, 7, 8, 2, 3, 9, 10, 11]
NREG = 12
ARING = 6
def round_of(step):
    return ROUND_OF_STEP[step] if step < 18 else ROUND_OF_STEP[step - 18]

S_X, S_W, S_W2, S_WO, S_WS, S_OUT, S_B1 = 24, 28, 32, 36, 40, 44, 48
sW, sLW = 52, 53
sR2, sC = 53, 54
sRB, sG, sPH = 55, 56, 57
sCT, sRT, sROT = 58, 59, 60
sTAG = 61
sXO, sWOF, sWSTEP, sWEND = 62, 63, 64, 65
sXB, sLX, sLWB, sWD = 66, 67, 68, 69
sWO1, sWO2 = 70, 71
sB2L, sB2C, sB2C2, sA2B = 72, 73, 74, 75
sC0, sPITCH, sE = 76, 83, 84
sT0, sT1, sT2, sT3, sT4, sT5 = 77, 78, 79, 80, 81, 82
sSPIN = 85
sEX = 86
sMASK = 62
sFL, sKB = 64, 65
sRES = 3
sSTAMP = 92
SP = list(range(4, 24)) + [48, 49, 50, 51, 88, 89, 90, 91, 100, 101]

vL, vL16 = 0, 1
vRR, vXO = 17, 18
XRES = 244
vX, vWv, vB2D, vB2A = 2, 6, 10, 12
vB2AL = [12, 13, 14, 15, 16, 19]
ACC2, AR, BT, B2R = 20, 84, 132, 148
vL16B = 248
vRW = 2
vXA, vWA = 2, 6
ACC, XF, WF = 20, 116, 132
CT = 220

class VM:
    def __init__(self, a): self.a = a; self.q = []
    def issue(self, tag): self.q.append(tag)
    def count(self, *tags):
        idx = max((i for i, t in enumerate(self.q) if t in tags), default=-1)
        return len(self.q) - 1 - idx if idx >= 0 else None
    def wait(self, *tags, lgkm=None):
        n = self.count(*tags)
        s = []
        if n is not None:
            assert n <= 63, n
            s.append(f"vmcnt({n})")
            self.q = self.q[len(self.q) - n:] if n else []
        if lgkm is not None: s.append(f"lgkmcnt({lgkm})")
        if s: self.a("s_waitcnt " + " ".join(s))
    def depth(self, n):
        if len(self.q) > n:
            self.a(f"s_waitcnt vmcnt({n})")
            self.q = self.q[len(self.q) - n:] if n else []
    def drained(self): self.q = []
    def copy(self):
        v = VM(self.a); v.q = list(self.q); return v

class Gen:
    def __init__(self, stamps=False, opts=None):
        self.a = Asm(); self.stamps = stamps
        self.o = dict(pf=1, hold=1, map2=0, classes=0, n0=3, spf=0, xloc=1, g3=1, pace=8, rel_mlp=1, rel_att=0, pollwait=5, hold2=1, kstamps=False, cprio=1, w2pf=5, p0_at=27, rot=8)
        if opts: self.o.update(opts)

    def srd(self, d, p, n):
        self.a(f"s_mov_b32 s{d}, s{p}\ns_mov_b32 s{d+1}, s{p+1}\ns_mov_b32 s{d+2}, {n}\ns_mov_b32 s{d+3}, 0x20000")
    def stamp(self, idx):
        if not self.stamps: return
        self.rstamp(idx)
        if self.o.get('cyc') and idx in self.o['cyc']:
            self.a(f"s_memtime s[{sSTAMP}:{sSTAMP+1}]\ns_waitcnt lgkmcnt(0)\nv_writelane_b32 v252, s{sSTAMP}, {idx + 40}")
    def rstamp(self, idx):
        if not self.stamps: return
        if 'only' in self.o and idx not in self.o['only']: return
        self.a(f"s_memrealtime s[{sSTAMP}:{sSTAMP+1}]\ns_waitcnt lgkmcnt(0)\nv_writelane_b32 v252, s{sSTAMP}, {idx}")
    def al(self):
        if self.o.get('align', 1): self.a(".p2align 3")
    def lane0(self, v):
        self.a(f"v_cmp_eq_u32 vcc, 0, v{vL}\nv_mov_b32 v{v}, {OOB}\ns_nop 0\nv_cndmask_b32 v{v}, v{v}, 0, vcc")
    def tag(self):
        self.a(f"s_mul_i32 s{sTAG}, s{sTAG}, 0x9e3779b1\ns_add_u32 s{sTAG}, s{sTAG}, 0x7f4a7c15")
    def decode2(self):
        a = self.a
        if self.o['map2'] == 0:
            a(f"s_and_b32 s{sT0}, s2, 7\ns_lshr_b32 s{sT1}, s2, 3\ns_and_b32 s{sCT}, s{sT1}, 7\ns_lshr_b32 s{sT1}, s{sT1}, 3")
            if self.o.get('ctmap', 1):
                a(f"s_xor_b32 s{sT1}, s{sT1}, 2\ns_and_b32 s{sROT}, s{sCT}, 1\ns_lshl1_add_u32 s{sROT}, s{sT1}, s{sROT}\ns_lshr_b32 s{sT1}, s{sCT}, 1\ns_mov_b32 s{sCT}, s{sROT}")
            if self.o['xloc']: a(f"s_lshr_b32 s{sRT}, s{sT0}, 1\ns_and_b32 s{sT0}, s{sT0}, 1\ns_lshl2_add_u32 s{sT0}, s{sT0}, s{sRT}")
            a(f"s_lshl2_add_u32 s{sRT}, s{sT0}, s{sT1}\ns_lshl1_add_u32 s{sROT}, s{sT1}, s{sCT}")
        else:
            a(f"s_and_b32 s{sT0}, s2, 1\ns_bfe_u32 s{sT1}, s2, 0x20003\ns_lshl2_add_u32 s{sCT}, s{sT0}, s{sT1}")
            a(f"s_bfe_u32 s{sT0}, s2, 0x20001\ns_lshr_b32 s{sROT}, s2, 5\ns_lshl3_add_u32 s{sRT}, s{sT0}, s{sROT}\ns_lshl1_add_u32 s{sROT}, s{sT1}, s{sROT}")
    def final_addr(self, vm, t0, t1):
        a = self.a
        a(f"v_lshrrev_b32 v{t0}, 3, v{vL}\nv_and_b32 v{t1}, 7, v{vL}\nv_lshlrev_b32 v{vXO}, 10, v{t0}\nv_lshl_add_u32 v{vXO}, v{t1}, 4, v{vXO}")
        a(f"s_lshl3_add_u32 s{sT0}, s{sRT}, s{sW}\ns_lshl_b32 s{sT0}, s{sT0}, 13\ns_lshl_b32 s{sT1}, s{sCT}, 7\ns_add_u32 s{sRES}, s{sT0}, s{sT1}")
        a(f"buffer_load_dwordx4 v[{XRES}:{XRES+3}], v{vXO}, s[{S_X}:{S_X+3}], s{sRES} offen"); vm.issue("xres")
        a(f"v_lshlrev_b32 v{t1}, 1, v{t1}\nv_xor_b32 v{t1}, v{t1}, v{t0}\nv_lshlrev_b32 v{t1}, 4, v{t1}\nv_lshl_add_u32 v{vRR}, v{t0}, 8, v{t1}")
        a(f"s_lshl_b32 s{sT0}, s{sW}, 13\nv_add_u32 v{vRR}, s{sT0}, v{vRR}")

    def spin_global(self, name, vaddr, vtmp, soff, imm=0, srd=S_WS):
        a = self.a
        off = f" offset:{imm}" if imm else ""
        a(f"s_mov_b32 s{sSPIN}, 0")
        a.label(f"L_sp{name}")
        a(f"buffer_load_dword v{vtmp}, v{vaddr}, s[{srd}:{srd+3}], s{soff} offen{off} sc1\ns_add_u32 s{sSPIN}, s{sSPIN}, 1\ns_waitcnt vmcnt(0)")
        a(f"v_cmp_ne_u32 vcc, s{sTAG}, v{vtmp}\ns_cmp_gt_u32 s{sSPIN}, 0x8000\ns_cbranch_scc1 L_sd{name}\ns_cbranch_vccz L_sd{name}\ns_sleep {self.o.get('sleep', 2)}\ns_branch L_sp{name}")
        a.label(f"L_sd{name}")
    def spin_lds(self, name, vaddr, vtmp, off):
        a = self.a
        a(f"s_mov_b32 s{sSPIN}, 0")
        a.label(f"L_sp{name}")
        a(f"ds_read_b32 v{vtmp}, v{vaddr} offset:{off}\ns_add_u32 s{sSPIN}, s{sSPIN}, 1\ns_waitcnt lgkmcnt(0)")
        a(f"v_cmp_ne_u32 vcc, 1, v{vtmp}\ns_cmp_gt_u32 s{sSPIN}, 0x40000\ns_cbranch_scc1 L_sd{name}\ns_cbranch_vccnz L_sp{name}")
        a.label(f"L_sd{name}")

    def entry(self):
        a = self.a
        a("s_cmp_ge_u32 s2, 256\ns_cbranch_scc1 L_end")
        a("s_load_dwordx16 s[4:19], s[0:1], 0\ns_load_dwordx4 s[20:23], s[0:1], 64")
        if self.o['pf']:
            a(f"s_getpc_b64 s[{sT0+1}:{sT0+2}]\ns_bfe_u32 s{sT0}, s2, 0x20003\ns_lshl_b32 s{sT0}, s{sT0}, 13\nv_lshlrev_b32 v2, 4, v0\nv_add_u32 v2, s{sT0}, v2")
            a.label("L_pc")
            a(f"v_min_u32 v2, L_codeend-L_pc, v2\ns_mov_b32 exec_lo, 0x01010101\ns_mov_b32 exec_hi, 0x01010101\nglobal_load_dword v253, v2, s[{sT0+1}:{sT0+2}]\ns_mov_b64 exec, -1")
        if self.stamps:
            a("v_mov_b32 v252, 0\ns_memrealtime s[96:97]")
        a(f"v_lshrrev_b32 v1, 6, v0\nv_and_b32 v{vL}, 63, v0\nv_readfirstlane_b32 s{sW}, v1")
        a(f"s_bfe_u32 s{sT0}, s2, 0x30003\ns_and_b32 s{sT1}, s2, 1\ns_lshl3_add_u32 s{sRB}, s{sT1}, s{sT0}")
        a(f"s_lshr_b32 s{sT1}, s2, 6\ns_bfe_u32 s{sT2}, s2, 0x20001")
        if self.o['g3']: a(f"s_xor_b32 s{sT2}, s{sT2}, 3")
        a(f"s_lshl2_add_u32 s{sG}, s{sT1}, s{sT2}")
        a(f"s_sub_u32 s{sT0}, s{sG}, 8\ns_min_u32 s{sT1}, s{sT0}, 3\ns_mul_i32 s{sC0}, s{sT0}, 5\ns_add_u32 s{sC0}, s{sC0}, s{sT1}")
        a(f"v_lshlrev_b32 v{vL16}, 4, v{vL}")
        a(f"s_cmp_lt_u32 s{sW}, 4\ns_cbranch_scc1 L_C")

    def l_stage(self, vm, t):
        a = self.a; slot = t % 3
        def xpart():
            a(f"s_add_u32 m0, s{sLX}, {L_X + slot*16384}\ns_lshl_b32 s{sXO}, s{sPH}, 7\ns_add_u32 s{sXO}, s{sXO}, s{sXB}")
            for ii in range(4):
                off = f" offset:{1024*ii}" if ii else ""
                a(f"buffer_load_dwordx4 v{vX+ii}, s[{S_X}:{S_X+3}], s{sXO} offen{off} lds"); vm.issue(f"st{t}")
        if t > 0: xpart()
        a(f"s_add_u32 m0, s{sLWB}, {slot*24576}\ns_sub_u32 s{sWO1}, s{sWOF}, s{sWD}\ns_sub_u32 s{sWO2}, s{sWO1}, s{sWD}")
        for rg in range(2):
            if rg: a(f"s_add_u32 m0, s{sLWB}, {slot*24576 + 3072}\ns_nop 0")
            a(f"buffer_load_dwordx4 v{vWv+2*rg}, s[{S_W}:{S_W+3}], s{sWOF} offen lds"); vm.issue(f"st{t}")
            a(f"buffer_load_dwordx4 v{vWv+2*rg}, s[{S_W}:{S_W+3}], s{sWO1} offen offset:1024 lds"); vm.issue(f"st{t}")
            a(f"buffer_load_dwordx4 v{vWv+2*rg+1}, s[{S_W}:{S_W+3}], s{sWO2} offen offset:2048 lds"); vm.issue(f"st{t}")
        if t == 0: xpart()
        if t < 7:
            a(f"s_add_u32 s{sWOF}, s{sWOF}, s{sWSTEP}\ns_add_u32 s{sPH}, s{sPH}, 1\ns_and_b32 s{sPH}, s{sPH}, 7\ns_cselect_b32 s{sT0}, 0, s{sWEND}\ns_sub_u32 s{sWOF}, s{sWOF}, s{sT0}")

    def l_prologue(self, vm):
        a = self.a; T = ACC2
        pm = self.o.get('phmode', 0)
        if pm == 0: a(f"s_bfe_u32 s{sT0}, s2, 0x30003\ns_lshr_b32 s{sT1}, s2, 6\ns_lshl1_add_u32 s{sPH}, s{sT1}, s{sT0}\ns_and_b32 s{sPH}, s{sPH}, 7")
        elif pm == 1: a(f"s_bfe_u32 s{sT0}, s2, 0x30003\ns_bfe_u32 s{sT1}, s2, 0x10006\ns_lshl2_add_u32 s{sPH}, s{sT1}, s{sT0}\ns_and_b32 s{sPH}, s{sPH}, 7")
        elif pm in (2, 3):
            a(f"s_bfe_u32 s{sT0}, s2, 0x30003\ns_bfe_u32 s{sT1}, s2, 0x10006\ns_lshl2_add_u32 s{sPH}, s{sT1}, s{sT0}\ns_lshr_b32 s{sT1}, s2, 7")
            if pm == 3: a(f"s_xor_b32 s{sT1}, s{sT1}, 1")
            a(f"s_add_u32 s{sPH}, s{sPH}, s{sT1}\ns_and_b32 s{sPH}, s{sPH}, 7")
        a(f"s_sub_u32 s{sLW}, s{sW}, 4\ns_movk_i32 s{sPITCH}, 2752\ns_cmp_lt_u32 s{sG}, 8\ns_cselect_b32 s{sPITCH}, 3072, s{sPITCH}")
        a(f"s_cselect_b32 s{sWD}, 0, 896\ns_cselect_b32 s{sT3}, 0, 2048")
        a(f"s_lshl_b32 s{sT0}, s{sG}, 7\ns_lshl_b32 s{sT1}, s{sC0}, 6\ns_cmp_lt_u32 s{sG}, 8\ns_cselect_b32 s{sT5}, s{sT0}, s{sT1}\ns_add_u32 s{sT5}, s{sT5}, s{sT3}")
        a(f"v_lshrrev_b32 v{T}, 4, v{vL}\nv_and_b32 v{T+1}, 7, v{vL}\nv_xor_b32 v{T}, v{T}, v{T+1}\nv_lshlrev_b32 v{T}, 4, v{T}\nv_lshrrev_b32 v{T+2}, 3, v{vL}")
        a(f"v_lshl_add_u32 v{vX}, v{T+2}, 10, v{T}\nv_xor_b32 v{vX+1}, 64, v{vX}\nv_add_u32 v{vX+1}, 7168, v{vX+1}\nv_add_u32 v{vX+2}, 14336, v{vX}\nv_add_u32 v{vX+3}, 14336, v{vX+1}")
        a(f"v_lshrrev_b32 v{T}, 2, v{vL}\nv_and_b32 v{T}, 4, v{T}\nv_xor_b32 v{T}, v{T}, v{T+1}\nv_lshlrev_b32 v{T}, 4, v{T}")
        a(f"s_cmp_ge_u32 s{sG}, 11\ns_cselect_b32 s{sT4}, 64, 128\nv_mad_u32_u24 v{vWv}, v{T+2}, s{sPITCH}, v{T}\nv_cmp_gt_u32 vcc, s{sT4}, v{T}\nv_mov_b32 v{vWv+1}, {OOB}")
        a(f"s_lshl_b32 s{sT0}, s{sPITCH}, 3\nv_cndmask_b32 v{vWv+1}, v{vWv+1}, v{vWv}, vcc\nv_add_u32 v{vWv+2}, s{sT0}, v{vWv}\nv_add_u32 v{vWv+3}, s{sT0}, v{vWv+1}")
        a(f"s_lshl2_add_u32 s{sXB}, s{sRB}, s{sLW}\ns_lshl_b32 s{sXB}, s{sXB}, 15\ns_lshl_b32 s{sWSTEP}, s{sPITCH}, 6\ns_lshl_b32 s{sWEND}, s{sPITCH}, 9")
        a(f"s_lshl2_add_u32 s{sT0}, s{sPH}, s{sLW}\ns_lshl_b32 s{sT0}, s{sT0}, 4\ns_mul_i32 s{sWOF}, s{sT0}, s{sPITCH}\ns_add_u32 s{sWOF}, s{sWOF}, s{sT5}")
        a(f"s_lshl_b32 s{sLX}, s{sLW}, 12\ns_mul_i32 s{sLWB}, s{sLW}, 6144\ns_add_u32 s{sLWB}, s{sLWB}, {L_W}")
        a(f"s_mov_b32 s{S_X+2}, 2097152\ns_mov_b32 s{S_X+3}, 0x20000\ns_add_u32 s{S_W+2}, s{sWEND}, s{sT3}\ns_mov_b32 s{S_W+3}, 0x20000")
        a("s_waitcnt lgkmcnt(0)")
        self.stamp(1)
        a(f"s_load_dword s{sTAG}, s[22:23], {WS_EPOCH}")
        a(f"s_mov_b32 s{S_X}, s4\ns_mov_b32 s{S_X+1}, s5\ns_sub_u32 s12, s12, 2048\ns_subb_u32 s13, s13, 0")
        a(f"s_cmp_lt_u32 s{sG}, 8\ns_cselect_b32 s{S_W}, s6, s12\ns_cselect_b32 s{S_W+1}, s7, s13")
        self.l_stage(vm, 0)
        if self.o.get('pst'): self.stamp(40)
        a(f"v_lshl_add_u32 v{vB2D}, v{T+2}, 10, v{T}\nv_add_u32 v{vB2D+1}, 7168, v{vB2D}")
        self.srd(S_WS, 22, WS_SIZE); self.srd(S_W2, 16, 1376*1024); self.srd(S_WO, 8, 512*1024); self.srd(S_OUT, 18, 2097152)
        self.decode2()
        a(f"v_bfe_u32 v{T}, v{vL}, 2, 2\nv_lshrrev_b32 v{T+1}, 1, v{T}\nv_lshlrev_b32 v{T}, 7, v{T}\nv_lshl_add_u32 v{T}, v{T+1}, 6, v{T}")
        a(f"v_bfe_u32 v{T+1}, v{vL}, 4, 1\nv_lshl_add_u32 v{T}, v{T+1}, 5, v{T}\nv_and_b32 v{T+1}, 3, v{vL}\nv_lshl_add_u32 v{T+14}, v{T+1}, 3, v{T}\nv_lshrrev_b32 v{T+15}, 5, v{vL}")
        a(f"s_lshl_b32 s{sB2L}, s{sLW}, 11\nv_lshl_add_u32 v{vB2AL[0]}, v{T+15}, 9, v{T+14}\nv_add_u32 v{vB2AL[0]}, s{sB2L}, v{vB2AL[0]}\nv_xor_b32 v{vB2AL[1]}, 64, v{vB2AL[0]}")
        for hi in (1, 2):
            a(f"v_add_u32 v{vB2AL[2*hi]}, {65536*hi}, v{vB2AL[0]}\nv_add_u32 v{vB2AL[2*hi+1]}, {65536*hi}, v{vB2AL[1]}")
        a(f"v_and_b32 v{T}, 31, v{vL}\nv_lshlrev_b32 v{T}, 2, v{T}\nv_add_u32 v{T}, {L_FL}, v{T}\nv_mov_b32 v{T+1}, 0\nds_write_b32 v{T}, v{T+1}")

    def l_colsum(self):
        a = self.a; T = ACC2; F = AR; S = T + 16
        a(f"s_mul_i32 s{sT0}, s{sLW}, 6144\ns_add_u32 s{sT0}, s{sT0}, {L_W}\nv_mul_u32_u24 v{T}, 3072, v{T+15}\nv_add3_u32 v{T}, v{T}, v{T+14}, s{sT0}\nv_xor_b32 v{T+1}, 64, v{T}")
        for u in range(3):
            for c in range(2):
                for rd in range(2):
                    r = F + 8*u + 4*c + 2*rd
                    a(f"ds_read_b64_tr_b16 v[{r}:{r+1}], v{T+c} offset:{1024*u + 512*rd}")
        a(f"s_mov_b32 s{sT0}, 0x3f803f80")
        for k in range(6): a(f"v_mov_b32 v{S+k}, 0")
        a(f"s_mul_i32 s{sT1}, s{sLW}, 1536\ns_add_u32 s{sT1}, s{sT1}, {L_KV}\nv_and_b32 v{T+2}, 31, v{vL}\nv_lshl_add_u32 v{T+2}, v{T+2}, 2, s{sT1}\nv_mul_u32_u24 v{T+3}, 768, v{T+15}\nv_add_u32 v{T+2}, v{T+2}, v{T+3}")
        a("s_waitcnt lgkmcnt(0)")
        for k in range(4):
            for uc in range(6): a(f"v_dot2c_f32_bf16 v{S+uc}, s{sT0}, v{F+4*uc+k}")
        a("s_nop 2")
        for uc in range(6): a(f"ds_write_b32 v{T+2}, v{S+uc} offset:{128*uc}")

    def wave_sum2(self, v0, v1, t0, t1):
        a = self.a
        for m in ("quad_perm:[1,0,3,2]", "quad_perm:[2,3,0,1]", "row_half_mirror", "row_mirror"):
            a(f"s_nop 0\nv_add_f32_dpp v{v0}, v{v0}, v{v0} {m} row_mask:0xf bank_mask:0xf\nv_add_f32_dpp v{v1}, v{v1}, v{v1} {m} row_mask:0xf bank_mask:0xf")
        for op in ("v_permlane16_swap_b32", "v_permlane32_swap_b32"):
            a(f"v_mov_b32 v{t0}, v{v0}\nv_mov_b32 v{t1}, v{v1}\ns_nop 1\n{op} v{t0}, v{v0}\n{op} v{t1}, v{v1}\ns_nop 0\nv_add_f32 v{v0}, v{v0}, v{t0}\nv_add_f32 v{v1}, v{v1}, v{t1}")

    def c_stats(self, vm):
        a = self.a; T = 160; u = 116
        vm.wait("xrow", lgkm=0)
        if self.o.get('pst'): self.stamp(42)
        self.tag()
        for r in range(2):
            for k in range(4):
                a(f"v_lshlrev_b32 v{u+8*r+2*k}, 16, v{T+4+4*r+k}\nv_and_b32 v{u+8*r+2*k+1}, 0xffff0000, v{T+4+4*r+k}")
        s0, s1 = u + 16, u + 17
        for r, s in ((0, s0), (1, s1)): a(f"v_add_f32 v{s}, v{u+8*r}, v{u+8*r+1}")
        for k in range(2, 8):
            for r, s in ((0, s0), (1, s1)): a(f"v_add_f32 v{s}, v{s}, v{u+8*r+k}")
        self.wave_sum2(s0, s1, u + 40, u + 41)
        G0, G1 = u + 20, u + 24
        a(f"v_mul_f32 v{G0}, {f2u(1/512.):#x}, v{s0}\nv_mul_f32 v{G1}, {f2u(1/512.):#x}, v{s1}")
        for k in range(8):
            a(f"v_sub_f32 v{u+k}, v{u+k}, v{G0}\nv_sub_f32 v{u+8+k}, v{u+8+k}, v{G1}")
        a(f"v_mul_f32 v{s0}, v{u}, v{u}\nv_mul_f32 v{s1}, v{u+8}, v{u+8}")
        for k in range(1, 8): a(f"v_fmac_f32 v{s0}, v{u+k}, v{u+k}\nv_fmac_f32 v{s1}, v{u+8+k}, v{u+8+k}")
        self.wave_sum2(s0, s1, u + 40, u + 41)
        a(f"v_mov_b32 v{u}, {f2u(1e-5):#x}\nv_mov_b32 v{u+1}, {f2u(1e-5):#x}\nv_fmac_f32 v{u}, {f2u(1/512.):#x}, v{s0}\nv_fmac_f32 v{u+1}, {f2u(1/512.):#x}, v{s1}")
        a(f"v_rsq_f32 v{u}, v{u}\nv_rsq_f32 v{u+1}, v{u+1}\nv_mov_b32 v{G0+2}, 0\nv_mov_b32 v{G0+3}, s{sTAG}\nv_mov_b32 v{G1+2}, 0\nv_mov_b32 v{G1+3}, s{sTAG}")
        a(f"v_mul_f32 v{G0+1}, {f2u(LOG2E):#x}, v{u}\nv_mul_f32 v{G1+1}, {f2u(LOG2E):#x}, v{u+1}")
        self.lane0(u + 2)
        a(f"buffer_store_dwordx4 v[{G0}:{G0+3}], v{u+2}, s[{S_WS}:{S_WS+3}], s{sE} offen sc1"); vm.issue("statst")
        a(f"buffer_store_dwordx4 v[{G1}:{G1+3}], v{u+2}, s[{S_WS}:{S_WS+3}], s{sE} offen offset:16 sc1"); vm.issue("statst")
        if self.o.get('pst'): self.stamp(43)
        vm.wait("bias")
        a(f"v_lshlrev_b32 v{u+3}, 16, v{T+12}\nv_mul_f32 v{u+3}, {f2u(LOG2E):#x}, v{u+3}\nv_lshlrev_b32 v{u+4}, 2, v{T+13}\nv_add_u32 v{u+4}, {L_BT}, v{u+4}")
        a(f"s_cmp_eq_u32 s{sW}, 3\ns_cbranch_scc1 L_nobt\nds_write_b32 v{u+4}, v{u+3}")
        a.label("L_nobt")

    def l_cspub(self, vm, vi):
        a = self.a; T = ACC2 + 24; U = B2R
        a(f"s_mov_b32 s{sT0}, {OOB}\ns_cmp_lg_u32 s{sLW}, 0\ns_cbranch_scc1 L_nocsp{vi}")
        a(f"v_lshlrev_b32 v{T}, 2, v{vL}\nv_add_u32 v{T}, {L_KV}, v{T}")
        for k in range(0, 24, 2): a(f"ds_read2st64_b32 v[{U+k}:{U+k+1}], v{T} offset0:{k} offset1:{k+1}")
        a(f"v_mov_b32 v{T+3}, s{sTAG}")
        a(f"s_lshl4_add_u32 s{sT0}, s{sG}, s{sRB}\ns_lshl_b32 s{sT0}, s{sT0}, 10\ns_add_u32 s{sT0}, s{sT0}, {WS_CSP}")
        a("s_waitcnt lgkmcnt(0)")
        for sl in range(1, 7):
            for u in range(3): a(f"v_add_f32 v{U+u}, v{U+u}, v{U+3*sl+u}")
        for u in range(3): a(f"v_add_f32 v{T+u}, v{U+u}, v{U+21+u}")
        a.label(f"L_nocsp{vi}")
        a(f"buffer_store_dwordx4 v[{T}:{T+3}], v{vL16}, s[{S_WS}:{S_WS+3}], s{sT0} offen sc1"); vm.issue("cspst")

    def l_steptable(self):
        a = self.a
        a("s_waitcnt lgkmcnt(0)")
        if not self.o['classes']:
            a(f"s_mul_i32 s{sT0}, s{sROT}, 3\ns_lshr_b32 s{sT0}, s{sT0}, {0 if self.o['map2'] == 0 else 1}")
            a(f"s_sub_u32 s{sT1}, s{sT0}, 22\ns_cmp_ge_u32 s{sT0}, 22\ns_cselect_b32 s{sT0}, s{sT1}, s{sT0}")
            a(f"s_mul_i32 s{sT3}, s{sLW}, 22\ns_add_u32 s{sT4}, s{sT3}, 22\ns_add_u32 s{sT0}, s{sT0}, s{sT3}")
            for i in range(22):
                a(f"s_lshl_b32 s{SP[i]}, s{sT0}, 10\ns_cmp_ge_u32 s{sT0}, 86\ns_cselect_b32 s{SP[i]}, {WS_SIZE}, s{SP[i]}")
                if i < 21: a(f"s_add_u32 s{sT0}, s{sT0}, 1\ns_cmp_eq_u32 s{sT0}, s{sT4}\ns_cselect_b32 s{sT0}, s{sT3}, s{sT0}")
        else:
            for k, d in ((0, sT4), (1, sT5)):
                a(f"s_lshl_b32 s{sT0}, s{sLW}, 1\ns_add_u32 s{sT0}, s{sT0}, {k}\ns_min_u32 s{sT1}, s{sT0}, 3\ns_mul_i32 s{sT0}, s{sT0}, 5\ns_add_u32 s{sT0}, s{sT0}, s{sT1}\ns_lshl_b32 s{d}, s{sT0}, 1")
            a(f"s_lshl_b32 s{sT3}, s{sROT}, 1")
            for i in range(16):
                a(f"s_add_u32 s{sT0}, s{sT3}, {i}\ns_and_b32 s{sT1}, s{sT0}, 7\ns_bitcmp1_b32 s{sT0}, 3\ns_cselect_b32 s{sT0}, s{sT5}, s{sT4}\ns_add_u32 s{sT0}, s{sT0}, s{sT1}\ns_lshl_b32 s{SP[i]}, s{sT0}, 10")
            tab = [[4, 5, 10], [11, 16, 17], [22, 27, 32], [37, 42, 43]]
            a(f"s_lshl_b32 s{sT0}, s{sLW}, 3\ns_or_b32 s{sT0}, s{sT0}, 0x80000")
            for k, d in ((0, sT3), (1, sT4), (2, sT5)):
                c = sum(tab[q][k] << (8*q) for q in range(4))
                a(f"s_bfe_u32 s{d}, {c:#x}, s{sT0}\ns_lshl_b32 s{d}, s{d}, 11")
            a(f"s_cmp_eq_u32 s{sLW}, 3\ns_cselect_b32 s{sT5}, {WS_SIZE}, s{sT5}")
            a(f"s_mov_b32 s{sT0}, s{sROT}")
            for r in range(2): a(f"s_sub_u32 s{sT1}, s{sT0}, 6\ns_cmp_ge_u32 s{sT0}, 6\ns_cselect_b32 s{sT0}, s{sT1}, s{sT0}")
            for i in range(6):
                a(f"s_cmp_ge_u32 s{sT0}, 2\ns_cselect_b32 s{sT1}, s{sT4}, s{sT3}\ns_cmp_ge_u32 s{sT0}, 4\ns_cselect_b32 s{sT1}, s{sT5}, s{sT1}")
                a(f"s_and_b32 s{sT2}, s{sT0}, 1\ns_lshl_b32 s{sT2}, s{sT2}, 10\ns_add_u32 s{SP[16+i]}, s{sT1}, s{sT2}")
                if i < 5: a(f"s_add_u32 s{sT0}, s{sT0}, 1\ns_cmp_eq_u32 s{sT0}, 6\ns_cselect_b32 s{sT0}, 0, s{sT0}")
        a(f"s_lshl_b32 s{sT3}, s{sLW}, 3\ns_add_u32 s{sT3}, s{sT3}, 88")
        for i in range(8):
            a(f"s_add_u32 s{sT0}, s{sROT}, {i}\ns_and_b32 s{sT0}, s{sT0}, 7\ns_add_u32 s{sT0}, s{sT0}, s{sT3}\ns_lshl_b32 s{SP[22+i]}, s{sT0}, 10")
        a(f"s_lshl_b32 s{sB2C}, s{sCT}, 7\ns_sub_u32 s{sB2C2}, s{sB2C}, {88*16384}")
        a(f"s_mul_i32 s{sA2B}, s{sRT}, {2*A2_RT}\ns_add_u32 s{sA2B}, s{sA2B}, {WS_A2}\nv_add_u32 v{vL16B}, {A2_RT}, v{vL16}")

    def l_gather_addr(self):
        a = self.a; T = ACC2 + 40; sT4, sT5 = 86, 87
        a(f"s_lshl2_add_u32 s{sT4}, s{sRB}, s{sLW}\ns_lshl_b32 s{sT4}, s{sT4}, 9\ns_add_u32 s{sT4}, s{sT4}, {WS_STATS}")
        a(f"s_and_b32 s{sT5}, s{sRB}, 8\ns_lshl4_add_u32 s{sT5}, s{sG}, s{sT5}\ns_lshl2_add_u32 s{sT5}, s{sT5}, s{sLW}\ns_lshl_b32 s{sT5}, s{sT5}, 8\ns_add_u32 s{sT5}, s{sT5}, {WS_CSP}")
        a(f"v_and_b32 v{T}, 0x1f0, v{vL16}\nv_lshrrev_b32 v{T+1}, 4, v{vL}\nv_lshlrev_b32 v{T+1}, 10, v{T+1}\nv_and_b32 v{T+2}, 0xf0, v{vL16}\nv_or_b32 v{T+1}, v{T+1}, v{T+2}\nv_add_u32 v{T+2}, 4096, v{T+1}")
    def l_gather_issue(self, vm):
        a = self.a; T = ACC2 + 40; G = AR; sT4, sT5 = 86, 87
        a(f"buffer_load_dwordx4 v[{G}:{G+3}], v{T}, s[{S_WS}:{S_WS+3}], s{sT4} offen sc1"); vm.issue("gath")
        a(f"buffer_load_dwordx4 v[{G+4}:{G+7}], v{T+1}, s[{S_WS}:{S_WS+3}], s{sT5} offen sc1"); vm.issue("gath")
        a(f"buffer_load_dwordx4 v[{G+8}:{G+11}], v{T+2}, s[{S_WS}:{S_WS+3}], s{sT5} offen sc1"); vm.issue("gath")
    def l_gather_check(self, vm, vi):
        a = self.a; T = ACC2; G = AR
        vm.wait("gath")
        a(f"s_mov_b32 s{sSPIN}, 0")
        a.label(f"L_gchk{vi}")
        a(f"v_cmp_ne_u32 vcc, s{sTAG}, v{G+3}\nv_cmp_ne_u32 s[70:71], s{sTAG}, v{G+7}\ns_nop 1\ns_or_b64 s[70:71], vcc, s[70:71]")
        a(f"v_cmp_ne_u32 vcc, s{sTAG}, v{G+11}\ns_nop 1\ns_or_b64 vcc, vcc, s[70:71]")
        a(f"s_cbranch_vccz L_gok{vi}")
        a(f"s_add_u32 s{sSPIN}, s{sSPIN}, 1\ns_cmp_gt_u32 s{sSPIN}, 0x8000\ns_cbranch_scc1 L_gok{vi}")
        self.l_gather_issue(VM(a))
        a(f"s_waitcnt vmcnt(0)\ns_branch L_gchk{vi}")
        a.label(f"L_gok{vi}")
        a(f"s_lshl_b32 s{sT0}, s{sLW}, 7\ns_add_u32 s{sT0}, s{sT0}, {L_MT}\nv_and_b32 v{T}, 31, v{vL}\nv_lshl_add_u32 v{T}, v{T}, 2, s{sT0}")
        a(f"ds_write_b32 v{T}, v{G}\nds_write_b32 v{T}, v{G+1} offset:512")
    def l_w2touch(self, vm):
        a = self.a; T = ACC2
        a(f"s_lshl2_add_u32 s{sT0}, s2, s{sLW}\ns_lshl_b32 s{sT1}, s{sT0}, 9\ns_mul_i32 s{sT0}, s{sT0}, 1408\nv_lshlrev_b32 v{T}, 7, v{vL}\ns_mov_b64 exec, 0x7ff")
        a(f"buffer_load_dword v{T+31}, v{T}, s[{S_W2}:{S_W2+3}], s{sT0} offen\ns_mov_b64 exec, 0xf"); vm.issue("w2t")
        a(f"buffer_load_dword v{T+30}, v{T}, s[{S_WO}:{S_WO+3}], s{sT1} offen\ns_mov_b64 exec, -1"); vm.issue("w2t")
    def l_gather_cs(self):
        a = self.a; T = ACC2; G = AR
        for k in range(3): a(f"v_add_f32 v{G+4+k}, v{G+4+k}, v{G+8+k}")
        for op in ("v_permlane16_swap_b32", "v_permlane32_swap_b32"):
            for k in range(3): a(f"v_mov_b32 v{G+8+k}, v{G+4+k}")
            a("s_nop 0")
            for k in range(3): a(f"{op} v{G+8+k}, v{G+4+k}")
            a("s_nop 0")
            for k in range(3): a(f"v_add_f32 v{G+4+k}, v{G+4+k}, v{G+8+k}")
        a(f"s_lshl_b32 s{sT0}, s{sLW}, 6\ns_add_u32 s{sT0}, s{sT0}, {L_CS}\nv_lshl_add_u32 v{T+1}, v{vL}, 2, s{sT0}\ns_mov_b64 exec, 0xffff")
        a(f"ds_write2st64_b32 v{T+1}, v{G+4}, v{G+5} offset1:1\nds_write_b32 v{T+1}, v{G+6} offset:512\ns_mov_b64 exec, -1")

    def b2_dma(self, vm, step, pace=True):
        a = self.a
        if pace: vm.depth((self.o['pace'] if pace is True else pace) - 2)
        srd, base = (S_W2, sB2C) if step < 22 else (S_WO, sB2C2)
        a(f"s_add_u32 m0, s{sB2L}, {8192*round_of(step)}\ns_lshl4_add_u32 s{sT0}, s{SP[step]}, s{base}")
        a(f"buffer_load_dwordx4 v{vB2D}, s[{srd}:{srd+3}], s{sT0} offen lds"); vm.issue(f"b2_{step}")
        a(f"buffer_load_dwordx4 v{vB2D+1}, s[{srd}:{srd+3}], s{sT0} offen offset:1024 lds"); vm.issue(f"b2_{step}")
        if self.o.get('b2stamps'): self.stamp(20 + step)
    def b2_reads(self, s, dst):
        rnd = round_of(s); hi, lo = rnd // 8, rnd % 8
        for cc in range(2):
            for rd in range(2):
                r = dst + 4*cc + 2*rd
                self.a(f"ds_read_b64_tr_b16 v[{r}:{r+1}], v{vB2AL[2*hi + cc]} offset:{8192*lo + 1024*rd}")

    def l_main(self):
        a = self.a; vm = VM(a); T = ACC2
        if self.o['pf']: vm.issue("codepf")
        self.l_prologue(vm)
        if self.o['spf']:
            a(f"s_lshr_b32 s{sT0}, s2, 3\ns_lshl2_add_u32 s{sT0}, s{sT0}, s{sLW}\ns_mul_i32 s{sT0}, s{sT0}, {64*self.o['spf']}\ns_add_u32 s94, s16, s{sT0}\ns_addc_u32 s95, s17, 0\ns_and_b32 s84, s2, 7")
        self.l_steptable()
        if self.o.get('pst'): self.stamp(41)
        assert self.o.get('st1_at', 4) <= 4
        vm.depth(self.o.get('st1_at', 4))
        if self.o.get('pst'): self.stamp(42)
        self.l_stage(vm, 1)
        if self.o.get('pst'): self.stamp(43)
        if self.o.get('w2pf', -1) == -1: self.l_w2touch(vm)
        self.tag(); self.l_colsum(); self.l_gather_addr()
        CL = self.o.get('cl') or [{}]
        TV = B2R + 40
        if len(CL) > 1 or CL[0]:
            a(f"s_lshr_b32 s{sT0}, s2, 3\ns_lshl2_add_u32 s{sT0}, s{sT0}, s{sLW}\ns_mul_i32 s{sT0}, s{sT0}, 118")
            a(f"v_min_u32 v{TV}, 58, v{vL}\nv_add_u32 v{TV}, s{sT0}, v{TV}\nv_lshlrev_b32 v{TV}, 7, v{TV}\nv_add_u32 v{TV+1}, {59*128}, v{TV}")
            a(f"v_subrev_u32 v{TV+2}, {1376*1024}, v{TV}\nv_subrev_u32 v{TV+3}, {1376*1024}, v{TV+1}\ns_and_b32 s84, s{sCT}, {len(CL)-1}")
        def touch(vm, k):
            a(f"buffer_load_dword v{TV+4}, v{TV+k}, s[{S_W2}:{S_W2+3}], 0 offen"); vm.issue("tch")
            a(f"buffer_load_dword v{TV+5}, v{TV+2+k}, s[{S_WO}:{S_WO+3}], 0 offen"); vm.issue("tch")
        base = vm; ends = []
        for vi, var in enumerate(CL):
            vm = base.copy()
            if vi + 1 < len(CL): a(f"s_cmp_lg_u32 s84, {vi}\ns_cbranch_scc1 L_var{vi}")
            for t in range(8):
                vm.wait(f"st{t}", lgkm=None if (self.o['spf'] and 1 <= t <= 6) else 0)
                if self.o.get('pst') and t < 2: self.stamp(44 + t)
                a("s_barrier")
                if self.o['kstamps'] or t in (0, 7): self.stamp(2 + t)
                if t + 2 < 8: self.l_stage(vm, t + 2)
                for k in var.get(t, []): touch(vm, k)
                if t == 0: self.l_cspub(vm, vi)
                if self.o['spf'] and t in self.o.get('spf_t', range(0, 6)):
                    n = self.o['spf']; assert 128*64*n <= 234752
                    a(f"s_add_u32 s84, s84, 1\ns_sub_u32 s{sT0}, s84, 6\ns_cmp_ge_u32 s84, 6\ns_cselect_b32 s84, s{sT0}, s84\ns_mul_i32 s{sT0}, s84, 234752\ns_add_u32 s98, s94, s{sT0}\ns_addc_u32 s99, s95, 0")
                    for k in range(n): a(f"s_load_dword s54, s[98:99], {64*k}")
                if t == 5: self.l_gather_issue(vm)
                if t == self.o.get('w2pf', -1): self.l_w2touch(vm)
                if t == 6:
                    for s in range(self.o['n0']): self.b2_dma(vm, s, pace=False)
                    self.l_gather_check(vm, vi); self.l_gather_cs()
            ends.append(list(vm.q))
            if vi + 1 < len(CL):
                a("s_branch L_varend"); a.label(f"L_var{vi}")
        assert all(e == ends[0] for e in ends)
        a.label("L_varend")
        for s in range(self.o['n0'], 7): self.b2_dma(vm, s, pace=False)
        a(f"v_and_b32 v{T}, 7, v{vL}\nv_lshrrev_b32 v{T+1}, 5, v{vL}\nv_xor_b32 v{T+1}, v{T+1}, v{T}\nv_lshlrev_b32 v{T+1}, 4, v{T+1}\nv_lshl_add_u32 v{T+1}, v{T}, 8, v{T+1}")
        a(f"v_bfe_u32 v{T}, v{vL}, 3, 2\nv_lshl_add_u32 v{T+1}, v{T}, 13, v{T+1}\nv_add_u32 v{vRW}, s{sB2L}, v{T+1}")
        for q in range(1, 4): a(f"v_xor_b32 v{vRW+q}, {32*q}, v{vRW}")
        vP0, vP2, vPT = 249, 250, 251
        a(f"s_lshl_b32 s{sXO}, s{sRT}, 12\ns_add_u32 s{sXO}, s{sXO}, {WS_FLAG}")
        a(f"v_and_b32 v{vP0}, 3, v{vL}\ns_lshl_b32 s{sT0}, s{sLW}, 2\nv_add_u32 v{vP0}, s{sT0}, v{vP0}\nv_lshlrev_b32 v{vP0}, 7, v{vP0}")
        if not self.o['classes'] and self.o.get('psub', 1):
            a(f"s_lshl_b32 s{sT0}, s{sLW}, 3\ns_or_b32 s{sT0}, s{sT0}, 0x80000\ns_bfe_u32 s{sT1}, 0x0c060200, s{sT0}\ns_bfe_u32 s{sT0}, 0x03050503, s{sT0}")
            a(f"v_min_u32 v{vP2}, s{sT0}, v{vL}\nv_add_u32 v{vP2}, s{sT1}, v{vP2}\nv_lshlrev_b32 v{vP2}, 7, v{vP2}")
        elif not self.o['classes']:
            a(f"v_and_b32 v{vP2}, 15, v{vL}\nv_lshlrev_b32 v{vP2}, 7, v{vP2}")
        else:
            a(f"v_and_b32 v{vP2}, 3, v{vL}\nv_min_u32 v{vP2}, 2, v{vP2}")
            a(f"s_mul_i32 s{sT0}, s{sLW}, 3\ns_mul_i32 s{sT1}, s{sLW}, 6\ns_sub_u32 s{sT1}, s{sT1}, 6\ns_cmp_lt_u32 s{sLW}, 2\ns_cselect_b32 s{sT0}, s{sT0}, s{sT1}\ns_cselect_b32 s{sT1}, 0, 1")
            a(f"v_lshlrev_b32 v{vP2}, s{sT1}, v{vP2}\nv_add_u32 v{vP2}, s{sT0}, v{vP2}\nv_min_u32 v{vP2}, 14, v{vP2}\nv_lshlrev_b32 v{vP2}, 7, v{vP2}")
        vA = vP0 if self.o['classes'] else vP2
        self.final_addr(vm, T, T + 1)
        for s in range(4 + self.o.get('pre7', 3), 13): self.b2_dma(vm, s)
        def park(k):
            vm.wait(f"b2_{k}")
            self.b2_reads(k, B2R + 8*k)
        a(f"v_and_b32 v{T}, 3, v{vL}\nv_lshlrev_b32 v{T}, 2, v{T}\nv_add_u32 v{T}, {L_FL}, v{T}")
        self.spin_lds("ring", T, T + 1, 0)
        for s in range(13, 18): self.b2_dma(vm, s)
        self.stamp(10)
        for k in range(12):
            park(k)
            if k > 1: a("s_waitcnt lgkmcnt(8)")
        if self.o['hold']: self.spin_lds("hold", T, T + 1, 64)
        else: a("s_waitcnt lgkmcnt(0)")
        self.stamp(13)
        def poll0():
            a(f"buffer_load_dword v{vPT}, v{vA}, s[{S_WS}:{S_WS+3}], s{sXO} offen offset:2048 sc1"); vm.issue("p0")
        for s in range(18, 30):
            self.b2_dma(vm, s, pace=self.o.get('pace2', 10))
            if s == self.o['p0_at'] and not self.o.get('hold2'): poll0()
        if self.o.get('pollwait'):
            vm.depth(self.o['pollwait'] - 1)
            a(f"s_lshl_b32 s{sT0}, s{sLW}, 2\ns_add_u32 s{sT0}, s{sT0}, {L_FL + 96}\nv_mov_b32 v{T}, s{sT0}\nv_mov_b32 v{T+1}, 1\nds_write_b32 v{T}, v{T+1}")
        if self.o.get('hold2'):
            a(f"v_and_b32 v{T}, 3, v{vL}\nv_lshlrev_b32 v{T}, 2, v{T}\nv_add_u32 v{T}, {L_FL}, v{T}")
            self.spin_lds("hold2", T, T + 1, 112)
            poll0()
        self.stamp(11)
        polls = {0: (vA, 2048), 22: (vP0, 0)}
        if self.o['classes']: polls[16] = (vP2, 2052)
        def a_load(i):
            r = AR + 8*(i % ARING)
            a(f"s_add_u32 s{sT0}, s{sA2B}, s{SP[i]}")
            a(f"buffer_load_dwordx4 v[{r}:{r+3}], v{vL16}, s[{S_WS}:{S_WS+3}], s{sT0} offen sc1"); vm.issue(f"a{i}")
            a(f"buffer_load_dwordx4 v[{r+4}:{r+7}], v{vL16B}, s[{S_WS}:{S_WS+3}], s{sT0} offen sc1"); vm.issue(f"a{i}")
        def poll_issue(c):
            v, imm = polls[c]
            off = f" offset:{imm}" if imm else ""
            a(f"buffer_load_dword v{vPT}, v{v}, s[{S_WS}:{S_WS+3}], s{sXO} offen{off} sc1"); vm.issue(f"p{c}")
        def poll_check(c):
            v, imm = polls[c]
            vm.wait(f"p{c}")
            a(f"v_cmp_ne_u32 vcc, s{sTAG}, v{vPT}\ns_cbranch_vccz L_pok{c}")
            self.spin_global(f"p{c}", v, vPT, sXO, imm)
            a.label(f"L_pok{c}")
            self.stamp({0: 12, 16: 14, 22: 15}[c])
        LEAD = self.o.get('lead', 3)
        poll_check(0)
        a("s_setprio 1")
        def issue_a(n):
            if n in polls and n > 0: poll_check(n)
            a_load(n)
            if n + LEAD in polls: poll_issue(n + LEAD)
        for i in range(ARING): issue_a(i)
        def breg(i): return B2R + 8*i if i < NREG else BT + 8*(i & 1)
        for i in range(30):
            if i + 1 >= NREG and i + 1 < 30: self.b2_reads(i + 1, breg(i + 1))
            lg = None
            if i >= NREG: lg = 4 if i + 1 < 30 else 0
            vm.wait(f"a{i}", lgkm=lg)
            if self.o.get('astamps'): self.stamp(20 + i)
            A, B = AR + 8*(i % ARING), breg(i)
            for cc in range(2):
                for t in range(2):
                    acc = f"v[{ACC2+16*(2*t+cc)}:{ACC2+16*(2*t+cc)+15}]"
                    a(f"v_mfma_f32_32x32x16_bf16 {acc}, v[{B+4*cc}:{B+4*cc+3}], v[{A+4*t}:{A+4*t+3}], {'0' if i == 0 else acc}")
            n = i + ARING
            if n < 30: issue_a(n)
        self.stamp(16)
        a("s_nop 7\ns_nop 3")
        for t in range(2):
            for cc in range(2):
                for q in range(4):
                    r = ACC2 + 16*(2*t+cc) + 4*q
                    a(f"ds_write_b128 v{vRW+q}, v[{r}:{r+3}] offset:{32768*t + 128*cc}")
        a("s_branch L_final")

    def c_prologue(self, vm):
        a = self.a; T = CT
        a("s_waitcnt lgkmcnt(0)")
        if self.o.get('pst'): self.stamp(40)
        a(f"s_load_dword s{sTAG}, s[22:23], {WS_EPOCH}")
        self.srd(S_X, 4, 2097152)
        X = 160
        a(f"s_lshl4_add_u32 s{sT0}, s{sRB}, s{sG}\ns_lshl2_add_u32 s{sT5}, s{sT0}, s{sW}\ns_lshl_b32 s{sT0}, s{sT5}, 11")
        a(f"buffer_load_dwordx4 v[{X+4}:{X+7}], v{vL16}, s[{S_X}:{S_X+3}], s{sT0} offen"); vm.issue("xrow")
        a(f"buffer_load_dwordx4 v[{X+8}:{X+11}], v{vL16}, s[{S_X}:{S_X+3}], s{sT0} offen offset:1024"); vm.issue("xrow")
        a(f"s_lshl_b32 s{sE}, s{sT5}, 5\ns_add_u32 s{sE}, s{sE}, {WS_STATS}")
        self.srd(S_B1, 14, 2752)
        a(f"v_lshl_add_u32 v{X+13}, s{sW}, 6, v{vL}\nv_lshlrev_b32 v{X+3}, 1, v{X+13}")
        a(f"s_lshl_b32 s{sT0}, s{sC0}, 6\ns_cmp_lt_u32 s{sG}, 8\ns_cselect_b32 s{sT0}, {OOB}, s{sT0}")
        a(f"buffer_load_ushort v{X+12}, v{X+3}, s[{S_B1}:{S_B1+3}], s{sT0} offen"); vm.issue("bias")
        a(f"s_and_b32 s{sR2}, s{sW}, 1\ns_lshr_b32 s{sC}, s{sW}, 1")
        a(f"v_and_b32 v{T+2}, 31, v{vL}\nv_lshrrev_b32 v{T+3}, 5, v{vL}\nv_bfe_u32 v{T+4}, v{vL}, 1, 3\nv_xor_b32 v{T+4}, v{T+4}, v{T+3}")
        a(f"s_lshl_b32 s{sT3}, s{sR2}, 13\nv_lshlrev_b32 v{T+2}, 7, v{T+2}\nv_lshl_add_u32 v{T+2}, v{T+4}, 4, v{T+2}\nv_add_u32 v{vXA}, s{sT3}, v{T+2}")
        for kk in range(1, 4): a(f"v_xor_b32 v{vXA+kk}, {32*kk}, v{vXA}")
        a(f"v_bfe_u32 v{T+2}, v{vL}, 2, 2\nv_mul_u32_u24 v{T+4}, 3072, v{T+3}\nv_lshl_add_u32 v{T+4}, v{T+2}, 7, v{T+4}")
        a(f"v_lshrrev_b32 v{T+2}, 1, v{T+2}\nv_xor_b32 v{T+2}, s{sC}, v{T+2}\nv_lshl_add_u32 v{T+4}, v{T+2}, 6, v{T+4}")
        a(f"v_bfe_u32 v{T+2}, v{vL}, 4, 1\nv_lshl_add_u32 v{T+4}, v{T+2}, 5, v{T+4}\nv_and_b32 v{T+2}, 3, v{vL}\nv_lshl_add_u32 v{T+4}, v{T+2}, 3, v{T+4}")
        for sl in range(3): a(f"v_add_u32 v{vWA+sl}, {L_W + 24576*sl}, v{T+4}")
        self.decode2()
        self.srd(S_WS, 22, WS_SIZE); self.srd(S_OUT, 18, 2097152)
        a(f"s_mov_b32 s{sMASK}, 0x0000ffff\ns_mov_b32 s{sMASK+1}, 0x0000ffff")
        a(f"s_lshl1_add_u32 s{sT0}, s{sRB}, s{sR2}\ns_mul_i32 s{sA2B}, s{sT0}, {2*A2_RT}\ns_add_u32 s{sA2B}, s{sA2B}, {WS_A2}")
        a(f"s_lshl4_add_u32 s{sT0}, s{sT0}, s{sG}\ns_lshl1_add_u32 s{sT0}, s{sT0}, s{sC}\ns_lshl_b32 s{sFL}, s{sT0}, 7\ns_add_u32 s{sFL}, s{sFL}, {WS_FLAG}")
        a(f"v_add_u32 v{vL16B}, {A2_RT}, v{vL16}")
        self.table_addr(); self.consts()
        if self.o.get('pst'): self.stamp(41)
        self.c_stats(vm)
        self.flag_regs()
        if self.o['cprio']: a(f"s_setprio {self.o['cprio']}")

    def c_read_list(self, n):
        t, kk = n // 4, n % 4; slot = t % 3; b = n & 1
        def x(a_): return f"ds_read_b128 v[{XF+8*b+4*a_}:{XF+8*b+4*a_+3}], v{vXA+kk} offset:{slot*16384 + 4096*a_}"
        def w(u, rd):
            r = WF + 12*b + 4*u + 2*rd
            return f"ds_read_b64_tr_b16 v[{r}:{r+1}], v{vWA+slot} offset:{6144*kk + 1024*u + 512*rd}"
        return [x(0), w(0, 0), w(0, 1), x(1), w(1, 0), w(1, 1), w(2, 0), w(2, 1)]
    def c_mfma(self, n, u, t_, att):
        b = n & 1
        x = f"v[{XF+8*b+4*t_}:{XF+8*b+4*t_+3}]"; w = f"v[{WF+12*b+4*u}:{WF+12*b+4*u+3}]"
        A = ACC + 16*(2*u + t_); acc = f"v[{A}:{A+15}]"; c = "0" if n == 0 else acc
        if att and u > 0: return f"v_mfma_f32_32x32x16_bf16 {acc}, {x}, {w}, {c}"
        return f"v_mfma_f32_32x32x16_bf16 {acc}, {w}, {x}, {c}"

    def c_kloop(self, att):
        a = self.a
        a("s_waitcnt lgkmcnt(0)\ns_barrier")
        self.stamp(2)
        for r in self.c_read_list(0): a(r)
        for n in range(32):
            boundary = (n % 4 == 3)
            if boundary:
                a("s_waitcnt lgkmcnt(0)")
                if n < 31:
                    a("s_barrier")
                    if self.o['kstamps'] == 2: self.stamp(3 + n // 4)
                else:
                    a(f"s_lshl_b32 s{sT0}, s{sW}, 2\ns_add_u32 s{sT0}, s{sT0}, {L_FL}\nv_mov_b32 v14, s{sT0}\nv_mov_b32 v15, 1\nds_write_b32 v14, v15")
            R = self.c_read_list(n + 1) if n < 31 else (self.att_pre if att else self.mlp_pre)()
            M = [self.c_mfma(n, u, t_, att) for u in range(3) for t_ in range(2)]
            place = self.o.get('rplace', [2, 2, 2, 2, 0, 0]) if n < 31 else [3, 3, 3, 3, 3, 3]
            need = {0: 3, 1: 4, 2: 6, 4: 8}
            issued = 0
            for k in range(6):
                if not boundary and k in need: a(f"s_waitcnt lgkmcnt({min(15, 8 - need[k] + issued)})")
                a(M[k])
                if R[0]:
                    for r in R[issued:issued + place[k]]: a(r)
                    issued += place[k]
        self.stamp(10)

    def consts(self):
        T = CT
        self.a(f"v_mov_b32 v{T}, 2.0\nv_mov_b32 v{T+2}, {f2u(-2*LN2):#x}\nv_mov_b32 v{T+4}, {f2u(LN2):#x}\nv_mov_b32 v{T+6}, 1.0\nv_mov_b32 v{T+8}, {f2u(1e-6):#x}")
    def table_list(self, dst, vaddr, off):
        return [f"ds_read_b128 v[{dst+4*q}:{dst+4*q+3}], v{vaddr} offset:{off + 32*q}" for q in range(4)]
    def table_reads(self, dst, vaddr, off):
        for r in self.table_list(dst, vaddr, off): self.a(r)
    def table_addr(self):
        a = self.a; T = CT
        a(f"v_lshrrev_b32 v{T+18}, 5, v{vL}\ns_lshl_b32 s{sT0}, s{sR2}, 8\ns_add_u32 s{sT0}, s{sT0}, {L_MT}\nv_lshl_add_u32 v{T+19}, v{T+18}, 4, s{sT0}")
        a(f"v_and_b32 v{T+22}, 31, v{vL}\nv_lshl_add_u32 v{T+23}, v{T+22}, 2, s{sT0}")
        a(f"s_lshl_b32 s{sT0}, s{sC}, 7\ns_add_u32 s{sT0}, s{sT0}, {L_TAB}\nv_lshl_add_u32 v{T+18}, v{T+18}, 4, s{sT0}\nv_lshl_add_u32 v{T+22}, v{T+22}, 2, s{sT0}")
    def lane_stats_list(self):
        T = CT
        return [f"ds_read_b32 v{T+10}, v{T+23}", f"ds_read_b32 v{T+12}, v{T+23} offset:512", f"ds_read_b32 v{T+14}, v{T+23} offset:128", f"ds_read_b32 v{T+16}, v{T+23} offset:640"]
    def flag(self, vm, soff, imm):
        a = self.a; T = CT
        off = f" offset:{imm}" if imm else ""
        a(f"buffer_store_dword v{T+21}, v{T+20}, s[{S_WS}:{S_WS+3}], s{soff} offen{off} sc1"); vm.issue("flag")
    def release(self, off=64):
        a = self.a
        a(f"s_lshl_b32 s{sT0}, s{sW}, 2\ns_add_u32 s{sT0}, s{sT0}, {L_FL + off}\nv_mov_b32 v14, s{sT0}\nv_mov_b32 v15, 1\nds_write_b32 v14, v15")
    def flag_regs(self):
        self.lane0(CT + 20); self.a(f"v_mov_b32 v{CT+21}, s{sTAG}")

    def mlp_pre(self):
        T = CT
        return self.lane_stats_list() + self.table_list(156, T+18, L_CS - L_TAB) + self.table_list(172, T+18, L_BT - L_TAB)
    def att_pre(self):
        T = CT
        return ([f"ds_read_b32 v8, v{T+22} offset:256", f"ds_read_b32 v10, v{T+22} offset:512"] + self.table_list(156, T+19, 0) + self.table_list(172, T+19, 512)
                + self.table_list(188, T+19, 128) + self.table_list(204, T+19, 640))
    def c_epi_mlp(self, vm):
        a = self.a; T = CT; P = range(0, 16, 2)
        CS, BB, CP, U = [156, 116], [172, 132], 188, 204
        a(f"s_add_u32 s{sT1}, s{sC0}, s{sC}\ns_lshl_b32 s{sT1}, s{sT1}, 11\ns_add_u32 s{sA2B}, s{sA2B}, s{sT1}")
        a("s_waitcnt lgkmcnt(8)")
        a(f"v_mul_f32 v{T+10}, v{T+10}, v{T+12}\nv_mul_f32 v{T+14}, v{T+14}, v{T+16}")
        for u in range(3):
            cs, bb = CS[u & 1], BB[u & 1]
            if u == 2:
                a(f"s_cmp_ge_u32 s{sG}, 11\ns_cselect_b32 s{sT0}, s{sC}, 0\ns_cmp_eq_u32 s{sT0}, 1\ns_cbranch_scc1 L_mlp_short")
            a("s_waitcnt lgkmcnt(0)")
            if u < 2:
                self.table_reads(CS[(u+1) & 1], T+18, L_CS - L_TAB + 256*(u+1)); self.table_reads(BB[(u+1) & 1], T+18, L_BT - L_TAB + 256*(u+1))
            for t in range(2):
                A = ACC + 16*(2*u + t); mr, rs = T + 10 + 4*t, T + 12 + 4*t
                self.al()
                for k in P: a(f"v_pk_fma_f32 v[{CP+k}:{CP+k+1}], v[{mr}:{mr+1}], v[{cs+k}:{cs+k+1}], v[{bb+k}:{bb+k+1}] op_sel_hi:[0,1,1] neg_lo:[1,0,0] neg_hi:[1,0,0]")
                for k in P: a(f"v_pk_fma_f32 v[{A+k}:{A+k+1}], v[{A+k}:{A+k+1}], v[{rs}:{rs+1}], v[{CP+k}:{CP+k+1}] op_sel_hi:[1,0,1]")
                for k in range(16): a(f"v_exp_f32 v{U+k}, v{A+k}")
                for k in P: a(f"v_pk_add_f32 v[{CP+k}:{CP+k+1}], v[{U+k}:{U+k+1}], v[{T}:{T+1}] op_sel_hi:[1,0]")
                for k in P: a(f"v_pk_fma_f32 v[{U+k}:{U+k+1}], v[{U+k}:{U+k+1}], v[{CP+k}:{CP+k+1}], v[{T}:{T+1}] op_sel_hi:[1,1,0]")
                for k in range(16): a(f"v_rcp_f32 v{U+k}, v{U+k}")
                for k in P: a(f"v_pk_fma_f32 v[{U+k}:{U+k+1}], v[{U+k}:{U+k+1}], v[{T+2}:{T+3}], v[{T+4}:{T+5}] op_sel_hi:[1,0,0]")
                for k in P: a(f"v_pk_mul_f32 v[{U+k}:{U+k+1}], v[{U+k}:{U+k+1}], v[{A+k}:{A+k+1}]")
                for k in P: a(f"v_cvt_pk_bf16_f32 v{A+k//2}, v{U+k}, v{U+k+1}")
                if t == 0: a(f"s_add_u32 s{sT0}, s{sA2B}, {4096*u}")
                vo = vL16B if t else vL16
                sc = self.o.get('actsc', 'sc1')
                if sc == 'none': continue
                a(f"buffer_store_dwordx4 v[{A}:{A+3}], v{vo}, s[{S_WS}:{S_WS+3}], s{sT0} offen {sc}"); vm.issue(f"act{u}")
                a(f"buffer_store_dwordx4 v[{A+4}:{A+7}], v{vo}, s[{S_WS}:{S_WS+3}], s{sT0} offen offset:1024 {sc}"); vm.issue(f"act{u}")
                if self.o['classes'] and u == 2 and t == self.o.get('fa_at', 0):
                    vm.wait("act1"); self.flag(vm, sFL, 0)
            if u == 1 and self.o.get('rel_mlp', 0) == -1: self.release()
            self.stamp(11 + u)
        if self.o['classes']:
            if self.o.get('rel_mlp', 0) == 0: self.release()
            vm.wait("act2"); self.flag(vm, sFL, 4)
            if self.o.get('rel_mlp', 0) == 1: self.release()
            if self.o.get('hold2'): self.release(112)
            a("s_branch L_cdone")
        a.label("L_mlp_short")
        if self.o.get('rel_mlp', 0) == 0: self.release()
        a("s_waitcnt vmcnt(0)"); self.flag(VM(a), sFL, 0)
        if self.o.get('rel_mlp', 0) == 1: self.release()
        if self.o.get('hold2'): self.release(112)
        a("s_branch L_cdone")

    def phi(self, A, E, dst):
        a = self.a; T = CT; P = range(0, 16, 2)
        self.al()
        for k in range(16): a(f"v_exp_f32 v{E+k}, v{A+k}")
        for k in P: a(f"v_pk_fma_f32 v[{A+k}:{A+k+1}], v[{A+k}:{A+k+1}], v[{T+4}:{T+5}], v[{T+6}:{T+7}] op_sel_hi:[1,0,0]")
        for k in range(16): a(f"v_med3_f32 v{E+k}, v{A+k}, v{E+k}, 1.0")
        for k in P: a(f"v_pk_add_f32 v[{E+k}:{E+k+1}], v[{E+k}:{E+k+1}], v[{T+8}:{T+9}] op_sel_hi:[1,0]")
        for k in P: a(f"v_cvt_pk_bf16_f32 v{dst+k//2}, v{E+k}, v{E+k+1}")

    def kv_write(self, S, flagoff):
        a = self.a
        for k in range(3): a(f"ds_write_b128 v2, v[{S+4*k}:{S+4*k+3}] offset:{1024*k}")
        a(f"v_mov_b32 v7, 1\ns_waitcnt lgkmcnt(0)\nds_write_b32 v6, v7 offset:{flagoff}")
    def kv_add(self, S, D):
        a = self.a
        for k in range(3): a(f"ds_read_b128 v[{D+4*k}:{D+4*k+3}], v4 offset:{1024*k}")
        a("s_waitcnt lgkmcnt(0)")
        for k in range(0, 12, 2): a(f"v_pk_add_f32 v[{S+k}:{S+k+1}], v[{S+k}:{S+k+1}], v[{D+k}:{D+k+1}]")

    def c_epi_att(self, vm):
        a = self.a; T = CT; P = range(0, 16, 2)
        MT, RT, U, D0, D1 = [156, 188], [172, 204], 116, 132, 156
        Q = [ACC, ACC + 16]; K = [ACC + 32, ACC + 48]; V = [ACC + 64, ACC + 80]
        msk = f"s[{sMASK}:{sMASK+1}]"
        a("s_nop 3")
        for t in range(2):
            a(f"s_waitcnt lgkmcnt({8 - 8*t})")
            self.al()
            for (A, cs) in ((K[t], 8), (V[t], 10)):
                for k in P: a(f"v_pk_fma_f32 v[{A+k}:{A+k+1}], v[{MT[t]+k}:{MT[t]+k+1}], v[{cs}:{cs+1}], v[{A+k}:{A+k+1}] op_sel_hi:[1,0,1] neg_lo:[1,0,0] neg_hi:[1,0,0]")
                for k in P: a(f"v_pk_mul_f32 v[{A+k}:{A+k+1}], v[{A+k}:{A+k+1}], v[{RT[t]+k}:{RT[t]+k+1}]")
        self.table_reads(RT[1], T+18, L_CS - L_TAB)
        for r in self.lane_stats_list(): a(r)
        if self.o.get('cst'): self.stamp(21)
        a(f"v_mov_b32 v12, 0x3f803f80")
        for t in range(2):
            self.phi(K[t], U, K[t])
            for k in P: a(f"v_cvt_pk_bf16_f32 v{V[t]+k//2}, v{V[t]+k}, v{V[t]+k+1}")
            for k in range(8): a(f"v_cndmask_b32 v{K[t]+8+k}, v12, v{V[t]+k}, {msk}")
            for k in range(8): a(f"v_cndmask_b32 v{V[t]+8+k}, v{V[t]+k}, v12, {msk}")
        a("s_nop 1")
        first = True
        for t in range(2):
            for hf in range(2):
                for (D, B) in ((D0, K[t] + 8), (D1, V[t] + 8)):
                    c = "0" if (t == 0 and hf == 0) else f"v[{D}:{D+15}]"
                    a(f"v_mfma_f32_32x32x16_bf16 v[{D}:{D+15}], v[{K[t]+4*hf}:{K[t]+4*hf+3}], v[{B+4*hf}:{B+4*hf+3}], {c}")
        if self.o.get('cst'): self.stamp(22)
        a(f"s_lshl1_add_u32 s{sT0}, s{sC}, s{sR2}\ns_xor_b32 s{sT1}, s{sT0}, 1")
        a(f"s_mul_i32 s{sT2}, s{sT0}, 3072\ns_add_u32 s{sT2}, s{sT2}, {L_KV}\nv_add_u32 v2, s{sT2}, v{vL16}")
        a(f"s_mul_i32 s{sT2}, s{sT1}, 3072\ns_add_u32 s{sT2}, s{sT2}, {L_KV}\nv_add_u32 v4, s{sT2}, v{vL16}")
        a(f"s_lshl_b32 s{sT2}, s{sT0}, 2\ns_add_u32 s{sT2}, s{sT2}, {L_FL}\nv_mov_b32 v6, s{sT2}\nv_xor_b32 v13, 4, v6")
        a(f"s_lshl1_add_u32 s{sT0}, s{sG}, s{sC}\ns_lshl_b32 s{sKB}, s{sT0}, 15\ns_add_u32 s{sKB}, s{sKB}, {WS_KVP}")
        a(f"s_mov_b32 s{sEX}, 0x55555555\ns_mov_b32 s{sEX+1}, 0x55555555")
        even = f"s[{sEX}:{sEX+1}]"
        S = K[0]; Z = K[1]
        for k in range(8): a(f"v_cndmask_b32 v{S+k}, v{D1+8+k}, v{D0+k}, {msk}")
        for k in range(8): a(f"v_cndmask_b32 v{Z+k}, v{D0+k}, v{D1+8+k}, {msk}")
        for k in range(4): a(f"v_cndmask_b32 v{S+8+k}, v{Z+4+k}, v{Z+k}, {even}")
        if self.o.get('cst'): self.stamp(23)
        a(f"s_cmp_eq_u32 s{sR2}, 0\ns_cbranch_scc1 L_kv_pub")
        self.kv_write(S, 16)
        a("s_branch L_kv_q")
        a.label("L_kv_pub")
        self.spin_lds("kv1", 13, 7, 16)
        self.kv_add(S, 132)
        for k in range(6): a(f"v_cvt_pk_bf16_f32 v{Z+k+k//3}, v{S+2*k}, v{S+2*k+1}")
        a(f"v_mov_b32 v{Z+3}, s{sTAG}\nv_mov_b32 v{Z+7}, s{sTAG}\ns_lshl_b32 s{sT2}, s{sRB}, 11\ns_add_u32 s{sT2}, s{sT2}, s{sKB}")
        a(f"buffer_store_dwordx4 v[{Z}:{Z+3}], v{vL16}, s[{S_WS}:{S_WS+3}], s{sT2} offen sc1")
        a(f"buffer_store_dwordx4 v[{Z+4}:{Z+7}], v{vL16}, s[{S_WS}:{S_WS+3}], s{sT2} offen offset:1024 sc1")
        a.label("L_kv_q")
        self.stamp(11)
        if self.o.get('rel_att', 1) == 0: self.release()
        QCS = RT[1]
        a("s_waitcnt lgkmcnt(0)")
        self.al()
        for t in range(2):
            m, rs = T + 10 + 4*t, T + 12 + 4*t
            for k in P: a(f"v_pk_fma_f32 v[{Q[t]+k}:{Q[t]+k+1}], v[{m}:{m+1}], v[{QCS+k}:{QCS+k+1}], v[{Q[t]+k}:{Q[t]+k+1}] op_sel_hi:[0,1,1] neg_lo:[1,0,0] neg_hi:[1,0,0]")
            for k in P: a(f"v_pk_mul_f32 v[{Q[t]+k}:{Q[t]+k+1}], v[{Q[t]+k}:{Q[t]+k+1}], v[{rs}:{rs+1}] op_sel_hi:[1,0]")
        for t in range(2): self.phi(Q[t], U, Q[t])
        if self.o.get('rel_att', 1) == 1: self.release()
        if self.o.get('cst'): self.stamp(24)
        G = 132
        a(f"s_lshl_b32 s{sT4}, s{sR2}, 14\ns_add_u32 s{sT4}, s{sT4}, s{sKB}\ns_mov_b32 s{sT5}, 0\nv_and_b32 v7, 15, v{vL}\nv_lshlrev_b32 v7, 10, v7")
        if self.o.get('pollwait'):
            a(f"v_and_b32 v11, 3, v{vL}\nv_lshlrev_b32 v11, 2, v11\nv_add_u32 v11, {L_FL}, v11")
            self.spin_lds("b2d", 11, 9, 96)
        a.label("L_kv_gather")
        self.spin_global("kv", 7, 9, sT4, 12)
        if self.o.get('cst'): self.stamp(28)
        vg = VM(a)
        for p in range(8):
            a(f"s_add_u32 s{sT2}, s{sRB}, {p}\ns_and_b32 s{sT2}, s{sT2}, 7\ns_lshl_b32 s{sT2}, s{sT2}, 11\ns_add_u32 s{sT2}, s{sT2}, s{sT4}")
            for hf in range(2):
                off = " offset:1024" if hf else ""
                a(f"buffer_load_dwordx4 v[{G+8*p+4*hf}:{G+8*p+4*hf+3}], v{vL16}, s[{S_WS}:{S_WS+3}], s{sT2} offen{off} sc1"); vg.issue(f"kvg{p}")
        if self.o.get('rel_att', 1) == 3: self.release()
        if self.o.get('hold2') == 1: self.release(112)
        for p in range(8):
            vg.wait(f"kvg{p}")
            d = S if p == 0 else U
            src = [G+8*p, G+8*p+1, G+8*p+2, G+8*p+4, G+8*p+5, G+8*p+6]
            for k in range(6): a(f"v_lshlrev_b32 v{d+2*k}, 16, v{src[k]}\nv_and_b32 v{d+2*k+1}, 0xffff0000, v{src[k]}")
            if p:
                for k in range(0, 12, 2): a(f"v_pk_add_f32 v[{S+k}:{S+k+1}], v[{S+k}:{S+k+1}], v[{U+k}:{U+k+1}]")
                a(f"v_bfi_b32 v3, v{G+8*p+3}, v{G+8*p+7}, 0\nv_or3_b32 v5, v5, v{G+8*p+3}, v{G+8*p+7}\nv_and_b32 v9, v9, v3")
            else:
                a(f"v_and_b32 v9, v{G+3}, v{G+7}\nv_or_b32 v5, v{G+3}, v{G+7}")
        if self.o.get('cst'): self.stamp(25); a(f"v_writelane_b32 v252, s{sT5}, 30")
        a(f"v_cmp_ne_u32 vcc, s{sTAG}, v9\nv_cmp_ne_u32 s[{sT2+1}:{sT2+2}], s{sTAG}, v5\ns_nop 1\ns_or_b64 vcc, vcc, s[{sT2+1}:{sT2+2}]".replace(f"s[{sT2+1}:{sT2+2}]", "s[66:67]"))
        a(f"s_cbranch_vccz L_kv_ok\ns_add_u32 s{sT5}, s{sT5}, 1\ns_cmp_gt_u32 s{sT5}, 64\ns_cbranch_scc0 L_kv_gather")
        a.label("L_kv_ok")
        vm.drained()
        if self.o.get('hold2') == 2: self.release(112)
        self.stamp(12)
        self.kv_write(S, 32)
        self.spin_lds("kv2", 13, 7, 32)
        self.kv_add(S, 132)
        if self.o.get('cst'): self.stamp(26)
        W = K[1]
        for k in range(6): a(f"v_cvt_pk_bf16_f32 v{W+k}, v{S+2*k}, v{S+2*k+1}")
        a("s_nop 1")
        for k in range(2): a(f"v_mov_b32_dpp v{W+6+k}, v{W+4+k} quad_perm:[1,0,3,2] row_mask:0xf bank_mask:0xf")
        for k in range(2): a(f"v_cndmask_b32 v{S+k}, v{W+6+k}, v{W+4+k}, {even}\nv_cndmask_b32 v{S+2+k}, v{W+4+k}, v{W+6+k}, {even}")
        for k in range(4): a(f"v_cndmask_b32 v{W+8+k}, v{S+k}, v{W+k}, {msk}")
        for k in range(4): a(f"v_cndmask_b32 v{W+12+k}, v{W+k}, v{S+k}, {msk}")
        O = [[132, 148], [164, 180]]
        a("s_nop 1")
        for t in range(2):
            for hd in range(2):
                a(f"v_mfma_f32_32x32x16_bf16 v[{O[t][hd]}:{O[t][hd]+15}], v[{W+8+4*hd}:{W+11+4*hd}], v[{Q[t]+4*hd}:{Q[t]+4*hd+3}], 0")
        a(f"s_lshl1_add_u32 s{sT0}, s{sG}, s{sC}\ns_lshl_b32 s{sT0}, s{sT0}, 11\ns_add_u32 s{sT0}, s{sT0}, {88*1024}\ns_add_u32 s{sT0}, s{sT0}, s{sA2B}")
        a("s_nop 7")
        R = U
        for t in range(2):
            a(f"v_add_f32 v{R+4*t}, v{T+8}, v{O[t][0]+8}\nv_add_f32 v{R+4*t+2}, v{T+8}, v{O[t][1]}")
        for k in range(4): a(f"v_rcp_f32 v{R+2*k}, v{R+2*k}")
        for k in range(4): a(f"v_mul_f32 v{R+2*k}, v{T+4}, v{R+2*k}")
        for t in range(2):
            for hd in range(2):
                N = O[t][hd] + 8*hd; r = R + 4*t + 2*hd
                for k in range(0, 8, 2): a(f"v_pk_mul_f32 v[{N+k}:{N+k+1}], v[{N+k}:{N+k+1}], v[{r}:{r+1}] op_sel_hi:[1,0]")
                d = V[0] + 8*t + 4*hd
                for k in range(0, 8, 2): a(f"v_cvt_pk_bf16_f32 v{d+k//2}, v{N+k}, v{N+k+1}")
                vo = vL16B if t else vL16
                off = " offset:1024" if hd else ""
                a(f"buffer_store_dwordx4 v[{d}:{d+3}], v{vo}, s[{S_WS}:{S_WS+3}], s{sT0} offen{off} sc1"); vm.issue("o")
        if self.o.get('cst'): self.stamp(27)
        vm.wait("o")
        self.flag(vm, sFL, 0)
        self.stamp(13)

    def c_main(self):
        a = self.a; vm = VM(a)
        a.label("L_C")
        if self.o['pf']: vm.issue("codepf")
        self.c_prologue(vm)
        self.stamp(1)
        a(f"s_cmp_lt_u32 s{sG}, 8\ns_cbranch_scc1 L_Catt")
        self.c_kloop(False); self.c_epi_mlp(vm.copy())
        a.label("L_Catt")
        self.c_kloop(True); self.c_epi_att(vm.copy())
        a(f"s_cmp_lg_u32 s2, 0\ns_cbranch_scc1 L_cdone\ns_cmp_lg_u32 s{sW}, 0\ns_cbranch_scc1 L_cdone")
        a(f"v_lshlrev_b32 v7, 10, v{vL}")
        for k in range(4):
            a(f"s_mov_b32 s{sT0}, {WS_CSP + 65536*k}")
            self.spin_global(f"ep{k}", 7, 9, sT0, 12)
        a(f"s_mov_b32 s{sT0}, {WS_EPOCH}")
        self.flag(VM(a), sT0, 0)
        a.label("L_cdone")
        self.stamp(14)
        self.final_addr(VM(a), 14, 15)

    def final(self):
        a = self.a
        a.label("L_final")
        a("s_waitcnt vmcnt(0) lgkmcnt(0)")
        if self.o.get('tst'): self.stamp(46)
        a("s_barrier")
        if self.o.get('tst'): self.stamp(47)
        R, X = 20, 60
        a(f"v_xor_b32 v19, 16, v{vRR}")
        for kq in range(4):
            a(f"ds_read_b128 v[{R+8*kq}:{R+8*kq+3}], v{vRR} offset:{2048*kq}\nds_read_b128 v[{R+8*kq+4}:{R+8*kq+7}], v19 offset:{2048*kq}")
        for k in range(4):
            a(f"v_lshlrev_b32 v{X+2*k}, 16, v{XRES+k}\nv_and_b32 v{X+2*k+1}, 0xffff0000, v{XRES+k}")
        for kq in range(4):
            a(f"s_waitcnt lgkmcnt({6-2*kq})")
            for k in range(0, 8, 2): a(f"v_pk_add_f32 v[{X+k}:{X+k+1}], v[{X+k}:{X+k+1}], v[{R+8*kq+k}:{R+8*kq+k+1}]")
        for k in range(0, 8, 2): a(f"v_cvt_pk_bf16_f32 v{R+k//2}, v{X+k}, v{X+k+1}")
        a(f"buffer_store_dwordx4 v[{R}:{R+3}], v{vXO}, s[{S_OUT}:{S_OUT+3}], s{sRES} offen {self.o.get('outsc', '')}")
        if self.stamps:
            if self.o.get('tst'): self.stamp(48)
            a("s_waitcnt vmcnt(0)")
            self.stamp(17); self.rstamp(19)
            a(f"v_writelane_b32 v252, s96, 0\nv_writelane_b32 v252, s96, 18")
            a(f"s_lshl_b32 s{sT0}, s2, 3\ns_add_u32 s{sT0}, s{sT0}, s{sW}\ns_lshl_b32 s{sT0}, s{sT0}, 8\ns_add_u32 s{sT0}, s{sT0}, {WS_STAMP}")
            a(f"v_lshlrev_b32 v14, 2, v{vL}\nbuffer_store_dword v252, v14, s[{S_WS}:{S_WS+3}], s{sT0} offen")

    def build(self):
        a = self.a
        a.label("L_code0")
        self.entry()
        self.l_main()
        self.c_main()
        self.final()
        a.label("L_end")
        a("s_endpgm")
        a.label("L_codeend")
        return single(a.text(), 256, 512, LDS_BYTES, 256, 102, 256)

if __name__ == "__main__":
    out = sys.argv[1] if len(sys.argv) > 1 else "k.s"
    stamps = "stamps" in sys.argv[2:]
    opts = {}
    for kv in sys.argv[2:]:
        if "=" in kv:
            k, v = kv.split("="); opts[k] = eval(v)
    open(out, "w").write(Gen(stamps, opts).build())
```

```python
import sys, math, struct
from asmlib import *

def f2u(x): return struct.unpack("<I", struct.pack("<f", x))[0]
LOG2E = 1.4426950408889634
LN2 = 0.6931471805599453

WS_EPOCH = 0
WS_STATS = 0x1000
WS_CSP   = 0x10000
WS_KVP   = 0x60000
WS_FLAG  = 0x100000
WS_KVF   = 0x140000
WS_A2    = 0x200000
A2_RT    = 120 * 1024
WS_SIZE  = 0x1000000
WS_STAMP = 0xC00000
OOB      = 0x40000000

L_X    = 0
L_W    = 49152
L_MISC = 147456
L_KV   = L_MISC
L_TAB  = L_MISC + 12288
L_CS   = L_TAB
L_BT   = L_CS + 768
L_MT   = L_BT + 768
L_RT   = L_MT + 512
L_FL   = L_RT + 512
LDS_BYTES = 163840

ROUND_OF_STEP = [15, 16, 17, 4, 5, 12, 13, 14, 0, 1, 6, 7, 8, 2, 3, 9, 10, 11]
NREG = 12
ARING = 6
def round_of(step):
    return ROUND_OF_STEP[step] if step < 18 else ROUND_OF_STEP[step - 18]

S_X, S_W, S_W2, S_WO, S_WS, S_OUT, S_B1 = 24, 28, 32, 36, 40, 44, 48
sW, sLW = 52, 53
sR2, sC = 53, 54
sRB, sG, sPH = 55, 56, 57
sCT, sRT, sROT = 58, 59, 60
sTAG = 61
sXO, sWOF, sWSTEP, sWEND = 62, 63, 64, 65
sXB, sLX, sLWB, sWD = 66, 67, 68, 69
sWO1, sWO2 = 70, 71
sB2L, sB2C, sB2C2, sA2B = 72, 73, 74, 75
sC0, sPITCH, sE = 76, 83, 84
sT0, sT1, sT2, sT3, sT4, sT5 = 77, 78, 79, 80, 81, 82
sSPIN = 85
sEX = 86
sMASK = 62
sFL, sKB = 64, 65
sRES = 3
sSTAMP = 92
SP = list(range(4, 24)) + [48, 49, 50, 51, 88, 89, 90, 91, 100, 101]

vL, vL16 = 0, 1
vRR, vXO = 17, 18
XRES = 244
vX, vWv, vB2D, vB2A = 2, 6, 10, 12
vB2AL = [12, 13, 14, 15, 16, 19]
ACC2, AR, BT, B2R = 20, 84, 132, 148
vL16B = 248
vRW = 2
vXA, vWA = 2, 6
ACC, XF, WF = 20, 116, 132
CT = 220

class VM:
    def __init__(self, a): self.a = a; self.q = []
    def issue(self, tag): self.q.append(tag)
    def count(self, *tags):
        idx = max((i for i, t in enumerate(self.q) if t in tags), default=-1)
        return len(self.q) - 1 - idx if idx >= 0 else None
    def wait(self, *tags, lgkm=None):
        n = self.count(*tags)
        s = []
        if n is not None:
            assert n <= 63, n
            s.append(f"vmcnt({n})")
            self.q = self.q[len(self.q) - n:] if n else []
        if lgkm is not None: s.append(f"lgkmcnt({lgkm})")
        if s: self.a("s_waitcnt " + " ".join(s))
    def depth(self, n):
        if len(self.q) > n:
            self.a(f"s_waitcnt vmcnt({n})")
            self.q = self.q[len(self.q) - n:] if n else []
    def drained(self): self.q = []
    def copy(self):
        v = VM(self.a); v.q = list(self.q); return v

class Gen:
    def __init__(self, stamps=False, opts=None):
        self.a = Asm(); self.stamps = stamps
        self.o = dict(pf=1, hold=1, map2=0, classes=1, n0=3, spf=0, xloc=1, g3=1, pace=8, rel_mlp=1, rel_att=-2, pollwait=5, hold2=1, kstamps=False, cprio=1, w2pf=5, p0_at=27, rot=8)
        if opts: self.o.update(opts)

    def srd(self, d, p, n):
        self.a(f"s_mov_b32 s{d}, s{p}\ns_mov_b32 s{d+1}, s{p+1}\ns_mov_b32 s{d+2}, {n}\ns_mov_b32 s{d+3}, 0x20000")
    def stamp(self, idx):
        if not self.stamps: return
        self.rstamp(idx)
        if self.o.get('cyc') and idx in self.o['cyc']:
            self.a(f"s_memtime s[{sSTAMP}:{sSTAMP+1}]\ns_waitcnt lgkmcnt(0)\nv_writelane_b32 v252, s{sSTAMP}, {idx + 40}")
    def rstamp(self, idx):
        if not self.stamps: return
        if 'only' in self.o and idx not in self.o['only']: return
        self.a(f"s_memrealtime s[{sSTAMP}:{sSTAMP+1}]\ns_waitcnt lgkmcnt(0)\nv_writelane_b32 v252, s{sSTAMP}, {idx}")
    def al(self):
        if self.o.get('align', 1): self.a(".p2align 3")
    def lane0(self, v):
        self.a(f"v_cmp_eq_u32 vcc, 0, v{vL}\nv_mov_b32 v{v}, {OOB}\ns_nop 0\nv_cndmask_b32 v{v}, v{v}, 0, vcc")
    def tag(self):
        self.a(f"s_mul_i32 s{sTAG}, s{sTAG}, 0x9e3779b1\ns_add_u32 s{sTAG}, s{sTAG}, 0x7f4a7c15")
    def decode2(self):
        a = self.a
        if self.o['map2'] == 0:
            a(f"s_and_b32 s{sT0}, s2, 7\ns_lshr_b32 s{sT1}, s2, 3\ns_and_b32 s{sCT}, s{sT1}, 7\ns_lshr_b32 s{sT1}, s{sT1}, 3")
            if self.o.get('ctmap', 1):
                a(f"s_xor_b32 s{sT1}, s{sT1}, 2\ns_and_b32 s{sROT}, s{sCT}, 1\ns_lshl1_add_u32 s{sROT}, s{sT1}, s{sROT}\ns_lshr_b32 s{sT1}, s{sCT}, 1\ns_mov_b32 s{sCT}, s{sROT}")
            if self.o['xloc']: a(f"s_lshr_b32 s{sRT}, s{sT0}, 1\ns_and_b32 s{sT0}, s{sT0}, 1\ns_lshl2_add_u32 s{sT0}, s{sT0}, s{sRT}")
            a(f"s_lshl2_add_u32 s{sRT}, s{sT0}, s{sT1}\ns_lshl1_add_u32 s{sROT}, s{sT1}, s{sCT}")
        else:
            a(f"s_and_b32 s{sT0}, s2, 1\ns_bfe_u32 s{sT1}, s2, 0x20003\ns_lshl2_add_u32 s{sCT}, s{sT0}, s{sT1}")
            a(f"s_bfe_u32 s{sT0}, s2, 0x20001\ns_lshr_b32 s{sROT}, s2, 5\ns_lshl3_add_u32 s{sRT}, s{sT0}, s{sROT}\ns_lshl1_add_u32 s{sROT}, s{sT1}, s{sROT}")
    def final_addr(self, vm, t0, t1):
        a = self.a
        a(f"v_lshrrev_b32 v{t0}, 3, v{vL}\nv_and_b32 v{t1}, 7, v{vL}\nv_lshlrev_b32 v{vXO}, 10, v{t0}\nv_lshl_add_u32 v{vXO}, v{t1}, 4, v{vXO}")
        a(f"s_lshl3_add_u32 s{sT0}, s{sRT}, s{sW}\ns_lshl_b32 s{sT0}, s{sT0}, 13\ns_lshl_b32 s{sT1}, s{sCT}, 7\ns_add_u32 s{sRES}, s{sT0}, s{sT1}")
        if vm is not None: self.xres(vm)
        a(f"v_lshlrev_b32 v{t1}, 1, v{t1}\nv_xor_b32 v{t1}, v{t1}, v{t0}\nv_lshlrev_b32 v{t1}, 4, v{t1}\nv_lshl_add_u32 v{vRR}, v{t0}, 8, v{t1}")
        a(f"s_lshl_b32 s{sT0}, s{sW}, 13\nv_add_u32 v{vRR}, s{sT0}, v{vRR}")

    def xres(self, vm):
        self.a(f"buffer_load_dwordx4 v[{XRES}:{XRES+3}], v{vXO}, s[{S_X}:{S_X+3}], s{sRES} offen"); vm.issue("xres")
    def spin_global(self, name, vaddr, vtmp, soff, imm=0, srd=S_WS):
        a = self.a
        off = f" offset:{imm}" if imm else ""
        a(f"s_mov_b32 s{sSPIN}, 0")
        a.label(f"L_sp{name}")
        a(f"buffer_load_dword v{vtmp}, v{vaddr}, s[{srd}:{srd+3}], s{soff} offen{off} sc1\ns_add_u32 s{sSPIN}, s{sSPIN}, 1\ns_waitcnt vmcnt(0)")
        a(f"v_cmp_ne_u32 vcc, s{sTAG}, v{vtmp}\ns_cmp_gt_u32 s{sSPIN}, 0x8000\ns_cbranch_scc1 L_sd{name}\ns_cbranch_vccz L_sd{name}\ns_sleep {self.o.get('sleep', 2)}\ns_branch L_sp{name}")
        a.label(f"L_sd{name}")
    def spin_lds(self, name, vaddr, vtmp, off):
        a = self.a
        a(f"s_mov_b32 s{sSPIN}, 0")
        a.label(f"L_sp{name}")
        a(f"ds_read_b32 v{vtmp}, v{vaddr} offset:{off}\ns_add_u32 s{sSPIN}, s{sSPIN}, 1\ns_waitcnt lgkmcnt(0)")
        a(f"v_cmp_ne_u32 vcc, 1, v{vtmp}\ns_cmp_gt_u32 s{sSPIN}, 0x40000\ns_cbranch_scc1 L_sd{name}\ns_cbranch_vccnz L_sp{name}")
        a.label(f"L_sd{name}")

    def entry(self):
        a = self.a
        a("s_cmp_ge_u32 s2, 256\ns_cbranch_scc1 L_end")
        a("s_load_dwordx16 s[4:19], s[0:1], 0\ns_load_dwordx4 s[20:23], s[0:1], 64")
        if self.o['pf']:
            a(f"s_getpc_b64 s[{sT0+1}:{sT0+2}]\ns_bfe_u32 s{sT0}, s2, 0x20003\ns_lshl_b32 s{sT0}, s{sT0}, 13\nv_lshlrev_b32 v2, 4, v0\nv_add_u32 v2, s{sT0}, v2")
            a.label("L_pc")
            a(f"v_min_u32 v2, L_codeend-L_pc, v2\ns_mov_b32 exec_lo, 0x01010101\ns_mov_b32 exec_hi, 0x01010101\nglobal_load_dword v253, v2, s[{sT0+1}:{sT0+2}]\ns_mov_b64 exec, -1")
        if self.stamps:
            a("v_mov_b32 v252, 0\ns_memrealtime s[96:97]")
        a(f"v_lshrrev_b32 v1, 6, v0\nv_and_b32 v{vL}, 63, v0\nv_readfirstlane_b32 s{sW}, v1")
        a(f"s_bfe_u32 s{sT0}, s2, 0x30003\ns_and_b32 s{sT1}, s2, 1\ns_lshl3_add_u32 s{sRB}, s{sT1}, s{sT0}")
        a(f"s_lshr_b32 s{sT1}, s2, 6\ns_bfe_u32 s{sT2}, s2, 0x20001")
        if self.o['g3']: a(f"s_xor_b32 s{sT2}, s{sT2}, 3")
        a(f"s_lshl2_add_u32 s{sG}, s{sT1}, s{sT2}")
        a(f"s_sub_u32 s{sT0}, s{sG}, 8\ns_min_u32 s{sT1}, s{sT0}, 3\ns_mul_i32 s{sC0}, s{sT0}, 5\ns_add_u32 s{sC0}, s{sC0}, s{sT1}")
        a(f"v_lshlrev_b32 v{vL16}, 4, v{vL}")
        a(f"s_cmp_lt_u32 s{sW}, 4\ns_cbranch_scc1 L_C")

    def l_stage(self, vm, t):
        a = self.a; slot = t % 3
        def xpart():
            a(f"s_add_u32 m0, s{sLX}, {L_X + slot*16384}\ns_lshl_b32 s{sXO}, s{sPH}, 7\ns_add_u32 s{sXO}, s{sXO}, s{sXB}")
            for ii in range(4):
                off = f" offset:{1024*ii}" if ii else ""
                a(f"buffer_load_dwordx4 v{vX+ii}, s[{S_X}:{S_X+3}], s{sXO} offen{off} lds"); vm.issue(f"st{t}")
        if t > 0: xpart()
        a(f"s_add_u32 m0, s{sLWB}, {slot*24576}\ns_sub_u32 s{sWO1}, s{sWOF}, s{sWD}\ns_sub_u32 s{sWO2}, s{sWO1}, s{sWD}")
        for rg in range(2):
            if rg: a(f"s_add_u32 m0, s{sLWB}, {slot*24576 + 3072}\ns_nop 0")
            a(f"buffer_load_dwordx4 v{vWv+2*rg}, s[{S_W}:{S_W+3}], s{sWOF} offen lds"); vm.issue(f"st{t}")
            a(f"buffer_load_dwordx4 v{vWv+2*rg}, s[{S_W}:{S_W+3}], s{sWO1} offen offset:1024 lds"); vm.issue(f"st{t}")
            a(f"buffer_load_dwordx4 v{vWv+2*rg+1}, s[{S_W}:{S_W+3}], s{sWO2} offen offset:2048 lds"); vm.issue(f"st{t}" if t or not rg else "st0w")
        if t == 0: xpart()
        if t < 7:
            a(f"s_add_u32 s{sWOF}, s{sWOF}, s{sWSTEP}\ns_add_u32 s{sPH}, s{sPH}, 1\ns_and_b32 s{sPH}, s{sPH}, 7\ns_cselect_b32 s{sT0}, 0, s{sWEND}\ns_sub_u32 s{sWOF}, s{sWOF}, s{sT0}")

    def l_prologue(self, vm):
        a = self.a; T = ACC2
        pm = self.o.get('phmode', 0)
        if pm == 0: a(f"s_bfe_u32 s{sT0}, s2, 0x30003\ns_lshr_b32 s{sT1}, s2, 6\ns_lshl1_add_u32 s{sPH}, s{sT1}, s{sT0}\ns_and_b32 s{sPH}, s{sPH}, 7")
        elif pm == 1: a(f"s_bfe_u32 s{sT0}, s2, 0x30003\ns_bfe_u32 s{sT1}, s2, 0x10006\ns_lshl2_add_u32 s{sPH}, s{sT1}, s{sT0}\ns_and_b32 s{sPH}, s{sPH}, 7")
        elif pm in (2, 3):
            a(f"s_bfe_u32 s{sT0}, s2, 0x30003\ns_bfe_u32 s{sT1}, s2, 0x10006\ns_lshl2_add_u32 s{sPH}, s{sT1}, s{sT0}\ns_lshr_b32 s{sT1}, s2, 7")
            if pm == 3: a(f"s_xor_b32 s{sT1}, s{sT1}, 1")
            a(f"s_add_u32 s{sPH}, s{sPH}, s{sT1}\ns_and_b32 s{sPH}, s{sPH}, 7")
        a(f"s_sub_u32 s{sLW}, s{sW}, 4\ns_movk_i32 s{sPITCH}, 2752\ns_cmp_lt_u32 s{sG}, 8\ns_cselect_b32 s{sPITCH}, 3072, s{sPITCH}")
        a(f"s_cselect_b32 s{sWD}, 0, 896\ns_cselect_b32 s{sT3}, 0, 2048")
        a(f"s_lshl_b32 s{sT0}, s{sG}, 7\ns_lshl_b32 s{sT1}, s{sC0}, 6\ns_cmp_lt_u32 s{sG}, 8\ns_cselect_b32 s{sT5}, s{sT0}, s{sT1}\ns_add_u32 s{sT5}, s{sT5}, s{sT3}")
        a(f"v_lshrrev_b32 v{T}, 4, v{vL}\nv_and_b32 v{T+1}, 7, v{vL}\nv_xor_b32 v{T}, v{T}, v{T+1}\nv_lshlrev_b32 v{T}, 4, v{T}\nv_lshrrev_b32 v{T+2}, 3, v{vL}")
        a(f"v_lshl_add_u32 v{vX}, v{T+2}, 10, v{T}\nv_xor_b32 v{vX+1}, 64, v{vX}\nv_add_u32 v{vX+1}, 7168, v{vX+1}\nv_add_u32 v{vX+2}, 14336, v{vX}\nv_add_u32 v{vX+3}, 14336, v{vX+1}")
        a(f"v_lshrrev_b32 v{T}, 2, v{vL}\nv_and_b32 v{T}, 4, v{T}\nv_xor_b32 v{T}, v{T}, v{T+1}\nv_lshlrev_b32 v{T}, 4, v{T}")
        a(f"s_cmp_ge_u32 s{sG}, 11\ns_cselect_b32 s{sT4}, 64, 128\nv_mad_u32_u24 v{vWv}, v{T+2}, s{sPITCH}, v{T}\nv_cmp_gt_u32 vcc, s{sT4}, v{T}\nv_mov_b32 v{vWv+1}, {OOB}")
        a(f"s_lshl_b32 s{sT0}, s{sPITCH}, 3\nv_cndmask_b32 v{vWv+1}, v{vWv+1}, v{vWv}, vcc\nv_add_u32 v{vWv+2}, s{sT0}, v{vWv}\nv_add_u32 v{vWv+3}, s{sT0}, v{vWv+1}")
        a(f"s_lshl2_add_u32 s{sXB}, s{sRB}, s{sLW}\ns_lshl_b32 s{sXB}, s{sXB}, 15\ns_lshl_b32 s{sWSTEP}, s{sPITCH}, 6\ns_lshl_b32 s{sWEND}, s{sPITCH}, 9")
        a(f"s_lshl2_add_u32 s{sT0}, s{sPH}, s{sLW}\ns_lshl_b32 s{sT0}, s{sT0}, 4\ns_mul_i32 s{sWOF}, s{sT0}, s{sPITCH}\ns_add_u32 s{sWOF}, s{sWOF}, s{sT5}")
        a(f"s_lshl_b32 s{sLX}, s{sLW}, 12\ns_mul_i32 s{sLWB}, s{sLW}, 6144\ns_add_u32 s{sLWB}, s{sLWB}, {L_W}")
        a(f"s_mov_b32 s{S_X+2}, 2097152\ns_mov_b32 s{S_X+3}, 0x20000\ns_add_u32 s{S_W+2}, s{sWEND}, s{sT3}\ns_mov_b32 s{S_W+3}, 0x20000")
        a("s_waitcnt lgkmcnt(0)")
        self.stamp(1)
        a(f"s_load_dword s{sTAG}, s[22:23], {WS_EPOCH}")
        a(f"s_mov_b32 s{S_X}, s4\ns_mov_b32 s{S_X+1}, s5\ns_sub_u32 s12, s12, 2048\ns_subb_u32 s13, s13, 0")
        a(f"s_cmp_lt_u32 s{sG}, 8\ns_cselect_b32 s{S_W}, s6, s12\ns_cselect_b32 s{S_W+1}, s7, s13")
        self.l_stage(vm, 0)
        if self.o.get('pst'): self.stamp(40)
        a(f"v_lshl_add_u32 v{vB2D}, v{T+2}, 10, v{T}\nv_add_u32 v{vB2D+1}, 7168, v{vB2D}")
        self.srd(S_WS, 22, WS_SIZE); self.srd(S_W2, 16, 1376*1024); self.srd(S_WO, 8, 512*1024); self.srd(S_OUT, 18, 2097152)
        self.decode2()
        a(f"v_bfe_u32 v{T}, v{vL}, 2, 2\nv_lshrrev_b32 v{T+1}, 1, v{T}\nv_lshlrev_b32 v{T}, 7, v{T}\nv_lshl_add_u32 v{T}, v{T+1}, 6, v{T}")
        a(f"v_bfe_u32 v{T+1}, v{vL}, 4, 1\nv_lshl_add_u32 v{T}, v{T+1}, 5, v{T}\nv_and_b32 v{T+1}, 3, v{vL}\nv_lshl_add_u32 v{T+14}, v{T+1}, 3, v{T}\nv_lshrrev_b32 v{T+15}, 5, v{vL}")
        a(f"s_lshl_b32 s{sB2L}, s{sLW}, 11\nv_lshl_add_u32 v{vB2AL[0]}, v{T+15}, 9, v{T+14}\nv_add_u32 v{vB2AL[0]}, s{sB2L}, v{vB2AL[0]}\nv_xor_b32 v{vB2AL[1]}, 64, v{vB2AL[0]}")
        for hi in (1, 2):
            a(f"v_add_u32 v{vB2AL[2*hi]}, {65536*hi}, v{vB2AL[0]}\nv_add_u32 v{vB2AL[2*hi+1]}, {65536*hi}, v{vB2AL[1]}")
        a(f"v_and_b32 v{T}, 31, v{vL}\nv_lshlrev_b32 v{T}, 2, v{T}\nv_add_u32 v{T}, {L_FL}, v{T}\nv_mov_b32 v{T+1}, 0\nds_write_b32 v{T}, v{T+1}")

    def l_colsum_pre(self):
        a = self.a; T = ACC2; S = T + 16
        a(f"s_mul_i32 s{sT0}, s{sLW}, 6144\ns_add_u32 s{sT0}, s{sT0}, {L_W}\nv_mul_u32_u24 v{T}, 3072, v{T+15}\nv_add3_u32 v{T}, v{T}, v{T+14}, s{sT0}\nv_xor_b32 v{T+1}, 64, v{T}")
        a(f"s_mov_b32 s{sT5}, 0x3f803f80")
        for k in range(6): a(f"v_mov_b32 v{S+k}, 0")
        a(f"s_mul_i32 s{sT1}, s{sLW}, 1536\ns_add_u32 s{sT1}, s{sT1}, {L_KV}\nv_and_b32 v{T+2}, 31, v{vL}\nv_lshl_add_u32 v{T+2}, v{T+2}, 2, s{sT1}\nv_mul_u32_u24 v{T+3}, 768, v{T+15}\nv_add_u32 v{T+2}, v{T+2}, v{T+3}")
    def l_colsum(self):
        a = self.a; T = ACC2; F = AR; S = T + 16
        for u in range(3):
            for c in range(2):
                for rd in range(2):
                    r = F + 8*u + 4*c + 2*rd
                    a(f"ds_read_b64_tr_b16 v[{r}:{r+1}], v{T+c} offset:{1024*u + 512*rd}")
        for half in range(2):
            a(f"s_waitcnt lgkmcnt({6 - 6*half})")
            for k in range(4):
                for uc in range(3*half, 3*half + 3): a(f"v_dot2c_f32_bf16 v{S+uc}, s{sT5}, v{F+4*uc+k}")
        a("s_nop 2")
        for uc in range(6): a(f"ds_write_b32 v{T+2}, v{S+uc} offset:{128*uc}")

    def wave_sum2(self, v0, v1, t0, t1):
        a = self.a
        for m in ("quad_perm:[1,0,3,2]", "quad_perm:[2,3,0,1]", "row_half_mirror", "row_mirror"):
            a(f"s_nop 0\nv_add_f32_dpp v{v0}, v{v0}, v{v0} {m} row_mask:0xf bank_mask:0xf\nv_add_f32_dpp v{v1}, v{v1}, v{v1} {m} row_mask:0xf bank_mask:0xf")
        for op in ("v_permlane16_swap_b32", "v_permlane32_swap_b32"):
            a(f"v_mov_b32 v{t0}, v{v0}\nv_mov_b32 v{t1}, v{v1}\ns_nop 1\n{op} v{t0}, v{v0}\n{op} v{t1}, v{v1}\ns_nop 0\nv_add_f32 v{v0}, v{v0}, v{t0}\nv_add_f32 v{v1}, v{v1}, v{t1}")

    def c_stats(self, vm):
        a = self.a; T = 160; u = 116
        vm.wait("xrow", lgkm=0)
        if self.o.get('pst'): self.stamp(42)
        self.tag()
        for r in range(2):
            for k in range(4):
                a(f"v_lshlrev_b32 v{u+8*r+2*k}, 16, v{T+4+4*r+k}\nv_and_b32 v{u+8*r+2*k+1}, 0xffff0000, v{T+4+4*r+k}")
        s0, s1 = u + 16, u + 17
        for r, s in ((0, s0), (1, s1)): a(f"v_add_f32 v{s}, v{u+8*r}, v{u+8*r+1}")
        for k in range(2, 8):
            for r, s in ((0, s0), (1, s1)): a(f"v_add_f32 v{s}, v{s}, v{u+8*r+k}")
        self.wave_sum2(s0, s1, u + 40, u + 41)
        G0, G1 = u + 20, u + 24
        a(f"v_mul_f32 v{G0}, {f2u(1/512.):#x}, v{s0}\nv_mul_f32 v{G1}, {f2u(1/512.):#x}, v{s1}")
        for k in range(8):
            a(f"v_sub_f32 v{u+k}, v{u+k}, v{G0}\nv_sub_f32 v{u+8+k}, v{u+8+k}, v{G1}")
        a(f"v_mul_f32 v{s0}, v{u}, v{u}\nv_mul_f32 v{s1}, v{u+8}, v{u+8}")
        for k in range(1, 8): a(f"v_fmac_f32 v{s0}, v{u+k}, v{u+k}\nv_fmac_f32 v{s1}, v{u+8+k}, v{u+8+k}")
        self.wave_sum2(s0, s1, u + 40, u + 41)
        a(f"v_mov_b32 v{u}, {f2u(1e-5):#x}\nv_mov_b32 v{u+1}, {f2u(1e-5):#x}\nv_fmac_f32 v{u}, {f2u(1/512.):#x}, v{s0}\nv_fmac_f32 v{u+1}, {f2u(1/512.):#x}, v{s1}")
        a(f"v_rsq_f32 v{u}, v{u}\nv_rsq_f32 v{u+1}, v{u+1}\nv_mov_b32 v{G0+2}, 0\nv_mov_b32 v{G0+3}, s{sTAG}\nv_mov_b32 v{G1+2}, 0\nv_mov_b32 v{G1+3}, s{sTAG}")
        a(f"v_mul_f32 v{G0+1}, {f2u(LOG2E):#x}, v{u}\nv_mul_f32 v{G1+1}, {f2u(LOG2E):#x}, v{u+1}")
        self.lane0(u + 2)
        a(f"buffer_store_dwordx4 v[{G0}:{G0+3}], v{u+2}, s[{S_WS}:{S_WS+3}], s{sE} offen sc1"); vm.issue("statst")
        a(f"buffer_store_dwordx4 v[{G1}:{G1+3}], v{u+2}, s[{S_WS}:{S_WS+3}], s{sE} offen offset:16 sc1"); vm.issue("statst")
        if self.o.get('pst'): self.stamp(43)
        vm.wait("bias")
        a(f"v_lshlrev_b32 v{u+3}, 16, v{T+12}\nv_mul_f32 v{u+3}, {f2u(LOG2E):#x}, v{u+3}\nv_lshlrev_b32 v{u+4}, 2, v{T+13}\nv_add_u32 v{u+4}, {L_BT}, v{u+4}")
        a(f"s_cmp_eq_u32 s{sW}, 3\ns_cbranch_scc1 L_nobt\nds_write_b32 v{u+4}, v{u+3}")
        a.label("L_nobt")

    def l_cspub(self, vm, vi):
        a = self.a; T = ACC2 + 24; U = B2R
        a(f"s_mov_b32 s{sT0}, {OOB}\ns_cmp_lg_u32 s{sLW}, 0\ns_cbranch_scc1 L_nocsp{vi}")
        a(f"v_lshlrev_b32 v{T}, 2, v{vL}\nv_add_u32 v{T}, {L_KV}, v{T}")
        for k in range(0, 24, 2): a(f"ds_read2st64_b32 v[{U+k}:{U+k+1}], v{T} offset0:{k} offset1:{k+1}")
        a(f"v_mov_b32 v{T+3}, s{sTAG}")
        a(f"s_lshl4_add_u32 s{sT0}, s{sG}, s{sRB}\ns_lshl_b32 s{sT0}, s{sT0}, 10\ns_add_u32 s{sT0}, s{sT0}, {WS_CSP}")
        a("s_waitcnt lgkmcnt(0)")
        for sl in range(1, 7):
            for u in range(3): a(f"v_add_f32 v{U+u}, v{U+u}, v{U+3*sl+u}")
        for u in range(3): a(f"v_add_f32 v{T+u}, v{U+u}, v{U+21+u}")
        a.label(f"L_nocsp{vi}")
        a(f"buffer_store_dwordx4 v[{T}:{T+3}], v{vL16}, s[{S_WS}:{S_WS+3}], s{sT0} offen sc1"); vm.issue("cspst")

    def l_steptable(self):
        a = self.a
        a("s_waitcnt lgkmcnt(0)")
        if not self.o['classes']:
            a(f"s_mul_i32 s{sT0}, s{sROT}, 3\ns_lshr_b32 s{sT0}, s{sT0}, {0 if self.o['map2'] == 0 else 1}")
            a(f"s_sub_u32 s{sT1}, s{sT0}, 22\ns_cmp_ge_u32 s{sT0}, 22\ns_cselect_b32 s{sT0}, s{sT1}, s{sT0}")
            a(f"s_mul_i32 s{sT3}, s{sLW}, 22\ns_add_u32 s{sT4}, s{sT3}, 22\ns_add_u32 s{sT0}, s{sT0}, s{sT3}")
            for i in range(22):
                a(f"s_lshl_b32 s{SP[i]}, s{sT0}, 10\ns_cmp_ge_u32 s{sT0}, 86\ns_cselect_b32 s{SP[i]}, {WS_SIZE}, s{SP[i]}")
                if i < 21: a(f"s_add_u32 s{sT0}, s{sT0}, 1\ns_cmp_eq_u32 s{sT0}, s{sT4}\ns_cselect_b32 s{sT0}, s{sT3}, s{sT0}")
        else:
            for k, d in ((0, sT4), (1, sT5)):
                a(f"s_lshl_b32 s{sT0}, s{sLW}, 1\ns_add_u32 s{sT0}, s{sT0}, {k}\ns_min_u32 s{sT1}, s{sT0}, 3\ns_mul_i32 s{sT0}, s{sT0}, 5\ns_add_u32 s{sT0}, s{sT0}, s{sT1}\ns_lshl_b32 s{d}, s{sT0}, 1")
            a(f"s_lshl_b32 s{sT3}, s{sROT}, 1")
            for i in range(16):
                a(f"s_add_u32 s{sT0}, s{sT3}, {i}\ns_and_b32 s{sT1}, s{sT0}, 7\ns_bitcmp1_b32 s{sT0}, 3\ns_cselect_b32 s{sT0}, s{sT5}, s{sT4}\ns_add_u32 s{sT0}, s{sT0}, s{sT1}\ns_lshl_b32 s{SP[i]}, s{sT0}, 10")
            tab = [[4, 5, 10], [11, 16, 17], [22, 27, 32], [37, 42, 43]]
            a(f"s_lshl_b32 s{sT0}, s{sLW}, 3\ns_or_b32 s{sT0}, s{sT0}, 0x80000")
            for k, d in ((0, sT3), (1, sT4), (2, sT5)):
                c = sum(tab[q][k] << (8*q) for q in range(4))
                a(f"s_bfe_u32 s{d}, {c:#x}, s{sT0}\ns_lshl_b32 s{d}, s{d}, 11")
            a(f"s_cmp_eq_u32 s{sLW}, 3\ns_cselect_b32 s{sT5}, {WS_SIZE}, s{sT5}")
            a(f"s_mov_b32 s{sT0}, s{sROT}")
            for r in range(2): a(f"s_sub_u32 s{sT1}, s{sT0}, 6\ns_cmp_ge_u32 s{sT0}, 6\ns_cselect_b32 s{sT0}, s{sT1}, s{sT0}")
            for i in range(6):
                a(f"s_cmp_ge_u32 s{sT0}, 2\ns_cselect_b32 s{sT1}, s{sT4}, s{sT3}\ns_cmp_ge_u32 s{sT0}, 4\ns_cselect_b32 s{sT1}, s{sT5}, s{sT1}")
                a(f"s_and_b32 s{sT2}, s{sT0}, 1\ns_lshl_b32 s{sT2}, s{sT2}, 10\ns_add_u32 s{SP[16+i]}, s{sT1}, s{sT2}")
                if i < 5: a(f"s_add_u32 s{sT0}, s{sT0}, 1\ns_cmp_eq_u32 s{sT0}, 6\ns_cselect_b32 s{sT0}, 0, s{sT0}")
        a(f"s_lshl_b32 s{sT3}, s{sLW}, 3\ns_add_u32 s{sT3}, s{sT3}, 88")
        for i in range(8):
            a(f"s_add_u32 s{sT0}, s{sROT}, {i}\ns_and_b32 s{sT0}, s{sT0}, 7\ns_add_u32 s{sT0}, s{sT0}, s{sT3}\ns_lshl_b32 s{SP[22+i]}, s{sT0}, 10")
        a(f"s_lshl_b32 s{sB2C}, s{sCT}, 7\ns_sub_u32 s{sB2C2}, s{sB2C}, {88*16384}")
        a(f"s_mul_i32 s{sA2B}, s{sRT}, {2*A2_RT}\ns_add_u32 s{sA2B}, s{sA2B}, {WS_A2}\nv_add_u32 v{vL16B}, {A2_RT}, v{vL16}")

    def l_gather_addr(self):
        a = self.a; T = ACC2 + 40; sT4, sT5 = 86, 87
        a(f"s_lshl2_add_u32 s{sT4}, s{sRB}, s{sLW}\ns_lshl_b32 s{sT4}, s{sT4}, 9\ns_add_u32 s{sT4}, s{sT4}, {WS_STATS}")
        a(f"s_and_b32 s{sT5}, s{sRB}, 8\ns_lshl4_add_u32 s{sT5}, s{sG}, s{sT5}\ns_lshl2_add_u32 s{sT5}, s{sT5}, s{sLW}\ns_lshl_b32 s{sT5}, s{sT5}, 8\ns_add_u32 s{sT5}, s{sT5}, {WS_CSP}")
        a(f"v_and_b32 v{T}, 0x1f0, v{vL16}\nv_lshrrev_b32 v{T+1}, 4, v{vL}\nv_lshlrev_b32 v{T+1}, 10, v{T+1}\nv_and_b32 v{T+2}, 0xf0, v{vL16}\nv_or_b32 v{T+1}, v{T+1}, v{T+2}\nv_add_u32 v{T+2}, 4096, v{T+1}")
    def l_gather_issue(self, vm):
        a = self.a; T = ACC2 + 40; G = AR; sT4, sT5 = 86, 87
        a(f"buffer_load_dwordx4 v[{G}:{G+3}], v{T}, s[{S_WS}:{S_WS+3}], s{sT4} offen sc1"); vm.issue("gath")
        a(f"buffer_load_dwordx4 v[{G+4}:{G+7}], v{T+1}, s[{S_WS}:{S_WS+3}], s{sT5} offen sc1"); vm.issue("gath")
        a(f"buffer_load_dwordx4 v[{G+8}:{G+11}], v{T+2}, s[{S_WS}:{S_WS+3}], s{sT5} offen sc1"); vm.issue("gath")
    def l_gather_check(self, vm, vi):
        a = self.a; T = ACC2; G = AR
        vm.wait("gath")
        a(f"s_mov_b32 s{sSPIN}, 0")
        a.label(f"L_gchk{vi}")
        a(f"v_cmp_ne_u32 vcc, s{sTAG}, v{G+3}\nv_cmp_ne_u32 s[70:71], s{sTAG}, v{G+7}\ns_nop 1\ns_or_b64 s[70:71], vcc, s[70:71]")
        a(f"v_cmp_ne_u32 vcc, s{sTAG}, v{G+11}\ns_nop 1\ns_or_b64 vcc, vcc, s[70:71]")
        a(f"s_cbranch_vccz L_gok{vi}")
        a(f"s_add_u32 s{sSPIN}, s{sSPIN}, 1\ns_cmp_gt_u32 s{sSPIN}, 0x8000\ns_cbranch_scc1 L_gok{vi}")
        self.l_gather_issue(VM(a))
        a(f"s_waitcnt vmcnt(0)\ns_branch L_gchk{vi}")
        a.label(f"L_gok{vi}")
        a(f"s_lshl_b32 s{sT0}, s{sLW}, 7\ns_add_u32 s{sT0}, s{sT0}, {L_MT}\nv_and_b32 v{T}, 31, v{vL}\nv_lshl_add_u32 v{T}, v{T}, 2, s{sT0}")
        a(f"ds_write_b32 v{T}, v{G}\nds_write_b32 v{T}, v{G+1} offset:512")
    def l_w2touch(self, vm):
        a = self.a; T = ACC2
        a(f"s_lshl2_add_u32 s{sT0}, s2, s{sLW}\ns_lshl_b32 s{sT1}, s{sT0}, 9\ns_mul_i32 s{sT0}, s{sT0}, 1408\nv_lshlrev_b32 v{T}, 7, v{vL}\ns_mov_b64 exec, 0x7ff")
        a(f"buffer_load_dword v{T+31}, v{T}, s[{S_W2}:{S_W2+3}], s{sT0} offen\ns_mov_b64 exec, 0xf"); vm.issue("w2t")
        a(f"buffer_load_dword v{T+30}, v{T}, s[{S_WO}:{S_WO+3}], s{sT1} offen\ns_mov_b64 exec, -1"); vm.issue("w2t")
    def l_gather_cs(self):
        a = self.a; T = ACC2; G = AR
        for k in range(3): a(f"v_add_f32 v{G+4+k}, v{G+4+k}, v{G+8+k}")
        for op in ("v_permlane16_swap_b32", "v_permlane32_swap_b32"):
            for k in range(3): a(f"v_mov_b32 v{G+8+k}, v{G+4+k}")
            a("s_nop 0")
            for k in range(3): a(f"{op} v{G+8+k}, v{G+4+k}")
            a("s_nop 0")
            for k in range(3): a(f"v_add_f32 v{G+4+k}, v{G+4+k}, v{G+8+k}")
        a(f"s_lshl_b32 s{sT0}, s{sLW}, 6\ns_add_u32 s{sT0}, s{sT0}, {L_CS}\nv_lshl_add_u32 v{T+1}, v{vL}, 2, s{sT0}\ns_mov_b64 exec, 0xffff")
        a(f"ds_write2st64_b32 v{T+1}, v{G+4}, v{G+5} offset1:1\nds_write_b32 v{T+1}, v{G+6} offset:512\ns_mov_b64 exec, -1")

    def b2_dma(self, vm, step, pace=True):
        a = self.a
        if pace: vm.depth((self.o['pace'] if pace is True else pace) - 2)
        srd, base = (S_W2, sB2C) if step < 22 else (S_WO, sB2C2)
        a(f"s_add_u32 m0, s{sB2L}, {8192*round_of(step)}\ns_lshl4_add_u32 s{sT0}, s{SP[step]}, s{base}")
        a(f"buffer_load_dwordx4 v{vB2D}, s[{srd}:{srd+3}], s{sT0} offen lds"); vm.issue(f"b2_{step}")
        a(f"buffer_load_dwordx4 v{vB2D+1}, s[{srd}:{srd+3}], s{sT0} offen offset:1024 lds"); vm.issue(f"b2_{step}")
        if self.o.get('b2stamps'): self.stamp(20 + step)
    def b2_reads(self, s, dst):
        rnd = round_of(s); hi, lo = rnd // 8, rnd % 8
        for cc in range(2):
            for rd in range(2):
                r = dst + 4*cc + 2*rd
                self.a(f"ds_read_b64_tr_b16 v[{r}:{r+1}], v{vB2AL[2*hi + cc]} offset:{8192*lo + 1024*rd}")

    def l_main(self):
        a = self.a; vm = VM(a); T = ACC2
        if self.o['pf']: vm.issue("codepf")
        self.l_prologue(vm)
        if self.o['spf']:
            a(f"s_lshr_b32 s{sT0}, s2, 3\ns_lshl2_add_u32 s{sT0}, s{sT0}, s{sLW}\ns_mul_i32 s{sT0}, s{sT0}, {64*self.o['spf']}\ns_add_u32 s94, s16, s{sT0}\ns_addc_u32 s95, s17, 0\ns_and_b32 s84, s2, 7")
        self.l_steptable()
        self.tag(); self.l_gather_addr()
        a(f"v_and_b32 v{T}, 7, v{vL}\nv_lshrrev_b32 v{T+1}, 5, v{vL}\nv_xor_b32 v{T+1}, v{T+1}, v{T}\nv_lshlrev_b32 v{T+1}, 4, v{T+1}\nv_lshl_add_u32 v{T+1}, v{T}, 8, v{T+1}")
        a(f"v_bfe_u32 v{T}, v{vL}, 3, 2\nv_lshl_add_u32 v{T+1}, v{T}, 13, v{T+1}\nv_add_u32 v254, s{sB2L}, v{T+1}")
        vP0, vP2, vPT = 249, 250, 251
        a(f"s_lshl_b32 s54, s{sRT}, 12\ns_add_u32 s54, s54, {WS_FLAG}")
        a(f"v_and_b32 v{vP0}, 3, v{vL}\ns_lshl_b32 s{sT0}, s{sLW}, 2\nv_add_u32 v{vP0}, s{sT0}, v{vP0}\nv_lshlrev_b32 v{vP0}, 7, v{vP0}")
        if not self.o['classes'] and self.o.get('psub', 1):
            a(f"s_lshl_b32 s{sT0}, s{sLW}, 3\ns_or_b32 s{sT0}, s{sT0}, 0x80000\ns_bfe_u32 s{sT1}, 0x0c060200, s{sT0}\ns_bfe_u32 s{sT0}, 0x03050503, s{sT0}")
            a(f"v_min_u32 v{vP2}, s{sT0}, v{vL}\nv_add_u32 v{vP2}, s{sT1}, v{vP2}\nv_lshlrev_b32 v{vP2}, 7, v{vP2}")
        elif not self.o['classes']:
            a(f"v_and_b32 v{vP2}, 15, v{vL}\nv_lshlrev_b32 v{vP2}, 7, v{vP2}")
        else:
            a(f"v_and_b32 v{vP2}, 3, v{vL}\nv_min_u32 v{vP2}, 2, v{vP2}")
            a(f"s_mul_i32 s{sT0}, s{sLW}, 3\ns_mul_i32 s{sT1}, s{sLW}, 6\ns_sub_u32 s{sT1}, s{sT1}, 6\ns_cmp_lt_u32 s{sLW}, 2\ns_cselect_b32 s{sT0}, s{sT0}, s{sT1}\ns_cselect_b32 s{sT1}, 0, 1")
            a(f"v_lshlrev_b32 v{vP2}, s{sT1}, v{vP2}\nv_add_u32 v{vP2}, s{sT0}, v{vP2}\nv_min_u32 v{vP2}, 14, v{vP2}\nv_lshlrev_b32 v{vP2}, 7, v{vP2}")
        vA = vP0 if self.o['classes'] else vP2
        self.final_addr(None, T, T + 1)
        a(f"v_and_b32 v255, 3, v{vL}\nv_lshlrev_b32 v255, 2, v255\nv_add_u32 v255, {L_FL}, v255")
        self.l_colsum_pre()
        if self.o.get('pst'): self.stamp(41)
        vm.depth(self.o.get('st1_at', 8))
        if self.o.get('pst'): self.stamp(42)
        self.l_stage(vm, 1)
        if self.o.get('pst'): self.stamp(43)
        if self.o.get('w2pf', -1) == -1: self.l_w2touch(vm)
        vm.wait("st0w")
        self.l_colsum()
        CL = self.o.get('cl') or [{}]
        TV = B2R + 40
        if len(CL) > 1 or CL[0]:
            a(f"s_lshr_b32 s{sT0}, s2, 3\ns_lshl2_add_u32 s{sT0}, s{sT0}, s{sLW}\ns_mul_i32 s{sT0}, s{sT0}, 118")
            a(f"v_min_u32 v{TV}, 58, v{vL}\nv_add_u32 v{TV}, s{sT0}, v{TV}\nv_lshlrev_b32 v{TV}, 7, v{TV}\nv_add_u32 v{TV+1}, {59*128}, v{TV}")
            a(f"v_subrev_u32 v{TV+2}, {1376*1024}, v{TV}\nv_subrev_u32 v{TV+3}, {1376*1024}, v{TV+1}\ns_and_b32 s84, s{sCT}, {len(CL)-1}")
        def touch(vm, k):
            a(f"buffer_load_dword v{TV+4}, v{TV+k}, s[{S_W2}:{S_W2+3}], 0 offen"); vm.issue("tch")
            a(f"buffer_load_dword v{TV+5}, v{TV+2+k}, s[{S_WO}:{S_WO+3}], 0 offen"); vm.issue("tch")
        base = vm; ends = []
        for vi, var in enumerate(CL):
            vm = base.copy()
            if vi + 1 < len(CL): a(f"s_cmp_lg_u32 s84, {vi}\ns_cbranch_scc1 L_var{vi}")
            for t in range(8):
                vm.wait(f"st{t}", lgkm=None if (self.o['spf'] and 1 <= t <= 6) else 0)
                if self.o.get('pst') and t < 2: self.stamp(44 + t)
                a("s_barrier")
                if self.o['kstamps'] or t in (0, 7): self.stamp(2 + t)
                if t + 2 < 8: self.l_stage(vm, t + 2)
                for k in var.get(t, []): touch(vm, k)
                if t == 0: self.l_cspub(vm, vi)
                if self.o['spf'] and t in self.o.get('spf_t', range(0, 6)):
                    n = self.o['spf']; assert 128*64*n <= 234752
                    a(f"s_add_u32 s84, s84, 1\ns_sub_u32 s{sT0}, s84, 6\ns_cmp_ge_u32 s84, 6\ns_cselect_b32 s84, s{sT0}, s84\ns_mul_i32 s{sT0}, s84, 234752\ns_add_u32 s98, s94, s{sT0}\ns_addc_u32 s99, s95, 0")
                    for k in range(n): a(f"s_load_dword s54, s[98:99], {64*k}")
                if t == 5: self.l_gather_issue(vm)
                if t == self.o.get('w2pf', -1): self.l_w2touch(vm)
                if t == 6:
                    for s in range(self.o['n0']): self.b2_dma(vm, s, pace=False)
                    self.l_gather_check(vm, vi); self.l_gather_cs()
            ends.append(list(vm.q))
            if vi + 1 < len(CL):
                a("s_branch L_varend"); a.label(f"L_var{vi}")
        assert all(e == ends[0] for e in ends)
        a.label("L_varend")
        for s in range(self.o['n0'], 7): self.b2_dma(vm, s, pace=False)
        def park(k):
            vm.wait(f"b2_{k}")
            self.b2_reads(k, B2R + 8*k)
        ep = self.o.get('epark', 1); done = 0
        for s in range(7, 18):
            if s == 13: self.spin_lds("ring", 255, T + 1, 0)
            self.b2_dma(vm, s)
            if ep and s - 6 > done:
                park(done); done += 1
        self.stamp(10)
        for k in range(done, 12):
            park(k)
            if k > 1: a("s_waitcnt lgkmcnt(8)")
        a(f"v_mov_b32 v{vRW}, v254")
        for q in range(1, 4): a(f"v_xor_b32 v{vRW+q}, {32*q}, v254")
        a("s_waitcnt lgkmcnt(0)")
        if self.o.get('mix', 0):
            a(f"s_cmp_lt_u32 s{sG}, 8\ns_cbranch_scc1 L_p2att")
            self.l_phase2(vm.copy(), "M", True, vP0, vP2, vPT, vA)
            a.label("L_p2att")
        self.l_phase2(vm.copy(), "A", False, vP0, vP2, vPT, vA)

    def l_phase2(self, vm, sfx, mix, vP0, vP2, vPT, vA):
        a = self.a; T = ACC2
        polls = {0: (vA, 2048), 22: (vP0, 0)}
        if self.o['classes']: polls[16] = (vP2, 2052)
        free = [AR + 8*k for k in range(ARING)]; slot = {}
        def areg(i):
            if i not in slot: slot[i] = free.pop(0)
            return slot[i]
        def a_load(i):
            r = areg(i)
            a(f"s_add_u32 s{sT0}, s{sA2B}, s{SP[i]}")
            a(f"buffer_load_dwordx4 v[{r}:{r+3}], v{vL16}, s[{S_WS}:{S_WS+3}], s{sT0} offen sc1"); vm.issue(f"a{i}")
            a(f"buffer_load_dwordx4 v[{r+4}:{r+7}], v{vL16B}, s[{S_WS}:{S_WS+3}], s{sT0} offen sc1"); vm.issue(f"a{i}")
        def a_half(i, t):
            r = areg(i) + 4*t
            if t == 0: a(f"s_add_u32 s{sT0}, s{sA2B}, s{SP[i]}")
            a(f"buffer_load_dwordx4 v[{r}:{r+3}], v{vL16B if t else vL16}, s[{S_WS}:{S_WS+3}], s{sT0} offen sc1"); vm.issue(f"a{i}")
        def poll_issue(c):
            v, imm = polls[c]
            off = f" offset:{imm}" if imm else ""
            a(f"buffer_load_dword v{vPT}, v{v}, s[{S_WS}:{S_WS+3}], s54 offen{off} sc1"); vm.issue(f"p{c}")
        def poll_check(c):
            v, imm = polls[c]
            vm.wait(f"p{c}")
            a(f"v_cmp_ne_u32 vcc, s{sTAG}, v{vPT}\ns_cbranch_vccz L_pok{c}{sfx}")
            self.spin_global(f"p{c}{sfx}", v, vPT, 54, imm)
            a.label(f"L_pok{c}{sfx}")
            self.stamp({0: 12, 16: 14, 22: 15}[c])
        pre = self.o.get('mixpre', 0) if mix else 12
        if pre: self.spin_lds("hold" + sfx, 255, T + 1, 64)
        self.stamp(13)
        for s in range(18, 18 + pre): self.b2_dma(vm, s, pace=self.o.get('pace2', 10))
        if self.o.get('pollwait') and not mix:
            vm.depth(self.o['pollwait'] - 1)
            a(f"s_lshl_b32 s{sT0}, s{sLW}, 2\ns_add_u32 s{sT0}, s{sT0}, {L_FL + 96}\nv_mov_b32 v{T}, s{sT0}\nv_mov_b32 v{T+1}, 1\nds_write_b32 v{T}, v{T+1}")
        self.spin_lds("hold2" + sfx, 255, T + 1, 112)
        poll_issue(0)
        nxt = 18 + pre
        for k in range(self.o.get('mixpoll', 2) if mix else 0):
            if nxt < 30: self.b2_dma(vm, nxt, pace=False); nxt += 1
        self.stamp(11)
        LEAD = self.o.get('lead', 3)
        poll_check(0)
        a("s_setprio 1")
        self.xres(vm)
        def issue_a(n):
            if n in polls and n > 0: poll_check(n)
            a_load(n)
            if n + LEAD in polls: poll_issue(n + LEAD)
        DEPTH = self.o.get('adepthM', 4) if mix else self.o.get('adepth', 4)
        for i in range(DEPTH): issue_a(i)
        issued = DEPTH
        def breg(i): return B2R + 8*i if i < NREG else BT + 8*(i & 1)
        IL = self.o.get('il', 1)
        for i in range(30):
            rd = i + 1 >= NREG and i + 1 < 30
            if rd: vm.wait(f"b2_{i+1}")
            if rd and not IL: self.b2_reads(i + 1, breg(i + 1))
            lg = None
            if i >= NREG: lg = 4 if (i + 1 < 30 and not IL) else 0
            vm.wait(f"a{i}", lgkm=lg)
            if self.o.get('astamps'): self.stamp(20 + i)
            A, B = areg(i), breg(i)
            M = []
            for cc in range(2):
                for t in range(2):
                    acc = f"v[{ACC2+16*(2*t+cc)}:{ACC2+16*(2*t+cc)+15}]"
                    M.append(f"v_mfma_f32_32x32x16_bf16 {acc}, v[{B+4*cc}:{B+4*cc+3}], v[{A+4*t}:{A+4*t+3}], {'0' if i == 0 else acc}")
            d = DEPTH + sum(1 for r in self.o.get('ramp', []) if i >= r) - sum(1 for r in self.o.get('unramp', []) if i >= r)
            if IL:
                side = Asm(); keep = self.a
                self.a = side
                if rd: self.b2_reads(i + 1, breg(i + 1))
                self.a = keep
                R = [x.strip() for x in side.l]
                simple = issued < min(30, i + 1 + d) and issued not in polls
                a(M[0])
                for x in R[:2]: a(x)
                if not rd and simple: a_half(issued, 0)
                a(M[1])
                for x in R[2:]: a(x)
                if not rd and simple: a_half(issued, 1)
                a(M[2])
                if rd and simple: a_half(issued, 0)
                a(M[3])
                if rd and simple: a_half(issued, 1)
                if simple:
                    if issued + LEAD in polls: poll_issue(issued + LEAD)
                    issued += 1
            else:
                for m in M: a(m)
            free.append(A)
            if i < NREG: free.append(B)
            while issued < min(30, i + 1 + d):
                issue_a(issued); issued += 1
            if nxt < 30 and i >= self.o.get('mixfrom', 0): self.b2_dma(vm, nxt, pace=False); nxt += 1
        self.stamp(16)
        a("s_nop 7\ns_nop 3")
        for t in range(2):
            for cc in range(2):
                for q in range(4):
                    r = ACC2 + 16*(2*t+cc) + 4*q
                    a(f"ds_write_b128 v{vRW+q}, v[{r}:{r+3}] offset:{32768*t + 128*cc}")
        a("s_branch L_final")

    def c_prologue(self, vm):
        a = self.a; T = CT
        a("s_waitcnt lgkmcnt(0)")
        if self.o.get('pst'): self.stamp(40)
        a(f"s_load_dword s{sTAG}, s[22:23], {WS_EPOCH}")
        self.srd(S_X, 4, 2097152)
        X = 160
        a(f"s_lshl4_add_u32 s{sT0}, s{sRB}, s{sG}\ns_lshl2_add_u32 s{sT5}, s{sT0}, s{sW}\ns_lshl_b32 s{sT0}, s{sT5}, 11")
        a(f"buffer_load_dwordx4 v[{X+4}:{X+7}], v{vL16}, s[{S_X}:{S_X+3}], s{sT0} offen"); vm.issue("xrow")
        a(f"buffer_load_dwordx4 v[{X+8}:{X+11}], v{vL16}, s[{S_X}:{S_X+3}], s{sT0} offen offset:1024"); vm.issue("xrow")
        a(f"s_lshl_b32 s{sE}, s{sT5}, 5\ns_add_u32 s{sE}, s{sE}, {WS_STATS}")
        self.srd(S_B1, 14, 2752)
        a(f"v_lshl_add_u32 v{X+13}, s{sW}, 6, v{vL}\nv_lshlrev_b32 v{X+3}, 1, v{X+13}")
        a(f"s_lshl_b32 s{sT0}, s{sC0}, 6\ns_cmp_lt_u32 s{sG}, 8\ns_cselect_b32 s{sT0}, {OOB}, s{sT0}")
        a(f"buffer_load_ushort v{X+12}, v{X+3}, s[{S_B1}:{S_B1+3}], s{sT0} offen"); vm.issue("bias")
        a(f"s_and_b32 s{sR2}, s{sW}, 1\ns_lshr_b32 s{sC}, s{sW}, 1")
        a(f"v_and_b32 v{T+2}, 31, v{vL}\nv_lshrrev_b32 v{T+3}, 5, v{vL}\nv_bfe_u32 v{T+4}, v{vL}, 1, 3\nv_xor_b32 v{T+4}, v{T+4}, v{T+3}")
        a(f"s_lshl_b32 s{sT3}, s{sR2}, 13\nv_lshlrev_b32 v{T+2}, 7, v{T+2}\nv_lshl_add_u32 v{T+2}, v{T+4}, 4, v{T+2}\nv_add_u32 v{vXA}, s{sT3}, v{T+2}")
        for kk in range(1, 4): a(f"v_xor_b32 v{vXA+kk}, {32*kk}, v{vXA}")
        a(f"v_bfe_u32 v{T+2}, v{vL}, 2, 2\nv_mul_u32_u24 v{T+4}, 3072, v{T+3}\nv_lshl_add_u32 v{T+4}, v{T+2}, 7, v{T+4}")
        a(f"v_lshrrev_b32 v{T+2}, 1, v{T+2}\nv_xor_b32 v{T+2}, s{sC}, v{T+2}\nv_lshl_add_u32 v{T+4}, v{T+2}, 6, v{T+4}")
        a(f"v_bfe_u32 v{T+2}, v{vL}, 4, 1\nv_lshl_add_u32 v{T+4}, v{T+2}, 5, v{T+4}\nv_and_b32 v{T+2}, 3, v{vL}\nv_lshl_add_u32 v{T+4}, v{T+2}, 3, v{T+4}")
        for sl in range(3): a(f"v_add_u32 v{vWA+sl}, {L_W + 24576*sl}, v{T+4}")
        self.decode2()
        self.srd(S_WS, 22, WS_SIZE); self.srd(S_OUT, 18, 2097152)
        a(f"s_mov_b32 s{sMASK}, 0x0000ffff\ns_mov_b32 s{sMASK+1}, 0x0000ffff")
        a(f"s_lshl1_add_u32 s{sT0}, s{sRB}, s{sR2}\ns_mul_i32 s{sA2B}, s{sT0}, {2*A2_RT}\ns_add_u32 s{sA2B}, s{sA2B}, {WS_A2}")
        a(f"s_lshl4_add_u32 s{sT0}, s{sT0}, s{sG}\ns_lshl1_add_u32 s{sT0}, s{sT0}, s{sC}\ns_lshl_b32 s{sFL}, s{sT0}, 7\ns_add_u32 s{sFL}, s{sFL}, {WS_FLAG}")
        a(f"v_add_u32 v{vL16B}, {A2_RT}, v{vL16}")
        self.table_addr(); self.consts()
        if self.o.get('pst'): self.stamp(41)
        self.c_stats(vm)
        self.flag_regs()
        if self.o['cprio']: a(f"s_setprio {self.o['cprio']}")

    def c_read_list(self, n):
        t, kk = n // 4, n % 4; slot = t % 3; b = n & 1
        def x(a_): return f"ds_read_b128 v[{XF+8*b+4*a_}:{XF+8*b+4*a_+3}], v{vXA+kk} offset:{slot*16384 + 4096*a_}"
        def w(u, rd):
            r = WF + 12*b + 4*u + 2*rd
            return f"ds_read_b64_tr_b16 v[{r}:{r+1}], v{vWA+slot} offset:{6144*kk + 1024*u + 512*rd}"
        return [x(0), w(0, 0), w(0, 1), x(1), w(1, 0), w(1, 1), w(2, 0), w(2, 1)]
    def c_mfma(self, n, u, t_, att):
        b = n & 1
        x = f"v[{XF+8*b+4*t_}:{XF+8*b+4*t_+3}]"; w = f"v[{WF+12*b+4*u}:{WF+12*b+4*u+3}]"
        A = ACC + 16*(2*u + t_); acc = f"v[{A}:{A+15}]"; c = "0" if n == 0 else acc
        if att and u > 0: return f"v_mfma_f32_32x32x16_bf16 {acc}, {x}, {w}, {c}"
        return f"v_mfma_f32_32x32x16_bf16 {acc}, {w}, {x}, {c}"

    def c_kloop(self, att):
        a = self.a
        a("s_waitcnt lgkmcnt(0)\ns_barrier")
        self.stamp(2)
        for r in self.c_read_list(0): a(r)
        for n in range(32):
            boundary = (n % 4 == 3)
            if boundary:
                a("s_waitcnt lgkmcnt(0)")
                if n < 31:
                    a("s_barrier")
                    if self.o['kstamps'] == 2: self.stamp(3 + n // 4)
                else:
                    a(f"s_lshl_b32 s{sT0}, s{sW}, 2\ns_add_u32 s{sT0}, s{sT0}, {L_FL}\nv_mov_b32 v14, s{sT0}\nv_mov_b32 v15, 1\nds_write_b32 v14, v15")
            R = self.c_read_list(n + 1) if n < 31 else (self.att_pre if att else self.mlp_pre)()
            M = [self.c_mfma(n, u, t_, att) for u in range(3) for t_ in range(2)]
            place = self.o.get('rplace', [2, 2, 2, 2, 0, 0]) if n < 31 else [3, 3, 3, 3, 3, 3]
            need = {0: 3, 1: 4, 2: 6, 4: 8}
            issued = 0
            for k in range(6):
                if not boundary and k in need: a(f"s_waitcnt lgkmcnt({min(15, 8 - need[k] + issued)})")
                a(M[k])
                if R[0]:
                    for r in R[issued:issued + place[k]]: a(r)
                    issued += place[k]
        self.stamp(10)

    def consts(self):
        T = CT
        self.a(f"v_mov_b32 v{T}, 2.0\nv_mov_b32 v{T+2}, {f2u(-2*LN2):#x}\nv_mov_b32 v{T+4}, {f2u(LN2):#x}\nv_mov_b32 v{T+6}, 1.0\nv_mov_b32 v{T+8}, {f2u(1e-6):#x}")
    def table_list(self, dst, vaddr, off):
        return [f"ds_read_b128 v[{dst+4*q}:{dst+4*q+3}], v{vaddr} offset:{off + 32*q}" for q in range(4)]
    def table_reads(self, dst, vaddr, off):
        for r in self.table_list(dst, vaddr, off): self.a(r)
    def table_addr(self):
        a = self.a; T = CT
        a(f"v_lshrrev_b32 v{T+18}, 5, v{vL}\ns_lshl_b32 s{sT0}, s{sR2}, 8\ns_add_u32 s{sT0}, s{sT0}, {L_MT}\nv_lshl_add_u32 v{T+19}, v{T+18}, 4, s{sT0}")
        a(f"v_and_b32 v{T+22}, 31, v{vL}\nv_lshl_add_u32 v{T+23}, v{T+22}, 2, s{sT0}")
        a(f"s_lshl_b32 s{sT0}, s{sC}, 7\ns_add_u32 s{sT0}, s{sT0}, {L_TAB}\nv_lshl_add_u32 v{T+18}, v{T+18}, 4, s{sT0}\nv_lshl_add_u32 v{T+22}, v{T+22}, 2, s{sT0}")
    def lane_stats_list(self):
        T = CT
        return [f"ds_read_b32 v{T+10}, v{T+23}", f"ds_read_b32 v{T+12}, v{T+23} offset:512", f"ds_read_b32 v{T+14}, v{T+23} offset:128", f"ds_read_b32 v{T+16}, v{T+23} offset:640"]
    def flag(self, vm, soff, imm):
        a = self.a; T = CT
        off = f" offset:{imm}" if imm else ""
        a(f"buffer_store_dword v{T+21}, v{T+20}, s[{S_WS}:{S_WS+3}], s{soff} offen{off} sc1"); vm.issue("flag")
    def release(self, off=64):
        a = self.a
        a(f"s_lshl_b32 s{sT0}, s{sW}, 2\ns_add_u32 s{sT0}, s{sT0}, {L_FL + off}\nv_mov_b32 v14, s{sT0}\nv_mov_b32 v15, 1\nds_write_b32 v14, v15")
    def flag_regs(self):
        self.lane0(CT + 20); self.a(f"v_mov_b32 v{CT+21}, s{sTAG}")

    def mlp_pre(self):
        T = CT
        return self.lane_stats_list() + self.table_list(156, T+18, L_CS - L_TAB) + self.table_list(172, T+18, L_BT - L_TAB)
    def att_pre(self):
        T = CT
        return ([f"ds_read_b32 v8, v{T+22} offset:256", f"ds_read_b32 v10, v{T+22} offset:512"] + self.table_list(156, T+19, 0) + self.table_list(172, T+19, 512)
                + self.table_list(188, T+19, 128) + self.table_list(204, T+19, 640))
    def c_epi_mlp(self, vm):
        a = self.a; T = CT; P = range(0, 16, 2)
        CS, BB, CP, U = [156, 116], [172, 132], 188, 204
        a(f"s_add_u32 s{sT1}, s{sC0}, s{sC}\ns_lshl_b32 s{sT1}, s{sT1}, 11\ns_add_u32 s{sA2B}, s{sA2B}, s{sT1}")
        a("s_waitcnt lgkmcnt(8)")
        a(f"v_mul_f32 v{T+10}, v{T+10}, v{T+12}\nv_mul_f32 v{T+14}, v{T+14}, v{T+16}")
        for u in range(3):
            cs, bb = CS[u & 1], BB[u & 1]
            if u == 2:
                a(f"s_cmp_ge_u32 s{sG}, 11\ns_cselect_b32 s{sT0}, s{sC}, 0\ns_cmp_eq_u32 s{sT0}, 1\ns_cbranch_scc1 L_mlp_short")
            a("s_waitcnt lgkmcnt(0)")
            if u < 2:
                self.table_reads(CS[(u+1) & 1], T+18, L_CS - L_TAB + 256*(u+1)); self.table_reads(BB[(u+1) & 1], T+18, L_BT - L_TAB + 256*(u+1))
            for t in range(2):
                A = ACC + 16*(2*u + t); mr, rs = T + 10 + 4*t, T + 12 + 4*t
                self.al()
                for k in P: a(f"v_pk_fma_f32 v[{CP+k}:{CP+k+1}], v[{mr}:{mr+1}], v[{cs+k}:{cs+k+1}], v[{bb+k}:{bb+k+1}] op_sel_hi:[0,1,1] neg_lo:[1,0,0] neg_hi:[1,0,0]")
                for k in P: a(f"v_pk_fma_f32 v[{A+k}:{A+k+1}], v[{A+k}:{A+k+1}], v[{rs}:{rs+1}], v[{CP+k}:{CP+k+1}] op_sel_hi:[1,0,1]")
                for k in range(16): a(f"v_exp_f32 v{U+k}, v{A+k}")
                for k in P: a(f"v_pk_add_f32 v[{CP+k}:{CP+k+1}], v[{U+k}:{U+k+1}], v[{T}:{T+1}] op_sel_hi:[1,0]")
                for k in P: a(f"v_pk_fma_f32 v[{U+k}:{U+k+1}], v[{U+k}:{U+k+1}], v[{CP+k}:{CP+k+1}], v[{T}:{T+1}] op_sel_hi:[1,1,0]")
                for k in range(16): a(f"v_rcp_f32 v{U+k}, v{U+k}")
                for k in P: a(f"v_pk_fma_f32 v[{U+k}:{U+k+1}], v[{U+k}:{U+k+1}], v[{T+2}:{T+3}], v[{T+4}:{T+5}] op_sel_hi:[1,0,0]")
                for k in P: a(f"v_pk_mul_f32 v[{U+k}:{U+k+1}], v[{U+k}:{U+k+1}], v[{A+k}:{A+k+1}]")
                for k in P: a(f"v_cvt_pk_bf16_f32 v{A+k//2}, v{U+k}, v{U+k+1}")
                if t == 0: a(f"s_add_u32 s{sT0}, s{sA2B}, {4096*u}")
                vo = vL16B if t else vL16
                sc = self.o.get('actsc', 'sc1')
                if sc == 'none': continue
                a(f"buffer_store_dwordx4 v[{A}:{A+3}], v{vo}, s[{S_WS}:{S_WS+3}], s{sT0} offen {sc}"); vm.issue(f"act{u}")
                a(f"buffer_store_dwordx4 v[{A+4}:{A+7}], v{vo}, s[{S_WS}:{S_WS+3}], s{sT0} offen offset:1024 {sc}"); vm.issue(f"act{u}")
                if self.o['classes'] and u == 2 and t == self.o.get('fa_at', 0):
                    vm.wait("act1"); self.flag(vm, sFL, 0)
            if u == 1 and self.o.get('rel_mlp', 0) == -1: self.release()
            self.stamp(11 + u)
        if self.o['classes']:
            if self.o.get('rel_mlp', 0) == 0: self.release()
            vm.wait("act2"); self.flag(vm, sFL, 4)
            if self.o.get('rel_mlp', 0) == 1: self.release()
            if self.o.get('hold2'): self.release(112)
            a("s_branch L_cdone")
        a.label("L_mlp_short")
        if self.o.get('rel_mlp', 0) == 0: self.release()
        a("s_waitcnt vmcnt(0)"); self.flag(VM(a), sFL, 0)
        if self.o.get('rel_mlp', 0) == 1: self.release()
        if self.o.get('hold2'): self.release(112)
        a("s_branch L_cdone")

    def phi(self, A, E, dst):
        a = self.a; T = CT; P = range(0, 16, 2)
        self.al()
        for k in range(16): a(f"v_exp_f32 v{E+k}, v{A+k}")
        for k in P: a(f"v_pk_fma_f32 v[{A+k}:{A+k+1}], v[{A+k}:{A+k+1}], v[{T+4}:{T+5}], v[{T+6}:{T+7}] op_sel_hi:[1,0,0]")
        for k in range(16): a(f"v_med3_f32 v{E+k}, v{A+k}, v{E+k}, 1.0")
        for k in P: a(f"v_pk_add_f32 v[{E+k}:{E+k+1}], v[{E+k}:{E+k+1}], v[{T+8}:{T+9}] op_sel_hi:[1,0]")
        for k in P: a(f"v_cvt_pk_bf16_f32 v{dst+k//2}, v{E+k}, v{E+k+1}")

    def kv_write(self, S, flagoff):
        a = self.a
        for k in range(3): a(f"ds_write_b128 v2, v[{S+4*k}:{S+4*k+3}] offset:{1024*k}")
        a(f"v_mov_b32 v7, 1\ns_waitcnt lgkmcnt(0)\nds_write_b32 v6, v7 offset:{flagoff}")
    def kv_add(self, S, D):
        a = self.a
        for k in range(3): a(f"ds_read_b128 v[{D+4*k}:{D+4*k+3}], v4 offset:{1024*k}")
        a("s_waitcnt lgkmcnt(0)")
        for k in range(0, 12, 2): a(f"v_pk_add_f32 v[{S+k}:{S+k+1}], v[{S+k}:{S+k+1}], v[{D+k}:{D+k+1}]")

    def c_epi_att(self, vm):
        a = self.a; T = CT; P = range(0, 16, 2)
        MT, RT, U, D0, D1 = [156, 188], [172, 204], 116, 132, 156
        Q = [ACC, ACC + 16]; K = [ACC + 32, ACC + 48]; V = [ACC + 64, ACC + 80]
        msk = f"s[{sMASK}:{sMASK+1}]"
        if self.o.get('rel_att', 1) == -1: self.release()
        a("s_nop 3")
        for t in range(2):
            a(f"s_waitcnt lgkmcnt({8 - 8*t})")
            self.al()
            for (A, cs) in ((K[t], 8), (V[t], 10)):
                for k in P: a(f"v_pk_fma_f32 v[{A+k}:{A+k+1}], v[{MT[t]+k}:{MT[t]+k+1}], v[{cs}:{cs+1}], v[{A+k}:{A+k+1}] op_sel_hi:[1,0,1] neg_lo:[1,0,0] neg_hi:[1,0,0]")
                for k in P: a(f"v_pk_mul_f32 v[{A+k}:{A+k+1}], v[{A+k}:{A+k+1}], v[{RT[t]+k}:{RT[t]+k+1}]")
        self.table_reads(RT[1], T+18, L_CS - L_TAB)
        for r in self.lane_stats_list(): a(r)
        if self.o.get('cst'): self.stamp(21)
        a(f"v_mov_b32 v12, 0x3f803f80")
        for t in range(2):
            self.phi(K[t], U, K[t])
            for k in P: a(f"v_cvt_pk_bf16_f32 v{V[t]+k//2}, v{V[t]+k}, v{V[t]+k+1}")
            for k in range(8): a(f"v_cndmask_b32 v{K[t]+8+k}, v12, v{V[t]+k}, {msk}")
            for k in range(8): a(f"v_cndmask_b32 v{V[t]+8+k}, v{V[t]+k}, v12, {msk}")
        a("s_nop 1")
        first = True
        for t in range(2):
            for hf in range(2):
                for (D, B) in ((D0, K[t] + 8), (D1, V[t] + 8)):
                    c = "0" if (t == 0 and hf == 0) else f"v[{D}:{D+15}]"
                    a(f"v_mfma_f32_32x32x16_bf16 v[{D}:{D+15}], v[{K[t]+4*hf}:{K[t]+4*hf+3}], v[{B+4*hf}:{B+4*hf+3}], {c}")
        if self.o.get('cst'): self.stamp(22)
        if self.o.get('rel_att', 1) == -2: self.release()
        a(f"s_lshl1_add_u32 s{sT0}, s{sC}, s{sR2}\ns_xor_b32 s{sT1}, s{sT0}, 1")
        a(f"s_mul_i32 s{sT2}, s{sT0}, 3072\ns_add_u32 s{sT2}, s{sT2}, {L_KV}\nv_add_u32 v2, s{sT2}, v{vL16}")
        a(f"s_mul_i32 s{sT2}, s{sT1}, 3072\ns_add_u32 s{sT2}, s{sT2}, {L_KV}\nv_add_u32 v4, s{sT2}, v{vL16}")
        a(f"s_lshl_b32 s{sT2}, s{sT0}, 2\ns_add_u32 s{sT2}, s{sT2}, {L_FL}\nv_mov_b32 v6, s{sT2}\nv_xor_b32 v13, 4, v6")
        a(f"s_lshl1_add_u32 s{sT0}, s{sG}, s{sC}\ns_lshl_b32 s{sKB}, s{sT0}, 15\ns_add_u32 s{sKB}, s{sKB}, {WS_KVP}")
        a(f"s_mov_b32 s{sEX}, 0x55555555\ns_mov_b32 s{sEX+1}, 0x55555555")
        even = f"s[{sEX}:{sEX+1}]"
        S = K[0]; Z = K[1]
        for k in range(8): a(f"v_cndmask_b32 v{S+k}, v{D1+8+k}, v{D0+k}, {msk}")
        for k in range(8): a(f"v_cndmask_b32 v{Z+k}, v{D0+k}, v{D1+8+k}, {msk}")
        for k in range(4): a(f"v_cndmask_b32 v{S+8+k}, v{Z+4+k}, v{Z+k}, {even}")
        if self.o.get('cst'): self.stamp(23)
        a(f"s_cmp_eq_u32 s{sR2}, 0\ns_cbranch_scc1 L_kv_pub")
        self.kv_write(S, 16)
        a("s_branch L_kv_q")
        a.label("L_kv_pub")
        self.spin_lds("kv1", 13, 7, 16)
        self.kv_add(S, 132)
        for k in range(6): a(f"v_cvt_pk_bf16_f32 v{Z+k+k//3}, v{S+2*k}, v{S+2*k+1}")
        a(f"v_mov_b32 v{Z+3}, s{sTAG}\nv_mov_b32 v{Z+7}, s{sTAG}\ns_lshl_b32 s{sT2}, s{sRB}, 11\ns_add_u32 s{sT2}, s{sT2}, s{sKB}")
        a(f"buffer_store_dwordx4 v[{Z}:{Z+3}], v{vL16}, s[{S_WS}:{S_WS+3}], s{sT2} offen sc1")
        a(f"buffer_store_dwordx4 v[{Z+4}:{Z+7}], v{vL16}, s[{S_WS}:{S_WS+3}], s{sT2} offen offset:1024 sc1")
        a.label("L_kv_q")
        self.stamp(11)
        if self.o.get('rel_att', 1) == 0: self.release()
        QCS = RT[1]
        a("s_waitcnt lgkmcnt(0)")
        self.al()
        for t in range(2):
            m, rs = T + 10 + 4*t, T + 12 + 4*t
            for k in P: a(f"v_pk_fma_f32 v[{Q[t]+k}:{Q[t]+k+1}], v[{m}:{m+1}], v[{QCS+k}:{QCS+k+1}], v[{Q[t]+k}:{Q[t]+k+1}] op_sel_hi:[0,1,1] neg_lo:[1,0,0] neg_hi:[1,0,0]")
            for k in P: a(f"v_pk_mul_f32 v[{Q[t]+k}:{Q[t]+k+1}], v[{Q[t]+k}:{Q[t]+k+1}], v[{rs}:{rs+1}] op_sel_hi:[1,0]")
        for t in range(2): self.phi(Q[t], U, Q[t])
        if self.o.get('rel_att', 1) == 1: self.release()
        if self.o.get('cst'): self.stamp(24)
        G = 132
        a(f"s_lshl_b32 s{sT4}, s{sR2}, 14\ns_add_u32 s{sT4}, s{sT4}, s{sKB}\ns_mov_b32 s{sT5}, 0\nv_and_b32 v7, 15, v{vL}\nv_lshlrev_b32 v7, 10, v7")
        if self.o.get('pollwait'):
            a(f"v_and_b32 v11, 3, v{vL}\nv_lshlrev_b32 v11, 2, v11\nv_add_u32 v11, {L_FL}, v11")
            self.spin_lds("b2d", 11, 9, 96)
        a.label("L_kv_gather")
        self.spin_global("kv", 7, 9, sT4, 12)
        if self.o.get('cst'): self.stamp(28)
        vg = VM(a)
        for p in range(8):
            a(f"s_add_u32 s{sT2}, s{sRB}, {p}\ns_and_b32 s{sT2}, s{sT2}, 7\ns_lshl_b32 s{sT2}, s{sT2}, 11\ns_add_u32 s{sT2}, s{sT2}, s{sT4}")
            for hf in range(2):
                off = " offset:1024" if hf else ""
                a(f"buffer_load_dwordx4 v[{G+8*p+4*hf}:{G+8*p+4*hf+3}], v{vL16}, s[{S_WS}:{S_WS+3}], s{sT2} offen{off} sc1"); vg.issue(f"kvg{p}")
        if self.o.get('rel_att', 1) == 3: self.release()
        if self.o.get('hold2') == 1: self.release(112)
        for p in range(8):
            vg.wait(f"kvg{p}")
            d = S if p == 0 else U
            src = [G+8*p, G+8*p+1, G+8*p+2, G+8*p+4, G+8*p+5, G+8*p+6]
            for k in range(6): a(f"v_lshlrev_b32 v{d+2*k}, 16, v{src[k]}\nv_and_b32 v{d+2*k+1}, 0xffff0000, v{src[k]}")
            if p:
                for k in range(0, 12, 2): a(f"v_pk_add_f32 v[{S+k}:{S+k+1}], v[{S+k}:{S+k+1}], v[{U+k}:{U+k+1}]")
                a(f"v_bfi_b32 v3, v{G+8*p+3}, v{G+8*p+7}, 0\nv_or3_b32 v5, v5, v{G+8*p+3}, v{G+8*p+7}\nv_and_b32 v9, v9, v3")
            else:
                a(f"v_and_b32 v9, v{G+3}, v{G+7}\nv_or_b32 v5, v{G+3}, v{G+7}")
        if self.o.get('cst'): self.stamp(25); a(f"v_writelane_b32 v252, s{sT5}, 30")
        a(f"v_cmp_ne_u32 vcc, s{sTAG}, v9\nv_cmp_ne_u32 s[{sT2+1}:{sT2+2}], s{sTAG}, v5\ns_nop 1\ns_or_b64 vcc, vcc, s[{sT2+1}:{sT2+2}]".replace(f"s[{sT2+1}:{sT2+2}]", "s[66:67]"))
        a(f"s_cbranch_vccz L_kv_ok\ns_add_u32 s{sT5}, s{sT5}, 1\ns_cmp_gt_u32 s{sT5}, 64\ns_cbranch_scc0 L_kv_gather")
        a.label("L_kv_ok")
        vm.drained()
        if self.o.get('hold2') == 2: self.release(112)
        self.stamp(12)
        self.kv_write(S, 32)
        self.spin_lds("kv2", 13, 7, 32)
        self.kv_add(S, 132)
        if self.o.get('cst'): self.stamp(26)
        W = K[1]
        for k in range(6): a(f"v_cvt_pk_bf16_f32 v{W+k}, v{S+2*k}, v{S+2*k+1}")
        a("s_nop 1")
        for k in range(2): a(f"v_mov_b32_dpp v{W+6+k}, v{W+4+k} quad_perm:[1,0,3,2] row_mask:0xf bank_mask:0xf")
        for k in range(2): a(f"v_cndmask_b32 v{S+k}, v{W+6+k}, v{W+4+k}, {even}\nv_cndmask_b32 v{S+2+k}, v{W+4+k}, v{W+6+k}, {even}")
        for k in range(4): a(f"v_cndmask_b32 v{W+8+k}, v{S+k}, v{W+k}, {msk}")
        for k in range(4): a(f"v_cndmask_b32 v{W+12+k}, v{W+k}, v{S+k}, {msk}")
        O = [[132, 148], [164, 180]]
        a("s_nop 1")
        for t in range(2):
            for hd in range(2):
                a(f"v_mfma_f32_32x32x16_bf16 v[{O[t][hd]}:{O[t][hd]+15}], v[{W+8+4*hd}:{W+11+4*hd}], v[{Q[t]+4*hd}:{Q[t]+4*hd+3}], 0")
        a(f"s_lshl1_add_u32 s{sT0}, s{sG}, s{sC}\ns_lshl_b32 s{sT0}, s{sT0}, 11\ns_add_u32 s{sT0}, s{sT0}, {88*1024}\ns_add_u32 s{sT0}, s{sT0}, s{sA2B}")
        a("s_nop 7")
        R = U
        for t in range(2):
            a(f"v_add_f32 v{R+4*t}, v{T+8}, v{O[t][0]+8}\nv_add_f32 v{R+4*t+2}, v{T+8}, v{O[t][1]}")
        for k in range(4): a(f"v_rcp_f32 v{R+2*k}, v{R+2*k}")
        for k in range(4): a(f"v_mul_f32 v{R+2*k}, v{T+4}, v{R+2*k}")
        for t in range(2):
            for hd in range(2):
                N = O[t][hd] + 8*hd; r = R + 4*t + 2*hd
                for k in range(0, 8, 2): a(f"v_pk_mul_f32 v[{N+k}:{N+k+1}], v[{N+k}:{N+k+1}], v[{r}:{r+1}] op_sel_hi:[1,0]")
                d = V[0] + 8*t + 4*hd
                for k in range(0, 8, 2): a(f"v_cvt_pk_bf16_f32 v{d+k//2}, v{N+k}, v{N+k+1}")
                vo = vL16B if t else vL16
                off = " offset:1024" if hd else ""
                a(f"buffer_store_dwordx4 v[{d}:{d+3}], v{vo}, s[{S_WS}:{S_WS+3}], s{sT0} offen{off} sc1"); vm.issue("o")
        if self.o.get('cst'): self.stamp(27)
        vm.wait("o")
        self.flag(vm, sFL, 0)
        self.stamp(13)

    def c_main(self):
        a = self.a; vm = VM(a)
        a.label("L_C")
        if self.o['pf']: vm.issue("codepf")
        self.c_prologue(vm)
        self.stamp(1)
        a(f"s_cmp_lt_u32 s{sG}, 8\ns_cbranch_scc1 L_Catt")
        self.c_kloop(False); self.c_epi_mlp(vm.copy())
        a.label("L_Catt")
        self.c_kloop(True); self.c_epi_att(vm.copy())
        a(f"s_cmp_lg_u32 s2, 0\ns_cbranch_scc1 L_cdone\ns_cmp_lg_u32 s{sW}, 0\ns_cbranch_scc1 L_cdone")
        a(f"v_lshlrev_b32 v7, 10, v{vL}")
        for k in range(4):
            a(f"s_mov_b32 s{sT0}, {WS_CSP + 65536*k}")
            self.spin_global(f"ep{k}", 7, 9, sT0, 12)
        a(f"s_mov_b32 s{sT0}, {WS_EPOCH}")
        self.flag(VM(a), sT0, 0)
        a.label("L_cdone")
        self.stamp(14)
        self.final_addr(VM(a), 14, 15)

    def final(self):
        a = self.a
        a.label("L_final")
        a("s_waitcnt vmcnt(0) lgkmcnt(0)")
        if self.o.get('tst'): self.stamp(46)
        a("s_barrier")
        if self.o.get('tst'): self.stamp(47)
        R, X = 20, 60
        a(f"v_xor_b32 v19, 16, v{vRR}")
        for kq in range(4):
            a(f"ds_read_b128 v[{R+8*kq}:{R+8*kq+3}], v{vRR} offset:{2048*kq}\nds_read_b128 v[{R+8*kq+4}:{R+8*kq+7}], v19 offset:{2048*kq}")
        for k in range(4):
            a(f"v_lshlrev_b32 v{X+2*k}, 16, v{XRES+k}\nv_and_b32 v{X+2*k+1}, 0xffff0000, v{XRES+k}")
        for kq in range(4):
            a(f"s_waitcnt lgkmcnt({6-2*kq})")
            for k in range(0, 8, 2): a(f"v_pk_add_f32 v[{X+k}:{X+k+1}], v[{X+k}:{X+k+1}], v[{R+8*kq+k}:{R+8*kq+k+1}]")
        for k in range(0, 8, 2): a(f"v_cvt_pk_bf16_f32 v{R+k//2}, v{X+k}, v{X+k+1}")
        a(f"buffer_store_dwordx4 v[{R}:{R+3}], v{vXO}, s[{S_OUT}:{S_OUT+3}], s{sRES} offen {self.o.get('outsc', '')}")
        if self.stamps:
            if self.o.get('tst'): self.stamp(48)
            a("s_waitcnt vmcnt(0)")
            self.stamp(17); self.rstamp(19)
            a(f"v_writelane_b32 v252, s96, 0\nv_writelane_b32 v252, s96, 18")
            a(f"s_lshl_b32 s{sT0}, s2, 3\ns_add_u32 s{sT0}, s{sT0}, s{sW}\ns_lshl_b32 s{sT0}, s{sT0}, 8\ns_add_u32 s{sT0}, s{sT0}, {WS_STAMP}")
            a(f"v_lshlrev_b32 v14, 2, v{vL}\nbuffer_store_dword v252, v14, s[{S_WS}:{S_WS+3}], s{sT0} offen")

    def build(self):
        a = self.a
        a.label("L_code0")
        self.entry()
        self.l_main()
        self.c_main()
        self.final()
        if self.o.get('probe'):
            wg, w, k = self.o['probe']
            a(f"s_cmp_lg_u32 s2, {wg}\ns_cbranch_scc1 L_end\ns_cmp_lg_u32 s{sW}, {w}\ns_cbranch_scc1 L_end")
            a(f"v_readlane_b32 s{sT1}, v252, {k}\ns_nop 3\ns_add_u32 s{sT1}, s{sT1}, 2500\ns_mov_b32 s{sSPIN}, 0")
            a.label("L_hold")
            a(f"s_memrealtime s[{sSTAMP}:{sSTAMP+1}]\ns_add_u32 s{sSPIN}, s{sSPIN}, 1\ns_waitcnt lgkmcnt(0)\ns_sub_u32 s{sT0}, s{sSTAMP}, s{sT1}")
            a(f"s_cmp_gt_u32 s{sSPIN}, 100000\ns_cbranch_scc1 L_end\ns_cmp_lt_i32 s{sT0}, 0\ns_cbranch_scc1 L_hold")
        a.label("L_end")
        a("s_endpgm")
        a.label("L_codeend")
        return single(a.text(), 256, 512, LDS_BYTES, 256, 102, 256)

if __name__ == "__main__":
    out = sys.argv[1] if len(sys.argv) > 1 else "k.s"
    stamps = "stamps" in sys.argv[2:]
    opts = {}
    for kv in sys.argv[2:]:
        if "=" in kv:
            k, v = kv.split("="); opts[k] = eval(v)
    open(out, "w").write(Gen(stamps, opts).build())
```

```python
import sys, math, struct
from asmlib import *

def f2u(x): return struct.unpack("<I", struct.pack("<f", x))[0]
LOG2E = 1.4426950408889634
LN2 = 0.6931471805599453

WS_EPOCH = 0
WS_STATS = 0x1000
WS_CSP   = 0x10000
WS_KVP   = 0x60000
WS_FLAG  = 0x100000
WS_KVF   = 0x140000
WS_A2    = 0x200000
A2_RT    = 120 * 1024
WS_SIZE  = 0x1000000
WS_STAMP = 0xC00000
OOB      = 0x40000000

L_X    = 0
L_W    = 49152
L_MISC = 147456
L_KV   = L_MISC
L_SLAB = 122880
L_TAB  = L_MISC + 12288
L_CS   = L_TAB
L_BT   = L_CS + 768
L_MT   = L_BT + 768
L_RT   = L_MT + 512
L_FL   = L_RT + 512
LDS_BYTES = 163840

ROUND_OF_STEP = [15, 16, 17, 4, 5, 12, 13, 14, 0, 1, 6, 7, 8, 2, 3, 9, 10, 11]
NREG = 12
ARING = 6
def round_of(step):
    return ROUND_OF_STEP[step] if step < 18 else ROUND_OF_STEP[step - 18]

S_X, S_W, S_W2, S_WO, S_WS, S_OUT, S_B1 = 24, 28, 32, 36, 40, 44, 48
sW, sLW = 52, 53
sR2, sC = 53, 54
sRB, sG, sPH = 55, 56, 57
sCT, sRT, sROT = 58, 59, 60
sTAG = 61
sXO, sWOF, sWSTEP, sWEND = 62, 63, 64, 65
sXB, sLX, sLWB, sWD = 66, 67, 68, 69
sWO1, sWO2 = 70, 71
sB2L, sB2C, sB2C2, sA2B = 72, 73, 74, 75
sC0, sPITCH, sE = 76, 83, 84
sT0, sT1, sT2, sT3, sT4, sT5 = 77, 78, 79, 80, 81, 82
sSPIN = 85
sEX = 86
sMASK = 62
sFL, sKB = 64, 65
sRES = 3
sSTAMP = 92
SP = list(range(4, 24)) + [48, 49, 50, 51, 88, 89, 90, 91, 100, 101]

vL, vL16 = 0, 1
vRR, vXO = 17, 18
XRES = 244
vX, vWv, vB2D, vB2A = 2, 6, 10, 12
vB2AL = [12, 13, 14, 15, 16, 19]
ACC2, AR, BT, B2R = 20, 84, 132, 148
vL16B = 248
vRW = 2
vXA, vWA = 2, 6
ACC, XF, WF = 20, 116, 132
CT = 220

class VM:
    def __init__(self, a): self.a = a; self.q = []
    def issue(self, tag): self.q.append(tag)
    def count(self, *tags):
        idx = max((i for i, t in enumerate(self.q) if t in tags), default=-1)
        return len(self.q) - 1 - idx if idx >= 0 else None
    def wait(self, *tags, lgkm=None):
        n = self.count(*tags)
        s = []
        if n is not None:
            assert n <= 63, n
            s.append(f"vmcnt({n})")
            self.q = self.q[len(self.q) - n:] if n else []
        if lgkm is not None: s.append(f"lgkmcnt({lgkm})")
        if s: self.a("s_waitcnt " + " ".join(s))
    def depth(self, n):
        if len(self.q) > n:
            self.a(f"s_waitcnt vmcnt({n})")
            self.q = self.q[len(self.q) - n:] if n else []
    def drained(self): self.q = []
    def copy(self):
        v = VM(self.a); v.q = list(self.q); return v

class Gen:
    def __init__(self, stamps=False, opts=None):
        self.a = Asm(); self.stamps = stamps
        self.o = dict(pf=1, hold=1, map2=0, classes=0, n0=3, spf=0, xloc=1, g3=1, pace=8, rel_mlp=1, rel_att=-2, pollwait=5, hold2=1, kstamps=False, cprio=1, w2pf=5, p0_at=27, rot=8)
        if opts: self.o.update(opts)

    def srd(self, d, p, n):
        self.a(f"s_mov_b32 s{d}, s{p}\ns_mov_b32 s{d+1}, s{p+1}\ns_mov_b32 s{d+2}, {n}\ns_mov_b32 s{d+3}, 0x20000")
    def stamp(self, idx):
        if not self.stamps: return
        self.rstamp(idx)
        if self.o.get('cyc') and idx in self.o['cyc']:
            self.a(f"s_memtime s[{sSTAMP}:{sSTAMP+1}]\ns_waitcnt lgkmcnt(0)\nv_writelane_b32 v252, s{sSTAMP}, {idx + 40}")
    def rstamp(self, idx):
        if not self.stamps: return
        if 'only' in self.o and idx not in self.o['only']: return
        self.a(f"s_memrealtime s[{sSTAMP}:{sSTAMP+1}]\ns_waitcnt lgkmcnt(0)\nv_writelane_b32 v252, s{sSTAMP}, {idx}")
    def al(self):
        if self.o.get('align', 1): self.a(".p2align 3")
    def lane0(self, v):
        self.a(f"v_cmp_eq_u32 vcc, 0, v{vL}\nv_mov_b32 v{v}, {OOB}\ns_nop 0\nv_cndmask_b32 v{v}, v{v}, 0, vcc")
    def tag(self):
        self.a(f"s_mul_i32 s{sTAG}, s{sTAG}, 0x9e3779b1\ns_add_u32 s{sTAG}, s{sTAG}, 0x7f4a7c15")
    def decode2(self):
        a = self.a
        if self.o['map2'] == 0:
            a(f"s_and_b32 s{sT0}, s2, 7\ns_lshr_b32 s{sT1}, s2, 3\ns_and_b32 s{sCT}, s{sT1}, 7\ns_lshr_b32 s{sT1}, s{sT1}, 3")
            if self.o.get('ctmap', 1):
                a(f"s_xor_b32 s{sT1}, s{sT1}, 2\ns_and_b32 s{sROT}, s{sCT}, 1\ns_lshl1_add_u32 s{sROT}, s{sT1}, s{sROT}\ns_lshr_b32 s{sT1}, s{sCT}, 1\ns_mov_b32 s{sCT}, s{sROT}")
            if self.o['xloc']: a(f"s_lshr_b32 s{sRT}, s{sT0}, 1\ns_and_b32 s{sT0}, s{sT0}, 1\ns_lshl2_add_u32 s{sT0}, s{sT0}, s{sRT}")
            a(f"s_lshl2_add_u32 s{sRT}, s{sT0}, s{sT1}\ns_lshl1_add_u32 s{sROT}, s{sT1}, s{sCT}")
        else:
            a(f"s_and_b32 s{sT0}, s2, 1\ns_bfe_u32 s{sT1}, s2, 0x20003\ns_lshl2_add_u32 s{sCT}, s{sT0}, s{sT1}")
            a(f"s_bfe_u32 s{sT0}, s2, 0x20001\ns_lshr_b32 s{sROT}, s2, 5\ns_lshl3_add_u32 s{sRT}, s{sT0}, s{sROT}\ns_lshl1_add_u32 s{sROT}, s{sT1}, s{sROT}")
    def final_addr(self, vm, t0, t1):
        a = self.a
        a(f"v_lshrrev_b32 v{t0}, 3, v{vL}\nv_and_b32 v{t1}, 7, v{vL}\nv_lshlrev_b32 v{vXO}, 10, v{t0}\nv_lshl_add_u32 v{vXO}, v{t1}, 4, v{vXO}")
        a(f"s_lshl3_add_u32 s{sT0}, s{sRT}, s{sW}\ns_lshl_b32 s{sT0}, s{sT0}, 13\ns_lshl_b32 s{sT1}, s{sCT}, 7\ns_add_u32 s{sRES}, s{sT0}, s{sT1}")
        if vm is not None: self.xres(vm)
        a(f"v_lshlrev_b32 v{t1}, 1, v{t1}\nv_xor_b32 v{t1}, v{t1}, v{t0}\nv_lshlrev_b32 v{t1}, 4, v{t1}\nv_lshl_add_u32 v{vRR}, v{t0}, 8, v{t1}")
        a(f"s_lshl_b32 s{sT0}, s{sW}, 13\nv_add_u32 v{vRR}, s{sT0}, v{vRR}")

    def xres(self, vm):
        self.a(f"buffer_load_dwordx4 v[{XRES}:{XRES+3}], v{vXO}, s[{S_X}:{S_X+3}], s{sRES} offen"); vm.issue("xres")
    def spin_global(self, name, vaddr, vtmp, soff, imm=0, srd=S_WS):
        a = self.a
        off = f" offset:{imm}" if imm else ""
        a(f"s_mov_b32 s{sSPIN}, 0")
        a.label(f"L_sp{name}")
        a(f"buffer_load_dword v{vtmp}, v{vaddr}, s[{srd}:{srd+3}], s{soff} offen{off} sc1\ns_add_u32 s{sSPIN}, s{sSPIN}, 1\ns_waitcnt vmcnt(0)")
        a(f"v_cmp_ne_u32 vcc, s{sTAG}, v{vtmp}\ns_cmp_gt_u32 s{sSPIN}, 0x8000\ns_cbranch_scc1 L_sd{name}\ns_cbranch_vccz L_sd{name}\ns_sleep {self.o.get('sleep', 2)}\ns_branch L_sp{name}")
        a.label(f"L_sd{name}")
    def spin_lds(self, name, vaddr, vtmp, off):
        a = self.a
        a(f"s_mov_b32 s{sSPIN}, 0")
        a.label(f"L_sp{name}")
        a(f"ds_read_b32 v{vtmp}, v{vaddr} offset:{off}\ns_add_u32 s{sSPIN}, s{sSPIN}, 1\ns_waitcnt lgkmcnt(0)")
        a(f"v_cmp_ne_u32 vcc, 1, v{vtmp}\ns_cmp_gt_u32 s{sSPIN}, 0x40000\ns_cbranch_scc1 L_sd{name}\ns_cbranch_vccnz L_sp{name}")
        a.label(f"L_sd{name}")

    def entry(self):
        a = self.a
        a("s_cmp_ge_u32 s2, 256\ns_cbranch_scc1 L_end")
        a("s_load_dwordx16 s[4:19], s[0:1], 0\ns_load_dwordx4 s[20:23], s[0:1], 64")
        if self.o['pf']:
            a(f"s_getpc_b64 s[{sT0+1}:{sT0+2}]\ns_bfe_u32 s{sT0}, s2, 0x20003\ns_lshl_b32 s{sT0}, s{sT0}, 13\nv_lshlrev_b32 v2, 4, v0\nv_add_u32 v2, s{sT0}, v2")
            a.label("L_pc")
            a(f"v_min_u32 v2, L_codeend-L_pc, v2\ns_mov_b32 exec_lo, 0x01010101\ns_mov_b32 exec_hi, 0x01010101\nglobal_load_dword v253, v2, s[{sT0+1}:{sT0+2}]\ns_mov_b64 exec, -1")
        if self.stamps:
            a("v_mov_b32 v252, 0\ns_memrealtime s[96:97]")
        a(f"v_lshrrev_b32 v1, 6, v0\nv_and_b32 v{vL}, 63, v0\nv_readfirstlane_b32 s{sW}, v1")
        a(f"s_bfe_u32 s{sT0}, s2, 0x30003\ns_and_b32 s{sT1}, s2, 1\ns_lshl3_add_u32 s{sRB}, s{sT1}, s{sT0}")
        a(f"s_lshr_b32 s{sT1}, s2, 6\ns_bfe_u32 s{sT2}, s2, 0x20001")
        if self.o['g3']: a(f"s_xor_b32 s{sT2}, s{sT2}, 3")
        a(f"s_lshl2_add_u32 s{sG}, s{sT1}, s{sT2}")
        a(f"s_sub_u32 s{sT0}, s{sG}, 8\ns_min_u32 s{sT1}, s{sT0}, 3\ns_mul_i32 s{sC0}, s{sT0}, 5\ns_add_u32 s{sC0}, s{sC0}, s{sT1}")
        a(f"v_lshlrev_b32 v{vL16}, 4, v{vL}")
        a(f"s_cmp_lt_u32 s{sW}, 4\ns_cbranch_scc1 L_C")

    def l_stage(self, vm, t):
        a = self.a; slot = t % 3
        def xpart():
            a(f"s_add_u32 m0, s{sLX}, {L_X + slot*16384}\ns_lshl_b32 s{sXO}, s{sPH}, 7\ns_add_u32 s{sXO}, s{sXO}, s{sXB}")
            for ii in range(4):
                off = f" offset:{1024*ii}" if ii else ""
                a(f"buffer_load_dwordx4 v{vX+ii}, s[{S_X}:{S_X+3}], s{sXO} offen{off} lds"); vm.issue(f"st{t}")
        if t > 0: xpart()
        a(f"s_add_u32 m0, s{sLWB}, {slot*24576}\ns_sub_u32 s{sWO1}, s{sWOF}, s{sWD}\ns_sub_u32 s{sWO2}, s{sWO1}, s{sWD}")
        for rg in range(2):
            if rg: a(f"s_add_u32 m0, s{sLWB}, {slot*24576 + 3072}\ns_nop 0")
            a(f"buffer_load_dwordx4 v{vWv+2*rg}, s[{S_W}:{S_W+3}], s{sWOF} offen lds"); vm.issue(f"st{t}")
            a(f"buffer_load_dwordx4 v{vWv+2*rg}, s[{S_W}:{S_W+3}], s{sWO1} offen offset:1024 lds"); vm.issue(f"st{t}")
            a(f"buffer_load_dwordx4 v{vWv+2*rg+1}, s[{S_W}:{S_W+3}], s{sWO2} offen offset:2048 lds"); vm.issue(f"st{t}" if t or not rg else "st0w")
        if t == 0: xpart()
        if t < 7:
            a(f"s_add_u32 s{sWOF}, s{sWOF}, s{sWSTEP}\ns_add_u32 s{sPH}, s{sPH}, 1\ns_and_b32 s{sPH}, s{sPH}, 7\ns_cselect_b32 s{sT0}, 0, s{sWEND}\ns_sub_u32 s{sWOF}, s{sWOF}, s{sT0}")

    def l_prologue(self, vm):
        a = self.a; T = ACC2
        pm = self.o.get('phmode', 0)
        if pm == 0: a(f"s_bfe_u32 s{sT0}, s2, 0x30003\ns_lshr_b32 s{sT1}, s2, 6\ns_lshl1_add_u32 s{sPH}, s{sT1}, s{sT0}\ns_and_b32 s{sPH}, s{sPH}, 7")
        elif pm == 1: a(f"s_bfe_u32 s{sT0}, s2, 0x30003\ns_bfe_u32 s{sT1}, s2, 0x10006\ns_lshl2_add_u32 s{sPH}, s{sT1}, s{sT0}\ns_and_b32 s{sPH}, s{sPH}, 7")
        elif pm in (2, 3):
            a(f"s_bfe_u32 s{sT0}, s2, 0x30003\ns_bfe_u32 s{sT1}, s2, 0x10006\ns_lshl2_add_u32 s{sPH}, s{sT1}, s{sT0}\ns_lshr_b32 s{sT1}, s2, 7")
            if pm == 3: a(f"s_xor_b32 s{sT1}, s{sT1}, 1")
            a(f"s_add_u32 s{sPH}, s{sPH}, s{sT1}\ns_and_b32 s{sPH}, s{sPH}, 7")
        a(f"s_sub_u32 s{sLW}, s{sW}, 4\ns_movk_i32 s{sPITCH}, 2752\ns_cmp_lt_u32 s{sG}, 8\ns_cselect_b32 s{sPITCH}, 3072, s{sPITCH}")
        a(f"s_cselect_b32 s{sWD}, 0, 896\ns_cselect_b32 s{sT3}, 0, 2048")
        a(f"s_lshl_b32 s{sT0}, s{sG}, 7\ns_lshl_b32 s{sT1}, s{sC0}, 6\ns_cmp_lt_u32 s{sG}, 8\ns_cselect_b32 s{sT5}, s{sT0}, s{sT1}\ns_add_u32 s{sT5}, s{sT5}, s{sT3}")
        a(f"v_lshrrev_b32 v{T}, 4, v{vL}\nv_and_b32 v{T+1}, 7, v{vL}\nv_xor_b32 v{T}, v{T}, v{T+1}\nv_lshlrev_b32 v{T}, 4, v{T}\nv_lshrrev_b32 v{T+2}, 3, v{vL}")
        a(f"v_lshl_add_u32 v{vX}, v{T+2}, 10, v{T}\nv_xor_b32 v{vX+1}, 64, v{vX}\nv_add_u32 v{vX+1}, 7168, v{vX+1}\nv_add_u32 v{vX+2}, 14336, v{vX}\nv_add_u32 v{vX+3}, 14336, v{vX+1}")
        a(f"v_lshrrev_b32 v{T}, 2, v{vL}\nv_and_b32 v{T}, 4, v{T}\nv_xor_b32 v{T}, v{T}, v{T+1}\nv_lshlrev_b32 v{T}, 4, v{T}")
        a(f"s_cmp_ge_u32 s{sG}, 11\ns_cselect_b32 s{sT4}, 64, 128\nv_mad_u32_u24 v{vWv}, v{T+2}, s{sPITCH}, v{T}\nv_cmp_gt_u32 vcc, s{sT4}, v{T}\nv_mov_b32 v{vWv+1}, {OOB}")
        a(f"s_lshl_b32 s{sT0}, s{sPITCH}, 3\nv_cndmask_b32 v{vWv+1}, v{vWv+1}, v{vWv}, vcc\nv_add_u32 v{vWv+2}, s{sT0}, v{vWv}\nv_add_u32 v{vWv+3}, s{sT0}, v{vWv+1}")
        a(f"s_lshl2_add_u32 s{sXB}, s{sRB}, s{sLW}\ns_lshl_b32 s{sXB}, s{sXB}, 15\ns_lshl_b32 s{sWSTEP}, s{sPITCH}, 6\ns_lshl_b32 s{sWEND}, s{sPITCH}, 9")
        a(f"s_lshl2_add_u32 s{sT0}, s{sPH}, s{sLW}\ns_lshl_b32 s{sT0}, s{sT0}, 4\ns_mul_i32 s{sWOF}, s{sT0}, s{sPITCH}\ns_add_u32 s{sWOF}, s{sWOF}, s{sT5}")
        a(f"s_lshl_b32 s{sLX}, s{sLW}, 12\ns_mul_i32 s{sLWB}, s{sLW}, 6144\ns_add_u32 s{sLWB}, s{sLWB}, {L_W}")
        a(f"s_mov_b32 s{S_X+2}, 2097152\ns_mov_b32 s{S_X+3}, 0x20000\ns_add_u32 s{S_W+2}, s{sWEND}, s{sT3}\ns_mov_b32 s{S_W+3}, 0x20000")
        a("s_waitcnt lgkmcnt(0)")
        self.stamp(1)
        a(f"s_load_dword s{sTAG}, s[22:23], {WS_EPOCH}")
        a(f"s_mov_b32 s{S_X}, s4\ns_mov_b32 s{S_X+1}, s5\ns_sub_u32 s12, s12, 2048\ns_subb_u32 s13, s13, 0")
        a(f"s_cmp_lt_u32 s{sG}, 8\ns_cselect_b32 s{S_W}, s6, s12\ns_cselect_b32 s{S_W+1}, s7, s13")
        self.l_stage(vm, 0)
        if self.o.get('pst'): self.stamp(40)
        a(f"v_lshl_add_u32 v{vB2D}, v{T+2}, 10, v{T}\nv_add_u32 v{vB2D+1}, 7168, v{vB2D}")
        self.srd(S_WS, 22, WS_SIZE); self.srd(S_W2, 16, 1376*1024); self.srd(S_WO, 8, 512*1024); self.srd(S_OUT, 18, 2097152)
        self.decode2()
        a(f"v_bfe_u32 v{T}, v{vL}, 2, 2\nv_lshrrev_b32 v{T+1}, 1, v{T}\nv_lshlrev_b32 v{T}, 7, v{T}\nv_lshl_add_u32 v{T}, v{T+1}, 6, v{T}")
        a(f"v_bfe_u32 v{T+1}, v{vL}, 4, 1\nv_lshl_add_u32 v{T}, v{T+1}, 5, v{T}\nv_and_b32 v{T+1}, 3, v{vL}\nv_lshl_add_u32 v{T+14}, v{T+1}, 3, v{T}\nv_lshrrev_b32 v{T+15}, 5, v{vL}")
        a(f"s_lshl_b32 s{sB2L}, s{sLW}, 11\nv_lshl_add_u32 v{vB2AL[0]}, v{T+15}, 9, v{T+14}\nv_add_u32 v{vB2AL[0]}, s{sB2L}, v{vB2AL[0]}\nv_xor_b32 v{vB2AL[1]}, 64, v{vB2AL[0]}")
        for hi in (1, 2):
            a(f"v_add_u32 v{vB2AL[2*hi]}, {65536*hi}, v{vB2AL[0]}\nv_add_u32 v{vB2AL[2*hi+1]}, {65536*hi}, v{vB2AL[1]}")
        a(f"v_and_b32 v{T}, 31, v{vL}\nv_lshlrev_b32 v{T}, 2, v{T}\nv_add_u32 v{T}, {L_FL}, v{T}\nv_mov_b32 v{T+1}, 0\nds_write_b32 v{T}, v{T+1}")

    def l_colsum_pre(self):
        a = self.a; T = ACC2; S = T + 16
        a(f"s_mul_i32 s{sT0}, s{sLW}, 6144\ns_add_u32 s{sT0}, s{sT0}, {L_W}\nv_mul_u32_u24 v{T}, 3072, v{T+15}\nv_add3_u32 v{T}, v{T}, v{T+14}, s{sT0}\nv_xor_b32 v{T+1}, 64, v{T}")
        a(f"s_mov_b32 s{sT5}, 0x3f803f80")
        for k in range(6): a(f"v_mov_b32 v{S+k}, 0")
        a(f"s_mul_i32 s{sT1}, s{sLW}, 1536\ns_add_u32 s{sT1}, s{sT1}, {L_SLAB}\nv_and_b32 v{T+2}, 31, v{vL}\nv_lshl_add_u32 v{T+2}, v{T+2}, 2, s{sT1}\nv_mul_u32_u24 v{T+3}, 768, v{T+15}\nv_add_u32 v{T+2}, v{T+2}, v{T+3}")
    def l_colsum(self):
        a = self.a; T = ACC2; F = AR; S = T + 16
        for u in range(3):
            for c in range(2):
                for rd in range(2):
                    r = F + 8*u + 4*c + 2*rd
                    a(f"ds_read_b64_tr_b16 v[{r}:{r+1}], v{T+c} offset:{1024*u + 512*rd}")
        for half in range(2):
            a(f"s_waitcnt lgkmcnt({6 - 6*half})")
            for k in range(4):
                for uc in range(3*half, 3*half + 3): a(f"v_dot2c_f32_bf16 v{S+uc}, s{sT5}, v{F+4*uc+k}")
        a("s_nop 2")
        for uc in range(6): a(f"ds_write_b32 v{T+2}, v{S+uc} offset:{128*uc}")

    def wave_sum2(self, v0, v1, t0, t1):
        a = self.a
        for m in ("quad_perm:[1,0,3,2]", "quad_perm:[2,3,0,1]", "row_half_mirror", "row_mirror"):
            a(f"s_nop 0\nv_add_f32_dpp v{v0}, v{v0}, v{v0} {m} row_mask:0xf bank_mask:0xf\nv_add_f32_dpp v{v1}, v{v1}, v{v1} {m} row_mask:0xf bank_mask:0xf")
        for op in ("v_permlane16_swap_b32", "v_permlane32_swap_b32"):
            a(f"v_mov_b32 v{t0}, v{v0}\nv_mov_b32 v{t1}, v{v1}\ns_nop 1\n{op} v{t0}, v{v0}\n{op} v{t1}, v{v1}\ns_nop 0\nv_add_f32 v{v0}, v{v0}, v{t0}\nv_add_f32 v{v1}, v{v1}, v{t1}")

    def c_stats(self, vm):
        a = self.a; T = 160; u = 116
        vm.wait("xrow", lgkm=0)
        if self.o.get('pst'): self.stamp(42)
        self.tag()
        for r in range(2):
            for k in range(4):
                a(f"v_lshlrev_b32 v{u+8*r+2*k}, 16, v{T+4+4*r+k}\nv_and_b32 v{u+8*r+2*k+1}, 0xffff0000, v{T+4+4*r+k}")
        s0, s1 = u + 16, u + 17
        for r, s in ((0, s0), (1, s1)): a(f"v_add_f32 v{s}, v{u+8*r}, v{u+8*r+1}")
        for k in range(2, 8):
            for r, s in ((0, s0), (1, s1)): a(f"v_add_f32 v{s}, v{s}, v{u+8*r+k}")
        self.wave_sum2(s0, s1, u + 40, u + 41)
        G0, G1 = u + 20, u + 24
        a(f"v_mul_f32 v{G0}, {f2u(1/512.):#x}, v{s0}\nv_mul_f32 v{G1}, {f2u(1/512.):#x}, v{s1}")
        for k in range(8):
            a(f"v_sub_f32 v{u+k}, v{u+k}, v{G0}\nv_sub_f32 v{u+8+k}, v{u+8+k}, v{G1}")
        a(f"v_mul_f32 v{s0}, v{u}, v{u}\nv_mul_f32 v{s1}, v{u+8}, v{u+8}")
        for k in range(1, 8): a(f"v_fmac_f32 v{s0}, v{u+k}, v{u+k}\nv_fmac_f32 v{s1}, v{u+8+k}, v{u+8+k}")
        self.wave_sum2(s0, s1, u + 40, u + 41)
        a(f"v_mov_b32 v{u}, {f2u(1e-5):#x}\nv_mov_b32 v{u+1}, {f2u(1e-5):#x}\nv_fmac_f32 v{u}, {f2u(1/512.):#x}, v{s0}\nv_fmac_f32 v{u+1}, {f2u(1/512.):#x}, v{s1}")
        a(f"v_rsq_f32 v{u}, v{u}\nv_rsq_f32 v{u+1}, v{u+1}\nv_mov_b32 v{G0+2}, 0\nv_mov_b32 v{G0+3}, s{sTAG}\nv_mov_b32 v{G1+2}, 0\nv_mov_b32 v{G1+3}, s{sTAG}")
        a(f"v_mul_f32 v{G0+1}, {f2u(LOG2E):#x}, v{u}\nv_mul_f32 v{G1+1}, {f2u(LOG2E):#x}, v{u+1}")
        self.lane0(u + 2)
        a(f"buffer_store_dwordx4 v[{G0}:{G0+3}], v{u+2}, s[{S_WS}:{S_WS+3}], s{sE} offen sc1"); vm.issue("statst")
        a(f"buffer_store_dwordx4 v[{G1}:{G1+3}], v{u+2}, s[{S_WS}:{S_WS+3}], s{sE} offen offset:16 sc1"); vm.issue("statst")
        if self.o.get('pst'): self.stamp(43)
        vm.wait("bias")
        a(f"v_lshlrev_b32 v{u+3}, 16, v{T+12}\nv_mul_f32 v{u+3}, {f2u(LOG2E):#x}, v{u+3}\nv_lshlrev_b32 v{u+4}, 2, v{T+13}\nv_add_u32 v{u+4}, {L_BT}, v{u+4}")
        a(f"s_cmp_eq_u32 s{sW}, 3\ns_cbranch_scc1 L_nobt\nds_write_b32 v{u+4}, v{u+3}")
        a.label("L_nobt")

    def l_cspub(self, vm, vi):
        a = self.a; T = ACC2 + 24; U = B2R
        a(f"s_mov_b32 s{sT0}, {OOB}\ns_cmp_lg_u32 s{sLW}, 0\ns_cbranch_scc1 L_nocsp{vi}")
        a(f"v_lshlrev_b32 v{T}, 2, v{vL}\nv_add_u32 v{T}, {L_SLAB}, v{T}")
        for k in range(0, 24, 2): a(f"ds_read2st64_b32 v[{U+k}:{U+k+1}], v{T} offset0:{k} offset1:{k+1}")
        a(f"v_mov_b32 v{T+3}, s{sTAG}")
        a(f"s_lshl4_add_u32 s{sT0}, s{sG}, s{sRB}\ns_lshl_b32 s{sT0}, s{sT0}, 10\ns_add_u32 s{sT0}, s{sT0}, {WS_CSP}")
        a("s_waitcnt lgkmcnt(0)")
        for sl in range(1, 7):
            for u in range(3): a(f"v_add_f32 v{U+u}, v{U+u}, v{U+3*sl+u}")
        for u in range(3): a(f"v_add_f32 v{T+u}, v{U+u}, v{U+21+u}")
        a.label(f"L_nocsp{vi}")
        a(f"buffer_store_dwordx4 v[{T}:{T+3}], v{vL16}, s[{S_WS}:{S_WS+3}], s{sT0} offen sc1"); vm.issue("cspst")

    def l_steptable(self):
        a = self.a
        a("s_waitcnt lgkmcnt(0)")
        if not self.o['classes']:
            a(f"s_mul_i32 s{sT0}, s{sROT}, 3\ns_lshr_b32 s{sT0}, s{sT0}, {0 if self.o['map2'] == 0 else 1}")
            a(f"s_sub_u32 s{sT1}, s{sT0}, 22\ns_cmp_ge_u32 s{sT0}, 22\ns_cselect_b32 s{sT0}, s{sT1}, s{sT0}")
            a(f"s_mul_i32 s{sT3}, s{sLW}, 22\ns_add_u32 s{sT4}, s{sT3}, 22\ns_add_u32 s{sT0}, s{sT0}, s{sT3}")
            for i in range(22):
                a(f"s_lshl_b32 s{SP[i]}, s{sT0}, 10\ns_cmp_ge_u32 s{sT0}, 86\ns_cselect_b32 s{SP[i]}, {WS_SIZE}, s{SP[i]}")
                if i < 21: a(f"s_add_u32 s{sT0}, s{sT0}, 1\ns_cmp_eq_u32 s{sT0}, s{sT4}\ns_cselect_b32 s{sT0}, s{sT3}, s{sT0}")
        else:
            for k, d in ((0, sT4), (1, sT5)):
                a(f"s_lshl_b32 s{sT0}, s{sLW}, 1\ns_add_u32 s{sT0}, s{sT0}, {k}\ns_min_u32 s{sT1}, s{sT0}, 3\ns_mul_i32 s{sT0}, s{sT0}, 5\ns_add_u32 s{sT0}, s{sT0}, s{sT1}\ns_lshl_b32 s{d}, s{sT0}, 1")
            a(f"s_lshl_b32 s{sT3}, s{sROT}, 1")
            for i in range(16):
                a(f"s_add_u32 s{sT0}, s{sT3}, {i}\ns_and_b32 s{sT1}, s{sT0}, 7\ns_bitcmp1_b32 s{sT0}, 3\ns_cselect_b32 s{sT0}, s{sT5}, s{sT4}\ns_add_u32 s{sT0}, s{sT0}, s{sT1}\ns_lshl_b32 s{SP[i]}, s{sT0}, 10")
            tab = [[4, 5, 10], [11, 16, 17], [22, 27, 32], [37, 42, 43]]
            a(f"s_lshl_b32 s{sT0}, s{sLW}, 3\ns_or_b32 s{sT0}, s{sT0}, 0x80000")
            for k, d in ((0, sT3), (1, sT4), (2, sT5)):
                c = sum(tab[q][k] << (8*q) for q in range(4))
                a(f"s_bfe_u32 s{d}, {c:#x}, s{sT0}\ns_lshl_b32 s{d}, s{d}, 11")
            a(f"s_cmp_eq_u32 s{sLW}, 3\ns_cselect_b32 s{sT5}, {WS_SIZE}, s{sT5}")
            a(f"s_mov_b32 s{sT0}, s{sROT}")
            for r in range(2): a(f"s_sub_u32 s{sT1}, s{sT0}, 6\ns_cmp_ge_u32 s{sT0}, 6\ns_cselect_b32 s{sT0}, s{sT1}, s{sT0}")
            for i in range(6):
                a(f"s_cmp_ge_u32 s{sT0}, 2\ns_cselect_b32 s{sT1}, s{sT4}, s{sT3}\ns_cmp_ge_u32 s{sT0}, 4\ns_cselect_b32 s{sT1}, s{sT5}, s{sT1}")
                a(f"s_and_b32 s{sT2}, s{sT0}, 1\ns_lshl_b32 s{sT2}, s{sT2}, 10\ns_add_u32 s{SP[16+i]}, s{sT1}, s{sT2}")
                if i < 5: a(f"s_add_u32 s{sT0}, s{sT0}, 1\ns_cmp_eq_u32 s{sT0}, 6\ns_cselect_b32 s{sT0}, 0, s{sT0}")
        a(f"s_lshl_b32 s{sT3}, s{sLW}, 3\ns_add_u32 s{sT3}, s{sT3}, 88")
        for i in range(8):
            a(f"s_add_u32 s{sT0}, s{sROT}, {i}\ns_and_b32 s{sT0}, s{sT0}, 7\ns_add_u32 s{sT0}, s{sT0}, s{sT3}\ns_lshl_b32 s{SP[22+i]}, s{sT0}, 10")
        a(f"s_lshl_b32 s{sB2C}, s{sCT}, 7\ns_sub_u32 s{sB2C2}, s{sB2C}, {88*16384}")
        a(f"s_mul_i32 s{sA2B}, s{sRT}, {2*A2_RT}\ns_add_u32 s{sA2B}, s{sA2B}, {WS_A2}\nv_add_u32 v{vL16B}, {A2_RT}, v{vL16}")

    def l_gather_addr(self):
        a = self.a; T = ACC2 + 40; sT4, sT5 = 86, 87
        a(f"s_lshl2_add_u32 s{sT4}, s{sRB}, s{sLW}\ns_lshl_b32 s{sT4}, s{sT4}, 9\ns_add_u32 s{sT4}, s{sT4}, {WS_STATS}")
        a(f"s_and_b32 s{sT5}, s{sRB}, 8\ns_lshl4_add_u32 s{sT5}, s{sG}, s{sT5}\ns_lshl2_add_u32 s{sT5}, s{sT5}, s{sLW}\ns_lshl_b32 s{sT5}, s{sT5}, 8\ns_add_u32 s{sT5}, s{sT5}, {WS_CSP}")
        a(f"v_and_b32 v{T}, 0x1f0, v{vL16}\nv_lshrrev_b32 v{T+1}, 4, v{vL}\nv_lshlrev_b32 v{T+1}, 10, v{T+1}\nv_and_b32 v{T+2}, 0xf0, v{vL16}\nv_or_b32 v{T+1}, v{T+1}, v{T+2}\nv_add_u32 v{T+2}, 4096, v{T+1}")
    def l_gather_issue(self, vm):
        a = self.a; T = ACC2 + 40; G = AR; sT4, sT5 = 86, 87
        a(f"buffer_load_dwordx4 v[{G}:{G+3}], v{T}, s[{S_WS}:{S_WS+3}], s{sT4} offen sc1"); vm.issue("gath")
        a(f"buffer_load_dwordx4 v[{G+4}:{G+7}], v{T+1}, s[{S_WS}:{S_WS+3}], s{sT5} offen sc1"); vm.issue("gath")
        a(f"buffer_load_dwordx4 v[{G+8}:{G+11}], v{T+2}, s[{S_WS}:{S_WS+3}], s{sT5} offen sc1"); vm.issue("gath")
    def l_gather_check(self, vm, vi):
        a = self.a; T = ACC2; G = AR
        vm.wait("gath")
        a(f"s_mov_b32 s{sSPIN}, 0")
        a.label(f"L_gchk{vi}")
        a(f"v_cmp_ne_u32 vcc, s{sTAG}, v{G+3}\nv_cmp_ne_u32 s[70:71], s{sTAG}, v{G+7}\ns_nop 1\ns_or_b64 s[70:71], vcc, s[70:71]")
        a(f"v_cmp_ne_u32 vcc, s{sTAG}, v{G+11}\ns_nop 1\ns_or_b64 vcc, vcc, s[70:71]")
        a(f"s_cbranch_vccz L_gok{vi}")
        a(f"s_add_u32 s{sSPIN}, s{sSPIN}, 1\ns_cmp_gt_u32 s{sSPIN}, 0x8000\ns_cbranch_scc1 L_gok{vi}")
        self.l_gather_issue(VM(a))
        a(f"s_waitcnt vmcnt(0)\ns_branch L_gchk{vi}")
        a.label(f"L_gok{vi}")
        a(f"s_lshl_b32 s{sT0}, s{sLW}, 7\ns_add_u32 s{sT0}, s{sT0}, {L_MT}\nv_and_b32 v{T}, 31, v{vL}\nv_lshl_add_u32 v{T}, v{T}, 2, s{sT0}")
        a(f"ds_write_b32 v{T}, v{G}\nds_write_b32 v{T}, v{G+1} offset:512")
    def l_w2touch(self, vm):
        a = self.a; T = ACC2 + 8
        a(f"s_lshl2_add_u32 s{sT0}, s2, s{sLW}\ns_lshl_b32 s{sT1}, s{sT0}, 9\ns_mul_i32 s{sT0}, s{sT0}, 1408\nv_lshlrev_b32 v{T}, 7, v{vL}\ns_mov_b64 exec, 0x7ff")
        a(f"buffer_load_dword v{T+1}, v{T}, s[{S_W2}:{S_W2+3}], s{sT0} offen\ns_mov_b64 exec, 0xf"); vm.issue("w2t")
        a(f"buffer_load_dword v{T+2}, v{T}, s[{S_WO}:{S_WO+3}], s{sT1} offen\ns_mov_b64 exec, -1"); vm.issue("w2t")
    def l_gather_cs(self):
        a = self.a; T = ACC2; G = AR
        for k in range(3): a(f"v_add_f32 v{G+4+k}, v{G+4+k}, v{G+8+k}")
        for op in ("v_permlane16_swap_b32", "v_permlane32_swap_b32"):
            for k in range(3): a(f"v_mov_b32 v{G+8+k}, v{G+4+k}")
            a("s_nop 0")
            for k in range(3): a(f"{op} v{G+8+k}, v{G+4+k}")
            a("s_nop 0")
            for k in range(3): a(f"v_add_f32 v{G+4+k}, v{G+4+k}, v{G+8+k}")
        a(f"s_lshl_b32 s{sT0}, s{sLW}, 6\ns_add_u32 s{sT0}, s{sT0}, {L_CS}\nv_lshl_add_u32 v{T+1}, v{vL}, 2, s{sT0}\ns_mov_b64 exec, 0xffff")
        a(f"ds_write2st64_b32 v{T+1}, v{G+4}, v{G+5} offset1:1\nds_write_b32 v{T+1}, v{G+6} offset:512\ns_mov_b64 exec, -1")

    def b2_dma(self, vm, step, pace=True):
        a = self.a
        if pace: vm.depth((self.o['pace'] if pace is True else pace) - 2)
        srd, base = (S_W2, sB2C) if step < 22 else (S_WO, sB2C2)
        a(f"s_add_u32 m0, s{sB2L}, {8192*round_of(step)}\ns_lshl4_add_u32 s{sT0}, s{SP[step]}, s{base}")
        a(f"buffer_load_dwordx4 v{vB2D}, s[{srd}:{srd+3}], s{sT0} offen lds"); vm.issue(f"b2_{step}")
        a(f"buffer_load_dwordx4 v{vB2D+1}, s[{srd}:{srd+3}], s{sT0} offen offset:1024 lds"); vm.issue(f"b2_{step}")
        if self.o.get('b2stamps'): self.stamp(20 + step)
    def b2_reads(self, s, dst):
        rnd = round_of(s); hi, lo = rnd // 8, rnd % 8
        for cc in range(2):
            for rd in range(2):
                r = dst + 4*cc + 2*rd
                self.a(f"ds_read_b64_tr_b16 v[{r}:{r+1}], v{vB2AL[2*hi + cc]} offset:{8192*lo + 1024*rd}")

    def l_main(self):
        a = self.a; vm = VM(a); T = ACC2
        if self.o['pf']: vm.issue("codepf")
        self.l_prologue(vm)
        if self.o['spf']:
            a(f"s_lshr_b32 s{sT0}, s2, 3\ns_lshl2_add_u32 s{sT0}, s{sT0}, s{sLW}\ns_mul_i32 s{sT0}, s{sT0}, {64*self.o['spf']}\ns_add_u32 s94, s16, s{sT0}\ns_addc_u32 s95, s17, 0\ns_and_b32 s84, s2, 7")
        if self.o.get('stouch'):
            a(f"s_lshl2_add_u32 s{sT0}, s2, s{sLW}\ns_mul_i32 s{sT1}, s{sT0}, 1376\ns_and_b32 s{sT1}, s{sT1}, 0xffffffc0\ns_add_u32 s94, s16, s{sT1}\ns_addc_u32 s95, s17, 0")
            a(f"s_lshl_b32 s{sT0}, s{sT0}, 9\ns_add_u32 s98, s8, s{sT0}\ns_addc_u32 s99, s9, 0")
        self.l_steptable()
        self.tag(); self.l_gather_addr()
        a(f"v_and_b32 v{T}, 7, v{vL}\nv_lshrrev_b32 v{T+1}, 5, v{vL}\nv_xor_b32 v{T+1}, v{T+1}, v{T}\nv_lshlrev_b32 v{T+1}, 4, v{T+1}\nv_lshl_add_u32 v{T+1}, v{T}, 8, v{T+1}")
        a(f"v_bfe_u32 v{T}, v{vL}, 3, 2\nv_lshl_add_u32 v{T+1}, v{T}, 13, v{T+1}\nv_add_u32 v254, s{sB2L}, v{T+1}")
        vP0, vP2, vPT = 249, 250, 251
        a(f"s_lshl_b32 s54, s{sRT}, 12\ns_add_u32 s54, s54, {WS_FLAG}")
        a(f"v_and_b32 v{vP0}, 3, v{vL}\ns_lshl_b32 s{sT0}, s{sLW}, 2\nv_add_u32 v{vP0}, s{sT0}, v{vP0}\nv_lshlrev_b32 v{vP0}, 7, v{vP0}")
        if not self.o['classes'] and self.o.get('psub', 1):
            a(f"s_lshl_b32 s{sT0}, s{sLW}, 3\ns_or_b32 s{sT0}, s{sT0}, 0x80000\ns_bfe_u32 s{sT1}, 0x0c060200, s{sT0}\ns_bfe_u32 s{sT0}, 0x03050503, s{sT0}")
            a(f"v_min_u32 v{vP2}, s{sT0}, v{vL}\nv_add_u32 v{vP2}, s{sT1}, v{vP2}\nv_lshlrev_b32 v{vP2}, 7, v{vP2}")
        elif not self.o['classes']:
            a(f"v_and_b32 v{vP2}, 15, v{vL}\nv_lshlrev_b32 v{vP2}, 7, v{vP2}")
        else:
            a(f"v_and_b32 v{vP2}, 3, v{vL}\nv_min_u32 v{vP2}, 2, v{vP2}")
            a(f"s_mul_i32 s{sT0}, s{sLW}, 3\ns_mul_i32 s{sT1}, s{sLW}, 6\ns_sub_u32 s{sT1}, s{sT1}, 6\ns_cmp_lt_u32 s{sLW}, 2\ns_cselect_b32 s{sT0}, s{sT0}, s{sT1}\ns_cselect_b32 s{sT1}, 0, 1")
            a(f"v_lshlrev_b32 v{vP2}, s{sT1}, v{vP2}\nv_add_u32 v{vP2}, s{sT0}, v{vP2}\nv_min_u32 v{vP2}, 14, v{vP2}\nv_lshlrev_b32 v{vP2}, 7, v{vP2}")
        vA = vP0 if self.o['classes'] else vP2
        self.final_addr(None, T, T + 1)
        a(f"v_and_b32 v255, 3, v{vL}\nv_lshlrev_b32 v255, 2, v255\nv_add_u32 v255, {L_FL}, v255")
        a(f"s_mul_i32 s{sT0}, s{sLW}, 3072\ns_add_u32 s{sT0}, s{sT0}, {L_KV + 12}\nv_add_u32 v{T}, s{sT0}, v{vL16}\ns_not_b32 s{sT0}, s{sTAG}\nv_mov_b32 v{T+1}, s{sT0}")
        for k in range(3): a(f"ds_write_b32 v{T}, v{T+1} offset:{1024*k}")
        self.l_colsum_pre()
        if self.o.get('pst'): self.stamp(41)
        vm.depth(self.o.get('st1_at', 8))
        if self.o.get('pst'): self.stamp(42)
        self.l_stage(vm, 1)
        if self.o.get('pst'): self.stamp(43)
        if self.o.get('w2pf', -1) == -1: self.l_w2touch(vm)
        vm.wait("st0w")
        self.l_colsum()
        CL = self.o.get('cl') or [{}]
        TV = B2R + 40
        if len(CL) > 1 or CL[0]:
            a(f"s_lshr_b32 s{sT0}, s2, 3\ns_lshl2_add_u32 s{sT0}, s{sT0}, s{sLW}\ns_mul_i32 s{sT0}, s{sT0}, 118")
            a(f"v_min_u32 v{TV}, 58, v{vL}\nv_add_u32 v{TV}, s{sT0}, v{TV}\nv_lshlrev_b32 v{TV}, 7, v{TV}\nv_add_u32 v{TV+1}, {59*128}, v{TV}")
            a(f"v_subrev_u32 v{TV+2}, {1376*1024}, v{TV}\nv_subrev_u32 v{TV+3}, {1376*1024}, v{TV+1}\ns_and_b32 s84, s{sCT}, {len(CL)-1}")
        def touch(vm, k):
            a(f"buffer_load_dword v{TV+4}, v{TV+k}, s[{S_W2}:{S_W2+3}], 0 offen"); vm.issue("tch")
            a(f"buffer_load_dword v{TV+5}, v{TV+2+k}, s[{S_WO}:{S_WO+3}], 0 offen"); vm.issue("tch")
        base = vm; ends = []
        for vi, var in enumerate(CL):
            vm = base.copy()
            if vi + 1 < len(CL): a(f"s_cmp_lg_u32 s84, {vi}\ns_cbranch_scc1 L_var{vi}")
            for t in range(8):
                vm.wait(f"st{t}", lgkm=None if ((self.o['spf'] or self.o.get('stouch')) and 1 <= t <= 6) else 0)
                if self.o.get('pst') and t < 2: self.stamp(44 + t)
                a("s_barrier")
                if self.o['kstamps'] or t in (0, 7): self.stamp(2 + t)
                if t + 2 < 8: self.l_stage(vm, t + 2)
                for k in var.get(t, []): touch(vm, k)
                if t == 0: self.l_cspub(vm, vi)
                if self.o['spf'] and t in self.o.get('spf_t', range(0, 6)):
                    n = self.o['spf']; assert 128*64*n <= 234752
                    a(f"s_add_u32 s84, s84, 1\ns_sub_u32 s{sT0}, s84, 6\ns_cmp_ge_u32 s84, 6\ns_cselect_b32 s84, s{sT0}, s84\ns_mul_i32 s{sT0}, s84, 234752\ns_add_u32 s98, s94, s{sT0}\ns_addc_u32 s99, s95, 0")
                    for k in range(n): a(f"s_load_dword s54, s[98:99], {64*k}")
                if self.o.get('stouch'):
                    n, t0 = self.o['stouch']
                    lst = [("94:95", 64*k) for k in range(22)] + [("98:99", 64*k) for k in range(8)]
                    if t >= t0:
                        for p, off in lst[n*(t - t0):n*(t - t0 + 1)]: a(f"s_load_dword s84, s[{p}], {off}")
                if t == self.o.get('a2touch', -9):
                    a(f"s_lshl2_add_u32 s{sT0}, s{sRB}, s{sLW}\ns_mul_i32 s{sT0}, s{sT0}, {A2_RT}\ns_lshl_b32 s{sT1}, s{sC0}, 11\ns_lshl_b32 s{sT2}, s{sG}, 12\ns_add_u32 s{sT2}, s{sT2}, {88*1024}")
                    a(f"s_cmp_lt_u32 s{sG}, 8\ns_cselect_b32 s{sT1}, s{sT2}, s{sT1}\ns_cselect_b32 s{sT2}, {OOB}, 8192\ns_cselect_b32 exec_hi, 0, -1\ns_add_u32 s{sT0}, s{sT0}, s{sT1}\ns_add_u32 s{sT0}, s{sT0}, {WS_A2}\ns_add_u32 s{sT2}, s{sT2}, s{sT0}")
                    a(f"v_lshlrev_b32 v{T+8}, 7, v{vL}\nbuffer_load_dword v{T+9}, v{T+8}, s[{S_WS}:{S_WS+3}], s{sT0} offen\ns_mov_b32 exec_hi, 0\nbuffer_load_dword v{T+10}, v{T+8}, s[{S_WS}:{S_WS+3}], s{sT2} offen\ns_mov_b64 exec, -1")
                    vm.issue("a2t"); vm.issue("a2t")
                if t == 5: self.l_gather_issue(vm)
                if t == self.o.get('w2pf', -1): self.l_w2touch(vm)
                if t == 6:
                    for s in range(self.o['n0']): self.b2_dma(vm, s, pace=False)
                    self.l_gather_check(vm, vi); self.l_gather_cs()
            ends.append(list(vm.q))
            if vi + 1 < len(CL):
                a("s_branch L_varend"); a.label(f"L_var{vi}")
        assert all(e == ends[0] for e in ends)
        a.label("L_varend")
        for s in range(self.o['n0'], 7): self.b2_dma(vm, s, pace=False)
        def park(k):
            vm.wait(f"b2_{k}")
            self.b2_reads(k, B2R + 8*k)
        ep = self.o.get('epark', 1); done = 0
        for s in range(7, 18):
            if s == 13: self.spin_lds("ring", 255, T + 1, 0)
            self.b2_dma(vm, s)
            if ep and s - 6 > done:
                park(done); done += 1
        self.stamp(10)
        for k in range(done, 12):
            park(k)
            if k > 1: a("s_waitcnt lgkmcnt(8)")
        a(f"v_mov_b32 v{vRW}, v254")
        for q in range(1, 4): a(f"v_xor_b32 v{vRW+q}, {32*q}, v254")
        a("s_waitcnt lgkmcnt(0)")
        if self.o.get('mix', 0):
            a(f"s_cmp_lt_u32 s{sG}, 8\ns_cbranch_scc1 L_p2att")
            self.l_phase2(vm.copy(), "M", True, vP0, vP2, vPT, vA)
            a.label("L_p2att")
        self.l_phase2(vm.copy(), "A", False, vP0, vP2, vPT, vA)

    def l_phase2(self, vm, sfx, mix, vP0, vP2, vPT, vA):
        a = self.a; T = ACC2
        polls = {0: (vA, 2048), 22: (vP0, 0)}
        if self.o['classes']: polls[16] = (vP2, 2052)
        free = [AR + 8*k for k in range(ARING)]; slot = {}
        def areg(i):
            if i not in slot: slot[i] = free.pop(0)
            return slot[i]
        def a_load(i):
            r = areg(i)
            a(f"s_add_u32 s{sT0}, s{sA2B}, s{SP[i]}")
            a(f"buffer_load_dwordx4 v[{r}:{r+3}], v{vL16}, s[{S_WS}:{S_WS+3}], s{sT0} offen {self.o.get('asc', 'sc1')}"); vm.issue(f"a{i}")
            a(f"buffer_load_dwordx4 v[{r+4}:{r+7}], v{vL16B}, s[{S_WS}:{S_WS+3}], s{sT0} offen {self.o.get('asc', 'sc1')}"); vm.issue(f"a{i}")
        def a_half(i, t):
            r = areg(i) + 4*t
            if t == 0: a(f"s_add_u32 s{sT0}, s{sA2B}, s{SP[i]}")
            a(f"buffer_load_dwordx4 v[{r}:{r+3}], v{vL16B if t else vL16}, s[{S_WS}:{S_WS+3}], s{sT0} offen {self.o.get('asc', 'sc1')}"); vm.issue(f"a{i}")
        def poll_issue(c):
            v, imm = polls[c]
            off = f" offset:{imm}" if imm else ""
            a(f"buffer_load_dword v{vPT}, v{v}, s[{S_WS}:{S_WS+3}], s54 offen{off} sc1"); vm.issue(f"p{c}")
        def poll_check(c):
            v, imm = polls[c]
            vm.wait(f"p{c}")
            a(f"v_cmp_ne_u32 vcc, s{sTAG}, v{vPT}\ns_cbranch_vccz L_pok{c}{sfx}")
            self.spin_global(f"p{c}{sfx}", v, vPT, 54, imm)
            a.label(f"L_pok{c}{sfx}")
            self.stamp({0: 12, 16: 14, 22: 15}[c])
        pre = self.o.get('mixpre', 0) if mix else 12
        if pre: self.spin_lds("hold" + sfx, 255, T + 1, 64)
        self.stamp(13)
        for s in range(18, 18 + pre): self.b2_dma(vm, s, pace=self.o.get('pace2', 10))
        if self.o.get('pollwait') and not mix:
            vm.depth(self.o['pollwait'] - 1)
            a(f"s_lshl_b32 s{sT0}, s{sLW}, 2\ns_add_u32 s{sT0}, s{sT0}, {L_FL + 96}\nv_mov_b32 v{T}, s{sT0}\nv_mov_b32 v{T+1}, 1\nds_write_b32 v{T}, v{T+1}")
        self.spin_lds("hold2" + sfx, 255, T + 1, 112)
        poll_issue(0)
        nxt = 18 + pre
        for k in range(self.o.get('mixpoll', 2) if mix else 0):
            if nxt < 30: self.b2_dma(vm, nxt, pace=False); nxt += 1
        self.stamp(11)
        LEAD = self.o.get('lead', 3)
        poll_check(0)
        a("s_setprio 1")
        self.xres(vm)
        def issue_a(n):
            if n in polls and n > 0: poll_check(n)
            a_load(n)
            if n + LEAD in polls: poll_issue(n + LEAD)
        DEPTH = self.o.get('adepthM', 4) if mix else self.o.get('adepth', 4)
        for i in range(DEPTH): issue_a(i)
        issued = DEPTH
        def breg(i): return B2R + 8*i if i < NREG else BT + 8*(i & 1)
        IL = self.o.get('il', 1)
        NT = self.o.get('ntail', 0)
        for i in range(30 - NT):
            rd = i + 1 >= NREG and i + 1 < 30
            if rd: vm.wait(f"b2_{i+1}")
            if rd and not IL: self.b2_reads(i + 1, breg(i + 1))
            lg = None
            if i >= NREG: lg = 4 if (i + 1 < 30 and not IL) else 0
            vm.wait(f"a{i}", lgkm=lg)
            if self.o.get('astamps'): self.stamp(20 + i)
            A, B = areg(i), breg(i)
            M = []
            for cc in range(2):
                for t in range(2):
                    acc = f"v[{ACC2+16*(2*t+cc)}:{ACC2+16*(2*t+cc)+15}]"
                    M.append(f"v_mfma_f32_32x32x16_bf16 {acc}, v[{B+4*cc}:{B+4*cc+3}], v[{A+4*t}:{A+4*t+3}], {'0' if i == 0 else acc}")
            d = DEPTH + sum(1 for r in self.o.get('ramp', []) if i >= r) - sum(1 for r in self.o.get('unramp', []) if i >= r)
            if IL:
                side = Asm(); keep = self.a
                self.a = side
                if rd: self.b2_reads(i + 1, breg(i + 1))
                self.a = keep
                R = [x.strip() for x in side.l]
                simple = issued < min(30, i + 1 + d) and issued not in polls
                a(M[0])
                for x in R[:2]: a(x)
                if not rd and simple: a_half(issued, 0)
                a(M[1])
                for x in R[2:]: a(x)
                if not rd and simple: a_half(issued, 1)
                a(M[2])
                if rd and simple: a_half(issued, 0)
                a(M[3])
                if rd and simple: a_half(issued, 1)
                if simple:
                    if issued + LEAD in polls: poll_issue(issued + LEAD)
                    issued += 1
            else:
                for m in M: a(m)
            free.append(A)
            if i < NREG: free.append(B)
            while issued < min(30, i + 1 + d):
                issue_a(issued); issued += 1
            if nxt < 30 and i >= self.o.get('mixfrom', 0): self.b2_dma(vm, nxt, pace=False); nxt += 1
        def wr(t, cc):
            for q in range(4):
                r = ACC2 + 16*(2*t+cc) + 4*q
                a(f"ds_write_b128 v{vRW+q}, v[{r}:{r+3}] offset:{32768*t + 128*cc}")
        if NT:
            assert issued == 30
            f = 30 - NT
            bt = {f: breg(f)}
            for i in range(f + 1, 30):
                bt[i] = free.pop(0); self.b2_reads(i, bt[i])
            order = [(0, 0), (1, 0), (0, 1), (1, 1)]
            def w1(t, cc, q):
                r = ACC2 + 16*(2*t+cc) + 4*q
                a(f"ds_write_b128 v{vRW+q}, v[{r}:{r+3}] offset:{32768*t + 128*cc}")
            assert NT == 4
            for k, (t, cc) in enumerate(order):
                acc = f"v[{ACC2+16*(2*t+cc)}:{ACC2+16*(2*t+cc)+15}]"
                if k == 2: a("s_nop 6")
                for i in range(f, 30):
                    if k == 0: vm.wait(f"a{i}", lgkm=4*(29 - i))
                    a(f"v_mfma_f32_32x32x16_bf16 {acc}, v[{bt[i]+4*cc}:{bt[i]+4*cc+3}], v[{slot[i]+4*t}:{slot[i]+4*t+3}], {acc}")
                    if k >= 2: w1(*order[k - 2], i - f)
            self.stamp(16)
            a("s_nop 3")
            wr(*order[2])
            a("s_nop 2")
            wr(*order[3])
        else:
            self.stamp(16)
            a("s_nop 7\ns_nop 3")
            for t in range(2):
                for cc in range(2): wr(t, cc)
        a("s_branch L_final")

    def c_prologue(self, vm):
        a = self.a; T = CT
        a("s_waitcnt lgkmcnt(0)")
        if self.o.get('pst'): self.stamp(40)
        a(f"s_load_dword s{sTAG}, s[22:23], {WS_EPOCH}")
        self.srd(S_X, 4, 2097152)
        X = 160
        a(f"s_lshl4_add_u32 s{sT0}, s{sRB}, s{sG}\ns_lshl2_add_u32 s{sT5}, s{sT0}, s{sW}\ns_lshl_b32 s{sT0}, s{sT5}, 11")
        a(f"buffer_load_dwordx4 v[{X+4}:{X+7}], v{vL16}, s[{S_X}:{S_X+3}], s{sT0} offen"); vm.issue("xrow")
        a(f"buffer_load_dwordx4 v[{X+8}:{X+11}], v{vL16}, s[{S_X}:{S_X+3}], s{sT0} offen offset:1024"); vm.issue("xrow")
        a(f"s_lshl_b32 s{sE}, s{sT5}, 5\ns_add_u32 s{sE}, s{sE}, {WS_STATS}")
        self.srd(S_B1, 14, 2752)
        a(f"v_lshl_add_u32 v{X+13}, s{sW}, 6, v{vL}\nv_lshlrev_b32 v{X+3}, 1, v{X+13}")
        a(f"s_lshl_b32 s{sT0}, s{sC0}, 6\ns_cmp_lt_u32 s{sG}, 8\ns_cselect_b32 s{sT0}, {OOB}, s{sT0}")
        a(f"buffer_load_ushort v{X+12}, v{X+3}, s[{S_B1}:{S_B1+3}], s{sT0} offen"); vm.issue("bias")
        a(f"s_and_b32 s{sR2}, s{sW}, 1\ns_lshr_b32 s{sC}, s{sW}, 1")
        a(f"v_and_b32 v{T+2}, 31, v{vL}\nv_lshrrev_b32 v{T+3}, 5, v{vL}\nv_bfe_u32 v{T+4}, v{vL}, 1, 3\nv_xor_b32 v{T+4}, v{T+4}, v{T+3}")
        a(f"s_lshl_b32 s{sT3}, s{sR2}, 13\nv_lshlrev_b32 v{T+2}, 7, v{T+2}\nv_lshl_add_u32 v{T+2}, v{T+4}, 4, v{T+2}\nv_add_u32 v{vXA}, s{sT3}, v{T+2}")
        for kk in range(1, 4): a(f"v_xor_b32 v{vXA+kk}, {32*kk}, v{vXA}")
        a(f"v_bfe_u32 v{T+2}, v{vL}, 2, 2\nv_mul_u32_u24 v{T+4}, 3072, v{T+3}\nv_lshl_add_u32 v{T+4}, v{T+2}, 7, v{T+4}")
        a(f"v_lshrrev_b32 v{T+2}, 1, v{T+2}\nv_xor_b32 v{T+2}, s{sC}, v{T+2}\nv_lshl_add_u32 v{T+4}, v{T+2}, 6, v{T+4}")
        a(f"v_bfe_u32 v{T+2}, v{vL}, 4, 1\nv_lshl_add_u32 v{T+4}, v{T+2}, 5, v{T+4}\nv_and_b32 v{T+2}, 3, v{vL}\nv_lshl_add_u32 v{T+4}, v{T+2}, 3, v{T+4}")
        for sl in range(3): a(f"v_add_u32 v{vWA+sl}, {L_W + 24576*sl}, v{T+4}")
        self.decode2()
        self.srd(S_WS, 22, WS_SIZE); self.srd(S_OUT, 18, 2097152)
        a(f"s_mov_b32 s{sMASK}, 0x0000ffff\ns_mov_b32 s{sMASK+1}, 0x0000ffff")
        a(f"s_lshl1_add_u32 s{sT0}, s{sRB}, s{sR2}\ns_mul_i32 s{sA2B}, s{sT0}, {2*A2_RT}\ns_add_u32 s{sA2B}, s{sA2B}, {WS_A2}")
        a(f"s_lshl4_add_u32 s{sT0}, s{sT0}, s{sG}\ns_lshl1_add_u32 s{sT0}, s{sT0}, s{sC}\ns_lshl_b32 s{sFL}, s{sT0}, 7\ns_add_u32 s{sFL}, s{sFL}, {WS_FLAG}")
        a(f"v_add_u32 v{vL16B}, {A2_RT}, v{vL16}")
        self.table_addr(); self.consts()
        if self.o.get('pst'): self.stamp(41)
        self.c_stats(vm)
        self.flag_regs()
        if self.o['cprio']: a(f"s_setprio {self.o['cprio']}")

    def c_read_list(self, n):
        t, kk = n // 4, n % 4; slot = t % 3; b = n & 1
        def x(a_): return f"ds_read_b128 v[{XF+8*b+4*a_}:{XF+8*b+4*a_+3}], v{vXA+kk} offset:{slot*16384 + 4096*a_}"
        def w(u, rd):
            r = WF + 12*b + 4*u + 2*rd
            return f"ds_read_b64_tr_b16 v[{r}:{r+1}], v{vWA+slot} offset:{6144*kk + 1024*u + 512*rd}"
        return [x(0), w(0, 0), w(0, 1), x(1), w(1, 0), w(1, 1), w(2, 0), w(2, 1)]
    def c_mfma(self, n, u, t_, att):
        b = n & 1
        x = f"v[{XF+8*b+4*t_}:{XF+8*b+4*t_+3}]"; w = f"v[{WF+12*b+4*u}:{WF+12*b+4*u+3}]"
        A = ACC + 16*(2*u + t_); acc = f"v[{A}:{A+15}]"; c = "0" if n == 0 else acc
        if att and u > 0: return f"v_mfma_f32_32x32x16_bf16 {acc}, {x}, {w}, {c}"
        return f"v_mfma_f32_32x32x16_bf16 {acc}, {w}, {x}, {c}"

    def c_kloop(self, att):
        a = self.a
        a("s_waitcnt lgkmcnt(0)\ns_barrier")
        self.stamp(2)
        for r in self.c_read_list(0): a(r)
        for n in range(32):
            boundary = (n % 4 == 3)
            if boundary:
                a("s_waitcnt lgkmcnt(0)")
                if n < 31:
                    a("s_barrier")
                    if self.o['kstamps'] == 2: self.stamp(3 + n // 4)
                else:
                    a(f"s_lshl_b32 s{sT0}, s{sW}, 2\ns_add_u32 s{sT0}, s{sT0}, {L_FL}\nv_mov_b32 v14, s{sT0}\nv_mov_b32 v15, 1\nds_write_b32 v14, v15")
            R = self.c_read_list(n + 1) if n < 31 else (self.att_pre if att else self.mlp_pre)()
            M = [self.c_mfma(n, u, t_, att) for u in range(3) for t_ in range(2)]
            place = self.o.get('rplace', [2, 2, 2, 2, 0, 0]) if n < 31 else [3, 3, 3, 3, 3, 3]
            need = {0: 3, 1: 4, 2: 6, 4: 8}
            issued = 0
            for k in range(6):
                if not boundary and k in need: a(f"s_waitcnt lgkmcnt({min(15, 8 - need[k] + issued)})")
                a(M[k])
                if R[0]:
                    for r in R[issued:issued + place[k]]: a(r)
                    issued += place[k]
        self.stamp(10)

    def consts(self):
        T = CT
        self.a(f"v_mov_b32 v{T}, 2.0\nv_mov_b32 v{T+2}, {f2u(-2*LN2):#x}\nv_mov_b32 v{T+4}, {f2u(LN2):#x}\nv_mov_b32 v{T+6}, 1.0\nv_mov_b32 v{T+8}, {f2u(1e-6):#x}")
    def table_list(self, dst, vaddr, off):
        return [f"ds_read_b128 v[{dst+4*q}:{dst+4*q+3}], v{vaddr} offset:{off + 32*q}" for q in range(4)]
    def table_reads(self, dst, vaddr, off):
        for r in self.table_list(dst, vaddr, off): self.a(r)
    def table_addr(self):
        a = self.a; T = CT
        a(f"v_lshrrev_b32 v{T+18}, 5, v{vL}\ns_lshl_b32 s{sT0}, s{sR2}, 8\ns_add_u32 s{sT0}, s{sT0}, {L_MT}\nv_lshl_add_u32 v{T+19}, v{T+18}, 4, s{sT0}")
        a(f"v_and_b32 v{T+22}, 31, v{vL}\nv_lshl_add_u32 v{T+23}, v{T+22}, 2, s{sT0}")
        a(f"s_lshl_b32 s{sT0}, s{sC}, 7\ns_add_u32 s{sT0}, s{sT0}, {L_TAB}\nv_lshl_add_u32 v{T+18}, v{T+18}, 4, s{sT0}\nv_lshl_add_u32 v{T+22}, v{T+22}, 2, s{sT0}")
    def lane_stats_list(self):
        T = CT
        return [f"ds_read_b32 v{T+10}, v{T+23}", f"ds_read_b32 v{T+12}, v{T+23} offset:512", f"ds_read_b32 v{T+14}, v{T+23} offset:128", f"ds_read_b32 v{T+16}, v{T+23} offset:640"]
    def flag(self, vm, soff, imm):
        a = self.a; T = CT
        off = f" offset:{imm}" if imm else ""
        a(f"buffer_store_dword v{T+21}, v{T+20}, s[{S_WS}:{S_WS+3}], s{soff} offen{off} sc1"); vm.issue("flag")
    def release(self, off=64):
        a = self.a
        a(f"s_lshl_b32 s{sT0}, s{sW}, 2\ns_add_u32 s{sT0}, s{sT0}, {L_FL + off}\nv_mov_b32 v14, s{sT0}\nv_mov_b32 v15, 1\nds_write_b32 v14, v15")
    def flag_regs(self):
        self.lane0(CT + 20); self.a(f"v_mov_b32 v{CT+21}, s{sTAG}")

    def mlp_pre(self):
        T = CT
        return self.lane_stats_list() + self.table_list(156, T+18, L_CS - L_TAB) + self.table_list(172, T+18, L_BT - L_TAB)
    def att_pre(self):
        T = CT
        return ([f"ds_read_b32 v8, v{T+22} offset:256", f"ds_read_b32 v10, v{T+22} offset:512"] + self.table_list(156, T+19, 0) + self.table_list(172, T+19, 512)
                + self.table_list(188, T+19, 128) + self.table_list(204, T+19, 640))
    def c_epi_mlp(self, vm):
        a = self.a; T = CT; P = range(0, 16, 2)
        CS, BB, CP, U = [156, 116], [172, 132], 188, 204
        a(f"s_add_u32 s{sT1}, s{sC0}, s{sC}\ns_lshl_b32 s{sT1}, s{sT1}, 11\ns_add_u32 s{sA2B}, s{sA2B}, s{sT1}")
        a("s_waitcnt lgkmcnt(8)")
        a(f"v_mul_f32 v{T+10}, v{T+10}, v{T+12}\nv_mul_f32 v{T+14}, v{T+14}, v{T+16}")
        for u in range(3):
            cs, bb = CS[u & 1], BB[u & 1]
            if u == 2:
                a(f"s_cmp_ge_u32 s{sG}, 11\ns_cselect_b32 s{sT0}, s{sC}, 0\ns_cmp_eq_u32 s{sT0}, 1\ns_cbranch_scc1 L_mlp_short")
            a("s_waitcnt lgkmcnt(0)")
            if u < 2:
                self.table_reads(CS[(u+1) & 1], T+18, L_CS - L_TAB + 256*(u+1)); self.table_reads(BB[(u+1) & 1], T+18, L_BT - L_TAB + 256*(u+1))
            for t in range(2):
                A = ACC + 16*(2*u + t); mr, rs = T + 10 + 4*t, T + 12 + 4*t
                self.al()
                for k in P: a(f"v_pk_fma_f32 v[{CP+k}:{CP+k+1}], v[{mr}:{mr+1}], v[{cs+k}:{cs+k+1}], v[{bb+k}:{bb+k+1}] op_sel_hi:[0,1,1] neg_lo:[1,0,0] neg_hi:[1,0,0]")
                for k in P: a(f"v_pk_fma_f32 v[{A+k}:{A+k+1}], v[{A+k}:{A+k+1}], v[{rs}:{rs+1}], v[{CP+k}:{CP+k+1}] op_sel_hi:[1,0,1]")
                for k in range(16): a(f"v_exp_f32 v{U+k}, v{A+k}")
                for k in P: a(f"v_pk_add_f32 v[{CP+k}:{CP+k+1}], v[{U+k}:{U+k+1}], v[{T}:{T+1}] op_sel_hi:[1,0]")
                for k in P: a(f"v_pk_fma_f32 v[{U+k}:{U+k+1}], v[{U+k}:{U+k+1}], v[{CP+k}:{CP+k+1}], v[{T}:{T+1}] op_sel_hi:[1,1,0]")
                for k in range(16): a(f"v_rcp_f32 v{U+k}, v{U+k}")
                for k in P: a(f"v_pk_fma_f32 v[{U+k}:{U+k+1}], v[{U+k}:{U+k+1}], v[{T+2}:{T+3}], v[{T+4}:{T+5}] op_sel_hi:[1,0,0]")
                for k in P: a(f"v_pk_mul_f32 v[{U+k}:{U+k+1}], v[{U+k}:{U+k+1}], v[{A+k}:{A+k+1}]")
                for k in P: a(f"v_cvt_pk_bf16_f32 v{A+k//2}, v{U+k}, v{U+k+1}")
                if t == 0: a(f"s_add_u32 s{sT0}, s{sA2B}, {4096*u}")
                vo = vL16B if t else vL16
                sc = self.o.get('actsc', 'sc1')
                if sc == 'none': continue
                a(f"buffer_store_dwordx4 v[{A}:{A+3}], v{vo}, s[{S_WS}:{S_WS+3}], s{sT0} offen {sc}"); vm.issue(f"act{u}")
                a(f"buffer_store_dwordx4 v[{A+4}:{A+7}], v{vo}, s[{S_WS}:{S_WS+3}], s{sT0} offen offset:1024 {sc}"); vm.issue(f"act{u}")
                if self.o['classes'] and u == 2 and t == self.o.get('fa_at', 0):
                    vm.wait("act1"); self.flag(vm, sFL, 0)
            if u == 1 and self.o.get('rel_mlp', 0) == -1: self.release()
            self.stamp(11 + u)
        if self.o['classes']:
            if self.o.get('rel_mlp', 0) == 0: self.release()
            vm.wait("act2"); self.flag(vm, sFL, 4)
            if self.o.get('rel_mlp', 0) == 1: self.release()
            if self.o.get('hold2'): self.release(112)
            a("s_branch L_cdone")
        a.label("L_mlp_short")
        if self.o.get('rel_mlp', 0) == 0: self.release()
        a("s_waitcnt vmcnt(0)"); self.flag(VM(a), sFL, 0)
        if self.o.get('rel_mlp', 0) == 1: self.release()
        if self.o.get('hold2'): self.release(112)
        a("s_branch L_cdone")

    def phi(self, A, E, dst):
        a = self.a; T = CT; P = range(0, 16, 2)
        self.al()
        for k in range(16): a(f"v_exp_f32 v{E+k}, v{A+k}")
        for k in P: a(f"v_pk_fma_f32 v[{A+k}:{A+k+1}], v[{A+k}:{A+k+1}], v[{T+4}:{T+5}], v[{T+6}:{T+7}] op_sel_hi:[1,0,0]")
        for k in range(16): a(f"v_med3_f32 v{E+k}, v{A+k}, v{E+k}, 1.0")
        for k in P: a(f"v_pk_add_f32 v[{E+k}:{E+k+1}], v[{E+k}:{E+k+1}], v[{T+8}:{T+9}] op_sel_hi:[1,0]")
        for k in P: a(f"v_cvt_pk_bf16_f32 v{dst+k//2}, v{E+k}, v{E+k+1}")

    def kv_write(self, S, flagoff):
        a = self.a
        for k in range(3): a(f"ds_write_b128 v2, v[{S+4*k}:{S+4*k+3}] offset:{1024*k}")
        a(f"v_mov_b32 v7, 1\ns_waitcnt lgkmcnt(0)\nds_write_b32 v6, v7 offset:{flagoff}")
    def kv_add(self, S, D):
        a = self.a
        for k in range(3): a(f"ds_read_b128 v[{D+4*k}:{D+4*k+3}], v4 offset:{1024*k}")
        a("s_waitcnt lgkmcnt(0)")
        for k in range(0, 12, 2): a(f"v_pk_add_f32 v[{S+k}:{S+k+1}], v[{S+k}:{S+k+1}], v[{D+k}:{D+k+1}]")

    def c_epi_att(self, vm):
        a = self.a; T = CT; P = range(0, 16, 2)
        MT, RT, U, D0, D1 = [156, 188], [172, 204], 116, 132, 156
        Q = [ACC, ACC + 16]; K = [ACC + 32, ACC + 48]; V = [ACC + 64, ACC + 80]
        msk = f"s[{sMASK}:{sMASK+1}]"
        if self.o.get('rel_att', 1) == -1: self.release()
        a("s_nop 3")
        for t in range(2):
            a(f"s_waitcnt lgkmcnt({8 - 8*t})")
            self.al()
            for (A, cs) in ((K[t], 8), (V[t], 10)):
                for k in P: a(f"v_pk_fma_f32 v[{A+k}:{A+k+1}], v[{MT[t]+k}:{MT[t]+k+1}], v[{cs}:{cs+1}], v[{A+k}:{A+k+1}] op_sel_hi:[1,0,1] neg_lo:[1,0,0] neg_hi:[1,0,0]")
                for k in P: a(f"v_pk_mul_f32 v[{A+k}:{A+k+1}], v[{A+k}:{A+k+1}], v[{RT[t]+k}:{RT[t]+k+1}]")
        self.table_reads(RT[1], T+18, L_CS - L_TAB)
        for r in self.lane_stats_list(): a(r)
        if self.o.get('cst'): self.stamp(21)
        a(f"v_mov_b32 v12, 0x3f803f80")
        for t in range(2):
            self.phi(K[t], U, K[t])
            for k in P: a(f"v_cvt_pk_bf16_f32 v{V[t]+k//2}, v{V[t]+k}, v{V[t]+k+1}")
            for k in range(8): a(f"v_cndmask_b32 v{K[t]+8+k}, v12, v{V[t]+k}, {msk}")
            for k in range(8): a(f"v_cndmask_b32 v{V[t]+8+k}, v{V[t]+k}, v12, {msk}")
        a("s_nop 1")
        first = True
        for t in range(2):
            for hf in range(2):
                for (D, B) in ((D0, K[t] + 8), (D1, V[t] + 8)):
                    c = "0" if (t == 0 and hf == 0) else f"v[{D}:{D+15}]"
                    a(f"v_mfma_f32_32x32x16_bf16 v[{D}:{D+15}], v[{K[t]+4*hf}:{K[t]+4*hf+3}], v[{B+4*hf}:{B+4*hf+3}], {c}")
        if self.o.get('cst'): self.stamp(22)
        if self.o.get('rel_att', 1) == -2: self.release()
        a(f"s_lshl1_add_u32 s{sT0}, s{sC}, s{sR2}\ns_xor_b32 s{sT1}, s{sT0}, 1")
        a(f"s_mul_i32 s{sT2}, s{sT0}, 3072\ns_add_u32 s{sT2}, s{sT2}, {L_KV}\nv_add_u32 v2, s{sT2}, v{vL16}")
        a(f"s_mul_i32 s{sT2}, s{sT1}, 3072\ns_add_u32 s{sT2}, s{sT2}, {L_KV}\nv_add_u32 v4, s{sT2}, v{vL16}")
        a(f"s_lshl1_add_u32 s{sT0}, s{sG}, s{sC}\ns_lshl_b32 s{sKB}, s{sT0}, 15\ns_lshl_b32 s{sT0}, s{sR2}, 10\ns_add_u32 s{sKB}, s{sKB}, s{sT0}\ns_add_u32 s{sKB}, s{sKB}, {WS_KVP}")
        a(f"s_mov_b32 s{sEX}, 0x55555555\ns_mov_b32 s{sEX+1}, 0x55555555\ns_sub_u32 s66, 0, s{sR2}\ns_mov_b32 s67, s66")
        a(f"s_lshl_b32 s{sT2}, s{sRB}, 11\ns_add_u32 s{sT2}, s{sT2}, s{sKB}")
        even = f"s[{sEX}:{sEX+1}]"; upper = "s[66:67]"
        S = K[0]; Z = K[1]; X = V[0]; Y = V[1]
        a(f"v_mov_b32 v{X+3}, s{sTAG}\nv_mov_b32 v{X+7}, s{sTAG}\nv_mov_b32 v{X+11}, s{sTAG}")
        self.al()
        for k in range(8): a(f"v_cndmask_b32 v{S+k}, v{D1+8+k}, v{D0+k}, {msk}")
        for k in range(8): a(f"v_cndmask_b32 v{Z+k}, v{D0+k}, v{D1+8+k}, {msk}")
        for k in range(4): a(f"v_cndmask_b32 v{S+8+k}, v{Z+4+k}, v{Z+k}, {even}")
        for k in range(6): a(f"v_cndmask_b32 v{X+k+k//3}, v{S+6+k}, v{S+k}, {upper}")
        a(f"ds_write_b128 v2, v[{X}:{X+3}]\nds_write_b128 v2, v[{X+4}:{X+7}] offset:1024")
        for k in range(6): a(f"v_cndmask_b32 v{Z+k}, v{S+k}, v{S+6+k}, {upper}")
        if self.o.get('cst'): self.stamp(23)
        a(f"s_mov_b32 s{sSPIN}, 0")
        a.label("L_x1")
        a(f"ds_read_b128 v[{Y}:{Y+3}], v4\nds_read_b128 v[{Y+4}:{Y+7}], v4 offset:1024\ns_add_u32 s{sSPIN}, s{sSPIN}, 1\ns_waitcnt lgkmcnt(0)")
        a(f"v_cmp_ne_u32 vcc, s{sTAG}, v{Y+3}\nv_cmp_ne_u32 s[68:69], s{sTAG}, v{Y+7}\ns_cmp_gt_u32 s{sSPIN}, 0x40000\ns_cbranch_scc1 L_x1d\ns_or_b64 vcc, vcc, s[68:69]\ns_cbranch_vccnz L_x1")
        a.label("L_x1d")
        for k in range(6): a(f"v_add_f32 v{Z+k}, v{Z+k}, v{Y+k+k//3}")
        for k in range(3): a(f"v_cvt_pk_bf16_f32 v{X+8+k}, v{Z+2*k}, v{Z+2*k+1}")
        a(f"buffer_store_dwordx4 v[{X+8}:{X+11}], v{vL16}, s[{S_WS}:{S_WS+3}], s{sT2} offen sc1")
        self.stamp(11)
        if self.o.get('rel_att', 1) == 0: self.release()
        QCS = RT[1]
        self.al()
        for t in range(2):
            m, rs = T + 10 + 4*t, T + 12 + 4*t
            for k in P: a(f"v_pk_fma_f32 v[{Q[t]+k}:{Q[t]+k+1}], v[{m}:{m+1}], v[{QCS+k}:{QCS+k+1}], v[{Q[t]+k}:{Q[t]+k+1}] op_sel_hi:[0,1,1] neg_lo:[1,0,0] neg_hi:[1,0,0]")
            for k in P: a(f"v_pk_mul_f32 v[{Q[t]+k}:{Q[t]+k+1}], v[{Q[t]+k}:{Q[t]+k+1}], v[{rs}:{rs+1}] op_sel_hi:[1,0]")
        for t in range(2): self.phi(Q[t], U, Q[t])
        if self.o.get('rel_att', 1) == 1: self.release()
        if self.o.get('cst'): self.stamp(24)
        G = 132
        a(f"s_mov_b32 s{sT5}, 0\nv_and_b32 v7, 15, v{vL}\nv_lshlrev_b32 v7, 11, v7")
        if self.o.get('pollwait'):
            a(f"v_and_b32 v11, 3, v{vL}\nv_lshlrev_b32 v11, 2, v11\nv_add_u32 v11, {L_FL}, v11")
            self.spin_lds("b2d", 11, 9, 96)
        if self.o.get('optim', 1): a("s_branch L_kv_go")
        a.label("L_kv_gather")
        self.spin_global("kv", 7, 9, sKB, 12)
        a.label("L_kv_go")
        if self.o.get('cst'): self.stamp(28)
        vg = VM(a)
        for p in range(16):
            if p % 2 == 0: a(f"s_lshl1_add_u32 s{sT2}, s{sRB}, {p}\ns_and_b32 s{sT2}, s{sT2}, 14\ns_lshl_b32 s{sT2}, s{sT2}, 11\ns_add_u32 s{sT2}, s{sT2}, s{sKB}")
            off = " offset:2048" if p % 2 else ""
            a(f"buffer_load_dwordx4 v[{G+4*p}:{G+4*p+3}], v{vL16}, s[{S_WS}:{S_WS+3}], s{sT2} offen{off} sc1"); vg.issue(f"kvg{p}")
        if self.o.get('rel_att', 1) == 3: self.release()
        if self.o.get('hold2') == 1: self.release(112)
        for p in range(0, 16, 2):
            vg.wait(f"kvg{p+1}")
            for h2 in range(2):
                d = S + 6*h2 if p == 0 else U + 6*h2; src = G + 4*(p + h2)
                for k in range(3): a(f"v_lshlrev_b32 v{d+2*k}, 16, v{src+k}\nv_and_b32 v{d+2*k+1}, 0xffff0000, v{src+k}")
            if p:
                for k in range(0, 12, 2): a(f"v_pk_add_f32 v[{S+k}:{S+k+1}], v[{S+k}:{S+k+1}], v[{U+k}:{U+k+1}]")
                a(f"v_bfi_b32 v3, v{G+4*p+3}, v{G+4*p+7}, 0\nv_or3_b32 v5, v5, v{G+4*p+3}, v{G+4*p+7}\nv_and_b32 v9, v9, v3")
            else:
                a(f"v_and_b32 v9, v{G+3}, v{G+7}\nv_or_b32 v5, v{G+3}, v{G+7}")
        if self.o.get('cst'): self.stamp(25); a(f"v_writelane_b32 v252, s{sT5}, 30")
        a(f"v_cmp_ne_u32 vcc, s{sTAG}, v9\nv_cmp_ne_u32 s[68:69], s{sTAG}, v5\ns_nop 1\ns_or_b64 vcc, vcc, s[68:69]")
        a(f"s_cbranch_vccz L_kv_ok\ns_add_u32 s{sT5}, s{sT5}, 1\ns_cmp_gt_u32 s{sT5}, 64\ns_cbranch_scc0 L_kv_gather")
        a.label("L_kv_ok")
        vm.drained()
        if self.o.get('hold2') == 2: self.release(112)
        self.stamp(12)
        for k in range(0, 6, 2): a(f"v_pk_add_f32 v[{S+k}:{S+k+1}], v[{S+k}:{S+k+1}], v[{S+6+k}:{S+7+k}]")
        for k in range(3): a(f"v_cvt_pk_bf16_f32 v{X+k}, v{S+2*k}, v{S+2*k+1}")
        a(f"ds_write_b128 v2, v[{X}:{X+3}] offset:2048\ns_mov_b32 s{sSPIN}, 0")
        a.label("L_x2")
        a(f"ds_read_b128 v[{Y}:{Y+3}], v4 offset:2048\ns_add_u32 s{sSPIN}, s{sSPIN}, 1\ns_waitcnt lgkmcnt(0)")
        a(f"v_cmp_ne_u32 vcc, s{sTAG}, v{Y+3}\ns_cmp_gt_u32 s{sSPIN}, 0x40000\ns_cbranch_scc1 L_x2d\ns_cbranch_vccnz L_x2")
        a.label("L_x2d")
        if self.o.get('cst'): self.stamp(26)
        W = K[1]
        for k in range(3): a(f"v_cndmask_b32 v{W+k}, v{X+k}, v{Y+k}, {upper}\nv_cndmask_b32 v{W+3+k}, v{Y+k}, v{X+k}, {upper}")
        a("s_nop 1")
        for k in range(2): a(f"v_mov_b32_dpp v{W+6+k}, v{W+4+k} quad_perm:[1,0,3,2] row_mask:0xf bank_mask:0xf")
        for k in range(2): a(f"v_cndmask_b32 v{S+k}, v{W+6+k}, v{W+4+k}, {even}\nv_cndmask_b32 v{S+2+k}, v{W+4+k}, v{W+6+k}, {even}")
        for k in range(4): a(f"v_cndmask_b32 v{W+8+k}, v{S+k}, v{W+k}, {msk}")
        for k in range(4): a(f"v_cndmask_b32 v{W+12+k}, v{W+k}, v{S+k}, {msk}")
        O = [[132, 148], [164, 180]]
        a("s_nop 1")
        for t in range(2):
            for hd in range(2):
                a(f"v_mfma_f32_32x32x16_bf16 v[{O[t][hd]}:{O[t][hd]+15}], v[{W+8+4*hd}:{W+11+4*hd}], v[{Q[t]+4*hd}:{Q[t]+4*hd+3}], 0")
        a(f"s_lshl1_add_u32 s{sT0}, s{sG}, s{sC}\ns_lshl_b32 s{sT0}, s{sT0}, 11\ns_add_u32 s{sT0}, s{sT0}, {88*1024}\ns_add_u32 s{sT0}, s{sT0}, s{sA2B}")
        a("s_nop 7")
        R = U
        for t in range(2):
            a(f"v_add_f32 v{R+4*t}, v{T+8}, v{O[t][0]+8}\nv_add_f32 v{R+4*t+2}, v{T+8}, v{O[t][1]}")
        for k in range(4): a(f"v_rcp_f32 v{R+2*k}, v{R+2*k}")
        for k in range(4): a(f"v_mul_f32 v{R+2*k}, v{T+4}, v{R+2*k}")
        for t in range(2):
            for hd in range(2):
                N = O[t][hd] + 8*hd; r = R + 4*t + 2*hd
                for k in range(0, 8, 2): a(f"v_pk_mul_f32 v[{N+k}:{N+k+1}], v[{N+k}:{N+k+1}], v[{r}:{r+1}] op_sel_hi:[1,0]")
                d = V[0] + 8*t + 4*hd
                for k in range(0, 8, 2): a(f"v_cvt_pk_bf16_f32 v{d+k//2}, v{N+k}, v{N+k+1}")
                vo = vL16B if t else vL16
                off = " offset:1024" if hd else ""
                a(f"buffer_store_dwordx4 v[{d}:{d+3}], v{vo}, s[{S_WS}:{S_WS+3}], s{sT0} offen{off} sc1"); vm.issue("o")
        if self.o.get('cst'): self.stamp(27)
        vm.wait("o")
        self.flag(vm, sFL, 0)
        self.stamp(13)

    def c_main(self):
        a = self.a; vm = VM(a)
        a.label("L_C")
        if self.o['pf']: vm.issue("codepf")
        self.c_prologue(vm)
        self.stamp(1)
        a(f"s_cmp_lt_u32 s{sG}, 8\ns_cbranch_scc1 L_Catt")
        self.c_kloop(False); self.c_epi_mlp(vm.copy())
        a.label("L_Catt")
        self.c_kloop(True); self.c_epi_att(vm.copy())
        a(f"s_cmp_lg_u32 s2, 0\ns_cbranch_scc1 L_cdone\ns_cmp_lg_u32 s{sW}, 0\ns_cbranch_scc1 L_cdone")
        a(f"v_lshlrev_b32 v7, 10, v{vL}")
        for k in range(4):
            a(f"s_mov_b32 s{sT0}, {WS_CSP + 65536*k}")
            self.spin_global(f"ep{k}", 7, 9, sT0, 12)
        a(f"s_mov_b32 s{sT0}, {WS_EPOCH}")
        self.flag(VM(a), sT0, 0)
        a.label("L_cdone")
        self.stamp(14)
        self.final_addr(VM(a), 14, 15)

    def final(self):
        a = self.a
        a.label("L_final")
        a("s_waitcnt vmcnt(0) lgkmcnt(0)")
        if self.o.get('tst'): self.stamp(46)
        a("s_barrier")
        if self.o.get('tst'): self.stamp(47)
        R, X = 20, 60
        a(f"v_xor_b32 v19, 16, v{vRR}")
        for kq in range(4):
            a(f"ds_read_b128 v[{R+8*kq}:{R+8*kq+3}], v{vRR} offset:{2048*kq}\nds_read_b128 v[{R+8*kq+4}:{R+8*kq+7}], v19 offset:{2048*kq}")
        for k in range(4):
            a(f"v_lshlrev_b32 v{X+2*k}, 16, v{XRES+k}\nv_and_b32 v{X+2*k+1}, 0xffff0000, v{XRES+k}")
        for kq in range(4):
            a(f"s_waitcnt lgkmcnt({6-2*kq})")
            for k in range(0, 8, 2): a(f"v_pk_add_f32 v[{X+k}:{X+k+1}], v[{X+k}:{X+k+1}], v[{R+8*kq+k}:{R+8*kq+k+1}]")
        for k in range(0, 8, 2): a(f"v_cvt_pk_bf16_f32 v{R+k//2}, v{X+k}, v{X+k+1}")
        a(f"buffer_store_dwordx4 v[{R}:{R+3}], v{vXO}, s[{S_OUT}:{S_OUT+3}], s{sRES} offen {self.o.get('outsc', '')}")
        if self.stamps:
            if self.o.get('tst'): self.stamp(48)
            a("s_waitcnt vmcnt(0)")
            self.stamp(17); self.rstamp(19)
            a(f"v_writelane_b32 v252, s96, 0\nv_writelane_b32 v252, s96, 18")
            a(f"s_lshl_b32 s{sT0}, s2, 3\ns_add_u32 s{sT0}, s{sT0}, s{sW}\ns_lshl_b32 s{sT0}, s{sT0}, 8\ns_add_u32 s{sT0}, s{sT0}, {WS_STAMP}")
            a(f"v_lshlrev_b32 v14, 2, v{vL}\nbuffer_store_dword v252, v14, s[{S_WS}:{S_WS+3}], s{sT0} offen")

    def build(self):
        a = self.a
        a.label("L_code0")
        self.entry()
        self.l_main()
        self.c_main()
        self.final()
        if self.o.get('probe'):
            wg, w, k = self.o['probe']
            a(f"s_cmp_lg_u32 s2, {wg}\ns_cbranch_scc1 L_end\ns_cmp_lg_u32 s{sW}, {w}\ns_cbranch_scc1 L_end")
            a(f"v_readlane_b32 s{sT1}, v252, {k}\ns_nop 3\ns_add_u32 s{sT1}, s{sT1}, 2500\ns_mov_b32 s{sSPIN}, 0")
            a.label("L_hold")
            a(f"s_memrealtime s[{sSTAMP}:{sSTAMP+1}]\ns_add_u32 s{sSPIN}, s{sSPIN}, 1\ns_waitcnt lgkmcnt(0)\ns_sub_u32 s{sT0}, s{sSTAMP}, s{sT1}")
            a(f"s_cmp_gt_u32 s{sSPIN}, 100000\ns_cbranch_scc1 L_end\ns_cmp_lt_i32 s{sT0}, 0\ns_cbranch_scc1 L_hold")
        a.label("L_end")
        a("s_endpgm")
        a.label("L_codeend")
        return single(a.text(), 256, 512, LDS_BYTES, 256, 102, 256)

if __name__ == "__main__":
    out = sys.argv[1] if len(sys.argv) > 1 else "k.s"
    stamps = "stamps" in sys.argv[2:]
    opts = {}
    for kv in sys.argv[2:]:
        if "=" in kv:
            k, v = kv.split("="); opts[k] = eval(v)
    open(out, "w").write(Gen(stamps, opts).build())
```

```python
import sys, math, struct
from asmlib import *

def f2u(x): return struct.unpack("<I", struct.pack("<f", x))[0]
LOG2E = 1.4426950408889634
LN2 = 0.6931471805599453

WS_EPOCH = 0
WS_STATS = 0x1000
WS_CSP   = 0x10000
WS_KVP   = 0x60000
WS_FLAG  = 0x100000
WS_KVF   = 0x140000
WS_A2    = 0x200000
A2_RT    = 120 * 1024
WS_SIZE  = 0x1000000
WS_STAMP = 0xC00000
OOB      = 0x40000000

L_X    = 0
L_W    = 49152
L_MISC = 147456
L_KV   = L_MISC
L_SLAB = 122880
L_TAB  = L_MISC + 12288
L_CS   = L_TAB
L_BT   = L_CS + 768
L_MT   = L_BT + 768
L_RT   = L_MT + 512
L_FL   = L_RT + 512
LDS_BYTES = 163840

ROUND_OF_STEP = [15, 16, 17, 4, 5, 12, 13, 14, 0, 1, 6, 7, 8, 2, 3, 9, 10, 11]
NREG = 12
ARING = 6
def round_of(step):
    return ROUND_OF_STEP[step] if step < 18 else ROUND_OF_STEP[step - 18]

S_X, S_W, S_W2, S_WO, S_WS, S_OUT, S_B1 = 24, 28, 32, 36, 40, 44, 48
sW, sLW = 52, 53
sR2, sC = 53, 54
sRB, sG, sPH = 55, 56, 57
sCT, sRT, sROT = 58, 59, 60
sTAG = 61
sXO, sWOF, sWSTEP, sWEND = 62, 63, 64, 65
sXB, sLX, sLWB, sWD = 66, 67, 68, 69
sWO1, sWO2 = 70, 71
sB2L, sB2C, sB2C2, sA2B = 72, 73, 74, 75
sC0, sPITCH, sE = 76, 83, 84
sT0, sT1, sT2, sT3, sT4, sT5 = 77, 78, 79, 80, 81, 82
sSPIN = 85
sEX = 86
sMASK = 62
sFL, sKB = 64, 65
sSW = 88
sB2C3 = 84
sRES = 3
sSTAMP = 92
SP = list(range(4, 24)) + [48, 49, 50, 51, 88, 89, 90, 91, 100, 101]

vL, vL16 = 0, 1
vRR, vXO = 17, 18
XRES = 244
vX, vWv, vB2D, vB2A = 2, 6, 10, 12
vB2AL = [12, 13, 14, 15, 16, 19]
ACC2, AR, BT, B2R = 20, 84, 132, 148
vL16B = 248
vRW = 2
vXA, vWA, vST = 2, 4, 16
ACC, FR = 20, 116
CT = 220

class VM:
    def __init__(self, a): self.a = a; self.q = []
    def issue(self, tag): self.q.append(tag)
    def count(self, *tags):
        idx = max((i for i, t in enumerate(self.q) if t in tags), default=-1)
        return len(self.q) - 1 - idx if idx >= 0 else None
    def wait(self, *tags, lgkm=None):
        n = self.count(*tags)
        s = []
        if n is not None:
            assert n <= 63, n
            s.append(f"vmcnt({n})")
            self.q = self.q[len(self.q) - n:] if n else []
        if lgkm is not None: s.append(f"lgkmcnt({lgkm})")
        if s: self.a("s_waitcnt " + " ".join(s))
    def depth(self, n):
        if len(self.q) > n:
            self.a(f"s_waitcnt vmcnt({n})")
            self.q = self.q[len(self.q) - n:] if n else []
    def drained(self): self.q = []
    def copy(self):
        v = VM(self.a); v.q = list(self.q); return v

class Gen:
    def __init__(self, stamps=False, opts=None):
        self.a = Asm(); self.stamps = stamps
        self.o = dict(pf=1, hold=1, map2=0, classes=0, n0=3, spf=0, xloc=1, g3=1, pace=8, rel_mlp=1, rel_att=-2, pollwait=5, hold2=1, kstamps=False, cprio=1, w2pf=5, p0_at=27, rot=8)
        if opts: self.o.update(opts)

    def srd(self, d, p, n):
        self.a(f"s_mov_b32 s{d}, s{p}\ns_mov_b32 s{d+1}, s{p+1}\ns_mov_b32 s{d+2}, {n}\ns_mov_b32 s{d+3}, 0x20000")
    def stamp(self, idx):
        if not self.stamps: return
        self.rstamp(idx)
        if self.o.get('cyc') and idx in self.o['cyc']:
            self.a(f"s_memtime s[{sSTAMP}:{sSTAMP+1}]\ns_waitcnt lgkmcnt(0)\nv_writelane_b32 v252, s{sSTAMP}, {idx + 40}")
    def rstamp(self, idx):
        if not self.stamps: return
        if 'only' in self.o and idx not in self.o['only']: return
        self.a(f"s_memrealtime s[{sSTAMP}:{sSTAMP+1}]\ns_waitcnt lgkmcnt(0)\nv_writelane_b32 v252, s{sSTAMP}, {idx}")
    def al(self):
        if self.o.get('align', 1): self.a(".p2align 3")
    def lane0(self, v):
        self.a(f"v_cmp_eq_u32 vcc, 0, v{vL}\nv_mov_b32 v{v}, {OOB}\ns_nop 0\nv_cndmask_b32 v{v}, v{v}, 0, vcc")
    def tag(self):
        self.a(f"s_mul_i32 s{sTAG}, s{sTAG}, 0x9e3779b1\ns_add_u32 s{sTAG}, s{sTAG}, 0x7f4a7c15")
    def decode2(self):
        a = self.a
        if self.o['map2'] == 0:
            a(f"s_and_b32 s{sT0}, s2, 7\ns_lshr_b32 s{sT1}, s2, 3\ns_and_b32 s{sCT}, s{sT1}, 7\ns_lshr_b32 s{sT1}, s{sT1}, 3")
            if self.o.get('ctmap', 1):
                a(f"s_xor_b32 s{sT1}, s{sT1}, 2\ns_and_b32 s{sROT}, s{sCT}, 1\ns_lshl1_add_u32 s{sROT}, s{sT1}, s{sROT}\ns_lshr_b32 s{sT1}, s{sCT}, 1\ns_mov_b32 s{sCT}, s{sROT}")
            if self.o['xloc']: a(f"s_lshr_b32 s{sRT}, s{sT0}, 1\ns_and_b32 s{sT0}, s{sT0}, 1\ns_lshl2_add_u32 s{sT0}, s{sT0}, s{sRT}")
            a(f"s_lshl2_add_u32 s{sRT}, s{sT0}, s{sT1}\ns_lshl1_add_u32 s{sROT}, s{sT1}, s{sCT}")
        else:
            a(f"s_and_b32 s{sT0}, s2, 1\ns_bfe_u32 s{sT1}, s2, 0x20003\ns_lshl2_add_u32 s{sCT}, s{sT0}, s{sT1}")
            a(f"s_bfe_u32 s{sT0}, s2, 0x20001\ns_lshr_b32 s{sROT}, s2, 5\ns_lshl3_add_u32 s{sRT}, s{sT0}, s{sROT}\ns_lshl1_add_u32 s{sROT}, s{sT1}, s{sROT}")
    def final_addr(self, vm, t0, t1):
        a = self.a
        a(f"v_lshrrev_b32 v{t0}, 3, v{vL}\nv_and_b32 v{t1}, 7, v{vL}\nv_lshlrev_b32 v{vXO}, 10, v{t0}\nv_lshl_add_u32 v{vXO}, v{t1}, 4, v{vXO}")
        a(f"s_lshl3_add_u32 s{sT0}, s{sRT}, s{sW}\ns_lshl_b32 s{sT0}, s{sT0}, 13\ns_lshl_b32 s{sT1}, s{sCT}, 7\ns_add_u32 s{sRES}, s{sT0}, s{sT1}")
        if vm is not None: self.xres(vm)
        a(f"v_lshlrev_b32 v{t1}, 1, v{t1}\nv_xor_b32 v{t1}, v{t1}, v{t0}\nv_lshlrev_b32 v{t1}, 4, v{t1}\nv_lshl_add_u32 v{vRR}, v{t0}, 8, v{t1}")
        a(f"s_lshl_b32 s{sT0}, s{sW}, 13\nv_add_u32 v{vRR}, s{sT0}, v{vRR}")

    def xres(self, vm):
        self.a(f"buffer_load_dwordx4 v[{XRES}:{XRES+3}], v{vXO}, s[{S_X}:{S_X+3}], s{sRES} offen"); vm.issue("xres")
    def spin_global(self, name, vaddr, vtmp, soff, imm=0, srd=S_WS):
        a = self.a
        off = f" offset:{imm}" if imm else ""
        a(f"s_mov_b32 s{sSPIN}, 0")
        a.label(f"L_sp{name}")
        a(f"buffer_load_dword v{vtmp}, v{vaddr}, s[{srd}:{srd+3}], s{soff} offen{off} sc1\ns_add_u32 s{sSPIN}, s{sSPIN}, 1\ns_waitcnt vmcnt(0)")
        a(f"v_cmp_ne_u32 vcc, s{sTAG}, v{vtmp}\ns_cmp_gt_u32 s{sSPIN}, 0x8000\ns_cbranch_scc1 L_sd{name}\ns_cbranch_vccz L_sd{name}\ns_sleep {self.o.get('sleep', 2)}\ns_branch L_sp{name}")
        a.label(f"L_sd{name}")
    def spin_lds(self, name, vaddr, vtmp, off):
        a = self.a
        a(f"s_mov_b32 s{sSPIN}, 0")
        a.label(f"L_sp{name}")
        a(f"ds_read_b32 v{vtmp}, v{vaddr} offset:{off}\ns_add_u32 s{sSPIN}, s{sSPIN}, 1\ns_waitcnt lgkmcnt(0)")
        a(f"v_cmp_ne_u32 vcc, 1, v{vtmp}\ns_cmp_gt_u32 s{sSPIN}, 0x40000\ns_cbranch_scc1 L_sd{name}\ns_cbranch_vccnz L_sp{name}")
        a.label(f"L_sd{name}")

    def entry(self):
        a = self.a
        a("s_cmp_ge_u32 s2, 256\ns_cbranch_scc1 L_end")
        a("s_load_dwordx16 s[4:19], s[0:1], 0\ns_load_dwordx4 s[20:23], s[0:1], 64")
        if self.o['pf']:
            a(f"s_getpc_b64 s[{sT0+1}:{sT0+2}]\ns_bfe_u32 s{sT0}, s2, 0x20003\ns_lshl_b32 s{sT0}, s{sT0}, 13\nv_lshlrev_b32 v2, 4, v0\nv_add_u32 v2, s{sT0}, v2")
            a.label("L_pc")
            a(f"v_min_u32 v2, L_codeend-L_pc, v2\ns_mov_b32 exec_lo, 0x01010101\ns_mov_b32 exec_hi, 0x01010101\nglobal_load_dword v251, v2, s[{sT0+1}:{sT0+2}]\ns_mov_b64 exec, -1")
        if self.stamps:
            a("v_mov_b32 v252, 0\ns_memrealtime s[96:97]")
        a(f"v_lshrrev_b32 v1, 6, v0\nv_and_b32 v{vL}, 63, v0\nv_readfirstlane_b32 s{sW}, v1")
        a(f"s_bfe_u32 s{sT0}, s2, 0x30003\ns_and_b32 s{sT1}, s2, 1\ns_lshl3_add_u32 s{sRB}, s{sT1}, s{sT0}")
        a(f"s_lshr_b32 s{sT1}, s2, 6\ns_bfe_u32 s{sT2}, s2, 0x20001")
        if self.o['g3']: a(f"s_xor_b32 s{sT2}, s{sT2}, 3")
        a(f"s_lshl2_add_u32 s{sG}, s{sT1}, s{sT2}")
        a(f"s_sub_u32 s{sT0}, s{sG}, 8\ns_min_u32 s{sT1}, s{sT0}, 3\ns_mul_i32 s{sC0}, s{sT0}, 5\ns_add_u32 s{sC0}, s{sC0}, s{sT1}")
        a(f"v_lshlrev_b32 v{vL16}, 4, v{vL}")
        a(f"s_cmp_lt_u32 s{sW}, 4\ns_cbranch_scc1 L_C")

    def l_stage(self, vm, t):
        a = self.a; slot = t % 3
        def xpart():
            a(f"s_add_u32 m0, s{sLX}, {L_X + slot*16384}\ns_lshl_b32 s{sXO}, s{sPH}, 7\ns_add_u32 s{sXO}, s{sXO}, s{sXB}")
            for ii in range(4):
                off = f" offset:{1024*ii}" if ii else ""
                a(f"buffer_load_dwordx4 v{vX+ii}, s[{S_X}:{S_X+3}], s{sXO} offen{off} lds"); vm.issue(f"st{t}")
        if t > 0: xpart()
        a(f"s_add_u32 m0, s{sLWB}, {slot*24576}\ns_sub_u32 s{sWO1}, s{sWOF}, s{sWD}\ns_sub_u32 s{sWO2}, s{sWO1}, s{sWD}")
        for rg in range(2):
            if rg: a(f"s_add_u32 m0, s{sLWB}, {slot*24576 + 3072}\ns_nop 0")
            a(f"buffer_load_dwordx4 v{vWv+2*rg}, s[{S_W}:{S_W+3}], s{sWOF} offen lds"); vm.issue(f"st{t}")
            a(f"buffer_load_dwordx4 v{vWv+2*rg}, s[{S_W}:{S_W+3}], s{sWO1} offen offset:1024 lds"); vm.issue(f"st{t}")
            a(f"buffer_load_dwordx4 v{vWv+2*rg+1}, s[{S_W}:{S_W+3}], s{sWO2} offen offset:2048 lds"); vm.issue(f"st{t}" if t or not rg else "st0w")
        if t == 0: xpart()
        if t < 7:
            a(f"s_add_u32 s{sWOF}, s{sWOF}, s{sWSTEP}\ns_add_u32 s{sPH}, s{sPH}, 1\ns_and_b32 s{sPH}, s{sPH}, 7\ns_cselect_b32 s{sT0}, 0, s{sWEND}\ns_sub_u32 s{sWOF}, s{sWOF}, s{sT0}")

    def l_prologue(self, vm):
        a = self.a; T = ACC2
        pm = self.o.get('phmode', 0)
        if pm == 0: a(f"s_bfe_u32 s{sT0}, s2, 0x30003\ns_lshr_b32 s{sT1}, s2, 6\ns_lshl1_add_u32 s{sPH}, s{sT1}, s{sT0}\ns_and_b32 s{sPH}, s{sPH}, 7")
        elif pm == 1: a(f"s_bfe_u32 s{sT0}, s2, 0x30003\ns_bfe_u32 s{sT1}, s2, 0x10006\ns_lshl2_add_u32 s{sPH}, s{sT1}, s{sT0}\ns_and_b32 s{sPH}, s{sPH}, 7")
        elif pm in (2, 3):
            a(f"s_bfe_u32 s{sT0}, s2, 0x30003\ns_bfe_u32 s{sT1}, s2, 0x10006\ns_lshl2_add_u32 s{sPH}, s{sT1}, s{sT0}\ns_lshr_b32 s{sT1}, s2, 7")
            if pm == 3: a(f"s_xor_b32 s{sT1}, s{sT1}, 1")
            a(f"s_add_u32 s{sPH}, s{sPH}, s{sT1}\ns_and_b32 s{sPH}, s{sPH}, 7")
        a(f"s_sub_u32 s{sLW}, s{sW}, 4\ns_movk_i32 s{sPITCH}, 2752\ns_cmp_lt_u32 s{sG}, 8\ns_cselect_b32 s{sPITCH}, 3072, s{sPITCH}")
        a(f"s_cselect_b32 s{sWD}, 0, 896\ns_cselect_b32 s{sT3}, 0, 2048")
        a(f"s_lshl_b32 s{sT0}, s{sG}, 7\ns_lshl_b32 s{sT1}, s{sC0}, 6\ns_cmp_lt_u32 s{sG}, 8\ns_cselect_b32 s{sT5}, s{sT0}, s{sT1}\ns_add_u32 s{sT5}, s{sT5}, s{sT3}")
        a(f"v_lshrrev_b32 v{T}, 4, v{vL}\nv_and_b32 v{T+1}, 7, v{vL}\nv_xor_b32 v{T}, v{T}, v{T+1}\nv_lshlrev_b32 v{T}, 4, v{T}\nv_lshrrev_b32 v{T+2}, 3, v{vL}")
        a(f"v_lshl_add_u32 v{vX}, v{T+2}, 10, v{T}\nv_xor_b32 v{vX+1}, 64, v{vX}\nv_add_u32 v{vX+1}, 7168, v{vX+1}\nv_add_u32 v{vX+2}, 14336, v{vX}\nv_add_u32 v{vX+3}, 14336, v{vX+1}")
        a(f"v_lshrrev_b32 v{T}, 2, v{vL}\nv_and_b32 v{T}, 4, v{T}\nv_xor_b32 v{T}, v{T}, v{T+1}\nv_lshlrev_b32 v{T}, 4, v{T}")
        a(f"s_cmp_ge_u32 s{sG}, 11\ns_cselect_b32 s{sT4}, 64, 128\nv_mad_u32_u24 v{vWv}, v{T+2}, s{sPITCH}, v{T}\nv_cmp_gt_u32 vcc, s{sT4}, v{T}\nv_mov_b32 v{vWv+1}, {OOB}")
        a(f"s_lshl_b32 s{sT0}, s{sPITCH}, 3\nv_cndmask_b32 v{vWv+1}, v{vWv+1}, v{vWv}, vcc\ns_cmp_lt_u32 s{sG}, 8\ns_cselect_b32 s{sT1}, 32, 16\nv_xor_b32 v{vWv+2}, s{sT1}, v{vWv}\nv_xor_b32 v{vWv+3}, s{sT1}, v{vWv+1}\nv_add_u32 v{vWv+2}, s{sT0}, v{vWv+2}\nv_add_u32 v{vWv+3}, s{sT0}, v{vWv+3}")
        a(f"s_lshl2_add_u32 s{sXB}, s{sRB}, s{sLW}\ns_lshl_b32 s{sXB}, s{sXB}, 15\ns_lshl_b32 s{sWSTEP}, s{sPITCH}, 6\ns_lshl_b32 s{sWEND}, s{sPITCH}, 9")
        a(f"s_lshl2_add_u32 s{sT0}, s{sPH}, s{sLW}\ns_lshl_b32 s{sT0}, s{sT0}, 4\ns_mul_i32 s{sWOF}, s{sT0}, s{sPITCH}\ns_add_u32 s{sWOF}, s{sWOF}, s{sT5}")
        a(f"s_lshl_b32 s{sLX}, s{sLW}, 12\ns_mul_i32 s{sLWB}, s{sLW}, 6144\ns_add_u32 s{sLWB}, s{sLWB}, {L_W}")
        a(f"s_mov_b32 s{S_X+2}, 2097152\ns_mov_b32 s{S_X+3}, 0x20000\ns_add_u32 s{S_W+2}, s{sWEND}, s{sT3}\ns_mov_b32 s{S_W+3}, 0x20000")
        a("s_waitcnt lgkmcnt(0)")
        self.stamp(1)
        a(f"s_load_dword s{sTAG}, s[22:23], {WS_EPOCH}")
        a(f"s_mov_b32 s{S_X}, s4\ns_mov_b32 s{S_X+1}, s5\ns_sub_u32 s12, s12, 2048\ns_subb_u32 s13, s13, 0")
        a(f"s_cmp_lt_u32 s{sG}, 8\ns_cselect_b32 s{S_W}, s6, s12\ns_cselect_b32 s{S_W+1}, s7, s13")
        self.l_stage(vm, 0)
        if self.o.get('pst'): self.stamp(40)
        a(f"v_lshl_add_u32 v{vB2D}, v{T+2}, 10, v{T}\nv_add_u32 v{vB2D+1}, 7168, v{vB2D}\nv_add_u32 v253, 15360, v{vB2D}")
        self.srd(S_WS, 22, WS_SIZE); self.srd(S_W2, 16, 1376*1024); self.srd(S_WO, 8, 512*1024); self.srd(S_OUT, 18, 2097152)
        self.decode2()
        a(f"v_bfe_u32 v{T}, v{vL}, 2, 2\nv_lshrrev_b32 v{T+1}, 1, v{T}\nv_lshlrev_b32 v{T}, 7, v{T}\nv_lshl_add_u32 v{T}, v{T+1}, 6, v{T}")
        a(f"v_bfe_u32 v{T+1}, v{vL}, 4, 1\nv_lshl_add_u32 v{T}, v{T+1}, 5, v{T}\nv_and_b32 v{T+1}, 3, v{vL}\nv_lshl_add_u32 v{T+14}, v{T+1}, 3, v{T}\nv_lshrrev_b32 v{T+15}, 5, v{vL}")
        a(f"s_lshl_b32 s{sB2L}, s{sLW}, 11\nv_lshl_add_u32 v{vB2AL[0]}, v{T+15}, 9, v{T+14}\nv_add_u32 v{vB2AL[0]}, s{sB2L}, v{vB2AL[0]}\nv_xor_b32 v{vB2AL[1]}, 64, v{vB2AL[0]}")
        for hi in (1, 2):
            a(f"v_add_u32 v{vB2AL[2*hi]}, {65536*hi}, v{vB2AL[0]}\nv_add_u32 v{vB2AL[2*hi+1]}, {65536*hi}, v{vB2AL[1]}")
        a(f"v_and_b32 v{T}, 31, v{vL}\nv_lshlrev_b32 v{T}, 2, v{T}\nv_add_u32 v{T}, {L_FL}, v{T}\nv_mov_b32 v{T+1}, 0\nds_write_b32 v{T}, v{T+1}")

    def l_colsum_pre(self):
        a = self.a; T = ACC2; S = T + 16
        a(f"s_mul_i32 s{sT0}, s{sLW}, 6144\ns_add_u32 s{sT0}, s{sT0}, {L_W}\nv_mul_u32_u24 v{T}, 3072, v{T+15}\nv_add3_u32 v{T}, v{T}, v{T+14}, s{sT0}")
        a(f"s_cmp_lt_u32 s{sG}, 8\ns_cselect_b32 s{sT0}, 32, 16\nv_mul_u32_u24 v{T+1}, s{sT0}, v{T+15}\nv_xor_b32 v{T}, v{T}, v{T+1}\nv_xor_b32 v{T+1}, 64, v{T}")
        a(f"s_mov_b32 s{sT5}, 0x3f803f80")
        for k in range(6): a(f"v_mov_b32 v{S+k}, 0")
        a(f"s_mul_i32 s{sT1}, s{sLW}, 1536\ns_add_u32 s{sT1}, s{sT1}, {L_SLAB}\nv_and_b32 v{T+2}, 31, v{vL}\nv_lshl_add_u32 v{T+2}, v{T+2}, 2, s{sT1}\nv_mul_u32_u24 v{T+3}, 768, v{T+15}\nv_add_u32 v{T+2}, v{T+2}, v{T+3}")
    def l_colsum(self):
        a = self.a; T = ACC2; F = AR; S = T + 16
        for u in range(3):
            for c in range(2):
                for rd in range(2):
                    r = F + 8*u + 4*c + 2*rd
                    a(f"ds_read_b64_tr_b16 v[{r}:{r+1}], v{T+c} offset:{1024*u + 512*rd}")
        for half in range(2):
            a(f"s_waitcnt lgkmcnt({6 - 6*half})")
            for k in range(4):
                for uc in range(3*half, 3*half + 3): a(f"v_dot2c_f32_bf16 v{S+uc}, s{sT5}, v{F+4*uc+k}")
        a("s_nop 2")
        for uc in range(6): a(f"ds_write_b32 v{T+2}, v{S+uc} offset:{128*uc}")

    def wave_sum2(self, v0, v1, t0, t1):
        a = self.a
        for m in ("quad_perm:[1,0,3,2]", "quad_perm:[2,3,0,1]", "row_half_mirror", "row_mirror"):
            a(f"s_nop 0\nv_add_f32_dpp v{v0}, v{v0}, v{v0} {m} row_mask:0xf bank_mask:0xf\nv_add_f32_dpp v{v1}, v{v1}, v{v1} {m} row_mask:0xf bank_mask:0xf")
        for op in ("v_permlane16_swap_b32", "v_permlane32_swap_b32"):
            a(f"v_mov_b32 v{t0}, v{v0}\nv_mov_b32 v{t1}, v{v1}\ns_nop 1\n{op} v{t0}, v{v0}\n{op} v{t1}, v{v1}\ns_nop 0\nv_add_f32 v{v0}, v{v0}, v{t0}\nv_add_f32 v{v1}, v{v1}, v{t1}")

    def c_stats(self, vm):
        a = self.a; T = 160; u = 116
        vm.wait("xrow", lgkm=0)
        if self.o.get('pst'): self.stamp(42)
        self.tag()
        for r in range(2):
            for k in range(4):
                a(f"v_lshlrev_b32 v{u+8*r+2*k}, 16, v{T+4+4*r+k}\nv_and_b32 v{u+8*r+2*k+1}, 0xffff0000, v{T+4+4*r+k}")
        s0, s1 = u + 16, u + 17
        for r, s in ((0, s0), (1, s1)): a(f"v_add_f32 v{s}, v{u+8*r}, v{u+8*r+1}")
        for k in range(2, 8):
            for r, s in ((0, s0), (1, s1)): a(f"v_add_f32 v{s}, v{s}, v{u+8*r+k}")
        self.wave_sum2(s0, s1, u + 40, u + 41)
        G0, G1 = u + 20, u + 24
        a(f"v_mul_f32 v{G0}, {f2u(1/512.):#x}, v{s0}\nv_mul_f32 v{G1}, {f2u(1/512.):#x}, v{s1}")
        for k in range(8):
            a(f"v_sub_f32 v{u+k}, v{u+k}, v{G0}\nv_sub_f32 v{u+8+k}, v{u+8+k}, v{G1}")
        a(f"v_mul_f32 v{s0}, v{u}, v{u}\nv_mul_f32 v{s1}, v{u+8}, v{u+8}")
        for k in range(1, 8): a(f"v_fmac_f32 v{s0}, v{u+k}, v{u+k}\nv_fmac_f32 v{s1}, v{u+8+k}, v{u+8+k}")
        self.wave_sum2(s0, s1, u + 40, u + 41)
        a(f"v_mov_b32 v{u}, {f2u(1e-5):#x}\nv_mov_b32 v{u+1}, {f2u(1e-5):#x}\nv_fmac_f32 v{u}, {f2u(1/512.):#x}, v{s0}\nv_fmac_f32 v{u+1}, {f2u(1/512.):#x}, v{s1}")
        a(f"v_rsq_f32 v{u}, v{u}\nv_rsq_f32 v{u+1}, v{u+1}\nv_mov_b32 v{G0+2}, 0\nv_mov_b32 v{G0+3}, s{sTAG}\nv_mov_b32 v{G1+2}, 0\nv_mov_b32 v{G1+3}, s{sTAG}")
        a(f"v_mul_f32 v{G0+1}, {f2u(LOG2E):#x}, v{u}\nv_mul_f32 v{G1+1}, {f2u(LOG2E):#x}, v{u+1}")
        self.lane0(u + 2)
        a(f"buffer_store_dwordx4 v[{G0}:{G0+3}], v{u+2}, s[{S_WS}:{S_WS+3}], s{sE} offen sc1"); vm.issue("statst")
        a(f"buffer_store_dwordx4 v[{G1}:{G1+3}], v{u+2}, s[{S_WS}:{S_WS+3}], s{sE} offen offset:16 sc1"); vm.issue("statst")
        if self.o.get('pst'): self.stamp(43)
        vm.wait("bias")
        a(f"v_lshlrev_b32 v{u+3}, 16, v{T+12}\nv_mul_f32 v{u+3}, {f2u(LOG2E):#x}, v{u+3}\nv_lshlrev_b32 v{u+4}, 2, v{T+13}\nv_add_u32 v{u+4}, {L_BT}, v{u+4}")
        a(f"s_cmp_eq_u32 s{sW}, 3\ns_cbranch_scc1 L_nobt\nds_write_b32 v{u+4}, v{u+3}")
        a.label("L_nobt")

    def l_cspub(self, vm, vi):
        a = self.a; T = ACC2 + 24; U = B2R
        a(f"s_mov_b32 s{sT0}, {OOB}\ns_cmp_lg_u32 s{sLW}, 0\ns_cbranch_scc1 L_nocsp{vi}")
        a(f"v_lshlrev_b32 v{T}, 2, v{vL}\nv_add_u32 v{T}, {L_SLAB}, v{T}")
        for k in range(0, 24, 2): a(f"ds_read2st64_b32 v[{U+k}:{U+k+1}], v{T} offset0:{k} offset1:{k+1}")
        a(f"v_mov_b32 v{T+3}, s{sTAG}")
        a(f"s_lshl4_add_u32 s{sT0}, s{sG}, s{sRB}\ns_lshl_b32 s{sT0}, s{sT0}, 10\ns_add_u32 s{sT0}, s{sT0}, {WS_CSP}")
        a("s_waitcnt lgkmcnt(0)")
        for sl in range(1, 7):
            for u in range(3): a(f"v_add_f32 v{U+u}, v{U+u}, v{U+3*sl+u}")
        for u in range(3): a(f"v_add_f32 v{T+u}, v{U+u}, v{U+21+u}")
        a.label(f"L_nocsp{vi}")
        a(f"buffer_store_dwordx4 v[{T}:{T+3}], v{vL16}, s[{S_WS}:{S_WS+3}], s{sT0} offen sc1"); vm.issue("cspst")

    def l_steptable(self):
        a = self.a
        a("s_waitcnt lgkmcnt(0)")
        if not self.o['classes']:
            a(f"s_mul_i32 s{sT0}, s{sROT}, 3\ns_lshr_b32 s{sT0}, s{sT0}, {0 if self.o['map2'] == 0 else 1}")
            a(f"s_sub_u32 s{sT1}, s{sT0}, 22\ns_cmp_ge_u32 s{sT0}, 22\ns_cselect_b32 s{sT0}, s{sT1}, s{sT0}")
            a(f"s_mul_i32 s{sT3}, s{sLW}, 22\ns_add_u32 s{sT4}, s{sT3}, 22\ns_add_u32 s{sT0}, s{sT0}, s{sT3}")
            for i in range(22):
                a(f"s_lshl_b32 s{SP[i]}, s{sT0}, 10\ns_cmp_ge_u32 s{sT0}, 86\ns_cselect_b32 s{SP[i]}, {WS_SIZE}, s{SP[i]}")
                if i < 21: a(f"s_add_u32 s{sT0}, s{sT0}, 1\ns_cmp_eq_u32 s{sT0}, s{sT4}\ns_cselect_b32 s{sT0}, s{sT3}, s{sT0}")
        else:
            for k, d in ((0, sT4), (1, sT5)):
                a(f"s_lshl_b32 s{sT0}, s{sLW}, 1\ns_add_u32 s{sT0}, s{sT0}, {k}\ns_min_u32 s{sT1}, s{sT0}, 3\ns_mul_i32 s{sT0}, s{sT0}, 5\ns_add_u32 s{sT0}, s{sT0}, s{sT1}\ns_lshl_b32 s{d}, s{sT0}, 1")
            a(f"s_lshl_b32 s{sT3}, s{sROT}, 1")
            for i in range(16):
                a(f"s_add_u32 s{sT0}, s{sT3}, {i}\ns_and_b32 s{sT1}, s{sT0}, 7\ns_bitcmp1_b32 s{sT0}, 3\ns_cselect_b32 s{sT0}, s{sT5}, s{sT4}\ns_add_u32 s{sT0}, s{sT0}, s{sT1}\ns_lshl_b32 s{SP[i]}, s{sT0}, 10")
            tab = [[4, 5, 10], [11, 16, 17], [22, 27, 32], [37, 42, 43]]
            a(f"s_lshl_b32 s{sT0}, s{sLW}, 3\ns_or_b32 s{sT0}, s{sT0}, 0x80000")
            for k, d in ((0, sT3), (1, sT4), (2, sT5)):
                c = sum(tab[q][k] << (8*q) for q in range(4))
                a(f"s_bfe_u32 s{d}, {c:#x}, s{sT0}\ns_lshl_b32 s{d}, s{d}, 11")
            a(f"s_cmp_eq_u32 s{sLW}, 3\ns_cselect_b32 s{sT5}, {WS_SIZE}, s{sT5}")
            a(f"s_mov_b32 s{sT0}, s{sROT}")
            for r in range(2): a(f"s_sub_u32 s{sT1}, s{sT0}, 6\ns_cmp_ge_u32 s{sT0}, 6\ns_cselect_b32 s{sT0}, s{sT1}, s{sT0}")
            for i in range(6):
                a(f"s_cmp_ge_u32 s{sT0}, 2\ns_cselect_b32 s{sT1}, s{sT4}, s{sT3}\ns_cmp_ge_u32 s{sT0}, 4\ns_cselect_b32 s{sT1}, s{sT5}, s{sT1}")
                a(f"s_and_b32 s{sT2}, s{sT0}, 1\ns_lshl_b32 s{sT2}, s{sT2}, 10\ns_add_u32 s{SP[16+i]}, s{sT1}, s{sT2}")
                if i < 5: a(f"s_add_u32 s{sT0}, s{sT0}, 1\ns_cmp_eq_u32 s{sT0}, 6\ns_cselect_b32 s{sT0}, 0, s{sT0}")
        a(f"s_lshl_b32 s{sT3}, s{sLW}, 3\ns_add_u32 s{sT3}, s{sT3}, 88")
        for j in range(4):
            a(f"s_add_u32 s{sT0}, s{sROT}, {j}\ns_and_b32 s{sT0}, s{sT0}, 3\ns_lshl1_add_u32 s{sT0}, s{sT0}, s{sT3}\ns_lshl_b32 s{SP[22+2*j]}, s{sT0}, 10\ns_add_u32 s{SP[23+2*j]}, s{SP[22+2*j]}, 1024")
        a(f"s_lshl_b32 s{sB2C}, s{sCT}, 7\ns_sub_u32 s{sB2C2}, s{sB2C}, {88*16384}\ns_sub_u32 s{sB2C3}, s{sB2C2}, 8192")
        a(f"s_mul_i32 s{sA2B}, s{sRT}, {2*A2_RT}\ns_add_u32 s{sA2B}, s{sA2B}, {WS_A2}\nv_add_u32 v{vL16B}, {A2_RT}, v{vL16}")

    def l_gather_addr(self):
        a = self.a; T = ACC2 + 40; sT4, sT5 = 86, 87
        a(f"s_lshl2_add_u32 s{sT4}, s{sRB}, s{sLW}\ns_lshl_b32 s{sT4}, s{sT4}, 9\ns_add_u32 s{sT4}, s{sT4}, {WS_STATS}")
        a(f"s_and_b32 s{sT5}, s{sRB}, 8\ns_lshl4_add_u32 s{sT5}, s{sG}, s{sT5}\ns_lshl2_add_u32 s{sT5}, s{sT5}, s{sLW}\ns_lshl_b32 s{sT5}, s{sT5}, 8\ns_add_u32 s{sT5}, s{sT5}, {WS_CSP}")
        a(f"v_and_b32 v{T}, 0x1f0, v{vL16}\nv_lshrrev_b32 v{T+1}, 4, v{vL}\nv_lshlrev_b32 v{T+1}, 10, v{T+1}\nv_and_b32 v{T+2}, 0xf0, v{vL16}\nv_or_b32 v{T+1}, v{T+1}, v{T+2}\nv_add_u32 v{T+2}, 4096, v{T+1}")
    def l_gather_issue(self, vm):
        a = self.a; T = ACC2 + 40; G = AR; sT4, sT5 = 86, 87
        a(f"buffer_load_dwordx4 v[{G}:{G+3}], v{T}, s[{S_WS}:{S_WS+3}], s{sT4} offen sc1"); vm.issue("gath")
        a(f"buffer_load_dwordx4 v[{G+4}:{G+7}], v{T+1}, s[{S_WS}:{S_WS+3}], s{sT5} offen sc1"); vm.issue("gath")
        a(f"buffer_load_dwordx4 v[{G+8}:{G+11}], v{T+2}, s[{S_WS}:{S_WS+3}], s{sT5} offen sc1"); vm.issue("gath")
    def l_gather_check(self, vm, vi):
        a = self.a; T = ACC2; G = AR
        vm.wait("gath")
        a(f"s_mov_b32 s{sSPIN}, 0")
        a.label(f"L_gchk{vi}")
        a(f"v_cmp_ne_u32 vcc, s{sTAG}, v{G+3}\nv_cmp_ne_u32 s[70:71], s{sTAG}, v{G+7}\ns_nop 1\ns_or_b64 s[70:71], vcc, s[70:71]")
        a(f"v_cmp_ne_u32 vcc, s{sTAG}, v{G+11}\ns_nop 1\ns_or_b64 vcc, vcc, s[70:71]")
        a(f"s_cbranch_vccz L_gok{vi}")
        a(f"s_add_u32 s{sSPIN}, s{sSPIN}, 1\ns_cmp_gt_u32 s{sSPIN}, 0x8000\ns_cbranch_scc1 L_gok{vi}")
        self.l_gather_issue(VM(a))
        a(f"s_waitcnt vmcnt(0)\ns_branch L_gchk{vi}")
        a.label(f"L_gok{vi}")
        a(f"s_lshl_b32 s{sT0}, s{sLW}, 7\ns_add_u32 s{sT0}, s{sT0}, {L_MT}\nv_and_b32 v{T}, 31, v{vL}\nv_lshl_add_u32 v{T}, v{T}, 2, s{sT0}")
        a(f"ds_write_b32 v{T}, v{G}\nds_write_b32 v{T}, v{G+1} offset:512")
    def l_w2touch(self, vm):
        a = self.a; T = ACC2 + 8
        a(f"s_lshl2_add_u32 s{sT0}, s2, s{sLW}\ns_lshl_b32 s{sT1}, s{sT0}, 9\ns_mul_i32 s{sT0}, s{sT0}, 1408\nv_lshlrev_b32 v{T}, 7, v{vL}\ns_mov_b64 exec, 0x7ff")
        a(f"buffer_load_dword v{T+1}, v{T}, s[{S_W2}:{S_W2+3}], s{sT0} offen\ns_mov_b64 exec, 0xf"); vm.issue("w2t")
        a(f"buffer_load_dword v{T+2}, v{T}, s[{S_WO}:{S_WO+3}], s{sT1} offen\ns_mov_b64 exec, -1"); vm.issue("w2t")
    def l_gather_cs(self):
        a = self.a; T = ACC2; G = AR
        for k in range(3): a(f"v_add_f32 v{G+4+k}, v{G+4+k}, v{G+8+k}")
        for op in ("v_permlane16_swap_b32", "v_permlane32_swap_b32"):
            for k in range(3): a(f"v_mov_b32 v{G+8+k}, v{G+4+k}")
            a("s_nop 0")
            for k in range(3): a(f"{op} v{G+8+k}, v{G+4+k}")
            a("s_nop 0")
            for k in range(3): a(f"v_add_f32 v{G+4+k}, v{G+4+k}, v{G+8+k}")
        a(f"s_lshl_b32 s{sT0}, s{sLW}, 6\ns_add_u32 s{sT0}, s{sT0}, {L_CS}\nv_lshl_add_u32 v{T+1}, v{vL}, 2, s{sT0}\ns_mov_b64 exec, 0xffff")
        a(f"ds_write2st64_b32 v{T+1}, v{G+4}, v{G+5} offset1:1\nds_write_b32 v{T+1}, v{G+6} offset:512\ns_mov_b64 exec, -1")

    def b2_dma(self, vm, step, pace=True):
        a = self.a
        if pace: vm.depth((self.o['pace'] if pace is True else pace) - 2)
        srd, base, v2 = (S_W2, sB2C, vB2D + 1) if step < 22 else (S_WO, sB2C3 if step & 1 else sB2C2, 253)
        a(f"s_add_u32 m0, s{sB2L}, {8192*round_of(step)}\ns_lshl4_add_u32 s{sT0}, s{SP[step]}, s{base}")
        a(f"buffer_load_dwordx4 v{vB2D}, s[{srd}:{srd+3}], s{sT0} offen lds"); vm.issue(f"b2_{step}")
        a(f"buffer_load_dwordx4 v{v2}, s[{srd}:{srd+3}], s{sT0} offen offset:1024 lds"); vm.issue(f"b2_{step}")
        if self.o.get('b2stamps'): self.stamp(20 + step)
    def b2_reads(self, s, dst):
        rnd = round_of(s); hi, lo = rnd // 8, rnd % 8
        for cc in range(2):
            for rd in range(2):
                r = dst + 4*cc + 2*rd
                self.a(f"ds_read_b64_tr_b16 v[{r}:{r+1}], v{vB2AL[2*hi + cc]} offset:{8192*lo + 1024*rd}")

    def l_main(self):
        a = self.a; vm = VM(a); T = ACC2
        if self.o['pf']: vm.issue("codepf")
        self.l_prologue(vm)
        if self.o['spf']:
            a(f"s_lshr_b32 s{sT0}, s2, 3\ns_lshl2_add_u32 s{sT0}, s{sT0}, s{sLW}\ns_mul_i32 s{sT0}, s{sT0}, {64*self.o['spf']}\ns_add_u32 s94, s16, s{sT0}\ns_addc_u32 s95, s17, 0\ns_and_b32 s84, s2, 7")
        if self.o.get('stouch'):
            a(f"s_lshl2_add_u32 s{sT0}, s2, s{sLW}\ns_mul_i32 s{sT1}, s{sT0}, 1376\ns_and_b32 s{sT1}, s{sT1}, 0xffffffc0\ns_add_u32 s94, s16, s{sT1}\ns_addc_u32 s95, s17, 0")
            a(f"s_lshl_b32 s{sT0}, s{sT0}, 9\ns_add_u32 s98, s8, s{sT0}\ns_addc_u32 s99, s9, 0")
        self.l_steptable()
        self.tag(); self.l_gather_addr()
        a(f"v_and_b32 v{T}, 7, v{vL}\nv_lshrrev_b32 v{T+1}, 5, v{vL}\nv_xor_b32 v{T+1}, v{T+1}, v{T}\nv_lshlrev_b32 v{T+1}, 4, v{T+1}\nv_lshl_add_u32 v{T+1}, v{T}, 8, v{T+1}")
        a(f"v_bfe_u32 v{T}, v{vL}, 3, 2\nv_lshl_add_u32 v{T+1}, v{T}, 13, v{T+1}\nv_add_u32 v254, s{sB2L}, v{T+1}")
        vP0, vP2, vPT = 249, 250, 251
        a(f"s_lshl_b32 s54, s{sRT}, 12\ns_add_u32 s54, s54, {WS_FLAG}")
        a(f"v_and_b32 v{vP0}, 3, v{vL}\ns_lshl_b32 s{sT0}, s{sLW}, 2\nv_add_u32 v{vP0}, s{sT0}, v{vP0}\nv_lshlrev_b32 v{vP0}, 7, v{vP0}")
        if not self.o['classes'] and self.o.get('psub', 1):
            a(f"s_lshl_b32 s{sT0}, s{sLW}, 3\ns_or_b32 s{sT0}, s{sT0}, 0x80000\ns_bfe_u32 s{sT1}, 0x0c060200, s{sT0}\ns_bfe_u32 s{sT0}, 0x03050503, s{sT0}")
            a(f"v_min_u32 v{vP2}, s{sT0}, v{vL}\nv_add_u32 v{vP2}, s{sT1}, v{vP2}\nv_lshlrev_b32 v{vP2}, 7, v{vP2}")
        elif not self.o['classes']:
            a(f"v_and_b32 v{vP2}, 15, v{vL}\nv_lshlrev_b32 v{vP2}, 7, v{vP2}")
        else:
            a(f"v_and_b32 v{vP2}, 3, v{vL}\nv_min_u32 v{vP2}, 2, v{vP2}")
            a(f"s_mul_i32 s{sT0}, s{sLW}, 3\ns_mul_i32 s{sT1}, s{sLW}, 6\ns_sub_u32 s{sT1}, s{sT1}, 6\ns_cmp_lt_u32 s{sLW}, 2\ns_cselect_b32 s{sT0}, s{sT0}, s{sT1}\ns_cselect_b32 s{sT1}, 0, 1")
            a(f"v_lshlrev_b32 v{vP2}, s{sT1}, v{vP2}\nv_add_u32 v{vP2}, s{sT0}, v{vP2}\nv_min_u32 v{vP2}, 14, v{vP2}\nv_lshlrev_b32 v{vP2}, 7, v{vP2}")
        vA = vP0 if self.o['classes'] else vP2
        self.final_addr(None, T, T + 1)
        a(f"v_and_b32 v255, 3, v{vL}\nv_lshlrev_b32 v255, 2, v255\nv_add_u32 v255, {L_FL}, v255")
        a(f"s_mul_i32 s{sT0}, s{sLW}, 3072\ns_add_u32 s{sT0}, s{sT0}, {L_KV + 12}\nv_add_u32 v{T}, s{sT0}, v{vL16}\ns_not_b32 s{sT0}, s{sTAG}\nv_mov_b32 v{T+1}, s{sT0}")
        for k in range(3): a(f"ds_write_b32 v{T}, v{T+1} offset:{1024*k}")
        self.l_colsum_pre()
        if self.o.get('pst'): self.stamp(41)
        vm.depth(self.o.get('st1_at', 8))
        if self.o.get('pst'): self.stamp(42)
        self.l_stage(vm, 1)
        if self.o.get('pst'): self.stamp(43)
        if self.o.get('w2pf', -1) == -1: self.l_w2touch(vm)
        vm.wait("st0w")
        self.l_colsum()
        CL = self.o.get('cl') or [{}]
        TV = B2R + 40
        if len(CL) > 1 or CL[0]:
            a(f"s_lshr_b32 s{sT0}, s2, 3\ns_lshl2_add_u32 s{sT0}, s{sT0}, s{sLW}\ns_mul_i32 s{sT0}, s{sT0}, 118")
            a(f"v_min_u32 v{TV}, 58, v{vL}\nv_add_u32 v{TV}, s{sT0}, v{TV}\nv_lshlrev_b32 v{TV}, 7, v{TV}\nv_add_u32 v{TV+1}, {59*128}, v{TV}")
            a(f"v_subrev_u32 v{TV+2}, {1376*1024}, v{TV}\nv_subrev_u32 v{TV+3}, {1376*1024}, v{TV+1}\ns_and_b32 s84, s{sCT}, {len(CL)-1}")
        def touch(vm, k):
            a(f"buffer_load_dword v{TV+4}, v{TV+k}, s[{S_W2}:{S_W2+3}], 0 offen"); vm.issue("tch")
            a(f"buffer_load_dword v{TV+5}, v{TV+2+k}, s[{S_WO}:{S_WO+3}], 0 offen"); vm.issue("tch")
        base = vm; ends = []
        for vi, var in enumerate(CL):
            vm = base.copy()
            if vi + 1 < len(CL): a(f"s_cmp_lg_u32 s84, {vi}\ns_cbranch_scc1 L_var{vi}")
            for t in range(8):
                vm.wait(f"st{t}", lgkm=None if ((self.o['spf'] or self.o.get('stouch')) and 1 <= t <= 6) else 0)
                if self.o.get('pst') and t < 2: self.stamp(44 + t)
                a("s_barrier")
                if self.o['kstamps'] or t in (0, 7): self.stamp(2 + t)
                if t + 2 < 8: self.l_stage(vm, t + 2)
                for k in var.get(t, []): touch(vm, k)
                if t == 0: self.l_cspub(vm, vi)
                if self.o['spf'] and t in self.o.get('spf_t', range(0, 6)):
                    n = self.o['spf']; assert 128*64*n <= 234752
                    a(f"s_add_u32 s84, s84, 1\ns_sub_u32 s{sT0}, s84, 6\ns_cmp_ge_u32 s84, 6\ns_cselect_b32 s84, s{sT0}, s84\ns_mul_i32 s{sT0}, s84, 234752\ns_add_u32 s98, s94, s{sT0}\ns_addc_u32 s99, s95, 0")
                    for k in range(n): a(f"s_load_dword s54, s[98:99], {64*k}")
                if self.o.get('stouch'):
                    n, t0 = self.o['stouch']
                    lst = [("94:95", 64*k) for k in range(22)] + [("98:99", 64*k) for k in range(8)]
                    if t >= t0:
                        for p, off in lst[n*(t - t0):n*(t - t0 + 1)]: a(f"s_load_dword s84, s[{p}], {off}")
                if t == self.o.get('a2touch', -9):
                    a(f"s_lshl2_add_u32 s{sT0}, s{sRB}, s{sLW}\ns_mul_i32 s{sT0}, s{sT0}, {A2_RT}\ns_lshl_b32 s{sT1}, s{sC0}, 11\ns_lshl_b32 s{sT2}, s{sG}, 12\ns_add_u32 s{sT2}, s{sT2}, {88*1024}")
                    a(f"s_cmp_lt_u32 s{sG}, 8\ns_cselect_b32 s{sT1}, s{sT2}, s{sT1}\ns_cselect_b32 s{sT2}, {OOB}, 8192\ns_cselect_b32 exec_hi, 0, -1\ns_add_u32 s{sT0}, s{sT0}, s{sT1}\ns_add_u32 s{sT0}, s{sT0}, {WS_A2}\ns_add_u32 s{sT2}, s{sT2}, s{sT0}")
                    a(f"v_lshlrev_b32 v{T+8}, 7, v{vL}\nbuffer_load_dword v{T+9}, v{T+8}, s[{S_WS}:{S_WS+3}], s{sT0} offen\ns_mov_b32 exec_hi, 0\nbuffer_load_dword v{T+10}, v{T+8}, s[{S_WS}:{S_WS+3}], s{sT2} offen\ns_mov_b64 exec, -1")
                    vm.issue("a2t"); vm.issue("a2t")
                if t == 5: self.l_gather_issue(vm)
                if t == self.o.get('w2pf', -1): self.l_w2touch(vm)
                if t == 6:
                    for s in range(self.o['n0']): self.b2_dma(vm, s, pace=False)
                    self.l_gather_check(vm, vi); self.l_gather_cs()
            ends.append(list(vm.q))
            if vi + 1 < len(CL):
                a("s_branch L_varend"); a.label(f"L_var{vi}")
        assert all(e == ends[0] for e in ends)
        a.label("L_varend")
        for s in range(self.o['n0'], 7): self.b2_dma(vm, s, pace=False)
        def park(k):
            vm.wait(f"b2_{k}")
            self.b2_reads(k, B2R + 8*k)
        ep = self.o.get('epark', 1); done = 0
        for s in range(7, 18):
            if s == 13: self.spin_lds("ring", 255, T + 1, 0)
            self.b2_dma(vm, s)
            if ep and s - 6 > done:
                park(done); done += 1
        self.stamp(10)
        for k in range(done, 12):
            park(k)
            if k > 1: a("s_waitcnt lgkmcnt(8)")
        a(f"v_mov_b32 v{vRW}, v254")
        for q in range(1, 4): a(f"v_xor_b32 v{vRW+q}, {32*q}, v254")
        a("s_waitcnt lgkmcnt(0)")
        if self.o.get('mix', 0):
            a(f"s_cmp_lt_u32 s{sG}, 8\ns_cbranch_scc1 L_p2att")
            self.l_phase2(vm.copy(), "M", True, vP0, vP2, vPT, vA)
            a.label("L_p2att")
        self.l_phase2(vm.copy(), "A", False, vP0, vP2, vPT, vA)

    def l_phase2(self, vm, sfx, mix, vP0, vP2, vPT, vA):
        a = self.a; T = ACC2
        polls = {0: (vA, 2048), 22: (vP0, 0)}
        if self.o['classes']: polls[16] = (vP2, 2052)
        free = [AR + 8*k for k in range(ARING)]; slot = {}
        def areg(i):
            if i not in slot: slot[i] = free.pop(0)
            return slot[i]
        def a_load(i):
            r = areg(i)
            a(f"s_add_u32 s{sT0}, s{sA2B}, s{SP[i]}")
            a(f"buffer_load_dwordx4 v[{r}:{r+3}], v{vL16}, s[{S_WS}:{S_WS+3}], s{sT0} offen {self.o.get('asc', 'sc1')}"); vm.issue(f"a{i}")
            a(f"buffer_load_dwordx4 v[{r+4}:{r+7}], v{vL16B}, s[{S_WS}:{S_WS+3}], s{sT0} offen {self.o.get('asc', 'sc1')}"); vm.issue(f"a{i}")
        def a_half(i, t):
            r = areg(i) + 4*t
            if t == 0: a(f"s_add_u32 s{sT0}, s{sA2B}, s{SP[i]}")
            a(f"buffer_load_dwordx4 v[{r}:{r+3}], v{vL16B if t else vL16}, s[{S_WS}:{S_WS+3}], s{sT0} offen {self.o.get('asc', 'sc1')}"); vm.issue(f"a{i}")
        def poll_issue(c):
            v, imm = polls[c]
            off = f" offset:{imm}" if imm else ""
            a(f"buffer_load_dword v{vPT}, v{v}, s[{S_WS}:{S_WS+3}], s54 offen{off} sc1"); vm.issue(f"p{c}")
        def poll_check(c):
            v, imm = polls[c]
            vm.wait(f"p{c}")
            a(f"v_cmp_ne_u32 vcc, s{sTAG}, v{vPT}\ns_cbranch_vccz L_pok{c}{sfx}")
            self.spin_global(f"p{c}{sfx}", v, vPT, 54, imm)
            a.label(f"L_pok{c}{sfx}")
            self.stamp({0: 12, 16: 14, 22: 15}[c])
        pre = self.o.get('mixpre', 12) if mix else 12
        if pre: self.spin_lds("hold" + sfx, 255, T + 1, 64)
        self.stamp(13)
        for s in range(18, 18 + pre): self.b2_dma(vm, s, pace=self.o.get('pace2', 10))
        if self.o.get('pollwait') and not mix:
            vm.depth(self.o['pollwait'] - 1)
            a(f"s_lshl_b32 s{sT0}, s{sLW}, 2\ns_add_u32 s{sT0}, s{sT0}, {L_FL + 96}\nv_mov_b32 v{T}, s{sT0}\nv_mov_b32 v{T+1}, 1\nds_write_b32 v{T}, v{T+1}")
        self.spin_lds("hold2" + sfx, 255, T + 1, 112)
        poll_issue(0)
        nxt = 18 + pre
        for k in range(self.o.get('mixpoll', 2) if mix else 0):
            if nxt < 30: self.b2_dma(vm, nxt, pace=False); nxt += 1
        self.stamp(11)
        LEAD = self.o.get('lead', 3)
        poll_check(0)
        a("s_setprio 1")
        self.xres(vm)
        def issue_a(n):
            if n in polls and n > 0: poll_check(n)
            a_load(n)
            if n + LEAD in polls: poll_issue(n + LEAD)
        DEPTH = self.o.get('adepthM', 4) if mix else self.o.get('adepth', 4)
        for i in range(DEPTH): issue_a(i)
        issued = DEPTH
        def breg(i): return B2R + 8*i if i < NREG else BT + 8*(i & 1)
        IL = self.o.get('il', 1)
        NT = self.o.get('ntail', 0)
        for i in range(30 - NT):
            rd = i + 1 >= NREG and i + 1 < 30
            if rd: vm.wait(f"b2_{i+1}")
            if rd and not IL: self.b2_reads(i + 1, breg(i + 1))
            lg = None
            if i >= NREG: lg = 4 if (i + 1 < 30 and not IL) else 0
            vm.wait(f"a{i}", lgkm=lg)
            if self.o.get('astamps'): self.stamp(20 + i)
            A, B = areg(i), breg(i)
            M = []
            for cc in range(2):
                for t in range(2):
                    acc = f"v[{ACC2+16*(2*t+cc)}:{ACC2+16*(2*t+cc)+15}]"
                    M.append(f"v_mfma_f32_32x32x16_bf16 {acc}, v[{B+4*cc}:{B+4*cc+3}], v[{A+4*t}:{A+4*t+3}], {'0' if i == 0 else acc}")
            d = DEPTH + sum(1 for r in self.o.get('ramp', []) if i >= r) - sum(1 for r in self.o.get('unramp', []) if i >= r)
            if IL:
                side = Asm(); keep = self.a
                self.a = side
                if rd: self.b2_reads(i + 1, breg(i + 1))
                self.a = keep
                R = [x.strip() for x in side.l]
                simple = issued < min(30, i + 1 + d) and issued not in polls
                a(M[0])
                for x in R[:2]: a(x)
                if not rd and simple: a_half(issued, 0)
                a(M[1])
                for x in R[2:]: a(x)
                if not rd and simple: a_half(issued, 1)
                a(M[2])
                if rd and simple: a_half(issued, 0)
                a(M[3])
                if rd and simple: a_half(issued, 1)
                if simple:
                    if issued + LEAD in polls: poll_issue(issued + LEAD)
                    issued += 1
            else:
                for m in M: a(m)
            free.append(A)
            if i < NREG: free.append(B)
            while issued < min(30, i + 1 + d):
                issue_a(issued); issued += 1
            if nxt < 30 and i >= self.o.get('mixfrom', 0): self.b2_dma(vm, nxt, pace=False); nxt += 1
        def wr(t, cc):
            for q in range(4):
                r = ACC2 + 16*(2*t+cc) + 4*q
                a(f"ds_write_b128 v{vRW+q}, v[{r}:{r+3}] offset:{32768*t + 128*cc}")
        if NT:
            assert issued == 30
            f = 30 - NT
            bt = {f: breg(f)}
            for i in range(f + 1, 30):
                bt[i] = free.pop(0); self.b2_reads(i, bt[i])
            order = [(0, 0), (1, 0), (0, 1), (1, 1)]
            def w1(t, cc, q):
                r = ACC2 + 16*(2*t+cc) + 4*q
                a(f"ds_write_b128 v{vRW+q}, v[{r}:{r+3}] offset:{32768*t + 128*cc}")
            assert NT == 4
            for k, (t, cc) in enumerate(order):
                acc = f"v[{ACC2+16*(2*t+cc)}:{ACC2+16*(2*t+cc)+15}]"
                if k == 2: a("s_nop 6")
                for i in range(f, 30):
                    if k == 0: vm.wait(f"a{i}", lgkm=4*(29 - i))
                    a(f"v_mfma_f32_32x32x16_bf16 {acc}, v[{bt[i]+4*cc}:{bt[i]+4*cc+3}], v[{slot[i]+4*t}:{slot[i]+4*t+3}], {acc}")
                    if k >= 2: w1(*order[k - 2], i - f)
            self.stamp(16)
            a("s_nop 3")
            wr(*order[2])
            a("s_nop 2")
            wr(*order[3])
        else:
            self.stamp(16)
            a("s_nop 7\ns_nop 3")
            for t in range(2):
                for cc in range(2): wr(t, cc)
        a("s_branch L_final")

    def c_prologue(self, vm):
        a = self.a; T = CT
        a("s_waitcnt lgkmcnt(0)")
        if self.o.get('pst'): self.stamp(40)
        a(f"s_load_dword s{sTAG}, s[22:23], {WS_EPOCH}")
        self.srd(S_X, 4, 2097152)
        X = 160
        a(f"s_lshl4_add_u32 s{sT0}, s{sRB}, s{sG}\ns_lshl2_add_u32 s{sT5}, s{sT0}, s{sW}\ns_lshl_b32 s{sT0}, s{sT5}, 11")
        a(f"buffer_load_dwordx4 v[{X+4}:{X+7}], v{vL16}, s[{S_X}:{S_X+3}], s{sT0} offen"); vm.issue("xrow")
        a(f"buffer_load_dwordx4 v[{X+8}:{X+11}], v{vL16}, s[{S_X}:{S_X+3}], s{sT0} offen offset:1024"); vm.issue("xrow")
        a(f"s_lshl_b32 s{sE}, s{sT5}, 5\ns_add_u32 s{sE}, s{sE}, {WS_STATS}")
        self.srd(S_B1, 14, 2752)
        a(f"v_lshl_add_u32 v{X+13}, s{sW}, 6, v{vL}\nv_lshlrev_b32 v{X+3}, 1, v{X+13}")
        a(f"s_lshl_b32 s{sT0}, s{sC0}, 6\ns_cmp_lt_u32 s{sG}, 8\ns_cselect_b32 s{sT0}, {OOB}, s{sT0}")
        a(f"buffer_load_ushort v{X+12}, v{X+3}, s[{S_B1}:{S_B1+3}], s{sT0} offen"); vm.issue("bias")
        a(f"s_and_b32 s{sR2}, s{sW}, 1\ns_lshr_b32 s{sC}, s{sW}, 1")
        a(f"s_cmp_lt_u32 s{sG}, 8\ns_cselect_b32 s{sSW}, 32, 16")
        a(f"v_and_b32 v{T+2}, 15, v{vL}\nv_lshrrev_b32 v{T+3}, 4, v{vL}\nv_lshrrev_b32 v{T+4}, 1, v{T+2}\nv_xor_b32 v{T+4}, v{T+4}, v{T+3}")
        a(f"s_lshl_b32 s{sT3}, s{sR2}, 13\nv_lshlrev_b32 v{T+5}, 7, v{T+2}\nv_lshl_add_u32 v{T+5}, v{T+4}, 4, v{T+5}\nv_add_u32 v{vXA}, s{sT3}, v{T+5}\nv_xor_b32 v{vXA+1}, 64, v{vXA}")
        a(f"s_sub_u32 s{sT0}, 48, s{sSW}\nv_bfe_u32 v{T+4}, v{vL}, 1, 1\nv_mul_u32_u24 v{T+4}, s{sT0}, v{T+4}\nv_and_b32 v{T+5}, 1, v{vL}\nv_lshl_add_u32 v{T+4}, v{T+5}, 3, v{T+4}")
        a(f"v_bfe_u32 v{T+5}, v{vL}, 3, 1\nv_xor_b32 v{T+5}, s{sC}, v{T+5}\nv_lshl_add_u32 v{T+4}, v{T+5}, 6, v{T+4}")
        a(f"v_and_b32 v{T+6}, 1, v{T+3}\nv_mul_u32_u24 v{T+5}, s{sSW}, v{T+6}\nv_xor_b32 v{T+4}, v{T+4}, v{T+5}")
        a(f"v_bfe_u32 v{T+5}, v{vL}, 2, 2\nv_lshl_add_u32 v{T+4}, v{T+5}, 7, v{T+4}\nv_mul_u32_u24 v{T+5}, 3072, v{T+3}\nv_add_u32 v{T+4}, v{T+4}, v{T+5}")
        a(f"v_add_u32 v{vWA}, {L_W}, v{T+4}\nv_xor_b32 v{vWA+1}, s{sSW}, v{vWA}")
        a(f"v_lshl_add_u32 v{T+4}, v{T+6}, 5, v{T+2}\nv_lshlrev_b32 v{T+4}, 4, v{T+4}\nv_lshrrev_b32 v{T+5}, 1, v{T+3}\nv_lshl_add_u32 v{vST}, v{T+5}, 10, v{T+4}")
        a(f"s_lshl_b32 s{sT0}, s{sR2}, 8\ns_add_u32 s{sT0}, s{sT0}, {L_MT}\nv_lshl_add_u32 v{T+19}, v{T+3}, 4, s{sT0}\nv_lshl_add_u32 v{T+23}, v{T+2}, 2, s{sT0}")
        a(f"s_lshl_b32 s{sT0}, s{sC}, 7\ns_add_u32 s{sT0}, s{sT0}, {L_TAB}\nv_lshl_add_u32 v{T+22}, v{T+2}, 2, s{sT0}\nv_lshl_add_u32 v{T+18}, v{T+6}, 4, s{sT0}")
        a(f"s_lshl_b32 s{sT0}, s{sSW}, 1\ns_sub_u32 s{sT0}, 96, s{sT0}\nv_mad_u32_u24 v{T+18}, v{T+5}, s{sT0}, v{T+18}")
        self.decode2()
        self.srd(S_WS, 22, WS_SIZE); self.srd(S_OUT, 18, 2097152)
        a(f"s_lshl1_add_u32 s{sT0}, s{sRB}, s{sR2}\ns_mul_i32 s{sA2B}, s{sT0}, {2*A2_RT}\ns_add_u32 s{sA2B}, s{sA2B}, {WS_A2}")
        a(f"s_lshl4_add_u32 s{sT0}, s{sT0}, s{sG}\ns_lshl1_add_u32 s{sT0}, s{sT0}, s{sC}\ns_lshl_b32 s{sFL}, s{sT0}, 7\ns_add_u32 s{sFL}, s{sFL}, {WS_FLAG}")
        a(f"v_add_u32 v{vL16B}, {A2_RT}, v{vST}")
        self.consts()
        if self.o.get('pst'): self.stamp(41)
        self.c_stats(vm)
        self.flag_regs()
        if self.o['cprio']: a(f"s_setprio {self.o['cprio']}")

    def c_read_list(self, n):
        t, kk = n // 2, n % 2; slot = t % 3; F = FR + 40*(n & 1)
        def x(a_): return f"ds_read_b128 v[{F+4*a_}:{F+4*a_+3}], v{vXA+kk} offset:{slot*16384 + 2048*a_}"
        def w(f):
            u, fp = f // 2, f % 2; r = F + 16 + 4*f
            return [f"ds_read_b64_tr_b16 v[{r+2*rd}:{r+2*rd+1}], v{vWA+fp} offset:{slot*24576 + 12288*kk + 1024*u + 512*rd}" for rd in range(2)]
        return [x(0)] + w(0) + [x(1), x(2), x(3)] + w(1) + w(2) + w(3) + w(4) + w(5)
    def c_mfma(self, n, f, a_, att):
        F = FR + 40*(n & 1); u, fp = f // 2, f % 2
        x = f"v[{F+4*a_}:{F+4*a_+3}]"; w = f"v[{F+16+4*f}:{F+19+4*f}]"
        A = ACC + 32*u + 8*a_ + 4*fp; acc = f"v[{A}:{A+3}]"; c = "0" if n == 0 else acc
        if att and u > 0: return f"v_mfma_f32_16x16x32_bf16 {acc}, {x}, {w}, {c}"
        return f"v_mfma_f32_16x16x32_bf16 {acc}, {w}, {x}, {c}"

    def c_kloop(self, att):
        a = self.a
        a("s_waitcnt lgkmcnt(0)\ns_barrier")
        self.stamp(2)
        for r in self.c_read_list(0): a(r)
        for n in range(16):
            boundary = (n % 2 == 1)
            if boundary:
                a("s_waitcnt lgkmcnt(0)")
                if n < 15:
                    a("s_barrier")
                    if self.o['kstamps'] == 2: self.stamp(3 + n // 2)
                else:
                    a(f"s_lshl_b32 s{sT0}, s{sW}, 2\ns_add_u32 s{sT0}, s{sT0}, {L_FL}\nv_mov_b32 v14, s{sT0}\nv_mov_b32 v15, 1\nds_write_b32 v14, v15")
            R = self.c_read_list(n + 1) if n < 15 else (self.att_pre if att else self.mlp_pre)()
            need = {0: 3, 1: 6, 4: 8, 8: 10, 12: 12, 16: 14, 20: 16}
            issued = 0
            for k in range(24):
                f, a_ = k // 4, k % 4
                if f % 2 and self.o.get('snake', 1): a_ = 3 - a_
                if not boundary and k in need: a(f"s_waitcnt lgkmcnt({min(15, 16 - need[k] + issued)})")
                a(self.c_mfma(n, f, a_, att))
                if issued < len(R): a(R[issued]); issued += 1
        self.stamp(10)

    def consts(self):
        T = CT
        self.a(f"v_mov_b32 v{T}, 2.0\nv_mov_b32 v{T+2}, {f2u(-2*LN2):#x}\nv_mov_b32 v{T+4}, {f2u(LN2):#x}\nv_mov_b32 v{T+6}, 1.0\nv_mov_b32 v{T+8}, {f2u(1e-6):#x}")
    def table_list(self, dst, vaddr, off, n, step):
        return [f"ds_read_b128 v[{dst+4*q}:{dst+4*q+3}], v{vaddr} offset:{off + step*q}" for q in range(n)]
    def lane_stats_list(self):
        return [f"ds_read_b32 v{CT+10+2*q}, v{CT+23} offset:{64*q}" for q in range(4)] + [f"ds_read_b32 v{6+2*q}, v{CT+23} offset:{64*q+512}" for q in range(4)]
    def flag(self, vm, soff, imm):
        a = self.a; T = CT
        off = f" offset:{imm}" if imm else ""
        a(f"buffer_store_dword v{T+21}, v{T+20}, s[{S_WS}:{S_WS+3}], s{soff} offen{off} sc1"); vm.issue("flag")
    def release(self, off=64):
        a = self.a
        a(f"s_lshl_b32 s{sT0}, s{sW}, 2\ns_add_u32 s{sT0}, s{sT0}, {L_FL + off}\nv_mov_b32 v14, s{sT0}\nv_mov_b32 v15, 1\nds_write_b32 v14, v15")
    def flag_regs(self):
        self.lane0(CT + 20); self.a(f"v_mov_b32 v{CT+21}, s{sTAG}")

    def mlp_tabs(self, u):
        return self.table_list(116 + 16*(u & 1), CT+18, L_CS - L_TAB + 256*u, 2, 32) + self.table_list(124 + 16*(u & 1), CT+18, L_BT - L_TAB + 256*u, 2, 32)
    def mlp_pre(self):
        return self.lane_stats_list() + self.mlp_tabs(0)
    def att_pre(self):
        T = CT
        return ([f"ds_read_b32 v{148+2*k}, v{T+22} offset:{256 + 256*(k >> 1) + 64*(k & 1)}" for k in range(4)]
                + self.table_list(116, T+19, 0, 4, 64) + self.table_list(132, T+19, 512, 4, 64)
                + self.table_list(212, T+18, L_CS - L_TAB, 2, 64) + self.lane_stats_list())
    def c_epi_mlp(self, vm):
        a = self.a; T = CT; P = range(0, 16, 2)
        CP, U = 156, 172
        a(f"s_add_u32 s{sT1}, s{sC0}, s{sC}\ns_lshl_b32 s{sT1}, s{sT1}, 11\ns_add_u32 s{sA2B}, s{sA2B}, s{sT1}")
        a("s_waitcnt lgkmcnt(4)")
        for q in range(4): a(f"v_mul_f32 v{T+10+2*q}, v{T+10+2*q}, v{6+2*q}")
        for u in range(3):
            cs, bb = 116 + 16*(u & 1), 124 + 16*(u & 1)
            if u == 2:
                a(f"s_cmp_ge_u32 s{sG}, 11\ns_cselect_b32 s{sT0}, s{sC}, 0\ns_cmp_eq_u32 s{sT0}, 1\ns_cbranch_scc1 L_mlp_short")
            a("s_waitcnt lgkmcnt(0)")
            if u < 2:
                for r in self.mlp_tabs(u + 1): a(r)
            for t in range(2):
                A = ACC + 32*u + 16*t
                self.al()
                for k in P:
                    st = T + 10 + 4*t + 2*(k // 8); j = k % 8
                    a(f"v_pk_fma_f32 v[{CP+k}:{CP+k+1}], v[{st}:{st+1}], v[{cs+j}:{cs+j+1}], v[{bb+j}:{bb+j+1}] op_sel_hi:[0,1,1] neg_lo:[1,0,0] neg_hi:[1,0,0]")
                for k in P:
                    st = 6 + 4*t + 2*(k // 8)
                    a(f"v_pk_fma_f32 v[{A+k}:{A+k+1}], v[{A+k}:{A+k+1}], v[{st}:{st+1}], v[{CP+k}:{CP+k+1}] op_sel_hi:[1,0,1]")
                for k in range(16): a(f"v_exp_f32 v{U+k}, v{A+k}")
                for k in P: a(f"v_pk_add_f32 v[{CP+k}:{CP+k+1}], v[{U+k}:{U+k+1}], v[{T}:{T+1}] op_sel_hi:[1,0]")
                for k in P: a(f"v_pk_fma_f32 v[{U+k}:{U+k+1}], v[{U+k}:{U+k+1}], v[{CP+k}:{CP+k+1}], v[{T}:{T+1}] op_sel_hi:[1,1,0]")
                for k in range(16): a(f"v_rcp_f32 v{U+k}, v{U+k}")
                for k in P: a(f"v_pk_fma_f32 v[{U+k}:{U+k+1}], v[{U+k}:{U+k+1}], v[{T+2}:{T+3}], v[{T+4}:{T+5}] op_sel_hi:[1,0,0]")
                for k in P: a(f"v_pk_mul_f32 v[{U+k}:{U+k+1}], v[{U+k}:{U+k+1}], v[{A+k}:{A+k+1}]")
                for k in P: a(f"v_cvt_pk_bf16_f32 v{A+k//2}, v{U+k}, v{U+k+1}")
                if t == 0: a(f"s_add_u32 s{sT0}, s{sA2B}, {4096*u}")
                vo = vL16B if t else vST
                sc = self.o.get('actsc', 'sc1')
                if sc == 'none': continue
                a(f"buffer_store_dwordx4 v[{A}:{A+3}], v{vo}, s[{S_WS}:{S_WS+3}], s{sT0} offen {sc}"); vm.issue(f"act{u}")
                a(f"buffer_store_dwordx4 v[{A+4}:{A+7}], v{vo}, s[{S_WS}:{S_WS+3}], s{sT0} offen offset:256 {sc}"); vm.issue(f"act{u}")
                if self.o['classes'] and u == 2 and t == self.o.get('fa_at', 0):
                    vm.wait("act1"); self.flag(vm, sFL, 0)
            if u == 1 and self.o.get('rel_mlp', 0) == -1: self.release()
            self.stamp(11 + u)
        if self.o['classes']:
            if self.o.get('rel_mlp', 0) == 0: self.release()
            vm.wait("act2"); self.flag(vm, sFL, 4)
            if self.o.get('rel_mlp', 0) == 1: self.release()
            if self.o.get('hold2'): self.release(112)
            a("s_branch L_cdone")
        a.label("L_mlp_short")
        if self.o.get('rel_mlp', 0) == 0: self.release()
        a("s_waitcnt vmcnt(0)"); self.flag(VM(a), sFL, 0)
        if self.o.get('rel_mlp', 0) == 1: self.release()
        if self.o.get('hold2'): self.release(112)
        a("s_branch L_cdone")

    def phi(self, A, E, dst):
        a = self.a; T = CT; P = range(0, 16, 2)
        self.al()
        for k in range(16): a(f"v_exp_f32 v{E+k}, v{A+k}")
        for k in P: a(f"v_pk_fma_f32 v[{A+k}:{A+k+1}], v[{A+k}:{A+k+1}], v[{T+4}:{T+5}], v[{T+6}:{T+7}] op_sel_hi:[1,0,0]")
        for k in range(16): a(f"v_med3_f32 v{E+k}, v{A+k}, v{E+k}, 1.0")
        for k in P: a(f"v_pk_add_f32 v[{E+k}:{E+k+1}], v[{E+k}:{E+k+1}], v[{T+8}:{T+9}] op_sel_hi:[1,0]")
        for k in P: a(f"v_cvt_pk_bf16_f32 v{dst(k//2) if callable(dst) else dst+k//2}, v{E+k}, v{E+k+1}")

    def kv_write(self, S, flagoff):
        a = self.a
        for k in range(3): a(f"ds_write_b128 v2, v[{S+4*k}:{S+4*k+3}] offset:{1024*k}")
        a(f"v_mov_b32 v7, 1\ns_waitcnt lgkmcnt(0)\nds_write_b32 v6, v7 offset:{flagoff}")
    def kv_add(self, S, D):
        a = self.a
        for k in range(3): a(f"ds_read_b128 v[{D+4*k}:{D+4*k+3}], v4 offset:{1024*k}")
        a("s_waitcnt lgkmcnt(0)")
        for k in range(0, 12, 2): a(f"v_pk_add_f32 v[{S+k}:{S+k+1}], v[{S+k}:{S+k+1}], v[{D+k}:{D+k+1}]")

    def c_epi_att(self, vm):
        a = self.a; T = CT; P = range(0, 16, 2)
        MT, RT, E, QCS, PV, S, ZZ = 116, 132, 196, 212, 156, 172, 180
        Q, K, V = ACC, ACC + 32, ACC + 64
        if self.o.get('rel_att', 1) == -1: self.release()
        a("s_waitcnt lgkmcnt(10)")
        self.al()
        for (A, cs0) in ((K, 148), (V, 152)):
            for k in range(0, 32, 2):
                m = 4*(k // 8) + (k % 4); cs = cs0 + 2*((k % 8) // 4)
                a(f"v_pk_fma_f32 v[{A+k}:{A+k+1}], v[{MT+m}:{MT+m+1}], v[{cs}:{cs+1}], v[{A+k}:{A+k+1}] op_sel_hi:[1,0,1] neg_lo:[1,0,0] neg_hi:[1,0,0]")
            for k in range(0, 32, 2):
                m = 4*(k // 8) + (k % 4)
                a(f"v_pk_mul_f32 v[{A+k}:{A+k+1}], v[{A+k}:{A+k+1}], v[{RT+m}:{RT+m+1}]")
        if self.o.get('cst'): self.stamp(21)
        ONE = 192
        for k in range(4): a(f"v_mov_b32 v{ONE+k}, 0x3f803f80")
        def opnd(base): return lambda j: base + 4*((j >> 1) & 1) + 2*(j >> 2) + (j & 1)
        for t in range(2):
            self.phi(K + 16*t, E, opnd(K + 16*t))
            for j in range(8): a(f"v_cvt_pk_bf16_f32 v{opnd(PV + 8*t)(j)}, v{V+16*t+2*j}, v{V+16*t+2*j+1}")
            a("s_nop 1")
            for h in range(2):
                for (D, B) in ((S + 4*h, PV + 8*t + 4*h), (ZZ + 4*h, ONE)):
                    c = "0" if t == 0 else f"v[{D}:{D+3}]"
                    a(f"v_mfma_f32_16x16x32_bf16 v[{D}:{D+3}], v[{K+16*t+4*h}:{K+16*t+4*h+3}], v[{B}:{B+3}], {c}")
        if self.o.get('cst'): self.stamp(22)
        if self.o.get('rel_att', 1) == -2: self.release()
        a(f"s_lshl1_add_u32 s{sT0}, s{sC}, s{sR2}\ns_xor_b32 s{sT1}, s{sT0}, 1")
        a(f"s_mul_i32 s{sT2}, s{sT0}, 3072\ns_add_u32 s{sT2}, s{sT2}, {L_KV}\nv_add_u32 v2, s{sT2}, v{vL16}")
        a(f"s_mul_i32 s{sT2}, s{sT1}, 3072\ns_add_u32 s{sT2}, s{sT2}, {L_KV}\nv_add_u32 v4, s{sT2}, v{vL16}")
        a(f"s_lshl1_add_u32 s{sT0}, s{sG}, s{sC}\ns_lshl_b32 s{sKB}, s{sT0}, 15\ns_lshl_b32 s{sT0}, s{sR2}, 10\ns_add_u32 s{sKB}, s{sKB}, s{sT0}\ns_add_u32 s{sKB}, s{sKB}, {WS_KVP}")
        a(f"s_mov_b32 s{sEX}, 0x55555555\ns_mov_b32 s{sEX+1}, 0x55555555\ns_sub_u32 s66, 0, s{sR2}\ns_mov_b32 s67, s66")
        a(f"s_lshl_b32 s{sT2}, s{sRB}, 11\ns_add_u32 s{sT2}, s{sT2}, s{sKB}")
        even = f"s[{sEX}:{sEX+1}]"; upper = "s[66:67]"
        Z = 186; X = V; Y = V + 16
        a(f"v_mov_b32 v{X+3}, s{sTAG}\nv_mov_b32 v{X+7}, s{sTAG}\nv_mov_b32 v{X+11}, s{sTAG}")
        self.al()
        for k in range(4): a(f"v_cndmask_b32 v{ZZ+k}, v{ZZ+4+k}, v{ZZ+k}, {even}")
        for k in range(6): a(f"v_cndmask_b32 v{X+k+k//3}, v{S+6+k}, v{S+k}, {upper}")
        a(f"ds_write_b128 v2, v[{X}:{X+3}]\nds_write_b128 v2, v[{X+4}:{X+7}] offset:1024")
        for k in range(6): a(f"v_cndmask_b32 v{Z+k}, v{S+k}, v{S+6+k}, {upper}")
        if self.o.get('cst'): self.stamp(23)
        a(f"s_mov_b32 s{sSPIN}, 0")
        a.label("L_x1")
        a(f"ds_read_b128 v[{Y}:{Y+3}], v4\nds_read_b128 v[{Y+4}:{Y+7}], v4 offset:1024\ns_add_u32 s{sSPIN}, s{sSPIN}, 1\ns_waitcnt lgkmcnt(0)")
        a(f"v_cmp_ne_u32 vcc, s{sTAG}, v{Y+3}\nv_cmp_ne_u32 s[68:69], s{sTAG}, v{Y+7}\ns_cmp_gt_u32 s{sSPIN}, 0x40000\ns_cbranch_scc1 L_x1d\ns_or_b64 vcc, vcc, s[68:69]\ns_cbranch_vccnz L_x1")
        a.label("L_x1d")
        for k in range(6): a(f"v_add_f32 v{Z+k}, v{Z+k}, v{Y+k+k//3}")
        for k in range(3): a(f"v_cvt_pk_bf16_f32 v{X+8+k}, v{Z+2*k}, v{Z+2*k+1}")
        a(f"buffer_store_dwordx4 v[{X+8}:{X+11}], v{vL16}, s[{S_WS}:{S_WS+3}], s{sT2} offen sc1")
        self.stamp(11)
        if self.o.get('rel_att', 1) == 0: self.release()
        self.al()
        for k in range(0, 32, 2):
            st = T + 10 + 2*(k // 8); j = k % 8
            a(f"v_pk_fma_f32 v[{Q+k}:{Q+k+1}], v[{st}:{st+1}], v[{QCS+j}:{QCS+j+1}], v[{Q+k}:{Q+k+1}] op_sel_hi:[0,1,1] neg_lo:[1,0,0] neg_hi:[1,0,0]")
        for k in range(0, 32, 2):
            st = 6 + 2*(k // 8)
            a(f"v_pk_mul_f32 v[{Q+k}:{Q+k+1}], v[{Q+k}:{Q+k+1}], v[{st}:{st+1}] op_sel_hi:[1,0]")
        for t in range(2): self.phi(Q + 16*t, E, Q + 16*t)
        if self.o.get('rel_att', 1) == 1: self.release()
        if self.o.get('cst'): self.stamp(24)
        G = 116; S = K; U = K + 12
        a(f"s_mov_b32 s{sT5}, 0\nv_and_b32 v7, 15, v{vL}\nv_lshlrev_b32 v7, 11, v7")
        if self.o.get('pollwait'):
            a(f"v_and_b32 v11, 3, v{vL}\nv_lshlrev_b32 v11, 2, v11\nv_add_u32 v11, {L_FL}, v11")
            self.spin_lds("b2d", 11, 9, 96)
        if self.o.get('optim', 1): a("s_branch L_kv_go")
        a.label("L_kv_gather")
        self.spin_global("kv", 7, 9, sKB, 12)
        a.label("L_kv_go")
        if self.o.get('cst'): self.stamp(28)
        vg = VM(a)
        for p in range(16):
            if p % 2 == 0: a(f"s_lshl1_add_u32 s{sT2}, s{sRB}, {p}\ns_and_b32 s{sT2}, s{sT2}, 14\ns_lshl_b32 s{sT2}, s{sT2}, 11\ns_add_u32 s{sT2}, s{sT2}, s{sKB}")
            off = " offset:2048" if p % 2 else ""
            a(f"buffer_load_dwordx4 v[{G+4*p}:{G+4*p+3}], v{vL16}, s[{S_WS}:{S_WS+3}], s{sT2} offen{off} sc1"); vg.issue(f"kvg{p}")
        if self.o.get('rel_att', 1) == 3: self.release()
        if self.o.get('hold2') == 1: self.release(112)
        for p in range(0, 16, 2):
            vg.wait(f"kvg{p+1}")
            for h2 in range(2):
                d = S + 6*h2 if p == 0 else U + 6*h2; src = G + 4*(p + h2)
                for k in range(3): a(f"v_lshlrev_b32 v{d+2*k}, 16, v{src+k}\nv_and_b32 v{d+2*k+1}, 0xffff0000, v{src+k}")
            if p:
                for k in range(0, 12, 2): a(f"v_pk_add_f32 v[{S+k}:{S+k+1}], v[{S+k}:{S+k+1}], v[{U+k}:{U+k+1}]")
                a(f"v_bfi_b32 v3, v{G+4*p+3}, v{G+4*p+7}, 0\nv_or3_b32 v5, v5, v{G+4*p+3}, v{G+4*p+7}\nv_and_b32 v9, v9, v3")
            else:
                a(f"v_and_b32 v9, v{G+3}, v{G+7}\nv_or_b32 v5, v{G+3}, v{G+7}")
        if self.o.get('cst'): self.stamp(25); a(f"v_writelane_b32 v252, s{sT5}, 30")
        a(f"v_cmp_ne_u32 vcc, s{sTAG}, v9\nv_cmp_ne_u32 s[68:69], s{sTAG}, v5\ns_nop 1\ns_or_b64 vcc, vcc, s[68:69]")
        a(f"s_cbranch_vccz L_kv_ok\ns_add_u32 s{sT5}, s{sT5}, 1\ns_cmp_gt_u32 s{sT5}, 64\ns_cbranch_scc0 L_kv_gather")
        a.label("L_kv_ok")
        vm.drained()
        if self.o.get('hold2') == 2: self.release(112)
        self.stamp(12)
        for k in range(0, 6, 2): a(f"v_pk_add_f32 v[{S+k}:{S+k+1}], v[{S+k}:{S+k+1}], v[{S+6+k}:{S+7+k}]")
        for k in range(3): a(f"v_cvt_pk_bf16_f32 v{X+k}, v{S+2*k}, v{S+2*k+1}")
        a(f"ds_write_b128 v2, v[{X}:{X+3}] offset:2048\ns_mov_b32 s{sSPIN}, 0")
        a.label("L_x2")
        a(f"ds_read_b128 v[{Y}:{Y+3}], v4 offset:2048\ns_add_u32 s{sSPIN}, s{sSPIN}, 1\ns_waitcnt lgkmcnt(0)")
        a(f"v_cmp_ne_u32 vcc, s{sTAG}, v{Y+3}\ns_cmp_gt_u32 s{sSPIN}, 0x40000\ns_cbranch_scc1 L_x2d\ns_cbranch_vccnz L_x2")
        a.label("L_x2d")
        if self.o.get('cst'): self.stamp(26)
        if self.o.get('hold2') == 4: self.release(112)
        W = K + 24
        for k in range(3): a(f"v_cndmask_b32 v{W+k}, v{X+k}, v{Y+k}, {upper}\nv_cndmask_b32 v{W+3+k}, v{Y+k}, v{X+k}, {upper}")
        def pq(a_, h): r = Q + 16*(a_ >> 1) + 4*(a_ & 1) + 2*h; return f"v[{r}:{r+1}]"
        NUM, DEN, R = 116, 148, 180
        a(f"s_lshl1_add_u32 s{sT0}, s{sG}, s{sC}\ns_lshl_b32 s{sT0}, s{sT0}, 11")
        for k in range(2): a(f"v_mov_b32_dpp v{W+6+k}, v{W+4+k} quad_perm:[1,0,3,2] row_mask:0xf bank_mask:0xf")
        for k in range(2): a(f"v_cndmask_b32 v{S+k}, v{W+6+k}, v{W+4+k}, {even}\nv_cndmask_b32 v{S+2+k}, v{W+4+k}, v{W+6+k}, {even}")
        a(f"s_add_u32 s{sT0}, s{sT0}, {88*1024}\ns_add_u32 s{sT0}, s{sT0}, s{sA2B}")
        for a_ in range(4):
            for h in range(2): a(f"v_mfma_f32_16x16x16_bf16 v[{DEN+8*a_+4*h}:{DEN+8*a_+4*h+3}], v[{S+2*h}:{S+2*h+1}], {pq(a_, h)}, 0")
        for a_ in range(4):
            for h in range(2): a(f"v_mfma_f32_16x16x16_bf16 v[{NUM+8*a_+4*h}:{NUM+8*a_+4*h+3}], v[{W+2*h}:{W+2*h+1}], {pq(a_, h)}, 0")
        for k in range(8): a(f"v_add_f32 v{R+2*k}, v{T+8}, v{DEN+4*k}")
        for k in range(8): a(f"v_rcp_f32 v{R+2*k}, v{R+2*k}")
        for k in range(8): a(f"v_mul_f32 v{R+2*k}, v{T+4}, v{R+2*k}")
        for a_ in range(4):
            d = V + 4*a_
            for h in range(2):
                N = NUM + 8*a_ + 4*h; r = R + 4*a_ + 2*h
                for k in (0, 2): a(f"v_pk_mul_f32 v[{N+k}:{N+k+1}], v[{N+k}:{N+k+1}], v[{r}:{r+1}] op_sel_hi:[1,0]")
            for j in range(4): a(f"v_cvt_pk_bf16_f32 v{d+j}, v{NUM+8*a_+2*j}, v{NUM+8*a_+2*j+1}")
            off = " offset:256" if a_ & 1 else ""
            a(f"buffer_store_dwordx4 v[{d}:{d+3}], v{vL16B if a_ >> 1 else vST}, s[{S_WS}:{S_WS+3}], s{sT0} offen{off} sc1"); vm.issue("o")
            if self.o.get('onop'): a(f"s_nop {self.o['onop']}")
        if self.o.get('hold2') == 3: self.release(112)
        if self.o.get('cst'): self.stamp(27)
        vm.wait("o")
        self.flag(vm, sFL, 0)
        self.stamp(13)

    def c_main(self):
        a = self.a; vm = VM(a)
        a.label("L_C")
        if self.o['pf']: vm.issue("codepf")
        self.c_prologue(vm)
        self.stamp(1)
        a(f"s_cmp_lt_u32 s{sG}, 8\ns_cbranch_scc1 L_Catt")
        self.c_kloop(False)
        self.c_epi_mlp(vm.copy())
        a.label("L_Catt")
        self.c_kloop(True); self.c_epi_att(vm.copy())
        a(f"s_cmp_lg_u32 s2, 0\ns_cbranch_scc1 L_cdone\ns_cmp_lg_u32 s{sW}, 0\ns_cbranch_scc1 L_cdone")
        a(f"v_lshlrev_b32 v7, 10, v{vL}")
        for k in range(4):
            a(f"s_mov_b32 s{sT0}, {WS_CSP + 65536*k}")
            self.spin_global(f"ep{k}", 7, 9, sT0, 12)
        a(f"s_mov_b32 s{sT0}, {WS_EPOCH}")
        self.flag(VM(a), sT0, 0)
        a.label("L_cdone")
        self.stamp(14)
        self.final_addr(VM(a), 14, 15)

    def final(self):
        a = self.a
        a.label("L_final")
        a("s_waitcnt vmcnt(0) lgkmcnt(0)")
        if self.o.get('tst'): self.stamp(46)
        a("s_barrier")
        if self.o.get('tst'): self.stamp(47)
        R, X = 20, 60
        a(f"v_xor_b32 v19, 16, v{vRR}")
        for kq in range(4):
            a(f"ds_read_b128 v[{R+8*kq}:{R+8*kq+3}], v{vRR} offset:{2048*kq}\nds_read_b128 v[{R+8*kq+4}:{R+8*kq+7}], v19 offset:{2048*kq}")
        for k in range(4):
            a(f"v_lshlrev_b32 v{X+2*k}, 16, v{XRES+k}\nv_and_b32 v{X+2*k+1}, 0xffff0000, v{XRES+k}")
        for kq in range(4):
            a(f"s_waitcnt lgkmcnt({6-2*kq})")
            for k in range(0, 8, 2): a(f"v_pk_add_f32 v[{X+k}:{X+k+1}], v[{X+k}:{X+k+1}], v[{R+8*kq+k}:{R+8*kq+k+1}]")
        for k in range(0, 8, 2): a(f"v_cvt_pk_bf16_f32 v{R+k//2}, v{X+k}, v{X+k+1}")
        a(f"buffer_store_dwordx4 v[{R}:{R+3}], v{vXO}, s[{S_OUT}:{S_OUT+3}], s{sRES} offen {self.o.get('outsc', '')}")
        if self.stamps:
            if self.o.get('tst'): self.stamp(48)
            a("s_waitcnt vmcnt(0)")
            self.stamp(17); self.rstamp(19)
            a(f"v_writelane_b32 v252, s96, 0\nv_writelane_b32 v252, s96, 18")
            a(f"s_lshl_b32 s{sT0}, s2, 3\ns_add_u32 s{sT0}, s{sT0}, s{sW}\ns_lshl_b32 s{sT0}, s{sT0}, 8\ns_add_u32 s{sT0}, s{sT0}, {WS_STAMP}")
            a(f"v_lshlrev_b32 v14, 2, v{vL}\nbuffer_store_dword v252, v14, s[{S_WS}:{S_WS+3}], s{sT0} offen")

    def build(self):
        a = self.a
        a.label("L_code0")
        self.entry()
        self.l_main()
        self.c_main()
        self.final()
        if self.o.get('probe'):
            wg, w, k = self.o['probe']
            a(f"s_cmp_lg_u32 s2, {wg}\ns_cbranch_scc1 L_end\ns_cmp_lg_u32 s{sW}, {w}\ns_cbranch_scc1 L_end")
            a(f"v_readlane_b32 s{sT1}, v252, {k}\ns_nop 3\ns_add_u32 s{sT1}, s{sT1}, 2500\ns_mov_b32 s{sSPIN}, 0")
            a.label("L_hold")
            a(f"s_memrealtime s[{sSTAMP}:{sSTAMP+1}]\ns_add_u32 s{sSPIN}, s{sSPIN}, 1\ns_waitcnt lgkmcnt(0)\ns_sub_u32 s{sT0}, s{sSTAMP}, s{sT1}")
            a(f"s_cmp_gt_u32 s{sSPIN}, 100000\ns_cbranch_scc1 L_end\ns_cmp_lt_i32 s{sT0}, 0\ns_cbranch_scc1 L_hold")
        a.label("L_end")
        a("s_endpgm")
        a.label("L_codeend")
        return single(a.text(), 256, 512, LDS_BYTES, 256, 102, 256)

if __name__ == "__main__":
    out = sys.argv[1] if len(sys.argv) > 1 else "k.s"
    stamps = "stamps" in sys.argv[2:]
    opts = {}
    for kv in sys.argv[2:]:
        if "=" in kv:
            k, v = kv.split("="); opts[k] = eval(v)
    open(out, "w").write(Gen(stamps, opts).build())
```

```python
import sys, math, struct
from asmlib import *

def f2u(x): return struct.unpack("<I", struct.pack("<f", x))[0]
LOG2E = 1.4426950408889634
LN2 = 0.6931471805599453

WS_EPOCH = 0
WS_STATS = 0x1000
WS_CSP   = 0x10000
WS_KVP   = 0x60000
WS_FLAG  = 0x100000
WS_KVF   = 0x140000
WS_A2    = 0x200000
A2_RT    = 120 * 1024
WS_SIZE  = 0x1000000
WS_STAMP = 0xC00000
OOB      = 0x40000000

L_X    = 0
L_W    = 49152
L_MISC = 147456
L_KV   = L_MISC
L_SLAB = 122880
L_TAB  = L_MISC + 12288
L_CS   = L_TAB
L_BT   = L_CS + 768
L_MT   = L_BT + 768
L_RT   = L_MT + 512
L_FL   = L_RT + 512
LDS_BYTES = 163840

ROUND_OF_STEP = [15, 16, 17, 4, 5, 12, 13, 14, 0, 1, 6, 7, 8, 2, 3, 9, 10, 11]
NREG = 12
ARING = 6
def round_of(step):
    return ROUND_OF_STEP[step] if step < 18 else ROUND_OF_STEP[step - 18]

S_X, S_W, S_W2, S_WO, S_WS, S_OUT, S_B1 = 24, 28, 32, 36, 40, 44, 48
sW, sLW = 52, 53
sR2, sC = 53, 54
sRB, sG, sPH = 55, 56, 57
sCT, sRT, sROT = 58, 59, 60
sTAG = 61
sXO, sWOF, sWSTEP, sWEND = 62, 63, 64, 65
sXB, sLX, sLWB, sWD = 66, 67, 68, 69
sWO1, sWO2 = 70, 71
sB2L, sB2C, sB2C2, sA2B = 72, 73, 74, 75
sC0, sPITCH, sE = 76, 83, 84
sT0, sT1, sT2, sT3, sT4, sT5 = 77, 78, 79, 80, 81, 82
sSPIN = 85
sEX = 86
sMASK = 62
sFL, sKB = 64, 65
sSW = 88
sB2C3 = 84
sRES = 3
sSTAMP = 92
SP = list(range(4, 24)) + [48, 49, 50, 51, 88, 89, 90, 91, 100, 101]

vL, vL16 = 0, 1
vRR, vXO = 17, 18
XRES = 244
vX, vWv, vB2D, vB2A = 2, 6, 10, 12
vB2AL = [12, 13, 14, 15, 16, 19]
ACC2, AR, BT, B2R = 20, 84, 132, 148
vL16B = 248
vRW = 2
vXA, vWA, vST = 2, 4, 16
ACC, FR = 20, 116
CT = 220

class VM:
    def __init__(self, a): self.a = a; self.q = []
    def issue(self, tag): self.q.append(tag)
    def count(self, *tags):
        idx = max((i for i, t in enumerate(self.q) if t in tags), default=-1)
        return len(self.q) - 1 - idx if idx >= 0 else None
    def wait(self, *tags, lgkm=None):
        n = self.count(*tags)
        s = []
        if n is not None:
            assert n <= 63, n
            s.append(f"vmcnt({n})")
            self.q = self.q[len(self.q) - n:] if n else []
        if lgkm is not None: s.append(f"lgkmcnt({lgkm})")
        if s: self.a("s_waitcnt " + " ".join(s))
    def depth(self, n):
        if len(self.q) > n:
            self.a(f"s_waitcnt vmcnt({n})")
            self.q = self.q[len(self.q) - n:] if n else []
    def drained(self): self.q = []
    def copy(self):
        v = VM(self.a); v.q = list(self.q); return v

class Gen:
    def __init__(self, stamps=False, opts=None):
        self.a = Asm(); self.stamps = stamps
        self.o = dict(pf=1, hold=1, map2=0, classes=0, n0=3, spf=0, xloc=1, g3=1, pace=8, rel_mlp=1, rel_att=-2, pollwait=9, hold2=1, kstamps=False, cprio=1, w2pf=5, p0_at=27, rot=8)
        if opts: self.o.update(opts)

    def srd(self, d, p, n):
        self.a(f"s_mov_b32 s{d}, s{p}\ns_mov_b32 s{d+1}, s{p+1}\ns_mov_b32 s{d+2}, {n}\ns_mov_b32 s{d+3}, 0x20000")
    def stamp(self, idx):
        if not self.stamps: return
        self.rstamp(idx)
        if self.o.get('cyc') and idx in self.o['cyc']:
            self.a(f"s_memtime s[{sSTAMP}:{sSTAMP+1}]\ns_waitcnt lgkmcnt(0)\nv_writelane_b32 v252, s{sSTAMP}, {idx + 40}")
    def rstamp(self, idx):
        if not self.stamps: return
        if 'only' in self.o and idx not in self.o['only']: return
        self.a(f"s_memrealtime s[{sSTAMP}:{sSTAMP+1}]\ns_waitcnt lgkmcnt(0)\nv_writelane_b32 v252, s{sSTAMP}, {idx}")
    def al(self):
        if self.o.get('align', 1): self.a(".p2align 3")
    def lane0(self, v):
        self.a(f"v_cmp_eq_u32 vcc, 0, v{vL}\nv_mov_b32 v{v}, {OOB}\ns_nop 0\nv_cndmask_b32 v{v}, v{v}, 0, vcc")
    def tag(self):
        self.a(f"s_mul_i32 s{sTAG}, s{sTAG}, 0x9e3779b1\ns_add_u32 s{sTAG}, s{sTAG}, 0x7f4a7c15")
    def decode2(self):
        a = self.a
        if self.o['map2'] == 0:
            a(f"s_and_b32 s{sT0}, s2, 7\ns_lshr_b32 s{sT1}, s2, 3\ns_and_b32 s{sCT}, s{sT1}, 7\ns_lshr_b32 s{sT1}, s{sT1}, 3")
            if self.o.get('ctmap', 1):
                a(f"s_xor_b32 s{sT1}, s{sT1}, 2\ns_and_b32 s{sROT}, s{sCT}, 1\ns_lshl1_add_u32 s{sROT}, s{sT1}, s{sROT}\ns_lshr_b32 s{sT1}, s{sCT}, 1\ns_mov_b32 s{sCT}, s{sROT}")
            if self.o['xloc']: a(f"s_lshr_b32 s{sRT}, s{sT0}, 1\ns_and_b32 s{sT0}, s{sT0}, 1\ns_lshl2_add_u32 s{sT0}, s{sT0}, s{sRT}")
            a(f"s_lshl2_add_u32 s{sRT}, s{sT0}, s{sT1}\ns_lshl1_add_u32 s{sROT}, s{sT1}, s{sCT}")
        else:
            a(f"s_and_b32 s{sT0}, s2, 1\ns_bfe_u32 s{sT1}, s2, 0x20003\ns_lshl2_add_u32 s{sCT}, s{sT0}, s{sT1}")
            a(f"s_bfe_u32 s{sT0}, s2, 0x20001\ns_lshr_b32 s{sROT}, s2, 5\ns_lshl3_add_u32 s{sRT}, s{sT0}, s{sROT}\ns_lshl1_add_u32 s{sROT}, s{sT1}, s{sROT}")
    def final_addr(self, vm, t0, t1):
        a = self.a
        a(f"v_lshrrev_b32 v{t0}, 3, v{vL}\nv_and_b32 v{t1}, 7, v{vL}\nv_lshlrev_b32 v{vXO}, 10, v{t0}\nv_lshl_add_u32 v{vXO}, v{t1}, 4, v{vXO}")
        a(f"s_lshl3_add_u32 s{sT0}, s{sRT}, s{sW}\ns_lshl_b32 s{sT0}, s{sT0}, 13\ns_lshl_b32 s{sT1}, s{sCT}, 7\ns_add_u32 s{sRES}, s{sT0}, s{sT1}")
        if vm is not None: self.xres(vm)
        a(f"v_lshlrev_b32 v{t1}, 1, v{t1}\nv_xor_b32 v{t1}, v{t1}, v{t0}\nv_lshlrev_b32 v{t1}, 4, v{t1}\nv_lshl_add_u32 v{vRR}, v{t0}, 8, v{t1}")
        a(f"s_lshl_b32 s{sT0}, s{sW}, 13\nv_add_u32 v{vRR}, s{sT0}, v{vRR}")

    def xres(self, vm):
        self.a(f"buffer_load_dwordx4 v[{XRES}:{XRES+3}], v{vXO}, s[{S_X}:{S_X+3}], s{sRES} offen"); vm.issue("xres")
    def spin_global(self, name, vaddr, vtmp, soff, imm=0, srd=S_WS):
        a = self.a
        off = f" offset:{imm}" if imm else ""
        a(f"s_mov_b32 s{sSPIN}, 0")
        a.label(f"L_sp{name}")
        a(f"buffer_load_dword v{vtmp}, v{vaddr}, s[{srd}:{srd+3}], s{soff} offen{off} sc1\ns_add_u32 s{sSPIN}, s{sSPIN}, 1\ns_waitcnt vmcnt(0)")
        a(f"v_cmp_ne_u32 vcc, s{sTAG}, v{vtmp}\ns_cmp_gt_u32 s{sSPIN}, 0x8000\ns_cbranch_scc1 L_sd{name}\ns_cbranch_vccz L_sd{name}\ns_sleep {self.o.get('sleep', 2)}\ns_branch L_sp{name}")
        a.label(f"L_sd{name}")
    def spin_lds(self, name, vaddr, vtmp, off):
        a = self.a
        a(f"s_mov_b32 s{sSPIN}, 0")
        a.label(f"L_sp{name}")
        a(f"ds_read_b32 v{vtmp}, v{vaddr} offset:{off}\ns_add_u32 s{sSPIN}, s{sSPIN}, 1\ns_waitcnt lgkmcnt(0)")
        a(f"v_cmp_ne_u32 vcc, 1, v{vtmp}\ns_cmp_gt_u32 s{sSPIN}, 0x40000\ns_cbranch_scc1 L_sd{name}\ns_cbranch_vccnz L_sp{name}")
        a.label(f"L_sd{name}")

    def entry(self):
        a = self.a
        a("s_cmp_ge_u32 s2, 256\ns_cbranch_scc1 L_end")
        a("s_load_dwordx16 s[4:19], s[0:1], 0\ns_load_dwordx4 s[20:23], s[0:1], 64")
        if self.o['pf']:
            a(f"s_getpc_b64 s[{sT0+1}:{sT0+2}]\ns_bfe_u32 s{sT0}, s2, 0x30003\ns_mul_i32 s{sT0}, s{sT0}, 5120\nv_lshlrev_b32 v2, 4, v0\nv_min_u32 v2, 4992, v2\nv_add_u32 v2, s{sT0}, v2")
            a.label("L_pc")
            a(f"v_min_u32 v2, L_codeend-L_pc, v2\ns_mov_b32 exec_lo, 0x01010101\ns_mov_b32 exec_hi, 0x01010101\nglobal_load_dword v251, v2, s[{sT0+1}:{sT0+2}]\ns_mov_b64 exec, -1".replace("0x01010101", self.o.get('pfmask', "0x01010101")))
        if self.stamps:
            a("v_mov_b32 v252, 0\ns_memrealtime s[96:97]")
        a(f"v_lshrrev_b32 v1, 6, v0\nv_and_b32 v{vL}, 63, v0\nv_readfirstlane_b32 s{sW}, v1")
        a(f"s_bfe_u32 s{sT0}, s2, 0x30003\ns_and_b32 s{sT1}, s2, 1\ns_lshl3_add_u32 s{sRB}, s{sT1}, s{sT0}")
        a(f"s_lshr_b32 s{sT1}, s2, 6\ns_bfe_u32 s{sT2}, s2, 0x20001")
        if self.o['g3']: a(f"s_xor_b32 s{sT2}, s{sT2}, 3")
        a(f"s_lshl2_add_u32 s{sG}, s{sT1}, s{sT2}")
        a(f"s_sub_u32 s{sT0}, s{sG}, 8\ns_min_u32 s{sT1}, s{sT0}, 3\ns_mul_i32 s{sC0}, s{sT0}, 5\ns_add_u32 s{sC0}, s{sC0}, s{sT1}")
        a(f"v_lshlrev_b32 v{vL16}, 4, v{vL}")
        a(f"s_cmp_lt_u32 s{sW}, 4\ns_cbranch_scc1 L_C")

    def l_stage(self, vm, t):
        a = self.a; slot = t % 3
        def xpart():
            a(f"s_add_u32 m0, s{sLX}, {L_X + slot*16384}\ns_lshl_b32 s{sXO}, s{sPH}, 7\ns_add_u32 s{sXO}, s{sXO}, s{sXB}")
            for ii in range(4):
                off = f" offset:{1024*ii}" if ii else ""
                a(f"buffer_load_dwordx4 v{vX+ii}, s[{S_X}:{S_X+3}], s{sXO} offen{off} lds"); vm.issue(f"st{t}")
        if t > 0: xpart()
        a(f"s_add_u32 m0, s{sLWB}, {slot*24576}\ns_sub_u32 s{sWO1}, s{sWOF}, s{sWD}\ns_sub_u32 s{sWO2}, s{sWO1}, s{sWD}")
        for rg in range(2):
            if rg: a(f"s_add_u32 m0, s{sLWB}, {slot*24576 + 3072}\ns_nop 0")
            a(f"buffer_load_dwordx4 v{vWv+2*rg}, s[{S_W}:{S_W+3}], s{sWOF} offen lds"); vm.issue(f"st{t}")
            a(f"buffer_load_dwordx4 v{vWv+2*rg}, s[{S_W}:{S_W+3}], s{sWO1} offen offset:1024 lds"); vm.issue(f"st{t}")
            a(f"buffer_load_dwordx4 v{vWv+2*rg+1}, s[{S_W}:{S_W+3}], s{sWO2} offen offset:2048 lds"); vm.issue(f"st{t}" if t or not rg else "st0w")
        if t == 0: xpart()
        if t < 7:
            a(f"s_add_u32 s{sWOF}, s{sWOF}, s{sWSTEP}\ns_add_u32 s{sPH}, s{sPH}, 1\ns_and_b32 s{sPH}, s{sPH}, 7\ns_cselect_b32 s{sT0}, 0, s{sWEND}\ns_sub_u32 s{sWOF}, s{sWOF}, s{sT0}")

    def l_prologue(self, vm):
        a = self.a; T = ACC2
        pm = self.o.get('phmode', 0)
        if pm == 0: a(f"s_bfe_u32 s{sT0}, s2, 0x30003\ns_lshr_b32 s{sT1}, s2, 6\ns_lshl1_add_u32 s{sPH}, s{sT1}, s{sT0}\ns_and_b32 s{sPH}, s{sPH}, 7")
        elif pm == 1: a(f"s_bfe_u32 s{sT0}, s2, 0x30003\ns_bfe_u32 s{sT1}, s2, 0x10006\ns_lshl2_add_u32 s{sPH}, s{sT1}, s{sT0}\ns_and_b32 s{sPH}, s{sPH}, 7")
        elif pm in (2, 3):
            a(f"s_bfe_u32 s{sT0}, s2, 0x30003\ns_bfe_u32 s{sT1}, s2, 0x10006\ns_lshl2_add_u32 s{sPH}, s{sT1}, s{sT0}\ns_lshr_b32 s{sT1}, s2, 7")
            if pm == 3: a(f"s_xor_b32 s{sT1}, s{sT1}, 1")
            a(f"s_add_u32 s{sPH}, s{sPH}, s{sT1}\ns_and_b32 s{sPH}, s{sPH}, 7")
        a(f"s_sub_u32 s{sLW}, s{sW}, 4\ns_movk_i32 s{sPITCH}, 2752\ns_cmp_lt_u32 s{sG}, 8\ns_cselect_b32 s{sPITCH}, 3072, s{sPITCH}")
        a(f"s_cselect_b32 s{sWD}, 0, 896\ns_cselect_b32 s{sT3}, 0, 2048")
        a(f"s_lshl_b32 s{sT0}, s{sG}, 7\ns_lshl_b32 s{sT1}, s{sC0}, 6\ns_cmp_lt_u32 s{sG}, 8\ns_cselect_b32 s{sT5}, s{sT0}, s{sT1}\ns_add_u32 s{sT5}, s{sT5}, s{sT3}")
        a(f"v_lshrrev_b32 v{T}, 4, v{vL}\nv_and_b32 v{T+1}, 7, v{vL}\nv_xor_b32 v{T}, v{T}, v{T+1}\nv_lshlrev_b32 v{T}, 4, v{T}\nv_lshrrev_b32 v{T+2}, 3, v{vL}")
        a(f"v_lshl_add_u32 v{vX}, v{T+2}, 10, v{T}\nv_xor_b32 v{vX+1}, 64, v{vX}\nv_add_u32 v{vX+1}, 7168, v{vX+1}\nv_add_u32 v{vX+2}, 14336, v{vX}\nv_add_u32 v{vX+3}, 14336, v{vX+1}")
        a(f"v_lshrrev_b32 v{T}, 2, v{vL}\nv_and_b32 v{T}, 4, v{T}\nv_xor_b32 v{T}, v{T}, v{T+1}\nv_lshlrev_b32 v{T}, 4, v{T}")
        a(f"s_cmp_ge_u32 s{sG}, 11\ns_cselect_b32 s{sT4}, 64, 128\nv_mad_u32_u24 v{vWv}, v{T+2}, s{sPITCH}, v{T}\nv_cmp_gt_u32 vcc, s{sT4}, v{T}\nv_mov_b32 v{vWv+1}, {OOB}")
        a(f"s_lshl_b32 s{sT0}, s{sPITCH}, 3\nv_cndmask_b32 v{vWv+1}, v{vWv+1}, v{vWv}, vcc\ns_cmp_lt_u32 s{sG}, 8\ns_cselect_b32 s{sT1}, 32, 16\nv_xor_b32 v{vWv+2}, s{sT1}, v{vWv}\nv_xor_b32 v{vWv+3}, s{sT1}, v{vWv+1}\nv_add_u32 v{vWv+2}, s{sT0}, v{vWv+2}\nv_add_u32 v{vWv+3}, s{sT0}, v{vWv+3}")
        a(f"s_lshl2_add_u32 s{sXB}, s{sRB}, s{sLW}\ns_lshl_b32 s{sXB}, s{sXB}, 15\ns_lshl_b32 s{sWSTEP}, s{sPITCH}, 6\ns_lshl_b32 s{sWEND}, s{sPITCH}, 9")
        a(f"s_lshl2_add_u32 s{sT0}, s{sPH}, s{sLW}\ns_lshl_b32 s{sT0}, s{sT0}, 4\ns_mul_i32 s{sWOF}, s{sT0}, s{sPITCH}\ns_add_u32 s{sWOF}, s{sWOF}, s{sT5}")
        a(f"s_lshl_b32 s{sLX}, s{sLW}, 12\ns_mul_i32 s{sLWB}, s{sLW}, 6144\ns_add_u32 s{sLWB}, s{sLWB}, {L_W}")
        a(f"s_mov_b32 s{S_X+2}, 2097152\ns_mov_b32 s{S_X+3}, 0x20000\ns_add_u32 s{S_W+2}, s{sWEND}, s{sT3}\ns_mov_b32 s{S_W+3}, 0x20000")
        a("s_waitcnt lgkmcnt(0)")
        self.stamp(1)
        a(f"s_load_dword s{sTAG}, s[22:23], {WS_EPOCH}")
        a(f"s_mov_b32 s{S_X}, s4\ns_mov_b32 s{S_X+1}, s5\ns_sub_u32 s12, s12, 2048\ns_subb_u32 s13, s13, 0")
        a(f"s_cmp_lt_u32 s{sG}, 8\ns_cselect_b32 s{S_W}, s6, s12\ns_cselect_b32 s{S_W+1}, s7, s13")
        self.l_stage(vm, 0)
        if self.o.get('pst'): self.stamp(40)
        a(f"v_lshl_add_u32 v{vB2D}, v{T+2}, 10, v{T}\nv_add_u32 v{vB2D+1}, 7168, v{vB2D}\nv_add_u32 v253, 15360, v{vB2D}")
        self.srd(S_WS, 22, WS_SIZE); self.srd(S_W2, 16, 1376*1024); self.srd(S_WO, 8, 512*1024); self.srd(S_OUT, 18, 2097152)
        self.decode2()
        a(f"v_bfe_u32 v{T}, v{vL}, 2, 2\nv_lshrrev_b32 v{T+1}, 1, v{T}\nv_lshlrev_b32 v{T}, 7, v{T}\nv_lshl_add_u32 v{T}, v{T+1}, 6, v{T}")
        a(f"v_bfe_u32 v{T+1}, v{vL}, 4, 1\nv_lshl_add_u32 v{T}, v{T+1}, 5, v{T}\nv_and_b32 v{T+1}, 3, v{vL}\nv_lshl_add_u32 v{T+14}, v{T+1}, 3, v{T}\nv_lshrrev_b32 v{T+15}, 5, v{vL}")
        a(f"s_lshl_b32 s{sB2L}, s{sLW}, 11\nv_lshl_add_u32 v{vB2AL[0]}, v{T+15}, 9, v{T+14}\nv_add_u32 v{vB2AL[0]}, s{sB2L}, v{vB2AL[0]}\nv_xor_b32 v{vB2AL[1]}, 64, v{vB2AL[0]}")
        for hi in (1, 2):
            a(f"v_add_u32 v{vB2AL[2*hi]}, {65536*hi}, v{vB2AL[0]}\nv_add_u32 v{vB2AL[2*hi+1]}, {65536*hi}, v{vB2AL[1]}")
        a(f"v_and_b32 v{T}, 31, v{vL}\nv_lshlrev_b32 v{T}, 2, v{T}\nv_add_u32 v{T}, {L_FL}, v{T}\nv_mov_b32 v{T+1}, 0\nds_write_b32 v{T}, v{T+1}")

    def l_colsum_pre(self):
        a = self.a; T = ACC2; S = T + 16
        a(f"s_mul_i32 s{sT0}, s{sLW}, 6144\ns_add_u32 s{sT0}, s{sT0}, {L_W}\nv_mul_u32_u24 v{T}, 3072, v{T+15}\nv_add3_u32 v{T}, v{T}, v{T+14}, s{sT0}")
        a(f"s_cmp_lt_u32 s{sG}, 8\ns_cselect_b32 s{sT0}, 32, 16\nv_mul_u32_u24 v{T+1}, s{sT0}, v{T+15}\nv_xor_b32 v{T}, v{T}, v{T+1}\nv_xor_b32 v{T+1}, 64, v{T}")
        a(f"s_mov_b32 s{sT5}, 0x3f803f80")
        for k in range(6): a(f"v_mov_b32 v{S+k}, 0")
        a(f"s_mul_i32 s{sT1}, s{sLW}, 1536\ns_add_u32 s{sT1}, s{sT1}, {L_SLAB}\nv_and_b32 v{T+2}, 31, v{vL}\nv_lshl_add_u32 v{T+2}, v{T+2}, 2, s{sT1}\nv_mul_u32_u24 v{T+3}, 768, v{T+15}\nv_add_u32 v{T+2}, v{T+2}, v{T+3}")
    def l_colsum(self):
        a = self.a; T = ACC2; F = AR; S = T + 16
        for u in range(3):
            for c in range(2):
                for rd in range(2):
                    r = F + 8*u + 4*c + 2*rd
                    a(f"ds_read_b64_tr_b16 v[{r}:{r+1}], v{T+c} offset:{1024*u + 512*rd}")
        for half in range(2):
            a(f"s_waitcnt lgkmcnt({6 - 6*half})")
            for k in range(4):
                for uc in range(3*half, 3*half + 3): a(f"v_dot2c_f32_bf16 v{S+uc}, s{sT5}, v{F+4*uc+k}")
        a("s_nop 2")
        for uc in range(6): a(f"ds_write_b32 v{T+2}, v{S+uc} offset:{128*uc}")

    def wave_sum2(self, v0, v1, t0, t1):
        a = self.a
        for m in ("quad_perm:[1,0,3,2]", "quad_perm:[2,3,0,1]", "row_half_mirror", "row_mirror"):
            a(f"s_nop 0\nv_add_f32_dpp v{v0}, v{v0}, v{v0} {m} row_mask:0xf bank_mask:0xf\nv_add_f32_dpp v{v1}, v{v1}, v{v1} {m} row_mask:0xf bank_mask:0xf")
        for op in ("v_permlane16_swap_b32", "v_permlane32_swap_b32"):
            a(f"v_mov_b32 v{t0}, v{v0}\nv_mov_b32 v{t1}, v{v1}\ns_nop 1\n{op} v{t0}, v{v0}\n{op} v{t1}, v{v1}\ns_nop 0\nv_add_f32 v{v0}, v{v0}, v{t0}\nv_add_f32 v{v1}, v{v1}, v{t1}")

    def c_stats(self, vm):
        a = self.a; T = 160; u = 116
        vm.wait("xrow", lgkm=0)
        if self.o.get('pst'): self.stamp(42)
        self.tag()
        for r in range(2):
            for k in range(4):
                a(f"v_lshlrev_b32 v{u+8*r+2*k}, 16, v{T+4+4*r+k}\nv_and_b32 v{u+8*r+2*k+1}, 0xffff0000, v{T+4+4*r+k}")
        s0, s1 = u + 16, u + 17
        for r, s in ((0, s0), (1, s1)): a(f"v_add_f32 v{s}, v{u+8*r}, v{u+8*r+1}")
        for k in range(2, 8):
            for r, s in ((0, s0), (1, s1)): a(f"v_add_f32 v{s}, v{s}, v{u+8*r+k}")
        self.wave_sum2(s0, s1, u + 40, u + 41)
        G0, G1 = u + 20, u + 24
        a(f"v_mul_f32 v{G0}, {f2u(1/512.):#x}, v{s0}\nv_mul_f32 v{G1}, {f2u(1/512.):#x}, v{s1}")
        for k in range(8):
            a(f"v_sub_f32 v{u+k}, v{u+k}, v{G0}\nv_sub_f32 v{u+8+k}, v{u+8+k}, v{G1}")
        a(f"v_mul_f32 v{s0}, v{u}, v{u}\nv_mul_f32 v{s1}, v{u+8}, v{u+8}")
        for k in range(1, 8): a(f"v_fmac_f32 v{s0}, v{u+k}, v{u+k}\nv_fmac_f32 v{s1}, v{u+8+k}, v{u+8+k}")
        self.wave_sum2(s0, s1, u + 40, u + 41)
        a(f"v_mov_b32 v{u}, {f2u(1e-5):#x}\nv_mov_b32 v{u+1}, {f2u(1e-5):#x}\nv_fmac_f32 v{u}, {f2u(1/512.):#x}, v{s0}\nv_fmac_f32 v{u+1}, {f2u(1/512.):#x}, v{s1}")
        a(f"v_rsq_f32 v{u}, v{u}\nv_rsq_f32 v{u+1}, v{u+1}\nv_mov_b32 v{G0+2}, 0\nv_mov_b32 v{G0+3}, s{sTAG}\nv_mov_b32 v{G1+2}, 0\nv_mov_b32 v{G1+3}, s{sTAG}")
        a(f"v_mul_f32 v{G0+1}, {f2u(LOG2E):#x}, v{u}\nv_mul_f32 v{G1+1}, {f2u(LOG2E):#x}, v{u+1}")
        self.lane0(u + 2)
        a(f"buffer_store_dwordx4 v[{G0}:{G0+3}], v{u+2}, s[{S_WS}:{S_WS+3}], s{sE} offen sc1"); vm.issue("statst")
        a(f"buffer_store_dwordx4 v[{G1}:{G1+3}], v{u+2}, s[{S_WS}:{S_WS+3}], s{sE} offen offset:16 sc1"); vm.issue("statst")
        if self.o.get('pst'): self.stamp(43)
        vm.wait("bias")
        a(f"v_lshlrev_b32 v{u+3}, 16, v{T+12}\nv_mul_f32 v{u+3}, {f2u(LOG2E):#x}, v{u+3}\nv_lshlrev_b32 v{u+4}, 2, v{T+13}\nv_add_u32 v{u+4}, {L_BT}, v{u+4}")
        a(f"s_cmp_eq_u32 s{sW}, 3\ns_cbranch_scc1 L_nobt\nds_write_b32 v{u+4}, v{u+3}")
        a.label("L_nobt")

    def l_cspub(self, vm, vi):
        a = self.a; T = ACC2 + 24; U = B2R
        a(f"s_mov_b32 s{sT0}, {OOB}\ns_cmp_lg_u32 s{sLW}, 0\ns_cbranch_scc1 L_nocsp{vi}")
        a(f"v_lshlrev_b32 v{T}, 2, v{vL}\nv_add_u32 v{T}, {L_SLAB}, v{T}")
        for k in range(0, 24, 2): a(f"ds_read2st64_b32 v[{U+k}:{U+k+1}], v{T} offset0:{k} offset1:{k+1}")
        a(f"v_mov_b32 v{T+3}, s{sTAG}")
        a(f"s_lshl4_add_u32 s{sT0}, s{sG}, s{sRB}\ns_lshl_b32 s{sT0}, s{sT0}, 10\ns_add_u32 s{sT0}, s{sT0}, {WS_CSP}")
        a("s_waitcnt lgkmcnt(0)")
        for sl in range(1, 7):
            for u in range(3): a(f"v_add_f32 v{U+u}, v{U+u}, v{U+3*sl+u}")
        for u in range(3): a(f"v_add_f32 v{T+u}, v{U+u}, v{U+21+u}")
        a.label(f"L_nocsp{vi}")
        a(f"buffer_store_dwordx4 v[{T}:{T+3}], v{vL16}, s[{S_WS}:{S_WS+3}], s{sT0} offen sc1"); vm.issue("cspst")

    def l_steptable(self):
        a = self.a
        a("s_waitcnt lgkmcnt(0)")
        if not self.o['classes']:
            a(f"s_mul_i32 s{sT0}, s{sROT}, 3\ns_lshr_b32 s{sT0}, s{sT0}, {0 if self.o['map2'] == 0 else 1}")
            a(f"s_sub_u32 s{sT1}, s{sT0}, 22\ns_cmp_ge_u32 s{sT0}, 22\ns_cselect_b32 s{sT0}, s{sT1}, s{sT0}")
            a(f"s_mul_i32 s{sT3}, s{sLW}, 22\ns_add_u32 s{sT4}, s{sT3}, 22\ns_add_u32 s{sT0}, s{sT0}, s{sT3}")
            for i in range(22):
                a(f"s_lshl_b32 s{SP[i]}, s{sT0}, 10\ns_cmp_ge_u32 s{sT0}, 86\ns_cselect_b32 s{SP[i]}, {WS_SIZE}, s{SP[i]}")
                if i < 21: a(f"s_add_u32 s{sT0}, s{sT0}, 1\ns_cmp_eq_u32 s{sT0}, s{sT4}\ns_cselect_b32 s{sT0}, s{sT3}, s{sT0}")
        else:
            for k, d in ((0, sT4), (1, sT5)):
                a(f"s_lshl_b32 s{sT0}, s{sLW}, 1\ns_add_u32 s{sT0}, s{sT0}, {k}\ns_min_u32 s{sT1}, s{sT0}, 3\ns_mul_i32 s{sT0}, s{sT0}, 5\ns_add_u32 s{sT0}, s{sT0}, s{sT1}\ns_lshl_b32 s{d}, s{sT0}, 1")
            a(f"s_lshl_b32 s{sT3}, s{sROT}, 1")
            for i in range(16):
                a(f"s_add_u32 s{sT0}, s{sT3}, {i}\ns_and_b32 s{sT1}, s{sT0}, 7\ns_bitcmp1_b32 s{sT0}, 3\ns_cselect_b32 s{sT0}, s{sT5}, s{sT4}\ns_add_u32 s{sT0}, s{sT0}, s{sT1}\ns_lshl_b32 s{SP[i]}, s{sT0}, 10")
            tab = [[4, 5, 10], [11, 16, 17], [22, 27, 32], [37, 42, 43]]
            a(f"s_lshl_b32 s{sT0}, s{sLW}, 3\ns_or_b32 s{sT0}, s{sT0}, 0x80000")
            for k, d in ((0, sT3), (1, sT4), (2, sT5)):
                c = sum(tab[q][k] << (8*q) for q in range(4))
                a(f"s_bfe_u32 s{d}, {c:#x}, s{sT0}\ns_lshl_b32 s{d}, s{d}, 11")
            a(f"s_cmp_eq_u32 s{sLW}, 3\ns_cselect_b32 s{sT5}, {WS_SIZE}, s{sT5}")
            a(f"s_mov_b32 s{sT0}, s{sROT}")
            for r in range(2): a(f"s_sub_u32 s{sT1}, s{sT0}, 6\ns_cmp_ge_u32 s{sT0}, 6\ns_cselect_b32 s{sT0}, s{sT1}, s{sT0}")
            for i in range(6):
                a(f"s_cmp_ge_u32 s{sT0}, 2\ns_cselect_b32 s{sT1}, s{sT4}, s{sT3}\ns_cmp_ge_u32 s{sT0}, 4\ns_cselect_b32 s{sT1}, s{sT5}, s{sT1}")
                a(f"s_and_b32 s{sT2}, s{sT0}, 1\ns_lshl_b32 s{sT2}, s{sT2}, 10\ns_add_u32 s{SP[16+i]}, s{sT1}, s{sT2}")
                if i < 5: a(f"s_add_u32 s{sT0}, s{sT0}, 1\ns_cmp_eq_u32 s{sT0}, 6\ns_cselect_b32 s{sT0}, 0, s{sT0}")
        a(f"s_lshl_b32 s{sT3}, s{sLW}, 3\ns_add_u32 s{sT3}, s{sT3}, 88")
        for j in range(4):
            a(f"s_add_u32 s{sT0}, s{sROT}, {j}\ns_and_b32 s{sT0}, s{sT0}, 3\ns_lshl1_add_u32 s{sT0}, s{sT0}, s{sT3}\ns_lshl_b32 s{SP[22+2*j]}, s{sT0}, 10\ns_add_u32 s{SP[23+2*j]}, s{SP[22+2*j]}, 1024")
        a(f"s_lshl_b32 s{sB2C}, s{sCT}, 7\ns_sub_u32 s{sB2C2}, s{sB2C}, {88*16384}\ns_sub_u32 s{sB2C3}, s{sB2C2}, 8192")
        a(f"s_mul_i32 s{sA2B}, s{sRT}, {2*A2_RT}\ns_add_u32 s{sA2B}, s{sA2B}, {WS_A2}\nv_add_u32 v{vL16B}, {A2_RT}, v{vL16}")

    def l_gather_addr(self):
        a = self.a; T = ACC2 + 40; sT4, sT5 = 86, 87
        a(f"s_lshl2_add_u32 s{sT4}, s{sRB}, s{sLW}\ns_lshl_b32 s{sT4}, s{sT4}, 9\ns_add_u32 s{sT4}, s{sT4}, {WS_STATS}")
        a(f"s_and_b32 s{sT5}, s{sRB}, 8\ns_lshl4_add_u32 s{sT5}, s{sG}, s{sT5}\ns_lshl2_add_u32 s{sT5}, s{sT5}, s{sLW}\ns_lshl_b32 s{sT5}, s{sT5}, 8\ns_add_u32 s{sT5}, s{sT5}, {WS_CSP}")
        a(f"v_and_b32 v{T}, 0x1f0, v{vL16}\nv_lshrrev_b32 v{T+1}, 4, v{vL}\nv_lshlrev_b32 v{T+1}, 10, v{T+1}\nv_and_b32 v{T+2}, 0xf0, v{vL16}\nv_or_b32 v{T+1}, v{T+1}, v{T+2}\nv_add_u32 v{T+2}, 4096, v{T+1}")
    def l_gather_issue(self, vm):
        a = self.a; T = ACC2 + 40; G = AR; sT4, sT5 = 86, 87
        a(f"buffer_load_dwordx4 v[{G}:{G+3}], v{T}, s[{S_WS}:{S_WS+3}], s{sT4} offen sc1"); vm.issue("gath")
        a(f"buffer_load_dwordx4 v[{G+4}:{G+7}], v{T+1}, s[{S_WS}:{S_WS+3}], s{sT5} offen sc1"); vm.issue("gath")
        a(f"buffer_load_dwordx4 v[{G+8}:{G+11}], v{T+2}, s[{S_WS}:{S_WS+3}], s{sT5} offen sc1"); vm.issue("gath")
    def l_gather_check(self, vm, vi):
        a = self.a; T = ACC2; G = AR
        vm.wait("gath")
        a(f"s_mov_b32 s{sSPIN}, 0")
        a.label(f"L_gchk{vi}")
        a(f"v_cmp_ne_u32 vcc, s{sTAG}, v{G+3}\nv_cmp_ne_u32 s[70:71], s{sTAG}, v{G+7}\ns_nop 1\ns_or_b64 s[70:71], vcc, s[70:71]")
        a(f"v_cmp_ne_u32 vcc, s{sTAG}, v{G+11}\ns_nop 1\ns_or_b64 vcc, vcc, s[70:71]")
        a(f"s_cbranch_vccz L_gok{vi}")
        a(f"s_add_u32 s{sSPIN}, s{sSPIN}, 1\ns_cmp_gt_u32 s{sSPIN}, 0x8000\ns_cbranch_scc1 L_gok{vi}")
        self.l_gather_issue(VM(a))
        a(f"s_waitcnt vmcnt(0)\ns_branch L_gchk{vi}")
        a.label(f"L_gok{vi}")
        a(f"s_lshl_b32 s{sT0}, s{sLW}, 7\ns_add_u32 s{sT0}, s{sT0}, {L_MT}\nv_and_b32 v{T}, 31, v{vL}\nv_lshl_add_u32 v{T}, v{T}, 2, s{sT0}")
        a(f"ds_write_b32 v{T}, v{G}\nds_write_b32 v{T}, v{G+1} offset:512")
    def l_w2touch(self, vm):
        a = self.a; T = ACC2 + 8
        a(f"s_lshl2_add_u32 s{sT0}, s2, s{sLW}\ns_lshl_b32 s{sT1}, s{sT0}, 9\ns_mul_i32 s{sT0}, s{sT0}, 1408\nv_lshlrev_b32 v{T}, 7, v{vL}\ns_mov_b64 exec, 0x7ff")
        a(f"buffer_load_dword v{T+1}, v{T}, s[{S_W2}:{S_W2+3}], s{sT0} offen\ns_mov_b64 exec, 0xf"); vm.issue("w2t")
        a(f"buffer_load_dword v{T+2}, v{T}, s[{S_WO}:{S_WO+3}], s{sT1} offen\ns_mov_b64 exec, -1"); vm.issue("w2t")
    def l_gather_cs(self):
        a = self.a; T = ACC2; G = AR
        for k in range(3): a(f"v_add_f32 v{G+4+k}, v{G+4+k}, v{G+8+k}")
        for op in ("v_permlane16_swap_b32", "v_permlane32_swap_b32"):
            for k in range(3): a(f"v_mov_b32 v{G+8+k}, v{G+4+k}")
            a("s_nop 0")
            for k in range(3): a(f"{op} v{G+8+k}, v{G+4+k}")
            a("s_nop 0")
            for k in range(3): a(f"v_add_f32 v{G+4+k}, v{G+4+k}, v{G+8+k}")
        a(f"s_lshl_b32 s{sT0}, s{sLW}, 6\ns_add_u32 s{sT0}, s{sT0}, {L_CS}\nv_lshl_add_u32 v{T+1}, v{vL}, 2, s{sT0}\ns_mov_b64 exec, 0xffff")
        a(f"ds_write2st64_b32 v{T+1}, v{G+4}, v{G+5} offset1:1\nds_write_b32 v{T+1}, v{G+6} offset:512\ns_mov_b64 exec, -1")

    def b2_dma(self, vm, step, pace=True):
        a = self.a
        if pace: vm.depth((self.o['pace'] if pace is True else pace) - 2)
        srd, base, v2 = (S_W2, sB2C, vB2D + 1) if step < 22 else (S_WO, sB2C3 if step & 1 else sB2C2, 253)
        a(f"s_add_u32 m0, s{sB2L}, {8192*round_of(step)}\ns_lshl4_add_u32 s{sT0}, s{SP[step]}, s{base}")
        a(f"buffer_load_dwordx4 v{vB2D}, s[{srd}:{srd+3}], s{sT0} offen lds"); vm.issue(f"b2_{step}")
        a(f"buffer_load_dwordx4 v{v2}, s[{srd}:{srd+3}], s{sT0} offen offset:1024 lds"); vm.issue(f"b2_{step}")
        if self.o.get('b2stamps'): self.stamp(20 + step)
    def b2_reads(self, s, dst):
        rnd = round_of(s); hi, lo = rnd // 8, rnd % 8
        for cc in range(2):
            for rd in range(2):
                r = dst + 4*cc + 2*rd
                self.a(f"ds_read_b64_tr_b16 v[{r}:{r+1}], v{vB2AL[2*hi + cc]} offset:{8192*lo + 1024*rd}")

    def l_main(self):
        a = self.a; vm = VM(a); T = ACC2
        if self.o['pf']: vm.issue("codepf")
        self.l_prologue(vm)
        if self.o['spf']:
            a(f"s_lshr_b32 s{sT0}, s2, 3\ns_lshl2_add_u32 s{sT0}, s{sT0}, s{sLW}\ns_mul_i32 s{sT0}, s{sT0}, {64*self.o['spf']}\ns_add_u32 s94, s16, s{sT0}\ns_addc_u32 s95, s17, 0\ns_and_b32 s84, s2, 7")
        if self.o.get('stouch'):
            a(f"s_lshl2_add_u32 s{sT0}, s2, s{sLW}\ns_mul_i32 s{sT1}, s{sT0}, 1376\ns_and_b32 s{sT1}, s{sT1}, 0xffffffc0\ns_add_u32 s94, s16, s{sT1}\ns_addc_u32 s95, s17, 0")
            a(f"s_lshl_b32 s{sT0}, s{sT0}, 9\ns_add_u32 s98, s8, s{sT0}\ns_addc_u32 s99, s9, 0")
        self.l_steptable()
        self.tag(); self.l_gather_addr()
        a(f"v_and_b32 v{T}, 7, v{vL}\nv_lshrrev_b32 v{T+1}, 5, v{vL}\nv_xor_b32 v{T+1}, v{T+1}, v{T}\nv_lshlrev_b32 v{T+1}, 4, v{T+1}\nv_lshl_add_u32 v{T+1}, v{T}, 8, v{T+1}")
        a(f"v_bfe_u32 v{T}, v{vL}, 3, 2\nv_lshl_add_u32 v{T+1}, v{T}, 13, v{T+1}\nv_add_u32 v254, s{sB2L}, v{T+1}")
        vP0, vP2, vPT = 249, 250, 251
        a(f"s_lshl_b32 s54, s{sRT}, 12\ns_add_u32 s54, s54, {WS_FLAG}")
        a(f"v_and_b32 v{vP0}, 3, v{vL}\ns_lshl_b32 s{sT0}, s{sLW}, 2\nv_add_u32 v{vP0}, s{sT0}, v{vP0}\nv_lshlrev_b32 v{vP0}, 7, v{vP0}")
        if not self.o['classes'] and self.o.get('psub', 1):
            a(f"s_lshl_b32 s{sT0}, s{sLW}, 3\ns_or_b32 s{sT0}, s{sT0}, 0x80000\ns_bfe_u32 s{sT1}, 0x0c060200, s{sT0}\ns_bfe_u32 s{sT0}, 0x03050503, s{sT0}")
            a(f"v_min_u32 v{vP2}, s{sT0}, v{vL}\nv_add_u32 v{vP2}, s{sT1}, v{vP2}\nv_lshlrev_b32 v{vP2}, 7, v{vP2}")
        elif not self.o['classes']:
            a(f"v_and_b32 v{vP2}, 15, v{vL}\nv_lshlrev_b32 v{vP2}, 7, v{vP2}")
        else:
            a(f"v_and_b32 v{vP2}, 3, v{vL}\nv_min_u32 v{vP2}, 2, v{vP2}")
            a(f"s_mul_i32 s{sT0}, s{sLW}, 3\ns_mul_i32 s{sT1}, s{sLW}, 6\ns_sub_u32 s{sT1}, s{sT1}, 6\ns_cmp_lt_u32 s{sLW}, 2\ns_cselect_b32 s{sT0}, s{sT0}, s{sT1}\ns_cselect_b32 s{sT1}, 0, 1")
            a(f"v_lshlrev_b32 v{vP2}, s{sT1}, v{vP2}\nv_add_u32 v{vP2}, s{sT0}, v{vP2}\nv_min_u32 v{vP2}, 14, v{vP2}\nv_lshlrev_b32 v{vP2}, 7, v{vP2}")
        vA = vP0 if self.o['classes'] else vP2
        self.final_addr(None, T, T + 1)
        a(f"v_and_b32 v255, 3, v{vL}\nv_lshlrev_b32 v255, 2, v255\nv_add_u32 v255, {L_FL}, v255")
        a(f"s_mul_i32 s{sT0}, s{sLW}, 3072\ns_add_u32 s{sT0}, s{sT0}, {L_KV + 12}\nv_add_u32 v{T}, s{sT0}, v{vL16}\ns_not_b32 s{sT0}, s{sTAG}\nv_mov_b32 v{T+1}, s{sT0}")
        for k in range(3): a(f"ds_write_b32 v{T}, v{T+1} offset:{1024*k}")
        self.l_colsum_pre()
        if self.o.get('pst'): self.stamp(41)
        vm.depth(self.o.get('st1_at', 8))
        if self.o.get('pst'): self.stamp(42)
        self.l_stage(vm, 1)
        if self.o.get('pst'): self.stamp(43)
        if self.o.get('w2pf', -1) == -1: self.l_w2touch(vm)
        vm.wait("st0w")
        self.l_colsum()
        CL = self.o.get('cl') or [{}]
        TV = B2R + 40
        if len(CL) > 1 or CL[0]:
            a(f"s_lshr_b32 s{sT0}, s2, 3\ns_lshl2_add_u32 s{sT0}, s{sT0}, s{sLW}\ns_mul_i32 s{sT0}, s{sT0}, 118")
            a(f"v_min_u32 v{TV}, 58, v{vL}\nv_add_u32 v{TV}, s{sT0}, v{TV}\nv_lshlrev_b32 v{TV}, 7, v{TV}\nv_add_u32 v{TV+1}, {59*128}, v{TV}")
            a(f"v_subrev_u32 v{TV+2}, {1376*1024}, v{TV}\nv_subrev_u32 v{TV+3}, {1376*1024}, v{TV+1}\ns_and_b32 s84, s{sCT}, {len(CL)-1}")
        def touch(vm, k):
            a(f"buffer_load_dword v{TV+4}, v{TV+k}, s[{S_W2}:{S_W2+3}], 0 offen"); vm.issue("tch")
            a(f"buffer_load_dword v{TV+5}, v{TV+2+k}, s[{S_WO}:{S_WO+3}], 0 offen"); vm.issue("tch")
        base = vm; ends = []
        for vi, var in enumerate(CL):
            vm = base.copy()
            if vi + 1 < len(CL): a(f"s_cmp_lg_u32 s84, {vi}\ns_cbranch_scc1 L_var{vi}")
            for t in range(8):
                vm.wait(f"st{t}", lgkm=None if ((self.o['spf'] or self.o.get('stouch')) and 1 <= t <= 6) else 0)
                if self.o.get('pst') and t < 2: self.stamp(44 + t)
                a("s_barrier")
                if self.o['kstamps'] or t in (0, 7): self.stamp(2 + t)
                if t + 2 < 8: self.l_stage(vm, t + 2)
                for k in var.get(t, []): touch(vm, k)
                if t == 0: self.l_cspub(vm, vi)
                if self.o['spf'] and t in self.o.get('spf_t', range(0, 6)):
                    n = self.o['spf']; assert 128*64*n <= 234752
                    a(f"s_add_u32 s84, s84, 1\ns_sub_u32 s{sT0}, s84, 6\ns_cmp_ge_u32 s84, 6\ns_cselect_b32 s84, s{sT0}, s84\ns_mul_i32 s{sT0}, s84, 234752\ns_add_u32 s98, s94, s{sT0}\ns_addc_u32 s99, s95, 0")
                    for k in range(n): a(f"s_load_dword s54, s[98:99], {64*k}")
                if self.o.get('stouch'):
                    n, t0 = self.o['stouch']
                    lst = [("94:95", 64*k) for k in range(22)] + [("98:99", 64*k) for k in range(8)]
                    if t >= t0:
                        for p, off in lst[n*(t - t0):n*(t - t0 + 1)]: a(f"s_load_dword s84, s[{p}], {off}")
                if t == self.o.get('a2touch', -9):
                    a(f"s_lshl2_add_u32 s{sT0}, s{sRB}, s{sLW}\ns_mul_i32 s{sT0}, s{sT0}, {A2_RT}\ns_lshl_b32 s{sT1}, s{sC0}, 11\ns_lshl_b32 s{sT2}, s{sG}, 12\ns_add_u32 s{sT2}, s{sT2}, {88*1024}")
                    a(f"s_cmp_lt_u32 s{sG}, 8\ns_cselect_b32 s{sT1}, s{sT2}, s{sT1}\ns_cselect_b32 s{sT2}, {OOB}, 8192\ns_cselect_b32 exec_hi, 0, -1\ns_add_u32 s{sT0}, s{sT0}, s{sT1}\ns_add_u32 s{sT0}, s{sT0}, {WS_A2}\ns_add_u32 s{sT2}, s{sT2}, s{sT0}")
                    a(f"v_lshlrev_b32 v{T+8}, 7, v{vL}\nbuffer_load_dword v{T+9}, v{T+8}, s[{S_WS}:{S_WS+3}], s{sT0} offen\ns_mov_b32 exec_hi, 0\nbuffer_load_dword v{T+10}, v{T+8}, s[{S_WS}:{S_WS+3}], s{sT2} offen\ns_mov_b64 exec, -1")
                    vm.issue("a2t"); vm.issue("a2t")
                if t == 5: self.l_gather_issue(vm)
                if t == self.o.get('w2pf', -1): self.l_w2touch(vm)
                if t == 6:
                    for s in range(self.o['n0']): self.b2_dma(vm, s, pace=False)
                    self.l_gather_check(vm, vi); self.l_gather_cs()
            ends.append(list(vm.q))
            if vi + 1 < len(CL):
                a("s_branch L_varend"); a.label(f"L_var{vi}")
        assert all(e == ends[0] for e in ends)
        a.label("L_varend")
        for s in range(self.o['n0'], 7): self.b2_dma(vm, s, pace=False)
        def park(k):
            vm.wait(f"b2_{k}")
            self.b2_reads(k, B2R + 8*k)
        ep = self.o.get('epark', 1); done = 0
        for s in range(7, 18):
            if s == 13: self.spin_lds("ring", 255, T + 1, 0)
            self.b2_dma(vm, s)
            if ep and s - 6 > done:
                park(done); done += 1
        self.stamp(10)
        for k in range(done, 12):
            park(k)
            if k > 1: a("s_waitcnt lgkmcnt(8)")
        a(f"v_mov_b32 v{vRW}, v254")
        for q in range(1, 4): a(f"v_xor_b32 v{vRW+q}, {32*q}, v254")
        a("s_waitcnt lgkmcnt(0)")
        if self.o.get('mix', 0):
            a(f"s_cmp_lt_u32 s{sG}, 8\ns_cbranch_scc1 L_p2att")
            self.l_phase2(vm.copy(), "M", True, vP0, vP2, vPT, vA)
            a.label("L_p2att")
        self.l_phase2(vm.copy(), "A", False, vP0, vP2, vPT, vA)

    def l_phase2(self, vm, sfx, mix, vP0, vP2, vPT, vA):
        a = self.a; T = ACC2
        polls = {0: (vA, 2048), 22: (vP0, 0)}
        if self.o['classes']: polls[16] = (vP2, 2052)
        free = [AR + 8*k for k in range(ARING)]; slot = {}
        def areg(i):
            if i not in slot: slot[i] = free.pop(0)
            return slot[i]
        def a_load(i):
            r = areg(i)
            a(f"s_add_u32 s{sT0}, s{sA2B}, s{SP[i]}")
            a(f"buffer_load_dwordx4 v[{r}:{r+3}], v{vL16}, s[{S_WS}:{S_WS+3}], s{sT0} offen {self.o.get('asc', 'sc1')}"); vm.issue(f"a{i}")
            a(f"buffer_load_dwordx4 v[{r+4}:{r+7}], v{vL16B}, s[{S_WS}:{S_WS+3}], s{sT0} offen {self.o.get('asc', 'sc1')}"); vm.issue(f"a{i}")
        def a_half(i, t):
            r = areg(i) + 4*t
            if t == 0: a(f"s_add_u32 s{sT0}, s{sA2B}, s{SP[i]}")
            a(f"buffer_load_dwordx4 v[{r}:{r+3}], v{vL16B if t else vL16}, s[{S_WS}:{S_WS+3}], s{sT0} offen {self.o.get('asc', 'sc1')}"); vm.issue(f"a{i}")
        def poll_issue(c):
            v, imm = polls[c]
            off = f" offset:{imm}" if imm else ""
            a(f"buffer_load_dword v{vPT}, v{v}, s[{S_WS}:{S_WS+3}], s54 offen{off} sc1"); vm.issue(f"p{c}")
        def poll_check(c):
            v, imm = polls[c]
            vm.wait(f"p{c}")
            a(f"v_cmp_ne_u32 vcc, s{sTAG}, v{vPT}\ns_cbranch_vccz L_pok{c}{sfx}")
            self.spin_global(f"p{c}{sfx}", v, vPT, 54, imm)
            a.label(f"L_pok{c}{sfx}")
            self.stamp({0: 12, 16: 14, 22: 15}[c])
        pre = self.o.get('mixpre', 12) if mix else 12
        if pre: self.spin_lds("hold" + sfx, 255, T + 1, 64)
        self.stamp(13)
        a(f"s_lshl_b32 s{sT0}, s{sLW}, 2\ns_add_u32 s{sT0}, s{sT0}, {L_FL + 96}\nv_mov_b32 v{T+2}, s{sT0}\nv_mov_b32 v{T+3}, 1")
        for s in range(18, 18 + pre):
            self.b2_dma(vm, s, pace=self.o.get('pace2', 10))
            if s == self.o.get('pw_at', 27) and not mix:
                if s == 29: vm.depth(self.o['pollwait'] - 1)
                a(f"ds_write_b32 v{T+2}, v{T+3}")
        self.spin_lds("hold2" + sfx, 255, T + 1, 112)
        poll_issue(0)
        nxt = 18 + pre
        for k in range(self.o.get('mixpoll', 2) if mix else 0):
            if nxt < 30: self.b2_dma(vm, nxt, pace=False); nxt += 1
        self.stamp(11)
        LEAD = self.o.get('lead', 3)
        poll_check(0)
        a("s_setprio 1")
        self.xres(vm)
        def issue_a(n):
            if n in polls and n > 0: poll_check(n)
            a_load(n)
            if n + LEAD in polls: poll_issue(n + LEAD)
        DEPTH = self.o.get('adepthM', 4) if mix else self.o.get('adepth', 4)
        for i in range(DEPTH): issue_a(i)
        issued = DEPTH
        def breg(i): return B2R + 8*i if i < NREG else BT + 8*(i & 1)
        IL = self.o.get('il', 1)
        NT = self.o.get('ntail', 0)
        for i in range(30 - NT):
            rd = i + 1 >= NREG and i + 1 < 30
            if rd: vm.wait(f"b2_{i+1}")
            if rd and not IL: self.b2_reads(i + 1, breg(i + 1))
            lg = None
            if i >= NREG: lg = 4 if (i + 1 < 30 and not IL) else 0
            vm.wait(f"a{i}", lgkm=lg)
            if self.o.get('astamps'): self.stamp(20 + i)
            A, B = areg(i), breg(i)
            M = []
            for cc in range(2):
                for t in range(2):
                    acc = f"v[{ACC2+16*(2*t+cc)}:{ACC2+16*(2*t+cc)+15}]"
                    M.append(f"v_mfma_f32_32x32x16_bf16 {acc}, v[{B+4*cc}:{B+4*cc+3}], v[{A+4*t}:{A+4*t+3}], {'0' if i == 0 else acc}")
            d = DEPTH + sum(1 for r in self.o.get('ramp', []) if i >= r) - sum(1 for r in self.o.get('unramp', []) if i >= r)
            if IL:
                side = Asm(); keep = self.a
                self.a = side
                if rd: self.b2_reads(i + 1, breg(i + 1))
                self.a = keep
                R = [x.strip() for x in side.l]
                simple = issued < min(30, i + 1 + d) and issued not in polls
                a(M[0])
                for x in R[:2]: a(x)
                if not rd and simple: a_half(issued, 0)
                a(M[1])
                for x in R[2:]: a(x)
                if not rd and simple: a_half(issued, 1)
                a(M[2])
                if rd and simple: a_half(issued, 0)
                a(M[3])
                if rd and simple: a_half(issued, 1)
                if simple:
                    if issued + LEAD in polls: poll_issue(issued + LEAD)
                    issued += 1
            else:
                for m in M: a(m)
            free.append(A)
            if i < NREG: free.append(B)
            while issued < min(30, i + 1 + d):
                issue_a(issued); issued += 1
            if nxt < 30 and i >= self.o.get('mixfrom', 0): self.b2_dma(vm, nxt, pace=False); nxt += 1
        def wr(t, cc):
            for q in range(4):
                r = ACC2 + 16*(2*t+cc) + 4*q
                a(f"ds_write_b128 v{vRW+q}, v[{r}:{r+3}] offset:{32768*t + 128*cc}")
        if NT:
            assert issued == 30
            f = 30 - NT
            bt = {f: breg(f)}
            for i in range(f + 1, 30):
                bt[i] = free.pop(0); self.b2_reads(i, bt[i])
            order = [(0, 0), (1, 0), (0, 1), (1, 1)]
            def w1(t, cc, q):
                r = ACC2 + 16*(2*t+cc) + 4*q
                a(f"ds_write_b128 v{vRW+q}, v[{r}:{r+3}] offset:{32768*t + 128*cc}")
            assert NT == 4
            for k, (t, cc) in enumerate(order):
                acc = f"v[{ACC2+16*(2*t+cc)}:{ACC2+16*(2*t+cc)+15}]"
                if k == 2: a("s_nop 6")
                for i in range(f, 30):
                    if k == 0: vm.wait(f"a{i}", lgkm=4*(29 - i))
                    a(f"v_mfma_f32_32x32x16_bf16 {acc}, v[{bt[i]+4*cc}:{bt[i]+4*cc+3}], v[{slot[i]+4*t}:{slot[i]+4*t+3}], {acc}")
                    if k >= 2: w1(*order[k - 2], i - f)
            self.stamp(16)
            a("s_nop 3")
            wr(*order[2])
            a("s_nop 2")
            wr(*order[3])
        else:
            self.stamp(16)
            a("s_nop 7\ns_nop 3")
            for t in range(2):
                for cc in range(2): wr(t, cc)
        a("s_branch L_final")

    def c_prologue(self, vm):
        a = self.a; T = CT
        a("s_waitcnt lgkmcnt(0)")
        if self.o.get('pst'): self.stamp(40)
        a(f"s_load_dword s{sTAG}, s[22:23], {WS_EPOCH}")
        self.srd(S_X, 4, 2097152)
        X = 160
        a(f"s_lshl4_add_u32 s{sT0}, s{sRB}, s{sG}\ns_lshl2_add_u32 s{sT5}, s{sT0}, s{sW}\ns_lshl_b32 s{sT0}, s{sT5}, 11")
        a(f"buffer_load_dwordx4 v[{X+4}:{X+7}], v{vL16}, s[{S_X}:{S_X+3}], s{sT0} offen"); vm.issue("xrow")
        a(f"buffer_load_dwordx4 v[{X+8}:{X+11}], v{vL16}, s[{S_X}:{S_X+3}], s{sT0} offen offset:1024"); vm.issue("xrow")
        a(f"s_lshl_b32 s{sE}, s{sT5}, 5\ns_add_u32 s{sE}, s{sE}, {WS_STATS}")
        self.srd(S_B1, 14, 2752)
        a(f"v_lshl_add_u32 v{X+13}, s{sW}, 6, v{vL}\nv_lshlrev_b32 v{X+3}, 1, v{X+13}")
        a(f"s_lshl_b32 s{sT0}, s{sC0}, 6\ns_cmp_lt_u32 s{sG}, 8\ns_cselect_b32 s{sT0}, {OOB}, s{sT0}")
        a(f"buffer_load_ushort v{X+12}, v{X+3}, s[{S_B1}:{S_B1+3}], s{sT0} offen"); vm.issue("bias")
        a(f"s_and_b32 s{sR2}, s{sW}, 1\ns_lshr_b32 s{sC}, s{sW}, 1")
        a(f"s_cmp_lt_u32 s{sG}, 8\ns_cselect_b32 s{sSW}, 32, 16")
        a(f"v_and_b32 v{T+2}, 15, v{vL}\nv_lshrrev_b32 v{T+3}, 4, v{vL}\nv_lshrrev_b32 v{T+4}, 1, v{T+2}\nv_xor_b32 v{T+4}, v{T+4}, v{T+3}")
        a(f"s_lshl_b32 s{sT3}, s{sR2}, 13\nv_lshlrev_b32 v{T+5}, 7, v{T+2}\nv_lshl_add_u32 v{T+5}, v{T+4}, 4, v{T+5}\nv_add_u32 v{vXA}, s{sT3}, v{T+5}\nv_xor_b32 v{vXA+1}, 64, v{vXA}")
        a(f"s_sub_u32 s{sT0}, 48, s{sSW}\nv_bfe_u32 v{T+4}, v{vL}, 1, 1\nv_mul_u32_u24 v{T+4}, s{sT0}, v{T+4}\nv_and_b32 v{T+5}, 1, v{vL}\nv_lshl_add_u32 v{T+4}, v{T+5}, 3, v{T+4}")
        a(f"v_bfe_u32 v{T+5}, v{vL}, 3, 1\nv_xor_b32 v{T+5}, s{sC}, v{T+5}\nv_lshl_add_u32 v{T+4}, v{T+5}, 6, v{T+4}")
        a(f"v_and_b32 v{T+6}, 1, v{T+3}\nv_mul_u32_u24 v{T+5}, s{sSW}, v{T+6}\nv_xor_b32 v{T+4}, v{T+4}, v{T+5}")
        a(f"v_bfe_u32 v{T+5}, v{vL}, 2, 2\nv_lshl_add_u32 v{T+4}, v{T+5}, 7, v{T+4}\nv_mul_u32_u24 v{T+5}, 3072, v{T+3}\nv_add_u32 v{T+4}, v{T+4}, v{T+5}")
        a(f"v_add_u32 v{vWA}, {L_W}, v{T+4}\nv_xor_b32 v{vWA+1}, s{sSW}, v{vWA}")
        a(f"v_lshl_add_u32 v{T+4}, v{T+6}, 5, v{T+2}\nv_lshlrev_b32 v{T+4}, 4, v{T+4}\nv_lshrrev_b32 v{T+5}, 1, v{T+3}\nv_lshl_add_u32 v{vST}, v{T+5}, 10, v{T+4}")
        a(f"s_lshl_b32 s{sT0}, s{sR2}, 8\ns_add_u32 s{sT0}, s{sT0}, {L_MT}\nv_lshl_add_u32 v{T+19}, v{T+3}, 4, s{sT0}\nv_lshl_add_u32 v{T+23}, v{T+2}, 2, s{sT0}")
        a(f"s_lshl_b32 s{sT0}, s{sC}, 7\ns_add_u32 s{sT0}, s{sT0}, {L_TAB}\nv_lshl_add_u32 v{T+22}, v{T+2}, 2, s{sT0}\nv_lshl_add_u32 v{T+18}, v{T+6}, 4, s{sT0}")
        a(f"s_lshl_b32 s{sT0}, s{sSW}, 1\ns_sub_u32 s{sT0}, 96, s{sT0}\nv_mad_u32_u24 v{T+18}, v{T+5}, s{sT0}, v{T+18}")
        self.decode2()
        self.srd(S_WS, 22, WS_SIZE); self.srd(S_OUT, 18, 2097152)
        a(f"s_lshl1_add_u32 s{sT0}, s{sRB}, s{sR2}\ns_mul_i32 s{sA2B}, s{sT0}, {2*A2_RT}\ns_add_u32 s{sA2B}, s{sA2B}, {WS_A2}")
        a(f"s_lshl4_add_u32 s{sT0}, s{sT0}, s{sG}\ns_lshl1_add_u32 s{sT0}, s{sT0}, s{sC}\ns_lshl_b32 s{sFL}, s{sT0}, 7\ns_add_u32 s{sFL}, s{sFL}, {WS_FLAG}")
        a(f"v_add_u32 v{vL16B}, {A2_RT}, v{vST}")
        self.consts()
        a(f"s_lshl_b32 s{sT0}, s{sW}, 2\ns_add_u32 s{sT0}, s{sT0}, {L_FL}\nv_mov_b32 v14, s{sT0}\nv_mov_b32 v15, 1")
        if self.o.get('pst'): self.stamp(41)
        self.c_stats(vm)
        self.flag_regs()
        if self.o['cprio']: a(f"s_setprio {self.o['cprio']}")

    def c_read_list(self, n):
        t, kk = n // 2, n % 2; slot = t % 3; F = FR + 40*(n & 1)
        def x(a_): return f"ds_read_b128 v[{F+4*a_}:{F+4*a_+3}], v{vXA+kk} offset:{slot*16384 + 2048*a_}"
        def w(f):
            u, fp = f // 2, f % 2; r = F + 16 + 4*f
            return [f"ds_read_b64_tr_b16 v[{r+2*rd}:{r+2*rd+1}], v{vWA+fp} offset:{slot*24576 + 12288*kk + 1024*u + 512*rd}" for rd in range(2)]
        return [x(0)] + w(0) + [x(1), x(2), x(3)] + w(1) + w(2) + w(3) + w(4) + w(5)
    def c_mfma(self, n, f, a_, att):
        F = FR + 40*(n & 1); u, fp = f // 2, f % 2
        x = f"v[{F+4*a_}:{F+4*a_+3}]"; w = f"v[{F+16+4*f}:{F+19+4*f}]"
        A = ACC + 32*u + 8*a_ + 4*fp; acc = f"v[{A}:{A+3}]"; c = "0" if n == 0 else acc
        if att and u > 0: return f"v_mfma_f32_16x16x32_bf16 {acc}, {x}, {w}, {c}"
        return f"v_mfma_f32_16x16x32_bf16 {acc}, {w}, {x}, {c}"

    def c_kloop(self, att, short=False):
        a = self.a; nr = 12 if short else 16
        a("s_waitcnt lgkmcnt(0)\ns_barrier")
        self.stamp(2)
        for r in self.c_read_list(0)[:nr]: a(r)
        for n in range(16):
            boundary = (n % 2 == 1)
            if boundary:
                a("s_waitcnt lgkmcnt(0)")
                if n < 15:
                    a("s_barrier")
                    if self.o['kstamps'] == 2: self.stamp(3 + n // 2)
                else:
                    a(f"ds_write_b32 v14, v15")
            R = self.c_read_list(n + 1)[:nr] if n < 15 else (self.att_pre if att else self.mlp_pre)()
            need = {0: 3, 1: 6, 4: 8, 8: 10, 12: 12, 16: 14, 20: 16}
            issued = 0
            for k in range(16 if short else 24):
                f, a_ = k // 4, k % 4
                if f % 2 and self.o.get('snake', 1): a_ = 3 - a_
                if not boundary and k in need: a(f"s_waitcnt lgkmcnt({min(15, nr - need[k] + issued)})")
                a(self.c_mfma(n, f, a_, att))
                if issued < len(R): a(R[issued]); issued += 1
        self.stamp(10)

    def consts(self):
        T = CT
        self.a(f"v_mov_b32 v{T}, 2.0\nv_mov_b32 v{T+2}, {f2u(-2*LN2):#x}\nv_mov_b32 v{T+4}, {f2u(LN2):#x}\nv_mov_b32 v{T+6}, 1.0\nv_mov_b32 v{T+8}, {f2u(1e-6):#x}")
    def table_list(self, dst, vaddr, off, n, step):
        return [f"ds_read_b128 v[{dst+4*q}:{dst+4*q+3}], v{vaddr} offset:{off + step*q}" for q in range(n)]
    def lane_stats_list(self):
        return [f"ds_read_b32 v{CT+10+2*q}, v{CT+23} offset:{64*q}" for q in range(4)] + [f"ds_read_b32 v{6+2*q}, v{CT+23} offset:{64*q+512}" for q in range(4)]
    def flag(self, vm, soff, imm):
        a = self.a; T = CT
        off = f" offset:{imm}" if imm else ""
        a(f"buffer_store_dword v{T+21}, v{T+20}, s[{S_WS}:{S_WS+3}], s{soff} offen{off} sc1"); vm.issue("flag")
    def release(self, off=64):
        a = self.a
        a(f"ds_write_b32 v14, v15 offset:{off}")
    def flag_regs(self):
        self.lane0(CT + 20); self.a(f"v_mov_b32 v{CT+21}, s{sTAG}")

    def mlp_tabs(self, u):
        return self.table_list(116 + 16*(u & 1), CT+18, L_CS - L_TAB + 256*u, 2, 32) + self.table_list(124 + 16*(u & 1), CT+18, L_BT - L_TAB + 256*u, 2, 32)
    def mlp_pre(self):
        return self.lane_stats_list() + self.mlp_tabs(0)
    def att_pre(self):
        T = CT
        return ([f"ds_read_b32 v{148+2*k}, v{T+22} offset:{256 + 256*(k >> 1) + 64*(k & 1)}" for k in range(4)]
                + self.table_list(116, T+19, 0, 4, 64) + self.table_list(132, T+19, 512, 4, 64)
                + self.table_list(212, T+18, L_CS - L_TAB, 2, 64) + self.lane_stats_list())
    def c_epi_mlp(self, vm):
        a = self.a; T = CT; P = range(0, 16, 2)
        CP, U = 156, 172
        a(f"s_add_u32 s{sT1}, s{sC0}, s{sC}\ns_lshl_b32 s{sT1}, s{sT1}, 11\ns_add_u32 s{sA2B}, s{sA2B}, s{sT1}")
        a("s_waitcnt lgkmcnt(4)")
        for q in range(4): a(f"v_mul_f32 v{T+10+2*q}, v{T+10+2*q}, v{6+2*q}")
        for u in range(3):
            cs, bb = 116 + 16*(u & 1), 124 + 16*(u & 1)
            if u == 2:
                a(f"s_cmp_ge_u32 s{sG}, 11\ns_cselect_b32 s{sT0}, s{sC}, 0\ns_cmp_eq_u32 s{sT0}, 1\ns_cbranch_scc1 L_mlp_short")
            a("s_waitcnt lgkmcnt(0)")
            if u < 2:
                for r in self.mlp_tabs(u + 1): a(r)
            for t in range(2):
                A = ACC + 32*u + 16*t
                self.al()
                for k in P:
                    st = T + 10 + 4*t + 2*(k // 8); j = k % 8
                    a(f"v_pk_fma_f32 v[{CP+k}:{CP+k+1}], v[{st}:{st+1}], v[{cs+j}:{cs+j+1}], v[{bb+j}:{bb+j+1}] op_sel_hi:[0,1,1] neg_lo:[1,0,0] neg_hi:[1,0,0]")
                for k in P:
                    st = 6 + 4*t + 2*(k // 8)
                    a(f"v_pk_fma_f32 v[{A+k}:{A+k+1}], v[{A+k}:{A+k+1}], v[{st}:{st+1}], v[{CP+k}:{CP+k+1}] op_sel_hi:[1,0,1]")
                for k in range(16): a(f"v_exp_f32 v{U+k}, v{A+k}")
                for k in P: a(f"v_pk_add_f32 v[{CP+k}:{CP+k+1}], v[{U+k}:{U+k+1}], v[{T}:{T+1}] op_sel_hi:[1,0]")
                for k in P: a(f"v_pk_fma_f32 v[{U+k}:{U+k+1}], v[{U+k}:{U+k+1}], v[{CP+k}:{CP+k+1}], v[{T}:{T+1}] op_sel_hi:[1,1,0]")
                for k in range(16): a(f"v_rcp_f32 v{U+k}, v{U+k}")
                for k in P: a(f"v_pk_fma_f32 v[{U+k}:{U+k+1}], v[{U+k}:{U+k+1}], v[{T+2}:{T+3}], v[{T+4}:{T+5}] op_sel_hi:[1,0,0]")
                for k in P: a(f"v_pk_mul_f32 v[{U+k}:{U+k+1}], v[{U+k}:{U+k+1}], v[{A+k}:{A+k+1}]")
                for k in P: a(f"v_cvt_pk_bf16_f32 v{A+k//2}, v{U+k}, v{U+k+1}")
                if t == 0: a(f"s_add_u32 s{sT0}, s{sA2B}, {4096*u}")
                vo = vL16B if t else vST
                sc = self.o.get('actsc', 'sc1')
                if sc == 'none': continue
                a(f"buffer_store_dwordx4 v[{A}:{A+3}], v{vo}, s[{S_WS}:{S_WS+3}], s{sT0} offen {sc}"); vm.issue(f"act{u}")
                a(f"buffer_store_dwordx4 v[{A+4}:{A+7}], v{vo}, s[{S_WS}:{S_WS+3}], s{sT0} offen offset:256 {sc}"); vm.issue(f"act{u}")
                if self.o['classes'] and u == 2 and t == self.o.get('fa_at', 0):
                    vm.wait("act1"); self.flag(vm, sFL, 0)
            if u == 1 and self.o.get('rel_mlp', 0) == -1: self.release()
            self.stamp(11 + u)
        if self.o['classes']:
            if self.o.get('rel_mlp', 0) == 0: self.release()
            vm.wait("act2"); self.flag(vm, sFL, 4)
            if self.o.get('rel_mlp', 0) == 1: self.release()
            if self.o.get('hold2'): self.release(112)
            a("s_branch L_cdone")
        a.label("L_mlp_short")
        if self.o.get('rel_mlp', 0) == 0: self.release()
        a("s_waitcnt vmcnt(0)"); self.flag(VM(a), sFL, 0)
        if self.o.get('rel_mlp', 0) == 1: self.release()
        if self.o.get('hold2'): self.release(112)
        a("s_branch L_cdone")

    def phi(self, A, E, dst):
        a = self.a; T = CT; P = range(0, 16, 2)
        self.al()
        for k in range(16): a(f"v_exp_f32 v{E+k}, v{A+k}")
        for k in P: a(f"v_pk_fma_f32 v[{A+k}:{A+k+1}], v[{A+k}:{A+k+1}], v[{T+4}:{T+5}], v[{T+6}:{T+7}] op_sel_hi:[1,0,0]")
        for k in range(16): a(f"v_med3_f32 v{E+k}, v{A+k}, v{E+k}, 1.0")
        for k in P: a(f"v_pk_add_f32 v[{E+k}:{E+k+1}], v[{E+k}:{E+k+1}], v[{T+8}:{T+9}] op_sel_hi:[1,0]")
        for k in P: a(f"v_cvt_pk_bf16_f32 v{dst(k//2) if callable(dst) else dst+k//2}, v{E+k}, v{E+k+1}")

    def kv_write(self, S, flagoff):
        a = self.a
        for k in range(3): a(f"ds_write_b128 v2, v[{S+4*k}:{S+4*k+3}] offset:{1024*k}")
        a(f"v_mov_b32 v7, 1\ns_waitcnt lgkmcnt(0)\nds_write_b32 v6, v7 offset:{flagoff}")
    def kv_add(self, S, D):
        a = self.a
        for k in range(3): a(f"ds_read_b128 v[{D+4*k}:{D+4*k+3}], v4 offset:{1024*k}")
        a("s_waitcnt lgkmcnt(0)")
        for k in range(0, 12, 2): a(f"v_pk_add_f32 v[{S+k}:{S+k+1}], v[{S+k}:{S+k+1}], v[{D+k}:{D+k+1}]")

    def c_epi_att(self, vm):
        a = self.a; T = CT; P = range(0, 16, 2)
        MT, RT, E, QCS, PV, S, ZZ = 116, 132, 196, 212, 156, 172, 180
        Q, K, V = ACC, ACC + 32, ACC + 64
        if self.o.get('rel_att', 1) == -1: self.release()
        a("s_waitcnt lgkmcnt(10)")
        self.al()
        for (A, cs0) in ((K, 148), (V, 152)):
            for k in range(0, 32, 2):
                m = 4*(k // 8) + (k % 4); cs = cs0 + 2*((k % 8) // 4)
                a(f"v_pk_fma_f32 v[{A+k}:{A+k+1}], v[{MT+m}:{MT+m+1}], v[{cs}:{cs+1}], v[{A+k}:{A+k+1}] op_sel_hi:[1,0,1] neg_lo:[1,0,0] neg_hi:[1,0,0]")
            for k in range(0, 32, 2):
                m = 4*(k // 8) + (k % 4)
                a(f"v_pk_mul_f32 v[{A+k}:{A+k+1}], v[{A+k}:{A+k+1}], v[{RT+m}:{RT+m+1}]")
        if self.o.get('cst'): self.stamp(21)
        ONE = 192
        for k in range(4): a(f"v_mov_b32 v{ONE+k}, 0x3f803f80")
        def opnd(base): return lambda j: base + 4*((j >> 1) & 1) + 2*(j >> 2) + (j & 1)
        for t in range(2):
            self.phi(K + 16*t, E, opnd(K + 16*t))
            for j in range(8): a(f"v_cvt_pk_bf16_f32 v{opnd(PV + 8*t)(j)}, v{V+16*t+2*j}, v{V+16*t+2*j+1}")
            a("s_nop 1")
            for h in range(2):
                for (D, B) in ((S + 4*h, PV + 8*t + 4*h), (ZZ + 4*h, ONE)):
                    c = "0" if t == 0 else f"v[{D}:{D+3}]"
                    a(f"v_mfma_f32_16x16x32_bf16 v[{D}:{D+3}], v[{K+16*t+4*h}:{K+16*t+4*h+3}], v[{B}:{B+3}], {c}")
        if self.o.get('cst'): self.stamp(22)
        if self.o.get('rel_att', 1) == -2: self.release()
        even = f"s[{sEX}:{sEX+1}]"; upper = "s[66:67]"
        Z = 186; X = V; Y = V + 16
        a(f"v_mov_b32 v{X+3}, s{sTAG}\nv_mov_b32 v{X+7}, s{sTAG}\nv_mov_b32 v{X+11}, s{sTAG}\ns_nop 4")
        self.al()
        for k in range(4): a(f"v_cndmask_b32 v{ZZ+k}, v{ZZ+4+k}, v{ZZ+k}, {even}")
        for k in range(6): a(f"v_cndmask_b32 v{X+k+k//3}, v{S+6+k}, v{S+k}, {upper}")
        a(f"ds_write_b128 v249, v[{X}:{X+3}]\nds_write_b128 v249, v[{X+4}:{X+7}] offset:1024")
        for k in range(6): a(f"v_cndmask_b32 v{Z+k}, v{S+k}, v{S+6+k}, {upper}")
        if self.o.get('cst'): self.stamp(23)
        a(f"s_mov_b32 s{sSPIN}, 0")
        a.label("L_x1")
        a(f"ds_read_b128 v[{Y}:{Y+3}], v250\nds_read_b128 v[{Y+4}:{Y+7}], v250 offset:1024\ns_add_u32 s{sSPIN}, s{sSPIN}, 1\ns_waitcnt lgkmcnt(0)")
        a(f"v_cmp_ne_u32 vcc, s{sTAG}, v{Y+3}\nv_cmp_ne_u32 s[68:69], s{sTAG}, v{Y+7}\ns_cmp_gt_u32 s{sSPIN}, 0x40000\ns_cbranch_scc1 L_x1d\ns_or_b64 vcc, vcc, s[68:69]\ns_cbranch_vccnz L_x1")
        a.label("L_x1d")
        for k in range(6): a(f"v_add_f32 v{Z+k}, v{Z+k}, v{Y+k+k//3}")
        for k in range(3): a(f"v_cvt_pk_bf16_f32 v{X+8+k}, v{Z+2*k}, v{Z+2*k+1}")
        a(f"buffer_store_dwordx4 v[{X+8}:{X+11}], v{vL16}, s[{S_WS}:{S_WS+3}], s70 offen sc1")
        self.stamp(11)
        if self.o.get('rel_att', 1) == 0: self.release()
        self.al()
        for k in range(0, 32, 2):
            st = T + 10 + 2*(k // 8); j = k % 8
            a(f"v_pk_fma_f32 v[{Q+k}:{Q+k+1}], v[{st}:{st+1}], v[{QCS+j}:{QCS+j+1}], v[{Q+k}:{Q+k+1}] op_sel_hi:[0,1,1] neg_lo:[1,0,0] neg_hi:[1,0,0]")
        for k in range(0, 32, 2):
            st = 6 + 2*(k // 8)
            a(f"v_pk_mul_f32 v[{Q+k}:{Q+k+1}], v[{Q+k}:{Q+k+1}], v[{st}:{st+1}] op_sel_hi:[1,0]")
        for t in range(2): self.phi(Q + 16*t, E, Q + 16*t)
        if self.o.get('rel_att', 1) == 1: self.release()
        if self.o.get('cst'): self.stamp(24)
        G = 116; S = K; U = K + 12
        a(f"s_mov_b32 s{sT5}, 0")
        if self.o.get('pollwait'):
            self.spin_lds("b2d", 254, 9, 96)
        if self.o.get('inc', 0):
            for k in range(12): a(f"v_mov_b32 v{S+k}, 0")
            a(f"s_mov_b32 s72, 0xffff\ns_lshl_b32 s73, s{sRB}, 12")
            if self.o.get('chprio', 3): a(f"s_setprio {self.o.get('chprio', 3)}")
            if self.o.get('cst'): self.stamp(28)
            a.label("L_kv_pass")
            for p in range(16):
                a(f"s_bitcmp0_b32 s72, {p}\ns_cbranch_scc1 L_kv_l{p}")
                a(f"s_add_u32 s{sT2}, s73, {2048*p}\ns_and_b32 s{sT2}, s{sT2}, 0x7800\ns_add_u32 s{sT2}, s{sT2}, s{sKB}")
                a(f"buffer_load_dwordx4 v[{G+4*p}:{G+4*p+3}], v{vL16}, s[{S_WS}:{S_WS+3}], s{sT2} offen sc1")
                a.label(f"L_kv_l{p}")
            if self.o.get('hold2') == 1: self.release(112)
            a(f"s_add_u32 s{sT5}, s{sT5}, 1\ns_waitcnt vmcnt(0)")
            for p in range(16):
                src = G + 4*p; d = S + 6*(p & 1)
                a(f"s_bitcmp0_b32 s72, {p}\ns_cbranch_scc1 L_kv_a{p}\nv_cmp_ne_u32 vcc, s{sTAG}, v{src+3}\ns_cbranch_vccnz L_kv_a{p}")
                for k in range(3): a(f"v_lshlrev_b32 v{U+2*k}, 16, v{src+k}\nv_and_b32 v{U+2*k+1}, 0xffff0000, v{src+k}")
                for k in range(6): a(f"v_add_f32 v{d+k}, v{d+k}, v{U+k}")
                a(f"s_bitset0_b32 s72, {p}")
                a.label(f"L_kv_a{p}")
            a(f"s_cmp_eq_u32 s72, 0\ns_cbranch_scc1 L_kv_ok\ns_cmp_gt_u32 s{sT5}, 0x4000\ns_cbranch_scc1 L_kv_ok\ns_sleep {self.o.get('sleep3', 1)}\ns_branch L_kv_pass")
            a.label("L_kv_ok")
            if self.o.get('cst'): self.stamp(25); a(f"v_writelane_b32 v252, s{sT5}, 30")
        else:
            if self.o.get('optim', 1): a("s_branch L_kv_go")
            a.label("L_kv_gather")
            self.spin_global("kv", 253, 9, sKB, 12)
            a.label("L_kv_go")
            if self.o.get('chprio', 3): a(f"s_setprio {self.o.get('chprio', 3)}")
            if self.o.get('cst'): self.stamp(28)
            vg = VM(a)
            for p in range(16):
                if p % 2 == 0: a(f"s_lshl1_add_u32 s{sT2}, s{sRB}, {p}\ns_and_b32 s{sT2}, s{sT2}, 14\ns_lshl_b32 s{sT2}, s{sT2}, 11\ns_add_u32 s{sT2}, s{sT2}, s{sKB}")
                off = " offset:2048" if p % 2 else ""
                a(f"buffer_load_dwordx4 v[{G+4*p}:{G+4*p+3}], v{vL16}, s[{S_WS}:{S_WS+3}], s{sT2} offen{off} sc1"); vg.issue(f"kvg{p}")
            if self.o.get('rel_att', 1) == 3: self.release()
            if self.o.get('hold2') == 1: self.release(112)
            for p in range(0, 16, 2):
                vg.wait(f"kvg{p+1}")
                for h2 in range(2):
                    d = S + 6*h2 if p == 0 else U + 6*h2; src = G + 4*(p + h2)
                    for k in range(3): a(f"v_lshlrev_b32 v{d+2*k}, 16, v{src+k}\nv_and_b32 v{d+2*k+1}, 0xffff0000, v{src+k}")
                if p:
                    for k in range(0, 12, 2): a(f"v_pk_add_f32 v[{S+k}:{S+k+1}], v[{S+k}:{S+k+1}], v[{U+k}:{U+k+1}]")
                    a(f"v_bfi_b32 v3, v{G+4*p+3}, v{G+4*p+7}, 0\nv_or3_b32 v5, v5, v{G+4*p+3}, v{G+4*p+7}\nv_and_b32 v9, v9, v3")
                else:
                    a(f"v_and_b32 v9, v{G+3}, v{G+7}\nv_or_b32 v5, v{G+3}, v{G+7}")
            if self.o.get('cst'): self.stamp(25); a(f"v_writelane_b32 v252, s{sT5}, 30")
            a(f"v_cmp_ne_u32 vcc, s{sTAG}, v9\nv_cmp_ne_u32 s[68:69], s{sTAG}, v5\ns_nop 1\ns_or_b64 vcc, vcc, s[68:69]")
            a(f"s_cbranch_vccz L_kv_ok\ns_add_u32 s{sT5}, s{sT5}, 1\ns_cmp_gt_u32 s{sT5}, 64\ns_cbranch_scc0 L_kv_gather")
            a.label("L_kv_ok")
        vm.drained()
        if self.o.get('hold2') == 2: self.release(112)
        self.stamp(12)
        for k in range(0, 6, 2): a(f"v_pk_add_f32 v[{S+k}:{S+k+1}], v[{S+k}:{S+k+1}], v[{S+6+k}:{S+7+k}]")
        for k in range(3): a(f"v_cvt_pk_bf16_f32 v{X+k}, v{S+2*k}, v{S+2*k+1}")
        a(f"ds_write_b128 v249, v[{X}:{X+3}] offset:2048\ns_mov_b32 s{sSPIN}, 0")
        a.label("L_x2")
        a(f"ds_read_b128 v[{Y}:{Y+3}], v250 offset:2048\ns_add_u32 s{sSPIN}, s{sSPIN}, 1\ns_waitcnt lgkmcnt(0)")
        a(f"v_cmp_ne_u32 vcc, s{sTAG}, v{Y+3}\ns_cmp_gt_u32 s{sSPIN}, 0x40000\ns_cbranch_scc1 L_x2d\ns_cbranch_vccnz L_x2")
        a.label("L_x2d")
        if self.o.get('cst'): self.stamp(26)
        if self.o.get('hold2') == 4: self.release(112)
        W = K + 24
        for k in range(3): a(f"v_cndmask_b32 v{W+k}, v{X+k}, v{Y+k}, {upper}\nv_cndmask_b32 v{W+3+k}, v{Y+k}, v{X+k}, {upper}")
        def pq(a_, h): r = Q + 16*(a_ >> 1) + 4*(a_ & 1) + 2*h; return f"v[{r}:{r+1}]"
        NUM, DEN, R = 116, 148, 180
        a("s_nop 1")
        for k in range(2): a(f"v_mov_b32_dpp v{W+6+k}, v{W+4+k} quad_perm:[1,0,3,2] row_mask:0xf bank_mask:0xf")
        for k in range(2): a(f"v_cndmask_b32 v{S+k}, v{W+6+k}, v{W+4+k}, {even}\nv_cndmask_b32 v{S+2+k}, v{W+4+k}, v{W+6+k}, {even}")
        a("s_nop 1")
        for a_ in range(4):
            for h in range(2): a(f"v_mfma_f32_16x16x16_bf16 v[{DEN+8*a_+4*h}:{DEN+8*a_+4*h+3}], v[{S+2*h}:{S+2*h+1}], {pq(a_, h)}, 0")
        for a_ in range(4):
            for h in range(2): a(f"v_mfma_f32_16x16x16_bf16 v[{NUM+8*a_+4*h}:{NUM+8*a_+4*h+3}], v[{W+2*h}:{W+2*h+1}], {pq(a_, h)}, 0")
        for k in range(8): a(f"v_add_f32 v{R+2*k}, v{T+8}, v{DEN+4*k}")
        for k in range(8): a(f"v_rcp_f32 v{R+2*k}, v{R+2*k}")
        for k in range(8): a(f"v_mul_f32 v{R+2*k}, v{T+4}, v{R+2*k}")
        for a_ in range(4):
            d = V + 4*a_
            for h in range(2):
                N = NUM + 8*a_ + 4*h; r = R + 4*a_ + 2*h
                if self.o.get('opk', 0):
                    for k in (0, 2): a(f"v_pk_mul_f32 v[{N+k}:{N+k+1}], v[{N+k}:{N+k+1}], v[{r}:{r+1}] op_sel_hi:[1,0]")
                else:
                    for k in range(4): a(f"v_mul_f32 v{N+k}, v{r}, v{N+k}")
            for j in range(4): a(f"v_cvt_pk_bf16_f32 v{d+j}, v{NUM+8*a_+2*j}, v{NUM+8*a_+2*j+1}")
            off = " offset:256" if a_ & 1 else ""
            a(f"buffer_store_dwordx4 v[{d}:{d+3}], v{vL16B if a_ >> 1 else vST}, s[{S_WS}:{S_WS+3}], s71 offen{off} sc1"); vm.issue("o")
            if self.o.get('onop'): a(f"s_nop {self.o['onop']}")
        if self.o.get('hold2') == 3: self.release(112)
        if self.o.get('cst'): self.stamp(27)
        vm.wait("o")
        self.flag(vm, sFL, 0)
        self.stamp(13)

    def c_main(self):
        a = self.a; vm = VM(a)
        a.label("L_C")
        if self.o['pf']: vm.issue("codepf")
        self.c_prologue(vm)
        self.stamp(1)
        a(f"s_cmp_lt_u32 s{sG}, 8\ns_cbranch_scc1 L_Catt")
        if self.o.get('short', 0):
            a(f"s_cmp_ge_u32 s{sG}, 11\ns_cselect_b32 s{sT0}, s{sC}, 0\ns_cmp_eq_u32 s{sT0}, 0\ns_cbranch_scc1 L_Cfull")
            self.c_kloop(False, True)
            a("s_branch L_Cepi")
            a.label("L_Cfull")
        self.c_kloop(False)
        a.label("L_Cepi")
        self.c_epi_mlp(vm.copy())
        a.label("L_Catt")
        a(f"s_lshl1_add_u32 s{sT0}, s{sC}, s{sR2}\ns_xor_b32 s{sT1}, s{sT0}, 1")
        a(f"s_mul_i32 s{sT2}, s{sT0}, 3072\ns_add_u32 s{sT2}, s{sT2}, {L_KV}\nv_add_u32 v249, s{sT2}, v{vL16}")
        a(f"s_mul_i32 s{sT2}, s{sT1}, 3072\ns_add_u32 s{sT2}, s{sT2}, {L_KV}\nv_add_u32 v250, s{sT2}, v{vL16}")
        a(f"s_lshl1_add_u32 s{sT0}, s{sG}, s{sC}\ns_lshl_b32 s{sKB}, s{sT0}, 15\ns_lshl_b32 s{sT0}, s{sR2}, 10\ns_add_u32 s{sKB}, s{sKB}, s{sT0}\ns_add_u32 s{sKB}, s{sKB}, {WS_KVP}")
        a(f"s_mov_b32 s{sEX}, 0x55555555\ns_mov_b32 s{sEX+1}, 0x55555555\ns_sub_u32 s66, 0, s{sR2}\ns_mov_b32 s67, s66")
        a(f"s_lshl_b32 s70, s{sRB}, 11\ns_add_u32 s70, s70, s{sKB}")
        a(f"s_lshl1_add_u32 s71, s{sG}, s{sC}\ns_lshl_b32 s71, s71, 11\ns_add_u32 s71, s71, {88*1024}\ns_add_u32 s71, s71, s{sA2B}")
        a(f"v_and_b32 v253, 15, v{vL}\nv_lshlrev_b32 v253, 11, v253\nv_and_b32 v254, 3, v{vL}\nv_lshlrev_b32 v254, 2, v254\nv_add_u32 v254, {L_FL}, v254")
        self.c_kloop(True); self.c_epi_att(vm.copy())
        a(f"s_cmp_lg_u32 s2, 0\ns_cbranch_scc1 L_cdone\ns_cmp_lg_u32 s{sW}, 0\ns_cbranch_scc1 L_cdone")
        a(f"v_lshlrev_b32 v7, 10, v{vL}")
        for k in range(4):
            a(f"s_mov_b32 s{sT0}, {WS_CSP + 65536*k}")
            self.spin_global(f"ep{k}", 7, 9, sT0, 12)
        a(f"s_mov_b32 s{sT0}, {WS_EPOCH}")
        self.flag(VM(a), sT0, 0)
        a.label("L_cdone")
        self.stamp(14)
        self.final_addr(VM(a), 11, 13)

    def final(self):
        a = self.a
        a.label("L_final")
        a("s_waitcnt vmcnt(0) lgkmcnt(0)")
        if self.o.get('tst'): self.stamp(46)
        a("s_barrier")
        if self.o.get('tst'): self.stamp(47)
        R, X = 20, 60
        a(f"v_xor_b32 v19, 16, v{vRR}")
        for kq in range(4):
            a(f"ds_read_b128 v[{R+8*kq}:{R+8*kq+3}], v{vRR} offset:{2048*kq}\nds_read_b128 v[{R+8*kq+4}:{R+8*kq+7}], v19 offset:{2048*kq}")
        for k in range(4):
            a(f"v_lshlrev_b32 v{X+2*k}, 16, v{XRES+k}\nv_and_b32 v{X+2*k+1}, 0xffff0000, v{XRES+k}")
        for kq in range(4):
            a(f"s_waitcnt lgkmcnt({6-2*kq})")
            for k in range(0, 8, 2): a(f"v_pk_add_f32 v[{X+k}:{X+k+1}], v[{X+k}:{X+k+1}], v[{R+8*kq+k}:{R+8*kq+k+1}]")
        for k in range(0, 8, 2): a(f"v_cvt_pk_bf16_f32 v{R+k//2}, v{X+k}, v{X+k+1}")
        a(f"buffer_store_dwordx4 v[{R}:{R+3}], v{vXO}, s[{S_OUT}:{S_OUT+3}], s{sRES} offen {self.o.get('outsc', '')}")
        if self.stamps:
            if self.o.get('tst'): self.stamp(48)
            a("s_waitcnt vmcnt(0)")
            self.stamp(17); self.rstamp(19)
            a(f"v_writelane_b32 v252, s96, 0\nv_writelane_b32 v252, s96, 18")
            a(f"s_lshl_b32 s{sT0}, s2, 3\ns_add_u32 s{sT0}, s{sT0}, s{sW}\ns_lshl_b32 s{sT0}, s{sT0}, 8\ns_add_u32 s{sT0}, s{sT0}, {WS_STAMP}")
            a(f"v_lshlrev_b32 v14, 2, v{vL}\nbuffer_store_dword v252, v14, s[{S_WS}:{S_WS+3}], s{sT0} offen")

    def build(self):
        a = self.a
        a.label("L_code0")
        self.entry()
        self.l_main()
        self.c_main()
        self.final()
        if self.o.get('probe'):
            wg, w, k = self.o['probe']
            a(f"s_cmp_lg_u32 s2, {wg}\ns_cbranch_scc1 L_end\ns_cmp_lg_u32 s{sW}, {w}\ns_cbranch_scc1 L_end")
            a(f"v_readlane_b32 s{sT1}, v252, {k}\ns_nop 3\ns_add_u32 s{sT1}, s{sT1}, 2500\ns_mov_b32 s{sSPIN}, 0")
            a.label("L_hold")
            a(f"s_memrealtime s[{sSTAMP}:{sSTAMP+1}]\ns_add_u32 s{sSPIN}, s{sSPIN}, 1\ns_waitcnt lgkmcnt(0)\ns_sub_u32 s{sT0}, s{sSTAMP}, s{sT1}")
            a(f"s_cmp_gt_u32 s{sSPIN}, 100000\ns_cbranch_scc1 L_end\ns_cmp_lt_i32 s{sT0}, 0\ns_cbranch_scc1 L_hold")
        a.label("L_end")
        a("s_endpgm")
        a.label("L_codeend")
        return single(a.text(), 256, 512, LDS_BYTES, 256, 102, 256)

if __name__ == "__main__":
    out = sys.argv[1] if len(sys.argv) > 1 else "k.s"
    stamps = "stamps" in sys.argv[2:]
    opts = {}
    for kv in sys.argv[2:]:
        if "=" in kv:
            k, v = kv.split("="); opts[k] = eval(v)
    open(out, "w").write(Gen(stamps, opts).build())
```

```python
import sys, math, struct
from asmlib import *

def f2u(x): return struct.unpack("<I", struct.pack("<f", x))[0]
LOG2E = 1.4426950408889634
LN2 = 0.6931471805599453

WS_EPOCH = 0
WS_STATS = 0x1000
WS_CSP   = 0x10000
WS_KVP   = 0x60000
WS_FLAG  = 0x100000
WS_KVF   = 0x140000
WS_A2    = 0x200000
A2_RT    = 60 * 1024
WS_SIZE  = 0x1000000
WS_STAMP = 0xC00000
OOB      = 0x40000000

L_X    = 0
L_W    = 49152
L_MISC = 147456
L_KV   = L_MISC
L_SLAB = 122880
L_TAB  = L_MISC + 12288
L_CS   = L_TAB
L_BT   = L_CS + 768
L_MT   = L_BT + 768
L_RT   = L_MT + 512
L_FL   = L_RT + 512
LDS_BYTES = 163840

ROUND_OF_STEP = [15, 16, 17, 4, 5, 12, 13, 14, 0, 1, 6, 7, 8, 2, 3, 9, 10, 11]
NREG = 12
ARING = 6
def round_of(step):
    return ROUND_OF_STEP[step] if step < 18 else ROUND_OF_STEP[step - 18]

S_X, S_W, S_W2, S_WO, S_WS, S_OUT, S_B1 = 24, 28, 32, 36, 40, 44, 48
sW, sLW = 52, 53
sR2, sC = 53, 54
sRB, sG, sPH = 55, 56, 57
sCT, sRT, sROT = 58, 59, 60
sTAG = 61
sXO, sWOF, sWSTEP, sWEND = 62, 63, 64, 65
sXB, sLX, sLWB, sWD = 66, 67, 68, 69
sWO1, sWO2 = 70, 71
sB2L, sB2C, sB2C2, sA2B = 72, 73, 74, 75
sC0, sPITCH, sE = 76, 83, 84
sT0, sT1, sT2, sT3, sT4, sT5 = 77, 78, 79, 80, 81, 82
sSPIN = 85
sEX = 86
sMASK = 62
sFL, sKB = 64, 65
sSW = 88
sB2C3 = 84
sRES = 3
sSTAMP = 92
SP = list(range(4, 24)) + [48, 49, 50, 51, 88, 89, 90, 91, 100, 101]

vL, vL16 = 0, 1
vRR, vXO = 17, 18
XRES = 244
vX, vWv, vB2D, vB2A = 2, 6, 10, 12
vB2AL = [132 + k for k in range(12)]
ACC2, AR, B2R = 20, 84, 148
vAO = [1, 248, 12, 13]
vL16B = 248
vRW = 2
vXA, vWA = 2, 4
vCO = [1, 248, 16, 255]
ACC, FR = 20, 116
CT = 220

class VM:
    def __init__(self, a): self.a = a; self.q = []
    def issue(self, tag): self.q.append(tag)
    def count(self, *tags):
        idx = max((i for i, t in enumerate(self.q) if t in tags), default=-1)
        return len(self.q) - 1 - idx if idx >= 0 else None
    def wait(self, *tags, lgkm=None):
        n = self.count(*tags)
        s = []
        if n is not None:
            assert n <= 63, n
            s.append(f"vmcnt({n})")
            self.q = self.q[len(self.q) - n:] if n else []
        if lgkm is not None: s.append(f"lgkmcnt({lgkm})")
        if s: self.a("s_waitcnt " + " ".join(s))
    def depth(self, n):
        if len(self.q) > n:
            self.a(f"s_waitcnt vmcnt({n})")
            self.q = self.q[len(self.q) - n:] if n else []
    def drained(self): self.q = []
    def copy(self):
        v = VM(self.a); v.q = list(self.q); return v

class Gen:
    def __init__(self, stamps=False, opts=None):
        self.a = Asm(); self.stamps = stamps
        self.o = dict(pf=1, hold=1, map2=0, classes=0, n0=3, spf=0, xloc=1, g3=1, pace=8, rel_mlp=1, rel_att=-2, pollwait=9, hold2=1, kstamps=False, cprio=1, w2pf=5, p0_at=27, rot=8)
        if opts: self.o.update(opts)

    def srd(self, d, p, n):
        self.a(f"s_mov_b32 s{d}, s{p}\ns_mov_b32 s{d+1}, s{p+1}\ns_mov_b32 s{d+2}, {n}\ns_mov_b32 s{d+3}, 0x20000")
    def stamp(self, idx):
        if not self.stamps: return
        self.rstamp(idx)
        if self.o.get('cyc') and idx in self.o['cyc']:
            self.a(f"s_memtime s[{sSTAMP}:{sSTAMP+1}]\ns_waitcnt lgkmcnt(0)\nv_writelane_b32 v252, s{sSTAMP}, {idx + 40}")
    def rstamp(self, idx):
        if not self.stamps: return
        if 'only' in self.o and idx not in self.o['only']: return
        self.a(f"s_memrealtime s[{sSTAMP}:{sSTAMP+1}]\ns_waitcnt lgkmcnt(0)\nv_writelane_b32 v252, s{sSTAMP}, {idx}")
    def al(self):
        if self.o.get('align', 1): self.a(".p2align 3")
    def lane0(self, v):
        self.a(f"v_cmp_eq_u32 vcc, 0, v{vL}\nv_mov_b32 v{v}, {OOB}\ns_nop 0\nv_cndmask_b32 v{v}, v{v}, 0, vcc")
    def tag(self):
        self.a(f"s_mul_i32 s{sTAG}, s{sTAG}, 0x9e3779b1\ns_add_u32 s{sTAG}, s{sTAG}, 0x7f4a7c15")
    def decode2(self):
        a = self.a
        if self.o['map2'] == 0:
            a(f"s_and_b32 s{sT0}, s2, 7\ns_lshr_b32 s{sT1}, s2, 3\ns_and_b32 s{sCT}, s{sT1}, 7\ns_lshr_b32 s{sT1}, s{sT1}, 3")
            if self.o.get('ctmap', 1):
                a(f"s_xor_b32 s{sT1}, s{sT1}, 2\ns_and_b32 s{sROT}, s{sCT}, 1\ns_lshl1_add_u32 s{sROT}, s{sT1}, s{sROT}\ns_lshr_b32 s{sT1}, s{sCT}, 1\ns_mov_b32 s{sCT}, s{sROT}")
            if self.o['xloc']: a(f"s_lshr_b32 s{sRT}, s{sT0}, 1\ns_and_b32 s{sT0}, s{sT0}, 1\ns_lshl2_add_u32 s{sT0}, s{sT0}, s{sRT}")
            a(f"s_lshl2_add_u32 s{sRT}, s{sT0}, s{sT1}\ns_lshl1_add_u32 s{sROT}, s{sT1}, s{sCT}")
        else:
            a(f"s_and_b32 s{sT0}, s2, 1\ns_bfe_u32 s{sT1}, s2, 0x20003\ns_lshl2_add_u32 s{sCT}, s{sT0}, s{sT1}")
            a(f"s_bfe_u32 s{sT0}, s2, 0x20001\ns_lshr_b32 s{sROT}, s2, 5\ns_lshl3_add_u32 s{sRT}, s{sT0}, s{sROT}\ns_lshl1_add_u32 s{sROT}, s{sT1}, s{sROT}")
    def final_addr(self, vm, t0, t1):
        a = self.a
        a(f"v_lshrrev_b32 v{t0}, 3, v{vL}\nv_and_b32 v{t1}, 7, v{vL}\nv_lshlrev_b32 v{vXO}, 10, v{t0}\nv_lshl_add_u32 v{vXO}, v{t1}, 4, v{vXO}")
        a(f"s_lshl3_add_u32 s{sT0}, s{sRT}, s{sW}\ns_lshl_b32 s{sT0}, s{sT0}, 13\ns_lshl_b32 s{sT1}, s{sCT}, 7\ns_add_u32 s{sRES}, s{sT0}, s{sT1}")
        if vm is not None: self.xres(vm)
        a(f"v_lshlrev_b32 v{t1}, 1, v{t1}\nv_xor_b32 v{t1}, v{t1}, v{t0}\nv_lshlrev_b32 v{t1}, 4, v{t1}\nv_lshl_add_u32 v{vRR}, v{t0}, 8, v{t1}")
        a(f"s_lshl_b32 s{sT0}, s{sW}, 13\nv_add_u32 v{vRR}, s{sT0}, v{vRR}")

    def xres(self, vm):
        self.a(f"buffer_load_dwordx4 v[{XRES}:{XRES+3}], v{vXO}, s[{S_X}:{S_X+3}], s{sRES} offen"); vm.issue("xres")
    def spin_global(self, name, vaddr, vtmp, soff, imm=0, srd=S_WS):
        a = self.a
        off = f" offset:{imm}" if imm else ""
        a(f"s_mov_b32 s{sSPIN}, 0")
        a.label(f"L_sp{name}")
        a(f"buffer_load_dword v{vtmp}, v{vaddr}, s[{srd}:{srd+3}], s{soff} offen{off} sc1\ns_add_u32 s{sSPIN}, s{sSPIN}, 1\ns_waitcnt vmcnt(0)")
        a(f"v_cmp_ne_u32 vcc, s{sTAG}, v{vtmp}\ns_cmp_gt_u32 s{sSPIN}, 0x8000\ns_cbranch_scc1 L_sd{name}\ns_cbranch_vccz L_sd{name}\ns_sleep {self.o.get('sleep', 2)}\ns_branch L_sp{name}")
        a.label(f"L_sd{name}")
    def spin_lds(self, name, vaddr, vtmp, off):
        a = self.a
        a(f"s_mov_b32 s{sSPIN}, 0")
        a.label(f"L_sp{name}")
        a(f"ds_read_b32 v{vtmp}, v{vaddr} offset:{off}\ns_add_u32 s{sSPIN}, s{sSPIN}, 1\ns_waitcnt lgkmcnt(0)")
        a(f"v_cmp_ne_u32 vcc, 1, v{vtmp}\ns_cmp_gt_u32 s{sSPIN}, 0x40000\ns_cbranch_scc1 L_sd{name}\ns_cbranch_vccnz L_sp{name}")
        a.label(f"L_sd{name}")

    def entry(self):
        a = self.a
        a("s_cmp_ge_u32 s2, 256\ns_cbranch_scc1 L_end")
        a("s_load_dwordx16 s[4:19], s[0:1], 0\ns_load_dwordx4 s[20:23], s[0:1], 64")
        if self.o['pf']:
            a(f"s_getpc_b64 s[{sT0+1}:{sT0+2}]\ns_bfe_u32 s{sT0}, s2, 0x30003\ns_mul_i32 s{sT0}, s{sT0}, 5120\nv_lshlrev_b32 v2, 4, v0\nv_min_u32 v2, 4992, v2\nv_add_u32 v2, s{sT0}, v2")
            a.label("L_pc")
            a(f"v_min_u32 v2, L_codeend-L_pc, v2\ns_mov_b32 exec_lo, 0x01010101\ns_mov_b32 exec_hi, 0x01010101\nglobal_load_dword v251, v2, s[{sT0+1}:{sT0+2}]\ns_mov_b64 exec, -1".replace("0x01010101", self.o.get('pfmask', "0x01010101")))
        if self.stamps:
            a("v_mov_b32 v252, 0\ns_memrealtime s[96:97]")
        a(f"v_lshrrev_b32 v1, 6, v0\nv_and_b32 v{vL}, 63, v0\nv_readfirstlane_b32 s{sW}, v1")
        a(f"s_bfe_u32 s{sT0}, s2, 0x30003\ns_and_b32 s{sT1}, s2, 1\ns_lshl3_add_u32 s{sRB}, s{sT1}, s{sT0}")
        a(f"s_lshr_b32 s{sT1}, s2, 6\ns_bfe_u32 s{sT2}, s2, 0x20001")
        if self.o['g3']: a(f"s_xor_b32 s{sT2}, s{sT2}, 3")
        a(f"s_lshl2_add_u32 s{sG}, s{sT1}, s{sT2}")
        a(f"s_sub_u32 s{sT0}, s{sG}, 8\ns_min_u32 s{sT1}, s{sT0}, 3\ns_mul_i32 s{sC0}, s{sT0}, 5\ns_add_u32 s{sC0}, s{sC0}, s{sT1}")
        a(f"v_lshlrev_b32 v{vL16}, 4, v{vL}")
        a(f"s_cmp_lt_u32 s{sW}, 4\ns_cbranch_scc1 L_C")

    def l_stage(self, vm, t):
        a = self.a; slot = t % 3
        def xpart():
            a(f"s_add_u32 m0, s{sLX}, {L_X + slot*16384}\ns_lshl_b32 s{sXO}, s{sPH}, 7\ns_add_u32 s{sXO}, s{sXO}, s{sXB}")
            for ii in range(4):
                off = f" offset:{1024*ii}" if ii else ""
                a(f"buffer_load_dwordx4 v{vX+ii}, s[{S_X}:{S_X+3}], s{sXO} offen{off} lds"); vm.issue(f"st{t}")
        if t > 0: xpart()
        a(f"s_add_u32 m0, s{sLWB}, {slot*24576}\ns_sub_u32 s{sWO1}, s{sWOF}, s{sWD}\ns_sub_u32 s{sWO2}, s{sWO1}, s{sWD}")
        for rg in range(2):
            if rg: a(f"s_add_u32 m0, s{sLWB}, {slot*24576 + 3072}\ns_nop 0")
            a(f"buffer_load_dwordx4 v{vWv+2*rg}, s[{S_W}:{S_W+3}], s{sWOF} offen lds"); vm.issue(f"st{t}")
            a(f"buffer_load_dwordx4 v{vWv+2*rg}, s[{S_W}:{S_W+3}], s{sWO1} offen offset:1024 lds"); vm.issue(f"st{t}")
            a(f"buffer_load_dwordx4 v{vWv+2*rg+1}, s[{S_W}:{S_W+3}], s{sWO2} offen offset:2048 lds"); vm.issue(f"st{t}" if t or not rg else "st0w")
        if t == 0: xpart()
        if t < 7:
            a(f"s_add_u32 s{sWOF}, s{sWOF}, s{sWSTEP}\ns_add_u32 s{sPH}, s{sPH}, 1\ns_and_b32 s{sPH}, s{sPH}, 7\ns_cselect_b32 s{sT0}, 0, s{sWEND}\ns_sub_u32 s{sWOF}, s{sWOF}, s{sT0}")

    def l_prologue(self, vm):
        a = self.a; T = ACC2
        pm = self.o.get('phmode', 0)
        if pm == 0: a(f"s_bfe_u32 s{sT0}, s2, 0x30003\ns_lshr_b32 s{sT1}, s2, 6\ns_lshl1_add_u32 s{sPH}, s{sT1}, s{sT0}\ns_and_b32 s{sPH}, s{sPH}, 7")
        elif pm == 1: a(f"s_bfe_u32 s{sT0}, s2, 0x30003\ns_bfe_u32 s{sT1}, s2, 0x10006\ns_lshl2_add_u32 s{sPH}, s{sT1}, s{sT0}\ns_and_b32 s{sPH}, s{sPH}, 7")
        elif pm in (2, 3):
            a(f"s_bfe_u32 s{sT0}, s2, 0x30003\ns_bfe_u32 s{sT1}, s2, 0x10006\ns_lshl2_add_u32 s{sPH}, s{sT1}, s{sT0}\ns_lshr_b32 s{sT1}, s2, 7")
            if pm == 3: a(f"s_xor_b32 s{sT1}, s{sT1}, 1")
            a(f"s_add_u32 s{sPH}, s{sPH}, s{sT1}\ns_and_b32 s{sPH}, s{sPH}, 7")
        if self.o.get('ph3'):
            a(f"s_cmp_eq_u32 s{sG}, 3\ns_cselect_b32 s{sT0}, {self.o['ph3']}, 0\ns_add_u32 s{sPH}, s{sPH}, s{sT0}\ns_and_b32 s{sPH}, s{sPH}, 7")
        a(f"s_sub_u32 s{sLW}, s{sW}, 4\ns_movk_i32 s{sPITCH}, 2752\ns_cmp_lt_u32 s{sG}, 8\ns_cselect_b32 s{sPITCH}, 3072, s{sPITCH}")
        a(f"s_cselect_b32 s{sWD}, 0, 896\ns_cselect_b32 s{sT3}, 0, 2048")
        a(f"s_lshl_b32 s{sT0}, s{sG}, 7\ns_lshl_b32 s{sT1}, s{sC0}, 6\ns_cmp_lt_u32 s{sG}, 8\ns_cselect_b32 s{sT5}, s{sT0}, s{sT1}\ns_add_u32 s{sT5}, s{sT5}, s{sT3}")
        a(f"v_lshrrev_b32 v{T}, 4, v{vL}\nv_and_b32 v{T+1}, 7, v{vL}\nv_xor_b32 v{T}, v{T}, v{T+1}\nv_lshlrev_b32 v{T}, 4, v{T}\nv_lshrrev_b32 v{T+2}, 3, v{vL}")
        a(f"v_lshl_add_u32 v{vX}, v{T+2}, 10, v{T}\nv_xor_b32 v{vX+1}, 64, v{vX}\nv_add_u32 v{vX+1}, 7168, v{vX+1}\nv_add_u32 v{vX+2}, 14336, v{vX}\nv_add_u32 v{vX+3}, 14336, v{vX+1}")
        a(f"v_lshrrev_b32 v{T}, 2, v{vL}\nv_and_b32 v{T}, 4, v{T}\nv_xor_b32 v{T}, v{T}, v{T+1}\nv_lshlrev_b32 v{T}, 4, v{T}")
        a(f"s_cmp_ge_u32 s{sG}, 11\ns_cselect_b32 s{sT4}, 64, 128\nv_mad_u32_u24 v{vWv}, v{T+2}, s{sPITCH}, v{T}\nv_cmp_gt_u32 vcc, s{sT4}, v{T}\nv_mov_b32 v{vWv+1}, {OOB}")
        a(f"s_lshl_b32 s{sT0}, s{sPITCH}, 3\nv_cndmask_b32 v{vWv+1}, v{vWv+1}, v{vWv}, vcc\nv_xor_b32 v{vWv+2}, 32, v{vWv}\nv_xor_b32 v{vWv+3}, 32, v{vWv+1}\nv_add_u32 v{vWv+2}, s{sT0}, v{vWv+2}\nv_add_u32 v{vWv+3}, s{sT0}, v{vWv+3}")
        a(f"s_lshl2_add_u32 s{sXB}, s{sRB}, s{sLW}\ns_lshl_b32 s{sXB}, s{sXB}, 15\ns_lshl_b32 s{sWSTEP}, s{sPITCH}, 6\ns_lshl_b32 s{sWEND}, s{sPITCH}, 9")
        a(f"s_lshl2_add_u32 s{sT0}, s{sPH}, s{sLW}\ns_lshl_b32 s{sT0}, s{sT0}, 4\ns_mul_i32 s{sWOF}, s{sT0}, s{sPITCH}\ns_add_u32 s{sWOF}, s{sWOF}, s{sT5}")
        a(f"s_lshl_b32 s{sLX}, s{sLW}, 12\ns_mul_i32 s{sLWB}, s{sLW}, 6144\ns_add_u32 s{sLWB}, s{sLWB}, {L_W}")
        a(f"s_mov_b32 s{S_X+2}, 2097152\ns_mov_b32 s{S_X+3}, 0x20000\ns_add_u32 s{S_W+2}, s{sWEND}, s{sT3}\ns_mov_b32 s{S_W+3}, 0x20000")
        a("s_waitcnt lgkmcnt(0)")
        self.stamp(1)
        a(f"s_load_dword s{sTAG}, s[22:23], {WS_EPOCH}")
        a(f"s_mov_b32 s{S_X}, s4\ns_mov_b32 s{S_X+1}, s5\ns_sub_u32 s12, s12, 2048\ns_subb_u32 s13, s13, 0")
        a(f"s_cmp_lt_u32 s{sG}, 8\ns_cselect_b32 s{S_W}, s6, s12\ns_cselect_b32 s{S_W+1}, s7, s13")
        self.l_stage(vm, 0)
        if self.o.get('pst'): self.stamp(40)
        a(f"v_lshrrev_b32 v{T}, 4, v{vL}\nv_lshlrev_b32 v{T}, 1, v{T}\nv_xor_b32 v{T}, v{T}, v{T+1}\nv_lshlrev_b32 v{T}, 4, v{T}\nv_lshl_add_u32 v{vB2D}, v{T+2}, 10, v{T}\nv_add_u32 v{vB2D+1}, 7168, v{vB2D}")
        self.srd(S_WS, 22, WS_SIZE); self.srd(S_W2, 16, 1376*1024); self.srd(S_WO, 8, 512*1024); self.srd(S_OUT, 18, 2097152)
        self.decode2()
        a(f"v_bfe_u32 v{T}, v{vL}, 2, 2\nv_lshrrev_b32 v{T+1}, 1, v{T}\nv_lshlrev_b32 v{T}, 7, v{T}\nv_lshl_add_u32 v{T}, v{T+1}, 6, v{T}")
        a(f"v_bfe_u32 v{T+1}, v{vL}, 4, 1\nv_lshl_add_u32 v{T}, v{T+1}, 5, v{T}\nv_and_b32 v{T+1}, 3, v{vL}\nv_lshl_add_u32 v{T+14}, v{T+1}, 3, v{T}\nv_lshrrev_b32 v{T+15}, 5, v{vL}")
        a(f"s_lshl_b32 s{sB2L}, s{sLW}, 11\nv_lshrrev_b32 v{T}, 2, v{vL}\nv_lshlrev_b32 v{T}, 7, v{T}\nv_lshl_add_u32 v{T}, v{T+1}, 3, v{T}\nv_bfe_u32 v{T+1}, v{vL}, 3, 2\nv_lshl_add_u32 v{T}, v{T+1}, 5, v{T}\nv_add_u32 v{vB2AL[0]}, s{sB2L}, v{T}")
        for j in range(1, 4): a(f"v_xor_b32 v{vB2AL[j]}, {32*j}, v{vB2AL[0]}")
        for k in range(4, 12): a(f"v_add_u32 v{vB2AL[k]}, 65536, v{vB2AL[k-4]}")
        a(f"v_and_b32 v{T}, 31, v{vL}\nv_lshlrev_b32 v{T}, 2, v{T}\nv_add_u32 v{T}, {L_FL}, v{T}\nv_mov_b32 v{T+1}, 0\nds_write_b32 v{T}, v{T+1}")

    def l_colsum_pre(self):
        a = self.a; T = ACC2; S = T + 16
        a(f"s_mul_i32 s{sT0}, s{sLW}, 6144\ns_add_u32 s{sT0}, s{sT0}, {L_W}\nv_mul_u32_u24 v{T}, 3072, v{T+15}\nv_add3_u32 v{T}, v{T}, v{T+14}, s{sT0}")
        a(f"v_lshlrev_b32 v{T+1}, 5, v{T+15}\nv_xor_b32 v{T}, v{T}, v{T+1}\nv_xor_b32 v{T+1}, 64, v{T}")
        a(f"s_mov_b32 s{sT5}, 0x3f803f80")
        for k in range(6): a(f"v_mov_b32 v{S+k}, 0")
        a(f"s_mul_i32 s{sT1}, s{sLW}, 1536\ns_add_u32 s{sT1}, s{sT1}, {L_SLAB}\nv_and_b32 v{T+2}, 31, v{vL}\nv_lshl_add_u32 v{T+2}, v{T+2}, 2, s{sT1}\nv_mul_u32_u24 v{T+3}, 768, v{T+15}\nv_add_u32 v{T+2}, v{T+2}, v{T+3}")
    def l_colsum(self):
        a = self.a; T = ACC2; F = AR; S = T + 16
        for u in range(3):
            for c in range(2):
                for rd in range(2):
                    r = F + 8*u + 4*c + 2*rd
                    a(f"ds_read_b64_tr_b16 v[{r}:{r+1}], v{T+c} offset:{1024*u + 512*rd}")
        for half in range(2):
            a(f"s_waitcnt lgkmcnt({6 - 6*half})")
            for k in range(4):
                for uc in range(3*half, 3*half + 3): a(f"v_dot2c_f32_bf16 v{S+uc}, s{sT5}, v{F+4*uc+k}")
        a("s_nop 2")
        for uc in range(6): a(f"ds_write_b32 v{T+2}, v{S+uc} offset:{128*uc}")

    def wave_sum2(self, v0, v1, t0, t1):
        a = self.a
        for m in ("quad_perm:[1,0,3,2]", "quad_perm:[2,3,0,1]", "row_half_mirror", "row_mirror"):
            a(f"s_nop 0\nv_add_f32_dpp v{v0}, v{v0}, v{v0} {m} row_mask:0xf bank_mask:0xf\nv_add_f32_dpp v{v1}, v{v1}, v{v1} {m} row_mask:0xf bank_mask:0xf")
        for op in ("v_permlane16_swap_b32", "v_permlane32_swap_b32"):
            a(f"v_mov_b32 v{t0}, v{v0}\nv_mov_b32 v{t1}, v{v1}\ns_nop 1\n{op} v{t0}, v{v0}\n{op} v{t1}, v{v1}\ns_nop 0\nv_add_f32 v{v0}, v{v0}, v{t0}\nv_add_f32 v{v1}, v{v1}, v{t1}")

    def c_stats(self, vm):
        a = self.a; T = 160; u = 116
        vm.wait("xrow", lgkm=0)
        if self.o.get('pst'): self.stamp(42)
        self.tag()
        for r in range(2):
            for k in range(4):
                a(f"v_lshlrev_b32 v{u+8*r+2*k}, 16, v{T+4+4*r+k}\nv_and_b32 v{u+8*r+2*k+1}, 0xffff0000, v{T+4+4*r+k}")
        s0, s1 = u + 16, u + 17
        for r, s in ((0, s0), (1, s1)): a(f"v_add_f32 v{s}, v{u+8*r}, v{u+8*r+1}")
        for k in range(2, 8):
            for r, s in ((0, s0), (1, s1)): a(f"v_add_f32 v{s}, v{s}, v{u+8*r+k}")
        self.wave_sum2(s0, s1, u + 40, u + 41)
        G0, G1 = u + 20, u + 24
        a(f"v_mul_f32 v{G0}, {f2u(1/512.):#x}, v{s0}\nv_mul_f32 v{G1}, {f2u(1/512.):#x}, v{s1}")
        for k in range(8):
            a(f"v_sub_f32 v{u+k}, v{u+k}, v{G0}\nv_sub_f32 v{u+8+k}, v{u+8+k}, v{G1}")
        a(f"v_mul_f32 v{s0}, v{u}, v{u}\nv_mul_f32 v{s1}, v{u+8}, v{u+8}")
        for k in range(1, 8): a(f"v_fmac_f32 v{s0}, v{u+k}, v{u+k}\nv_fmac_f32 v{s1}, v{u+8+k}, v{u+8+k}")
        self.wave_sum2(s0, s1, u + 40, u + 41)
        a(f"v_mov_b32 v{u}, {f2u(1e-5):#x}\nv_mov_b32 v{u+1}, {f2u(1e-5):#x}\nv_fmac_f32 v{u}, {f2u(1/512.):#x}, v{s0}\nv_fmac_f32 v{u+1}, {f2u(1/512.):#x}, v{s1}")
        a(f"v_rsq_f32 v{u}, v{u}\nv_rsq_f32 v{u+1}, v{u+1}\nv_mov_b32 v{G0+2}, 0\nv_mov_b32 v{G0+3}, s{sTAG}\nv_mov_b32 v{G1+2}, 0\nv_mov_b32 v{G1+3}, s{sTAG}")
        a(f"v_mul_f32 v{G0+1}, {f2u(LOG2E):#x}, v{u}\nv_mul_f32 v{G1+1}, {f2u(LOG2E):#x}, v{u+1}")
        self.lane0(u + 2)
        a(f"buffer_store_dwordx4 v[{G0}:{G0+3}], v{u+2}, s[{S_WS}:{S_WS+3}], s{sE} offen sc1"); vm.issue("statst")
        a(f"buffer_store_dwordx4 v[{G1}:{G1+3}], v{u+2}, s[{S_WS}:{S_WS+3}], s{sE} offen offset:16 sc1"); vm.issue("statst")
        if self.o.get('pst'): self.stamp(43)
        vm.wait("bias")
        a(f"v_lshlrev_b32 v{u+3}, 16, v{T+12}\nv_mul_f32 v{u+3}, {f2u(LOG2E):#x}, v{u+3}\nv_lshlrev_b32 v{u+4}, 2, v{T+13}\nv_add_u32 v{u+4}, {L_BT}, v{u+4}")
        a(f"s_cmp_eq_u32 s{sW}, 3\ns_cbranch_scc1 L_nobt\nds_write_b32 v{u+4}, v{u+3}")
        a.label("L_nobt")

    def l_cspub(self, vm, vi):
        a = self.a; T = ACC2 + 24; U = B2R
        a(f"s_mov_b32 s{sT0}, {OOB}\ns_cmp_lg_u32 s{sLW}, 0\ns_cbranch_scc1 L_nocsp{vi}")
        a(f"v_lshlrev_b32 v{T}, 2, v{vL}\nv_add_u32 v{T}, {L_SLAB}, v{T}")
        for k in range(0, 24, 2): a(f"ds_read2st64_b32 v[{U+k}:{U+k+1}], v{T} offset0:{k} offset1:{k+1}")
        a(f"v_mov_b32 v{T+3}, s{sTAG}")
        a(f"s_lshl4_add_u32 s{sT0}, s{sG}, s{sRB}\ns_lshl_b32 s{sT0}, s{sT0}, 10\ns_add_u32 s{sT0}, s{sT0}, {WS_CSP}")
        a("s_waitcnt lgkmcnt(0)")
        for sl in range(1, 7):
            for u in range(3): a(f"v_add_f32 v{U+u}, v{U+u}, v{U+3*sl+u}")
        for u in range(3): a(f"v_add_f32 v{T+u}, v{U+u}, v{U+21+u}")
        a.label(f"L_nocsp{vi}")
        a(f"buffer_store_dwordx4 v[{T}:{T+3}], v{vL16}, s[{S_WS}:{S_WS+3}], s{sT0} offen sc1"); vm.issue("cspst")

    def l_steptable(self):
        a = self.a
        a("s_waitcnt lgkmcnt(0)")
        a(f"s_mul_i32 s{sT0}, s{sROT}, 3\ns_lshr_b32 s{sT0}, s{sT0}, 1\ns_sub_u32 s{sT1}, s{sT0}, 11\ns_cmp_ge_u32 s{sT0}, 11\ns_cselect_b32 s{sT0}, s{sT1}, s{sT0}")
        a(f"s_mul_i32 s{sT3}, s{sLW}, 11\ns_add_u32 s{sT4}, s{sT3}, 11\ns_add_u32 s{sT0}, s{sT0}, s{sT3}")
        for i in range(11):
            a(f"s_lshl_b32 s{SP[i]}, s{sT0}, 10\ns_cmp_ge_u32 s{sT0}, 43\ns_cselect_b32 s{SP[i]}, {WS_SIZE}, s{SP[i]}")
            if i < 10: a(f"s_add_u32 s{sT0}, s{sT0}, 1\ns_cmp_eq_u32 s{sT0}, s{sT4}\ns_cselect_b32 s{sT0}, s{sT3}, s{sT0}")
        a(f"s_lshl_b32 s{sT3}, s{sLW}, 2\ns_add_u32 s{sT3}, s{sT3}, 44")
        for j in range(4):
            a(f"s_add_u32 s{sT0}, s{sROT}, {j}\ns_and_b32 s{sT0}, s{sT0}, 3\ns_add_u32 s{sT0}, s{sT0}, s{sT3}\ns_lshl_b32 s{SP[11+j]}, s{sT0}, 10")
        a(f"s_lshl_b32 s{SP[15]}, s{sCT}, 7\ns_add_u32 s{SP[16]}, s{SP[15]}, 16384\ns_sub_u32 s{SP[17]}, s{SP[15]}, {44*32768}\ns_add_u32 s{SP[18]}, s{SP[17]}, 16384")
        a(f"s_mul_i32 s{sA2B}, s{sRT}, {4*A2_RT}\ns_add_u32 s{sA2B}, s{sA2B}, {WS_A2}")
        for k in range(1, 4): a(f"v_add_u32 v{vAO[k]}, {k*A2_RT}, v{vL16}")

    def l_gather_addr(self):
        a = self.a; T = ACC2 + 40; sT4, sT5 = 86, 87
        a(f"s_lshl2_add_u32 s{sT4}, s{sRB}, s{sLW}\ns_lshl_b32 s{sT4}, s{sT4}, 9\ns_add_u32 s{sT4}, s{sT4}, {WS_STATS}")
        a(f"s_and_b32 s{sT5}, s{sRB}, 8\ns_lshl4_add_u32 s{sT5}, s{sG}, s{sT5}\ns_lshl2_add_u32 s{sT5}, s{sT5}, s{sLW}\ns_lshl_b32 s{sT5}, s{sT5}, 8\ns_add_u32 s{sT5}, s{sT5}, {WS_CSP}")
        a(f"v_and_b32 v{T}, 0x1f0, v{vL16}\nv_lshrrev_b32 v{T+1}, 4, v{vL}\nv_lshlrev_b32 v{T+1}, 10, v{T+1}\nv_and_b32 v{T+2}, 0xf0, v{vL16}\nv_or_b32 v{T+1}, v{T+1}, v{T+2}\nv_add_u32 v{T+2}, 4096, v{T+1}")
    def l_gather_issue(self, vm):
        a = self.a; T = ACC2 + 40; G = AR; sT4, sT5 = 86, 87
        a(f"buffer_load_dwordx4 v[{G}:{G+3}], v{T}, s[{S_WS}:{S_WS+3}], s{sT4} offen sc1"); vm.issue("gath")
        a(f"buffer_load_dwordx4 v[{G+4}:{G+7}], v{T+1}, s[{S_WS}:{S_WS+3}], s{sT5} offen sc1"); vm.issue("gath")
        a(f"buffer_load_dwordx4 v[{G+8}:{G+11}], v{T+2}, s[{S_WS}:{S_WS+3}], s{sT5} offen sc1"); vm.issue("gath")
    def l_gather_check(self, vm, vi):
        a = self.a; T = ACC2; G = AR
        vm.wait("gath")
        a(f"s_mov_b32 s{sSPIN}, 0")
        a.label(f"L_gchk{vi}")
        a(f"v_cmp_ne_u32 vcc, s{sTAG}, v{G+3}\nv_cmp_ne_u32 s[70:71], s{sTAG}, v{G+7}\ns_nop 1\ns_or_b64 s[70:71], vcc, s[70:71]")
        a(f"v_cmp_ne_u32 vcc, s{sTAG}, v{G+11}\ns_nop 1\ns_or_b64 vcc, vcc, s[70:71]")
        a(f"s_cbranch_vccz L_gok{vi}")
        a(f"s_add_u32 s{sSPIN}, s{sSPIN}, 1\ns_cmp_gt_u32 s{sSPIN}, 0x8000\ns_cbranch_scc1 L_gok{vi}")
        self.l_gather_issue(VM(a))
        a(f"s_waitcnt vmcnt(0)\ns_branch L_gchk{vi}")
        a.label(f"L_gok{vi}")
        a(f"s_lshl_b32 s{sT0}, s{sLW}, 7\ns_add_u32 s{sT0}, s{sT0}, {L_MT}\nv_and_b32 v{T}, 31, v{vL}\nv_lshl_add_u32 v{T}, v{T}, 2, s{sT0}")
        a(f"ds_write_b32 v{T}, v{G}\nds_write_b32 v{T}, v{G+1} offset:512")
    def l_w2touch(self, vm):
        a = self.a; T = ACC2 + 8
        a(f"s_lshl2_add_u32 s{sT0}, s2, s{sLW}\ns_lshl_b32 s{sT1}, s{sT0}, 9\ns_mul_i32 s{sT0}, s{sT0}, 1408\nv_lshlrev_b32 v{T}, 7, v{vL}\ns_mov_b64 exec, 0x7ff")
        a(f"buffer_load_dword v{T+1}, v{T}, s[{S_W2}:{S_W2+3}], s{sT0} offen\ns_mov_b64 exec, 0xf"); vm.issue("w2t")
        a(f"buffer_load_dword v{T+2}, v{T}, s[{S_WO}:{S_WO+3}], s{sT1} offen\ns_mov_b64 exec, -1"); vm.issue("w2t")
    def l_gather_cs(self):
        a = self.a; T = ACC2; G = AR
        for k in range(3): a(f"v_add_f32 v{G+4+k}, v{G+4+k}, v{G+8+k}")
        for op in ("v_permlane16_swap_b32", "v_permlane32_swap_b32"):
            for k in range(3): a(f"v_mov_b32 v{G+8+k}, v{G+4+k}")
            a("s_nop 0")
            for k in range(3): a(f"{op} v{G+8+k}, v{G+4+k}")
            a("s_nop 0")
            for k in range(3): a(f"v_add_f32 v{G+4+k}, v{G+4+k}, v{G+8+k}")
        a(f"s_lshl_b32 s{sT0}, s{sLW}, 6\ns_add_u32 s{sT0}, s{sT0}, {L_CS}\nv_lshl_add_u32 v{T+1}, v{vL}, 2, s{sT0}\ns_mov_b64 exec, 0xffff")
        a(f"ds_write2st64_b32 v{T+1}, v{G+4}, v{G+5} offset1:1\nds_write_b32 v{T+1}, v{G+6} offset:512\ns_mov_b64 exec, -1")

    def b2_dma(self, vm, step, pace=True):
        a = self.a
        if pace: vm.depth((self.o['pace'] if pace is True else pace) - 2)
        srd, base = (S_W2, SP[15 + (step & 1)]) if step < 22 else (S_WO, SP[17 + (step & 1)])
        a(f"s_lshl_b32 s{sT0}, s{SP[step // 2]}, 5\ns_add_u32 m0, s{sB2L}, {8192*round_of(step)}\ns_add_u32 s{sT0}, s{sT0}, s{base}")
        a(f"buffer_load_dwordx4 v{vB2D}, s[{srd}:{srd+3}], s{sT0} offen lds"); vm.issue(f"b2_{step}")
        a(f"buffer_load_dwordx4 v{vB2D+1}, s[{srd}:{srd+3}], s{sT0} offen offset:1024 lds"); vm.issue(f"b2_{step}")
        if self.o.get('b2stamps'): self.stamp(20 + step)
    def b2_read_list(self, s, dst):
        rnd = round_of(s); hi, lo = rnd // 8, rnd % 8
        return [f"ds_read_b64_tr_b16 v[{dst+4*j+2*(s&1)}:{dst+4*j+2*(s&1)+1}], v{vB2AL[4*hi + j]} offset:{8192*lo}" for j in range(4)]
    def b2_reads(self, s, dst):
        for r in self.b2_read_list(s, dst): self.a(r)

    def l_main(self):
        a = self.a; vm = VM(a); T = ACC2
        if self.o['pf']: vm.issue("codepf")
        self.l_prologue(vm)
        if self.o['spf']:
            a(f"s_lshr_b32 s{sT0}, s2, 3\ns_lshl2_add_u32 s{sT0}, s{sT0}, s{sLW}\ns_mul_i32 s{sT0}, s{sT0}, {64*self.o['spf']}\ns_add_u32 s94, s16, s{sT0}\ns_addc_u32 s95, s17, 0\ns_and_b32 s84, s2, 7")
        if self.o.get('stouch'):
            a(f"s_lshl2_add_u32 s{sT0}, s2, s{sLW}\ns_mul_i32 s{sT1}, s{sT0}, 1376\ns_and_b32 s{sT1}, s{sT1}, 0xffffffc0\ns_add_u32 s94, s16, s{sT1}\ns_addc_u32 s95, s17, 0")
            a(f"s_lshl_b32 s{sT0}, s{sT0}, 9\ns_add_u32 s98, s8, s{sT0}\ns_addc_u32 s99, s9, 0")
        self.l_steptable()
        self.tag(); self.l_gather_addr()
        a(f"v_and_b32 v{T}, 7, v{vL}\nv_lshrrev_b32 v{T+1}, 4, v{vL}\nv_xor_b32 v{T+1}, v{T+1}, v{T}\nv_lshlrev_b32 v{T+1}, 4, v{T+1}\nv_lshl_add_u32 v{T+1}, v{T}, 8, v{T+1}")
        a(f"v_bfe_u32 v{T}, v{vL}, 3, 1\nv_lshl_add_u32 v{T+1}, v{T}, 13, v{T+1}\nv_add_u32 v254, s{sB2L}, v{T+1}")
        vP0, vP2, vPT = 249, 250, 251
        a(f"s_lshl_b32 s54, s{sRT}, 12\ns_add_u32 s54, s54, {WS_FLAG}")
        a(f"v_and_b32 v{vP0}, 3, v{vL}\ns_lshl_b32 s{sT0}, s{sLW}, 2\nv_add_u32 v{vP0}, s{sT0}, v{vP0}\nv_lshlrev_b32 v{vP0}, 7, v{vP0}")
        if not self.o['classes'] and self.o.get('psub', 1):
            a(f"s_lshl_b32 s{sT0}, s{sLW}, 3\ns_or_b32 s{sT0}, s{sT0}, 0x80000\ns_bfe_u32 s{sT1}, 0x0c060200, s{sT0}\ns_bfe_u32 s{sT0}, 0x03050503, s{sT0}")
            a(f"v_min_u32 v{vP2}, s{sT0}, v{vL}\nv_add_u32 v{vP2}, s{sT1}, v{vP2}\nv_lshlrev_b32 v{vP2}, 7, v{vP2}")
        elif not self.o['classes']:
            a(f"v_and_b32 v{vP2}, 15, v{vL}\nv_lshlrev_b32 v{vP2}, 7, v{vP2}")
        else:
            a(f"v_and_b32 v{vP2}, 3, v{vL}\nv_min_u32 v{vP2}, 2, v{vP2}")
            a(f"s_mul_i32 s{sT0}, s{sLW}, 3\ns_mul_i32 s{sT1}, s{sLW}, 6\ns_sub_u32 s{sT1}, s{sT1}, 6\ns_cmp_lt_u32 s{sLW}, 2\ns_cselect_b32 s{sT0}, s{sT0}, s{sT1}\ns_cselect_b32 s{sT1}, 0, 1")
            a(f"v_lshlrev_b32 v{vP2}, s{sT1}, v{vP2}\nv_add_u32 v{vP2}, s{sT0}, v{vP2}\nv_min_u32 v{vP2}, 14, v{vP2}\nv_lshlrev_b32 v{vP2}, 7, v{vP2}")
        vA = vP0 if self.o['classes'] else vP2
        self.final_addr(None, T, T + 1)
        a(f"v_and_b32 v255, 3, v{vL}\nv_lshlrev_b32 v255, 2, v255\nv_add_u32 v255, {L_FL}, v255")
        a(f"s_mul_i32 s{sT0}, s{sLW}, 3072\ns_add_u32 s{sT0}, s{sT0}, {L_KV + 12}\nv_add_u32 v{T}, s{sT0}, v{vL16}\ns_not_b32 s{sT0}, s{sTAG}\nv_mov_b32 v{T+1}, s{sT0}")
        for k in range(3): a(f"ds_write_b32 v{T}, v{T+1} offset:{1024*k}")
        self.l_colsum_pre()
        if self.o.get('pst'): self.stamp(41)
        vm.depth(self.o.get('st1_at', 8))
        if self.o.get('pst'): self.stamp(42)
        self.l_stage(vm, 1)
        if self.o.get('pst'): self.stamp(43)
        if self.o.get('w2pf', -1) == -1: self.l_w2touch(vm)
        vm.wait("st0w")
        self.l_colsum()
        CL = self.o.get('cl') or [{}]
        TV = B2R + 40
        if len(CL) > 1 or CL[0]:
            a(f"s_lshr_b32 s{sT0}, s2, 3\ns_lshl2_add_u32 s{sT0}, s{sT0}, s{sLW}\ns_mul_i32 s{sT0}, s{sT0}, 118")
            a(f"v_min_u32 v{TV}, 58, v{vL}\nv_add_u32 v{TV}, s{sT0}, v{TV}\nv_lshlrev_b32 v{TV}, 7, v{TV}\nv_add_u32 v{TV+1}, {59*128}, v{TV}")
            a(f"v_subrev_u32 v{TV+2}, {1376*1024}, v{TV}\nv_subrev_u32 v{TV+3}, {1376*1024}, v{TV+1}\ns_and_b32 s84, s{sCT}, {len(CL)-1}")
        def touch(vm, k):
            a(f"buffer_load_dword v{TV+4}, v{TV+k}, s[{S_W2}:{S_W2+3}], 0 offen"); vm.issue("tch")
            a(f"buffer_load_dword v{TV+5}, v{TV+2+k}, s[{S_WO}:{S_WO+3}], 0 offen"); vm.issue("tch")
        base = vm; ends = []
        for vi, var in enumerate(CL):
            vm = base.copy()
            if vi + 1 < len(CL): a(f"s_cmp_lg_u32 s84, {vi}\ns_cbranch_scc1 L_var{vi}")
            for t in range(8):
                vm.wait(f"st{t}", lgkm=None if ((self.o['spf'] or self.o.get('stouch')) and 1 <= t <= 6) else 0)
                if self.o.get('pst') and t < 2: self.stamp(44 + t)
                a("s_barrier")
                if self.o['kstamps'] or t in (0, 7): self.stamp(2 + t)
                if t + 2 < 8: self.l_stage(vm, t + 2)
                for k in var.get(t, []): touch(vm, k)
                if t == 0: self.l_cspub(vm, vi)
                if self.o['spf'] and t in self.o.get('spf_t', range(0, 6)):
                    n = self.o['spf']; assert 128*64*n <= 234752
                    a(f"s_add_u32 s84, s84, 1\ns_sub_u32 s{sT0}, s84, 6\ns_cmp_ge_u32 s84, 6\ns_cselect_b32 s84, s{sT0}, s84\ns_mul_i32 s{sT0}, s84, 234752\ns_add_u32 s98, s94, s{sT0}\ns_addc_u32 s99, s95, 0")
                    for k in range(n): a(f"s_load_dword s54, s[98:99], {64*k}")
                if self.o.get('stouch'):
                    n, t0 = self.o['stouch']
                    lst = [("94:95", 64*k) for k in range(22)] + [("98:99", 64*k) for k in range(8)]
                    if t >= t0:
                        for p, off in lst[n*(t - t0):n*(t - t0 + 1)]: a(f"s_load_dword s84, s[{p}], {off}")
                if t == self.o.get('a2touch', -9):
                    a(f"s_lshl2_add_u32 s{sT0}, s{sRB}, s{sLW}\ns_mul_i32 s{sT0}, s{sT0}, {A2_RT}\ns_lshl_b32 s{sT1}, s{sC0}, 11\ns_lshl_b32 s{sT2}, s{sG}, 12\ns_add_u32 s{sT2}, s{sT2}, {88*1024}")
                    a(f"s_cmp_lt_u32 s{sG}, 8\ns_cselect_b32 s{sT1}, s{sT2}, s{sT1}\ns_cselect_b32 s{sT2}, {OOB}, 8192\ns_cselect_b32 exec_hi, 0, -1\ns_add_u32 s{sT0}, s{sT0}, s{sT1}\ns_add_u32 s{sT0}, s{sT0}, {WS_A2}\ns_add_u32 s{sT2}, s{sT2}, s{sT0}")
                    a(f"v_lshlrev_b32 v{T+8}, 7, v{vL}\nbuffer_load_dword v{T+9}, v{T+8}, s[{S_WS}:{S_WS+3}], s{sT0} offen\ns_mov_b32 exec_hi, 0\nbuffer_load_dword v{T+10}, v{T+8}, s[{S_WS}:{S_WS+3}], s{sT2} offen\ns_mov_b64 exec, -1")
                    vm.issue("a2t"); vm.issue("a2t")
                if t == 5: self.l_gather_issue(vm)
                if t == self.o.get('w2pf', -1): self.l_w2touch(vm)
                if t == 6:
                    for s in range(self.o['n0']): self.b2_dma(vm, s, pace=False)
                    self.l_gather_check(vm, vi); self.l_gather_cs()
            ends.append(list(vm.q))
            if vi + 1 < len(CL):
                a("s_branch L_varend"); a.label(f"L_var{vi}")
        assert all(e == ends[0] for e in ends)
        a.label("L_varend")
        for s in range(self.o['n0'], 7): self.b2_dma(vm, s, pace=False)
        def park(k):
            vm.wait(f"b2_{k}")
            self.b2_reads(k, B2R + 16*(k // 2))
        ep = self.o.get('epark', 1); done = 0
        for s in range(7, 18):
            if s == 13: self.spin_lds("ring", 255, T + 1, 0)
            self.b2_dma(vm, s)
            if ep and s - 6 > done:
                park(done); done += 1
        self.stamp(10)
        for k in range(done, 12):
            park(k)
            if k > 1: a("s_waitcnt lgkmcnt(8)")
        a(f"v_xor_b32 v253, 64, v254")
        a("s_waitcnt lgkmcnt(0)")
        if self.o.get('mix', 0):
            a(f"s_cmp_lt_u32 s{sG}, 8\ns_cbranch_scc1 L_p2att")
            self.l_phase2(vm.copy(), "M", True, vP0, vP2, vPT, vA)
            a.label("L_p2att")
        self.l_phase2(vm.copy(), "A", False, vP0, vP2, vPT, vA)

    def l_phase2(self, vm, sfx, mix, vP0, vP2, vPT, vA):
        a = self.a; T = ACC2
        polls = {0: (vA, 2048), 11: (vP0, 0)}
        free = [AR + 16*k for k in range(3)]; slot = {}; bslot = {i: B2R + 16*i for i in range(NREG // 2)}
        def a_one(i, t):
            if t == 0:
                slot[i] = free.pop(0)
                a(f"s_add_u32 s{sT0}, s{sA2B}, s{SP[i]}")
            r = slot[i] + 4*t
            a(f"buffer_load_dwordx4 v[{r}:{r+3}], v{vAO[t]}, s[{S_WS}:{S_WS+3}], s{sT0} offen sc1"); vm.issue(f"a{i}_{t}")
        def poll_issue(c):
            v, imm = polls[c]
            off = f" offset:{imm}" if imm else ""
            a(f"buffer_load_dword v{vPT}, v{v}, s[{S_WS}:{S_WS+3}], s54 offen{off} sc1"); vm.issue(f"p{c}")
        def poll_check(c):
            v, imm = polls[c]
            vm.wait(f"p{c}")
            a(f"v_cmp_ne_u32 vcc, s{sTAG}, v{vPT}\ns_cbranch_vccz L_pok{c}{sfx}")
            self.spin_global(f"p{c}{sfx}", v, vPT, 54, imm)
            a.label(f"L_pok{c}{sfx}")
            self.stamp({0: 12, 11: 15}[c])
        pre = self.o.get('mixpre', 12) if mix else 12
        if pre: self.spin_lds("hold" + sfx, 255, T + 1, 64)
        self.stamp(13)
        a(f"s_lshl_b32 s{sT0}, s{sLW}, 2\ns_add_u32 s{sT0}, s{sT0}, {L_FL + 96}\nv_mov_b32 v{T+2}, s{sT0}\nv_mov_b32 v{T+3}, 1")
        for s in range(18, 18 + pre):
            self.b2_dma(vm, s, pace=self.o.get('pace2', 10))
            if s == self.o.get('pw_at', 25) and not mix:
                if s == 29: vm.depth(self.o['pollwait'] - 1)
                a(f"ds_write_b32 v{T+2}, v{T+3}")
        self.spin_lds("hold2" + sfx, 255, T + 1, 112)
        poll_issue(0)
        nxt = 18 + pre
        for k in range(self.o.get('mixpoll', 2) if mix else 0):
            if nxt < 30: self.b2_dma(vm, nxt, pace=False); nxt += 1
        self.stamp(11)
        poll_check(0)
        a("s_setprio 1")
        self.xres(vm)
        D4 = self.o.get('adepth', 10)
        LEAD = self.o.get('lead', 4)
        todo = [(i, t) for i in range(15) for t in range(4)]; nxt = 0
        def issue_next():
            nonlocal nxt
            i, t = todo[nxt]
            if (i, t) == (11, 0): poll_check(11)
            a_one(i, t); nxt += 1
            if nxt == 44 - LEAD: poll_issue(11)
        for k in range(D4): issue_next()
        for i in range(15):
            R = []
            if NREG // 2 <= i + 1 < 15:
                bslot[i + 1] = free.pop(0)
                vm.wait(f"b2_{2*i+3}")
                R = self.b2_read_list(2*i + 2, bslot[i + 1]) + self.b2_read_list(2*i + 3, bslot[i + 1])
            if i >= NREG // 2: a("s_waitcnt lgkmcnt(0)")
            if self.o.get('astamps'): self.stamp(20 + i)
            for t in range(4):
                vm.wait(f"a{i}_{t}")
                for jj in range(4):
                    j = 3 - jj if t & 1 else jj
                    A = ACC2 + 16*t + 4*j; acc = f"v[{A}:{A+3}]"
                    a(f"v_mfma_f32_16x16x32_bf16 {acc}, v[{bslot[i]+4*j}:{bslot[i]+4*j+3}], v[{slot[i]+4*t}:{slot[i]+4*t+3}], {'0' if i == 0 else acc}")
                    if jj < 3 and t < 3 and R: a(R.pop(0))
                    if jj in (0, 2) and nxt < min(60, 4*i + t + D4 + jj // 2) and (todo[nxt][1] or free): issue_next()
            free.append(slot[i]); free.append(bslot[i])
        assert nxt == 60
        self.stamp(16)
        a("s_nop 3")
        for t in range(4):
            for j in range(4):
                r = ACC2 + 16*t + 4*j
                a(f"ds_write_b128 v{253 if j & 1 else 254}, v[{r}:{r+3}] offset:{16384*t + 128*(j >> 1)}")
        a("s_branch L_final")

    def c_prologue(self, vm):
        a = self.a; T = CT
        a("s_waitcnt lgkmcnt(0)")
        if self.o.get('pst'): self.stamp(40)
        a(f"s_load_dword s{sTAG}, s[22:23], {WS_EPOCH}")
        self.srd(S_X, 4, 2097152)
        X = 160
        a(f"s_lshl4_add_u32 s{sT0}, s{sRB}, s{sG}\ns_lshl2_add_u32 s{sT5}, s{sT0}, s{sW}\ns_lshl_b32 s{sT0}, s{sT5}, 11")
        a(f"buffer_load_dwordx4 v[{X+4}:{X+7}], v{vL16}, s[{S_X}:{S_X+3}], s{sT0} offen"); vm.issue("xrow")
        a(f"buffer_load_dwordx4 v[{X+8}:{X+11}], v{vL16}, s[{S_X}:{S_X+3}], s{sT0} offen offset:1024"); vm.issue("xrow")
        a(f"s_lshl_b32 s{sE}, s{sT5}, 5\ns_add_u32 s{sE}, s{sE}, {WS_STATS}")
        self.srd(S_B1, 14, 2752)
        a(f"v_lshl_add_u32 v{X+13}, s{sW}, 6, v{vL}\nv_lshlrev_b32 v{X+3}, 1, v{X+13}")
        a(f"s_lshl_b32 s{sT0}, s{sC0}, 6\ns_cmp_lt_u32 s{sG}, 8\ns_cselect_b32 s{sT0}, {OOB}, s{sT0}")
        a(f"buffer_load_ushort v{X+12}, v{X+3}, s[{S_B1}:{S_B1+3}], s{sT0} offen"); vm.issue("bias")
        a(f"s_and_b32 s{sR2}, s{sW}, 1\ns_lshr_b32 s{sC}, s{sW}, 1")
        a(f"v_and_b32 v{T+2}, 15, v{vL}\nv_lshrrev_b32 v{T+3}, 4, v{vL}\nv_lshrrev_b32 v{T+4}, 1, v{T+2}\nv_xor_b32 v{T+4}, v{T+4}, v{T+3}")
        a(f"s_lshl_b32 s{sT3}, s{sR2}, 13\nv_lshlrev_b32 v{T+5}, 7, v{T+2}\nv_lshl_add_u32 v{T+5}, v{T+4}, 4, v{T+5}\nv_add_u32 v{vXA}, s{sT3}, v{T+5}\nv_xor_b32 v{vXA+1}, 64, v{vXA}")
        a(f"v_and_b32 v{T+4}, 3, v{vL}\nv_lshlrev_b32 v{T+4}, 3, v{T+4}\nv_bfe_u32 v{T+5}, v{vL}, 3, 1\nv_xor_b32 v{T+5}, s{sC}, v{T+5}\nv_lshl_add_u32 v{T+4}, v{T+5}, 6, v{T+4}")
        a(f"v_and_b32 v{T+6}, 1, v{T+3}\nv_lshl_add_u32 v{T+4}, v{T+6}, 5, v{T+4}")
        a(f"v_bfe_u32 v{T+5}, v{vL}, 2, 2\nv_lshl_add_u32 v{T+4}, v{T+5}, 7, v{T+4}\nv_mul_u32_u24 v{T+5}, 3072, v{T+3}\nv_add_u32 v{T+4}, v{T+4}, v{T+5}")
        a(f"v_add_u32 v{vWA}, {L_W}, v{T+4}\nv_xor_b32 v{vWA+1}, 32, v{vWA}")
        a(f"s_lshl_b32 s{sT0}, s{sR2}, 8\ns_add_u32 s{sT0}, s{sT0}, {L_MT}\nv_lshl_add_u32 v{T+19}, v{T+3}, 4, s{sT0}\nv_lshl_add_u32 v{T+23}, v{T+2}, 2, s{sT0}")
        a(f"s_lshl_b32 s{sT0}, s{sC}, 7\ns_add_u32 s{sT0}, s{sT0}, {L_TAB}\nv_lshl_add_u32 v{T+22}, v{T+2}, 2, s{sT0}\nv_lshl_add_u32 v{T+18}, v{T+3}, 4, s{sT0}")
        self.decode2()
        self.srd(S_WS, 22, WS_SIZE); self.srd(S_OUT, 18, 2097152)
        a(f"s_lshl1_add_u32 s{sT0}, s{sRB}, s{sR2}\ns_mul_i32 s{sA2B}, s{sT0}, {4*A2_RT}\ns_add_u32 s{sA2B}, s{sA2B}, {WS_A2}")
        a(f"s_lshl4_add_u32 s{sT0}, s{sT0}, s{sG}\ns_lshl1_add_u32 s{sT0}, s{sT0}, s{sC}\ns_lshl_b32 s{sFL}, s{sT0}, 7\ns_add_u32 s{sFL}, s{sFL}, {WS_FLAG}")
        for k in range(1, 4): a(f"v_add_u32 v{vCO[k]}, {k*A2_RT}, v{vL16}")
        self.consts()
        a(f"s_lshl_b32 s{sT0}, s{sW}, 2\ns_add_u32 s{sT0}, s{sT0}, {L_FL}\nv_mov_b32 v14, s{sT0}\nv_mov_b32 v15, 1")
        if self.o.get('pst'): self.stamp(41)
        self.c_stats(vm)
        self.flag_regs()
        if self.o['cprio']: a(f"s_setprio {self.o['cprio']}")

    def c_read_list(self, n):
        t, kk = n // 2, n % 2; slot = t % 3; F = FR + 40*(n & 1)
        def x(a_): return f"ds_read_b128 v[{F+4*a_}:{F+4*a_+3}], v{vXA+kk} offset:{slot*16384 + 2048*a_}"
        def w(f):
            u, fp = f // 2, f % 2; r = F + 16 + 4*f
            return [f"ds_read_b64_tr_b16 v[{r+2*rd}:{r+2*rd+1}], v{vWA+fp} offset:{slot*24576 + 12288*kk + 1024*u + 512*rd}" for rd in range(2)]
        return [x(0)] + w(0) + [x(1), x(2), x(3)] + w(1) + w(2) + w(3) + w(4) + w(5)
    def c_mfma(self, n, f, a_, att):
        F = FR + 40*(n & 1); u, fp = f // 2, f % 2
        x = f"v[{F+4*a_}:{F+4*a_+3}]"; w = f"v[{F+16+4*f}:{F+19+4*f}]"
        A = ACC + 32*u + 8*a_ + 4*fp; acc = f"v[{A}:{A+3}]"; c = "0" if n == 0 else acc
        if att and u > 0: return f"v_mfma_f32_16x16x32_bf16 {acc}, {x}, {w}, {c}"
        return f"v_mfma_f32_16x16x32_bf16 {acc}, {w}, {x}, {c}"

    def c_kloop(self, att, short=False):
        a = self.a; nr = 12 if short else 16
        a("s_waitcnt lgkmcnt(0)\ns_barrier")
        self.stamp(2)
        for r in self.c_read_list(0)[:nr]: a(r)
        for n in range(16):
            boundary = (n % 2 == 1)
            if boundary:
                a("s_waitcnt lgkmcnt(0)")
                if n < 15:
                    a("s_barrier")
                    if self.o['kstamps'] == 2: self.stamp(3 + n // 2)
                else:
                    a(f"ds_write_b32 v14, v15")
            R = self.c_read_list(n + 1)[:nr] if n < 15 else (self.att_pre if att else self.mlp_pre)()
            need = {0: 3, 1: 6, 4: 8, 8: 10, 12: 12, 16: 14, 20: 16}
            issued = 0
            for k in range(16 if short else 24):
                f, a_ = k // 4, k % 4
                if f % 2 and self.o.get('snake', 1): a_ = 3 - a_
                if not boundary and k in need: a(f"s_waitcnt lgkmcnt({min(15, nr - need[k] + issued)})")
                a(self.c_mfma(n, f, a_, att))
                if issued < len(R): a(R[issued]); issued += 1
        self.stamp(10)

    def consts(self):
        T = CT
        self.a(f"v_mov_b32 v{T}, 2.0\nv_mov_b32 v{T+2}, {f2u(-2*LN2):#x}\nv_mov_b32 v{T+4}, {f2u(LN2):#x}\nv_mov_b32 v{T+6}, 1.0\nv_mov_b32 v{T+8}, {f2u(1e-6):#x}")
    def table_list(self, dst, vaddr, off, n, step):
        return [f"ds_read_b128 v[{dst+4*q}:{dst+4*q+3}], v{vaddr} offset:{off + step*q}" for q in range(n)]
    def lane_stats_list(self):
        return [f"ds_read_b32 v{CT+10+2*q}, v{CT+23} offset:{64*q}" for q in range(4)] + [f"ds_read_b32 v{6+2*q}, v{CT+23} offset:{64*q+512}" for q in range(4)]
    def flag(self, vm, soff, imm):
        a = self.a; T = CT
        off = f" offset:{imm}" if imm else ""
        a(f"buffer_store_dword v{T+21}, v{T+20}, s[{S_WS}:{S_WS+3}], s{soff} offen{off} sc1"); vm.issue("flag")
    def release(self, off=64):
        a = self.a
        a(f"ds_write_b32 v14, v15 offset:{off}")
    def flag_regs(self):
        self.lane0(CT + 20); self.a(f"v_mov_b32 v{CT+21}, s{sTAG}")

    def mlp_tabs(self, u):
        return self.table_list(116 + 16*(u & 1), CT+18, L_CS - L_TAB + 256*u, 2, 64) + self.table_list(124 + 16*(u & 1), CT+18, L_BT - L_TAB + 256*u, 2, 64)
    def mlp_pre(self):
        return self.lane_stats_list() + self.mlp_tabs(0)
    def att_pre(self):
        T = CT
        return ([f"ds_read_b32 v{148+2*k}, v{T+22} offset:{256 + 256*(k >> 1) + 64*(k & 1)}" for k in range(4)]
                + self.table_list(116, T+19, 0, 4, 64) + self.table_list(132, T+19, 512, 4, 64)
                + self.table_list(212, T+18, L_CS - L_TAB, 2, 64) + self.lane_stats_list())
    def c_epi_mlp(self, vm):
        a = self.a; T = CT; P = range(0, 16, 2)
        CP, U = 156, 172
        a(f"s_add_u32 s{sT1}, s{sC0}, s{sC}\ns_lshl_b32 s{sT1}, s{sT1}, 10\ns_add_u32 s{sA2B}, s{sA2B}, s{sT1}")
        a("s_waitcnt lgkmcnt(4)")
        for q in range(4): a(f"v_mul_f32 v{T+10+2*q}, v{T+10+2*q}, v{6+2*q}")
        for u in range(3):
            cs, bb = 116 + 16*(u & 1), 124 + 16*(u & 1)
            if u == 2:
                a(f"s_cmp_ge_u32 s{sG}, 11\ns_cselect_b32 s{sT0}, s{sC}, 0\ns_cmp_eq_u32 s{sT0}, 1\ns_cbranch_scc1 L_mlp_short")
            a("s_waitcnt lgkmcnt(0)")
            if u < 2:
                for r in self.mlp_tabs(u + 1): a(r)
            for t in range(2):
                A = ACC + 32*u + 16*t
                self.al()
                for k in P:
                    st = T + 10 + 4*t + 2*(k // 8); j = k % 8
                    a(f"v_pk_fma_f32 v[{CP+k}:{CP+k+1}], v[{st}:{st+1}], v[{cs+j}:{cs+j+1}], v[{bb+j}:{bb+j+1}] op_sel_hi:[0,1,1] neg_lo:[1,0,0] neg_hi:[1,0,0]")
                for k in P:
                    st = 6 + 4*t + 2*(k // 8)
                    a(f"v_pk_fma_f32 v[{A+k}:{A+k+1}], v[{A+k}:{A+k+1}], v[{st}:{st+1}], v[{CP+k}:{CP+k+1}] op_sel_hi:[1,0,1]")
                for k in range(16): a(f"v_exp_f32 v{U+k}, v{A+k}")
                for k in P: a(f"v_pk_add_f32 v[{CP+k}:{CP+k+1}], v[{U+k}:{U+k+1}], v[{T}:{T+1}] op_sel_hi:[1,0]")
                for k in P: a(f"v_pk_fma_f32 v[{U+k}:{U+k+1}], v[{U+k}:{U+k+1}], v[{CP+k}:{CP+k+1}], v[{T}:{T+1}] op_sel_hi:[1,1,0]")
                for k in range(16): a(f"v_rcp_f32 v{U+k}, v{U+k}")
                for k in P: a(f"v_pk_fma_f32 v[{U+k}:{U+k+1}], v[{U+k}:{U+k+1}], v[{T+2}:{T+3}], v[{T+4}:{T+5}] op_sel_hi:[1,0,0]")
                for k in P: a(f"v_pk_mul_f32 v[{U+k}:{U+k+1}], v[{U+k}:{U+k+1}], v[{A+k}:{A+k+1}]")
                for k in P: a(f"v_cvt_pk_bf16_f32 v{A+k//2}, v{U+k}, v{U+k+1}")
                for k in range(2):
                    off = f" offset:{2048*u}" if 0 < u < 2 else ""
                    if u == 2 and t == 0 and k == 0: a(f"s_add_u32 s{sA2B}, s{sA2B}, 4096")
                    a(f"buffer_store_dwordx4 v[{A+4*k}:{A+4*k+3}], v{vCO[2*t+k]}, s[{S_WS}:{S_WS+3}], s{sA2B} offen{off} sc1"); vm.issue(f"act{u}")
                if self.o['classes'] and u == 2 and t == self.o.get('fa_at', 0):
                    vm.wait("act1"); self.flag(vm, sFL, 0)
            if u == 1 and self.o.get('rel_mlp', 0) == -1: self.release()
            self.stamp(11 + u)
        if self.o['classes']:
            if self.o.get('rel_mlp', 0) == 0: self.release()
            vm.wait("act2"); self.flag(vm, sFL, 4)
            if self.o.get('rel_mlp', 0) == 1: self.release()
            if self.o.get('hold2'): self.release(112)
            a("s_branch L_cdone")
        a.label("L_mlp_short")
        if self.o.get('rel_mlp', 0) == 0: self.release()
        a("s_waitcnt vmcnt(0)"); self.flag(VM(a), sFL, 0)
        if self.o.get('rel_mlp', 0) == 1: self.release()
        if self.o.get('hold2'): self.release(112)
        a("s_branch L_cdone")

    def phi(self, A, E, dst):
        a = self.a; T = CT; P = range(0, 16, 2)
        self.al()
        for k in range(16): a(f"v_exp_f32 v{E+k}, v{A+k}")
        for k in P: a(f"v_pk_fma_f32 v[{A+k}:{A+k+1}], v[{A+k}:{A+k+1}], v[{T+4}:{T+5}], v[{T+6}:{T+7}] op_sel_hi:[1,0,0]")
        for k in range(16): a(f"v_med3_f32 v{E+k}, v{A+k}, v{E+k}, 1.0")
        for k in P: a(f"v_pk_add_f32 v[{E+k}:{E+k+1}], v[{E+k}:{E+k+1}], v[{T+8}:{T+9}] op_sel_hi:[1,0]")
        for k in P: a(f"v_cvt_pk_bf16_f32 v{dst(k//2) if callable(dst) else dst+k//2}, v{E+k}, v{E+k+1}")

    def kv_write(self, S, flagoff):
        a = self.a
        for k in range(3): a(f"ds_write_b128 v2, v[{S+4*k}:{S+4*k+3}] offset:{1024*k}")
        a(f"v_mov_b32 v7, 1\ns_waitcnt lgkmcnt(0)\nds_write_b32 v6, v7 offset:{flagoff}")
    def kv_add(self, S, D):
        a = self.a
        for k in range(3): a(f"ds_read_b128 v[{D+4*k}:{D+4*k+3}], v4 offset:{1024*k}")
        a("s_waitcnt lgkmcnt(0)")
        for k in range(0, 12, 2): a(f"v_pk_add_f32 v[{S+k}:{S+k+1}], v[{S+k}:{S+k+1}], v[{D+k}:{D+k+1}]")

    def c_epi_att(self, vm):
        a = self.a; T = CT; P = range(0, 16, 2)
        MT, RT, E, QCS, PV, S, ZZ = 116, 132, 196, 212, 156, 172, 180
        Q, K, V = ACC, ACC + 32, ACC + 64
        if self.o.get('rel_att', 1) == -1: self.release()
        a("s_waitcnt lgkmcnt(10)")
        self.al()
        for (A, cs0) in ((K, 148), (V, 152)):
            for k in range(0, 32, 2):
                m = 4*(k // 8) + (k % 4); cs = cs0 + 2*((k % 8) // 4)
                a(f"v_pk_fma_f32 v[{A+k}:{A+k+1}], v[{MT+m}:{MT+m+1}], v[{cs}:{cs+1}], v[{A+k}:{A+k+1}] op_sel_hi:[1,0,1] neg_lo:[1,0,0] neg_hi:[1,0,0]")
            for k in range(0, 32, 2):
                m = 4*(k // 8) + (k % 4)
                a(f"v_pk_mul_f32 v[{A+k}:{A+k+1}], v[{A+k}:{A+k+1}], v[{RT+m}:{RT+m+1}]")
        if self.o.get('cst'): self.stamp(21)
        ONE = 192
        for k in range(4): a(f"v_mov_b32 v{ONE+k}, 0x3f803f80")
        def opnd(base): return lambda j: base + 4*((j >> 1) & 1) + 2*(j >> 2) + (j & 1)
        for t in range(2):
            self.phi(K + 16*t, E, opnd(K + 16*t))
            for j in range(8): a(f"v_cvt_pk_bf16_f32 v{opnd(PV + 8*t)(j)}, v{V+16*t+2*j}, v{V+16*t+2*j+1}")
            a("s_nop 1")
            for h in range(2):
                for (D, B) in ((S + 4*h, PV + 8*t + 4*h), (ZZ + 4*h, ONE)):
                    c = "0" if t == 0 else f"v[{D}:{D+3}]"
                    a(f"v_mfma_f32_16x16x32_bf16 v[{D}:{D+3}], v[{K+16*t+4*h}:{K+16*t+4*h+3}], v[{B}:{B+3}], {c}")
        if self.o.get('cst'): self.stamp(22)
        if self.o.get('rel_att', 1) == -2: self.release()
        even = f"s[{sEX}:{sEX+1}]"; upper = "s[66:67]"
        Z = 186; X = V; Y = V + 16
        a(f"v_mov_b32 v{X+3}, s{sTAG}\nv_mov_b32 v{X+7}, s{sTAG}\nv_mov_b32 v{X+11}, s{sTAG}\ns_nop 4")
        self.al()
        for k in range(4): a(f"v_cndmask_b32 v{ZZ+k}, v{ZZ+4+k}, v{ZZ+k}, {even}")
        for k in range(6): a(f"v_cndmask_b32 v{X+k+k//3}, v{S+6+k}, v{S+k}, {upper}")
        a(f"ds_write_b128 v249, v[{X}:{X+3}]\nds_write_b128 v249, v[{X+4}:{X+7}] offset:1024")
        for k in range(6): a(f"v_cndmask_b32 v{Z+k}, v{S+k}, v{S+6+k}, {upper}")
        if self.o.get('cst'): self.stamp(23)
        a(f"s_mov_b32 s{sSPIN}, 0")
        a.label("L_x1")
        a(f"ds_read_b128 v[{Y}:{Y+3}], v250\nds_read_b128 v[{Y+4}:{Y+7}], v250 offset:1024\ns_add_u32 s{sSPIN}, s{sSPIN}, 1\ns_waitcnt lgkmcnt(0)")
        a(f"v_cmp_ne_u32 vcc, s{sTAG}, v{Y+3}\nv_cmp_ne_u32 s[68:69], s{sTAG}, v{Y+7}\ns_cmp_gt_u32 s{sSPIN}, 0x40000\ns_cbranch_scc1 L_x1d\ns_or_b64 vcc, vcc, s[68:69]\ns_cbranch_vccnz L_x1")
        a.label("L_x1d")
        for k in range(6): a(f"v_add_f32 v{Z+k}, v{Z+k}, v{Y+k+k//3}")
        for k in range(3): a(f"v_cvt_pk_bf16_f32 v{X+8+k}, v{Z+2*k}, v{Z+2*k+1}")
        a(f"buffer_store_dwordx4 v[{X+8}:{X+11}], v{vL16}, s[{S_WS}:{S_WS+3}], s70 offen sc1")
        self.stamp(11)
        if self.o.get('rel_att', 1) == 0: self.release()
        self.al()
        for k in range(0, 32, 2):
            st = T + 10 + 2*(k // 8); j = k % 8
            a(f"v_pk_fma_f32 v[{Q+k}:{Q+k+1}], v[{st}:{st+1}], v[{QCS+j}:{QCS+j+1}], v[{Q+k}:{Q+k+1}] op_sel_hi:[0,1,1] neg_lo:[1,0,0] neg_hi:[1,0,0]")
        for k in range(0, 32, 2):
            st = 6 + 2*(k // 8)
            a(f"v_pk_mul_f32 v[{Q+k}:{Q+k+1}], v[{Q+k}:{Q+k+1}], v[{st}:{st+1}] op_sel_hi:[1,0]")
        for t in range(2): self.phi(Q + 16*t, E, Q + 16*t)
        if self.o.get('rel_att', 1) == 1: self.release()
        if self.o.get('cst'): self.stamp(24)
        G = 116; S = K; U = K + 12
        a(f"s_mov_b32 s{sT5}, 0")
        if self.o.get('pollwait'):
            self.spin_lds("b2d", 254, 9, 96)
        if self.o.get('inc', 0):
            for k in range(12): a(f"v_mov_b32 v{S+k}, 0")
            a(f"s_mov_b32 s72, 0xffff\ns_lshl_b32 s73, s{sRB}, 12")
            if self.o.get('chprio', 3): a(f"s_setprio {self.o.get('chprio', 3)}")
            if self.o.get('cst'): self.stamp(28)
            a.label("L_kv_pass")
            for p in range(16):
                a(f"s_bitcmp0_b32 s72, {p}\ns_cbranch_scc1 L_kv_l{p}")
                a(f"s_add_u32 s{sT2}, s73, {2048*p}\ns_and_b32 s{sT2}, s{sT2}, 0x7800\ns_add_u32 s{sT2}, s{sT2}, s{sKB}")
                a(f"buffer_load_dwordx4 v[{G+4*p}:{G+4*p+3}], v{vL16}, s[{S_WS}:{S_WS+3}], s{sT2} offen sc1")
                a.label(f"L_kv_l{p}")
            if self.o.get('hold2') == 1: self.release(112)
            a(f"s_add_u32 s{sT5}, s{sT5}, 1\ns_waitcnt vmcnt(0)")
            for p in range(16):
                src = G + 4*p; d = S + 6*(p & 1)
                a(f"s_bitcmp0_b32 s72, {p}\ns_cbranch_scc1 L_kv_a{p}\nv_cmp_ne_u32 vcc, s{sTAG}, v{src+3}\ns_cbranch_vccnz L_kv_a{p}")
                for k in range(3): a(f"v_lshlrev_b32 v{U+2*k}, 16, v{src+k}\nv_and_b32 v{U+2*k+1}, 0xffff0000, v{src+k}")
                for k in range(6): a(f"v_add_f32 v{d+k}, v{d+k}, v{U+k}")
                a(f"s_bitset0_b32 s72, {p}")
                a.label(f"L_kv_a{p}")
            a(f"s_cmp_eq_u32 s72, 0\ns_cbranch_scc1 L_kv_ok\ns_cmp_gt_u32 s{sT5}, 0x4000\ns_cbranch_scc1 L_kv_ok\ns_sleep {self.o.get('sleep3', 1)}\ns_branch L_kv_pass")
            a.label("L_kv_ok")
            if self.o.get('cst'): self.stamp(25); a(f"v_writelane_b32 v252, s{sT5}, 30")
        else:
            if self.o.get('optim', 0): a("s_branch L_kv_go")
            a.label("L_kv_gather")
            self.spin_global("kv", 253, 9, sKB, 12)
            a.label("L_kv_go")
            if self.o.get('chprio', 3): a(f"s_setprio {self.o.get('chprio', 3)}")
            if self.o.get('cst'): self.stamp(28)
            vg = VM(a)
            for p in range(16):
                if p % 2 == 0: a(f"s_lshl1_add_u32 s{sT2}, s{sRB}, {p}\ns_and_b32 s{sT2}, s{sT2}, 14\ns_lshl_b32 s{sT2}, s{sT2}, 11\ns_add_u32 s{sT2}, s{sT2}, s{sKB}")
                off = " offset:2048" if p % 2 else ""
                a(f"buffer_load_dwordx4 v[{G+4*p}:{G+4*p+3}], v{vL16}, s[{S_WS}:{S_WS+3}], s{sT2} offen{off} sc1"); vg.issue(f"kvg{p}")
            if self.o.get('rel_att', 1) == 3: self.release()
            if self.o.get('hold2') == 1: self.release(112)
            for p in range(0, 16, 2):
                vg.wait(f"kvg{p+1}")
                for h2 in range(2):
                    d = S + 6*h2 if p == 0 else U + 6*h2; src = G + 4*(p + h2)
                    for k in range(3): a(f"v_lshlrev_b32 v{d+2*k}, 16, v{src+k}\nv_and_b32 v{d+2*k+1}, 0xffff0000, v{src+k}")
                if p:
                    for k in range(0, 12, 2): a(f"v_pk_add_f32 v[{S+k}:{S+k+1}], v[{S+k}:{S+k+1}], v[{U+k}:{U+k+1}]")
                    a(f"v_bfi_b32 v3, v{G+4*p+3}, v{G+4*p+7}, 0\nv_or3_b32 v5, v5, v{G+4*p+3}, v{G+4*p+7}\nv_and_b32 v9, v9, v3")
                else:
                    a(f"v_and_b32 v9, v{G+3}, v{G+7}\nv_or_b32 v5, v{G+3}, v{G+7}")
            if self.o.get('cst'): self.stamp(25); a(f"v_writelane_b32 v252, s{sT5}, 30")
            a(f"v_cmp_ne_u32 vcc, s{sTAG}, v9\nv_cmp_ne_u32 s[68:69], s{sTAG}, v5\ns_nop 1\ns_or_b64 vcc, vcc, s[68:69]")
            a(f"s_cbranch_vccz L_kv_ok\ns_add_u32 s{sT5}, s{sT5}, 1\ns_cmp_gt_u32 s{sT5}, 64\ns_cbranch_scc0 L_kv_gather")
            a.label("L_kv_ok")
        vm.drained()
        if self.o.get('hold2') == 2: self.release(112)
        self.stamp(12)
        for k in range(0, 6, 2): a(f"v_pk_add_f32 v[{S+k}:{S+k+1}], v[{S+k}:{S+k+1}], v[{S+6+k}:{S+7+k}]")
        for k in range(3): a(f"v_cvt_pk_bf16_f32 v{X+k}, v{S+2*k}, v{S+2*k+1}")
        a(f"ds_write_b128 v249, v[{X}:{X+3}] offset:2048\ns_mov_b32 s{sSPIN}, 0")
        a.label("L_x2")
        a(f"ds_read_b128 v[{Y}:{Y+3}], v250 offset:2048\ns_add_u32 s{sSPIN}, s{sSPIN}, 1\ns_waitcnt lgkmcnt(0)")
        a(f"v_cmp_ne_u32 vcc, s{sTAG}, v{Y+3}\ns_cmp_gt_u32 s{sSPIN}, 0x40000\ns_cbranch_scc1 L_x2d\ns_cbranch_vccnz L_x2")
        a.label("L_x2d")
        if self.o.get('cst'): self.stamp(26)
        if self.o.get('hold2') == 4: self.release(112)
        W = K + 24
        for k in range(3): a(f"v_cndmask_b32 v{W+k}, v{X+k}, v{Y+k}, {upper}\nv_cndmask_b32 v{W+3+k}, v{Y+k}, v{X+k}, {upper}")
        def pq(a_, h): r = Q + 16*(a_ >> 1) + 4*(a_ & 1) + 2*h; return f"v[{r}:{r+1}]"
        NUM, DEN, R = 116, 148, 180
        a("s_nop 1")
        for k in range(2): a(f"v_mov_b32_dpp v{W+6+k}, v{W+4+k} quad_perm:[1,0,3,2] row_mask:0xf bank_mask:0xf")
        for k in range(2): a(f"v_cndmask_b32 v{S+k}, v{W+6+k}, v{W+4+k}, {even}\nv_cndmask_b32 v{S+2+k}, v{W+4+k}, v{W+6+k}, {even}")
        a("s_nop 1")
        for a_ in range(4):
            for h in range(2): a(f"v_mfma_f32_16x16x16_bf16 v[{DEN+8*a_+4*h}:{DEN+8*a_+4*h+3}], v[{S+2*h}:{S+2*h+1}], {pq(a_, h)}, 0")
        for a_ in range(4):
            for h in range(2): a(f"v_mfma_f32_16x16x16_bf16 v[{NUM+8*a_+4*h}:{NUM+8*a_+4*h+3}], v[{W+2*h}:{W+2*h+1}], {pq(a_, h)}, 0")
        for k in range(8): a(f"v_add_f32 v{R+2*k}, v{T+8}, v{DEN+4*k}")
        for k in range(8): a(f"v_rcp_f32 v{R+2*k}, v{R+2*k}")
        for k in range(8): a(f"v_mul_f32 v{R+2*k}, v{T+4}, v{R+2*k}")
        for a_ in range(4):
            d = V + 4*a_
            for h in range(2):
                N = NUM + 8*a_ + 4*h; r = R + 4*a_ + 2*h
                if self.o.get('opk', 0):
                    for k in (0, 2): a(f"v_pk_mul_f32 v[{N+k}:{N+k+1}], v[{N+k}:{N+k+1}], v[{r}:{r+1}] op_sel_hi:[1,0]")
                else:
                    for k in range(4): a(f"v_mul_f32 v{N+k}, v{r}, v{N+k}")
            for j in range(4): a(f"v_cvt_pk_bf16_f32 v{d+j}, v{NUM+8*a_+2*j}, v{NUM+8*a_+2*j+1}")
            a(f"buffer_store_dwordx4 v[{d}:{d+3}], v{vCO[a_]}, s[{S_WS}:{S_WS+3}], s71 offen sc1"); vm.issue("o")
            if self.o.get('onop'): a(f"s_nop {self.o['onop']}")
        if self.o.get('hold2') == 3: self.release(112)
        if self.o.get('cst'): self.stamp(27)
        vm.wait("o")
        self.flag(vm, sFL, 0)
        self.stamp(13)

    def c_main(self):
        a = self.a; vm = VM(a)
        a.label("L_C")
        if self.o['pf']: vm.issue("codepf")
        self.c_prologue(vm)
        self.stamp(1)
        a(f"s_cmp_lt_u32 s{sG}, 8\ns_cbranch_scc1 L_Catt")
        if self.o.get('short', 0):
            a(f"s_cmp_ge_u32 s{sG}, 11\ns_cselect_b32 s{sT0}, s{sC}, 0\ns_cmp_eq_u32 s{sT0}, 0\ns_cbranch_scc1 L_Cfull")
            self.c_kloop(False, True)
            a("s_branch L_Cepi")
            a.label("L_Cfull")
        self.c_kloop(False)
        a.label("L_Cepi")
        self.c_epi_mlp(vm.copy())
        a.label("L_Catt")
        a(f"s_lshl1_add_u32 s{sT0}, s{sC}, s{sR2}\ns_xor_b32 s{sT1}, s{sT0}, 1")
        a(f"s_mul_i32 s{sT2}, s{sT0}, 3072\ns_add_u32 s{sT2}, s{sT2}, {L_KV}\nv_add_u32 v249, s{sT2}, v{vL16}")
        a(f"s_mul_i32 s{sT2}, s{sT1}, 3072\ns_add_u32 s{sT2}, s{sT2}, {L_KV}\nv_add_u32 v250, s{sT2}, v{vL16}")
        a(f"s_lshl1_add_u32 s{sT0}, s{sG}, s{sC}\ns_lshl_b32 s{sKB}, s{sT0}, 15\ns_lshl_b32 s{sT0}, s{sR2}, 10\ns_add_u32 s{sKB}, s{sKB}, s{sT0}\ns_add_u32 s{sKB}, s{sKB}, {WS_KVP}")
        a(f"s_mov_b32 s{sEX}, 0x55555555\ns_mov_b32 s{sEX+1}, 0x55555555\ns_sub_u32 s66, 0, s{sR2}\ns_mov_b32 s67, s66")
        a(f"s_lshl_b32 s70, s{sRB}, 11\ns_add_u32 s70, s70, s{sKB}")
        a(f"s_lshl1_add_u32 s71, s{sG}, s{sC}\ns_lshl_b32 s71, s71, 10\ns_add_u32 s71, s71, {44*1024}\ns_add_u32 s71, s71, s{sA2B}")
        a(f"v_and_b32 v253, 15, v{vL}\nv_lshlrev_b32 v253, 11, v253\nv_and_b32 v254, 3, v{vL}\nv_lshlrev_b32 v254, 2, v254\nv_add_u32 v254, {L_FL}, v254")
        self.c_kloop(True); self.c_epi_att(vm.copy())
        a(f"s_cmp_lg_u32 s2, 0\ns_cbranch_scc1 L_cdone\ns_cmp_lg_u32 s{sW}, 0\ns_cbranch_scc1 L_cdone")
        a(f"v_lshlrev_b32 v7, 10, v{vL}")
        for k in range(4):
            a(f"s_mov_b32 s{sT0}, {WS_CSP + 65536*k}")
            self.spin_global(f"ep{k}", 7, 9, sT0, 12)
        a(f"s_mov_b32 s{sT0}, {WS_EPOCH}")
        self.flag(VM(a), sT0, 0)
        a.label("L_cdone")
        self.stamp(14)
        self.final_addr(VM(a), 11, 13)

    def final(self):
        a = self.a
        a.label("L_final")
        a("s_waitcnt vmcnt(0) lgkmcnt(0)")
        if self.o.get('tst'): self.stamp(46)
        a("s_barrier")
        if self.o.get('tst'): self.stamp(47)
        R, X = 20, 60
        a(f"v_xor_b32 v19, 16, v{vRR}")
        for kq in range(4):
            a(f"ds_read_b128 v[{R+8*kq}:{R+8*kq+3}], v{vRR} offset:{2048*kq}\nds_read_b128 v[{R+8*kq+4}:{R+8*kq+7}], v19 offset:{2048*kq}")
        for k in range(4):
            a(f"v_lshlrev_b32 v{X+2*k}, 16, v{XRES+k}\nv_and_b32 v{X+2*k+1}, 0xffff0000, v{XRES+k}")
        for kq in range(4):
            a(f"s_waitcnt lgkmcnt({6-2*kq})")
            for k in range(0, 8, 2): a(f"v_pk_add_f32 v[{X+k}:{X+k+1}], v[{X+k}:{X+k+1}], v[{R+8*kq+k}:{R+8*kq+k+1}]")
        for k in range(0, 8, 2): a(f"v_cvt_pk_bf16_f32 v{R+k//2}, v{X+k}, v{X+k+1}")
        a(f"buffer_store_dwordx4 v[{R}:{R+3}], v{vXO}, s[{S_OUT}:{S_OUT+3}], s{sRES} offen {self.o.get('outsc', '')}")
        if self.stamps:
            if self.o.get('tst'): self.stamp(48)
            a("s_waitcnt vmcnt(0)")
            self.stamp(17); self.rstamp(19)
            a(f"v_writelane_b32 v252, s96, 0\nv_writelane_b32 v252, s96, 18")
            a(f"s_lshl_b32 s{sT0}, s2, 3\ns_add_u32 s{sT0}, s{sT0}, s{sW}\ns_lshl_b32 s{sT0}, s{sT0}, 8\ns_add_u32 s{sT0}, s{sT0}, {WS_STAMP}")
            a(f"v_lshlrev_b32 v14, 2, v{vL}\nbuffer_store_dword v252, v14, s[{S_WS}:{S_WS+3}], s{sT0} offen")

    def build(self):
        a = self.a
        a.label("L_code0")
        self.entry()
        self.l_main()
        self.c_main()
        self.final()
        if self.o.get('probe'):
            wg, w, k = self.o['probe']
            a(f"s_cmp_lg_u32 s2, {wg}\ns_cbranch_scc1 L_end\ns_cmp_lg_u32 s{sW}, {w}\ns_cbranch_scc1 L_end")
            a(f"v_readlane_b32 s{sT1}, v252, {k}\ns_nop 3\ns_add_u32 s{sT1}, s{sT1}, 2500\ns_mov_b32 s{sSPIN}, 0")
            a.label("L_hold")
            a(f"s_memrealtime s[{sSTAMP}:{sSTAMP+1}]\ns_add_u32 s{sSPIN}, s{sSPIN}, 1\ns_waitcnt lgkmcnt(0)\ns_sub_u32 s{sT0}, s{sSTAMP}, s{sT1}")
            a(f"s_cmp_gt_u32 s{sSPIN}, 100000\ns_cbranch_scc1 L_end\ns_cmp_lt_i32 s{sT0}, 0\ns_cbranch_scc1 L_hold")
        a.label("L_end")
        a("s_endpgm")
        a.label("L_codeend")
        return single(a.text(), 256, 512, LDS_BYTES, 256, 102, 256)

if __name__ == "__main__":
    out = sys.argv[1] if len(sys.argv) > 1 else "k.s"
    stamps = "stamps" in sys.argv[2:]
    opts = {}
    for kv in sys.argv[2:]:
        if "=" in kv:
            k, v = kv.split("="); opts[k] = eval(v)
    open(out, "w").write(Gen(stamps, opts).build())
```

```python
import sys, math, struct
from asmlib import *

def f2u(x): return struct.unpack("<I", struct.pack("<f", x))[0]
LOG2E = 1.4426950408889634
LN2 = 0.6931471805599453

WS_EPOCH = 0
WS_STATS = 0x1000
WS_CSP   = 0x10000
WS_KVP   = 0x60000
WS_FLAG  = 0x100000
WS_KVF   = 0x140000
WS_A2    = 0x200000
A2_RT    = 60 * 1024
WS_SIZE  = 0x1000000
WS_STAMP = 0xC00000
OOB      = 0x40000000

L_X    = 0
L_W    = 49152
L_MISC = 147456
L_KV   = L_MISC
L_SLAB = 122880
L_TAB  = L_MISC + 12288
L_CS   = L_TAB
L_BT   = L_CS + 768
L_MT   = L_BT + 768
L_RT   = L_MT + 512
L_FL   = L_RT + 512
LDS_BYTES = 163840

ROUND_OF_STEP = [15, 16, 17, 4, 5, 12, 13, 14, 0, 1, 6, 7, 8, 2, 3, 9, 10, 11]
NREG = 12
ARING = 6
def round_of(step):
    return ROUND_OF_STEP[step] if step < 18 else ROUND_OF_STEP[step - 18]

S_X, S_W, S_W2, S_WO, S_WS, S_OUT, S_B1 = 24, 28, 32, 36, 40, 44, 48
sW, sLW = 52, 53
sR2, sC = 53, 54
sRB, sG, sPH = 55, 56, 57
sCT, sRT, sROT = 58, 59, 60
sTAG = 61
sXO, sWOF, sWSTEP, sWEND = 62, 63, 64, 65
sXB, sLX, sLWB, sWD = 66, 67, 68, 69
sWO1, sWO2 = 70, 71
sB2L, sB2C, sB2C2, sA2B = 72, 73, 74, 75
sC0, sPITCH, sE = 76, 83, 84
sT0, sT1, sT2, sT3, sT4, sT5 = 77, 78, 79, 80, 81, 82
sSPIN = 85
sEX = 86
sMASK = 62
sFL, sKB = 64, 65
sSW = 88
sB2C3 = 84
sRES = 3
sSTAMP = 92
SP = list(range(4, 24)) + [48, 49, 50, 51, 88, 89, 90, 91, 100, 101]

vL, vL16 = 0, 1
vRR, vXO = 17, 18
XRES = 244
vX, vWv, vB2D, vB2A = 2, 6, 10, 12
vB2AL = [132 + k for k in range(12)]
ACC2, AR, B2R = 20, 84, 148
vAO = [1, 248, 12, 13]
vL16B = 248
vRW = 2
vXA, vWA = 2, 4
vCO = [1, 248, 16, 255]
ACC, FR = 20, 116
CT = 220

DOC = """;
;
; Workgroup ids are arranged for L2 locality only.
"""

class VM:
    def __init__(self, a): self.a = a; self.q = []
    def issue(self, tag): self.q.append(tag)
    def count(self, *tags):
        idx = max((i for i, t in enumerate(self.q) if t in tags), default=-1)
        return len(self.q) - 1 - idx if idx >= 0 else None
    def wait(self, *tags, lgkm=None):
        n = self.count(*tags)
        s = []
        if n is not None:
            assert n <= 63, n
            s.append(f"vmcnt({n})")
            self.q = self.q[len(self.q) - n:] if n else []
        if lgkm is not None: s.append(f"lgkmcnt({lgkm})")
        if s: self.a("s_waitcnt " + " ".join(s))
    def depth(self, n):
        if len(self.q) > n:
            self.a(f"s_waitcnt vmcnt({n})")
            self.q = self.q[len(self.q) - n:] if n else []
    def drained(self): self.q = []
    def copy(self):
        v = VM(self.a); v.q = list(self.q); return v

class Gen:
    def __init__(self, stamps=False, opts=None):
        self.a = Asm(); self.stamps = stamps
        self.o = dict(pf=1, hold=1, map2=0, classes=0, n0=3, spf=0, xloc=1, g3=1, pace=8, rel_mlp=1, rel_att=-2, pollwait=9, hold2=1, kstamps=False, cprio=1, w2pf=5, p0_at=27, rot=8)
        if opts: self.o.update(opts)

    def srd(self, d, p, n):
        self.a(f"s_mov_b32 s{d}, s{p}\ns_mov_b32 s{d+1}, s{p+1}\ns_mov_b32 s{d+2}, {n}\ns_mov_b32 s{d+3}, 0x20000")
    def stamp(self, idx):
        if not self.stamps: return
        self.rstamp(idx)
        if self.o.get('cyc') and idx in self.o['cyc']:
            self.a(f"s_memtime s[{sSTAMP}:{sSTAMP+1}]\ns_waitcnt lgkmcnt(0)\nv_writelane_b32 v252, s{sSTAMP}, {idx + 40}")
    def rstamp(self, idx):
        if not self.stamps: return
        if 'only' in self.o and idx not in self.o['only']: return
        self.a(f"s_memrealtime s[{sSTAMP}:{sSTAMP+1}]\ns_waitcnt lgkmcnt(0)\nv_writelane_b32 v252, s{sSTAMP}, {idx}")
    def al(self):
        if self.o.get('align', 1): self.a(".p2align 3")
    def lane0(self, v):
        self.a(f"v_cmp_eq_u32 vcc, 0, v{vL}\nv_mov_b32 v{v}, {OOB}\ns_nop 0\nv_cndmask_b32 v{v}, v{v}, 0, vcc")
    def tag(self):
        self.a(f"s_mul_i32 s{sTAG}, s{sTAG}, 0x9e3779b1\ns_add_u32 s{sTAG}, s{sTAG}, 0x7f4a7c15")
    def decode2(self):
        a = self.a
        if self.o['map2'] == 0:
            a(f"s_and_b32 s{sT0}, s2, 7\ns_lshr_b32 s{sT1}, s2, 3\ns_and_b32 s{sCT}, s{sT1}, 7\ns_lshr_b32 s{sT1}, s{sT1}, 3")
            if self.o.get('ctmap', 1):
                a(f"s_xor_b32 s{sT1}, s{sT1}, 2\ns_and_b32 s{sROT}, s{sCT}, 1\ns_lshl1_add_u32 s{sROT}, s{sT1}, s{sROT}\ns_lshr_b32 s{sT1}, s{sCT}, 1\ns_mov_b32 s{sCT}, s{sROT}")
            if self.o['xloc']: a(f"s_lshr_b32 s{sRT}, s{sT0}, 1\ns_and_b32 s{sT0}, s{sT0}, 1\ns_lshl2_add_u32 s{sT0}, s{sT0}, s{sRT}")
            a(f"s_lshl2_add_u32 s{sRT}, s{sT0}, s{sT1}\ns_lshl1_add_u32 s{sROT}, s{sT1}, s{sCT}")
        else:
            a(f"s_and_b32 s{sT0}, s2, 1\ns_bfe_u32 s{sT1}, s2, 0x20003\ns_lshl2_add_u32 s{sCT}, s{sT0}, s{sT1}")
            a(f"s_bfe_u32 s{sT0}, s2, 0x20001\ns_lshr_b32 s{sROT}, s2, 5\ns_lshl3_add_u32 s{sRT}, s{sT0}, s{sROT}\ns_lshl1_add_u32 s{sROT}, s{sT1}, s{sROT}")
    def final_addr(self, vm, t0, t1):
        a = self.a
        a(f"v_lshrrev_b32 v{t0}, 3, v{vL}\nv_and_b32 v{t1}, 7, v{vL}\nv_lshlrev_b32 v{vXO}, 10, v{t0}\nv_lshl_add_u32 v{vXO}, v{t1}, 4, v{vXO}")
        a(f"s_lshl3_add_u32 s{sT0}, s{sRT}, s{sW}\ns_lshl_b32 s{sT0}, s{sT0}, 13\ns_lshl_b32 s{sT1}, s{sCT}, 7\ns_add_u32 s{sRES}, s{sT0}, s{sT1}")
        if vm is not None: self.xres(vm)
        a(f"v_lshlrev_b32 v{t1}, 1, v{t1}\nv_xor_b32 v{t1}, v{t1}, v{t0}\nv_lshlrev_b32 v{t1}, 4, v{t1}\nv_lshl_add_u32 v{vRR}, v{t0}, 8, v{t1}")
        a(f"s_lshl_b32 s{sT0}, s{sW}, 13\nv_add_u32 v{vRR}, s{sT0}, v{vRR}")

    def xres(self, vm):
        self.a(f"buffer_load_dwordx4 v[{XRES}:{XRES+3}], v{vXO}, s[{S_X}:{S_X+3}], s{sRES} offen"); vm.issue("xres")
    def spin_global(self, name, vaddr, vtmp, soff, imm=0, srd=S_WS):
        a = self.a
        off = f" offset:{imm}" if imm else ""
        a(f"s_mov_b32 s{sSPIN}, 0")
        a.label(f"L_sp{name}")
        a(f"buffer_load_dword v{vtmp}, v{vaddr}, s[{srd}:{srd+3}], s{soff} offen{off} sc1\ns_add_u32 s{sSPIN}, s{sSPIN}, 1\ns_waitcnt vmcnt(0)")
        a(f"v_cmp_ne_u32 vcc, s{sTAG}, v{vtmp}\ns_cmp_gt_u32 s{sSPIN}, 0x8000\ns_cbranch_scc1 L_sd{name}\ns_cbranch_vccz L_sd{name}\ns_sleep {self.o.get('sleep', 2)}\ns_branch L_sp{name}")
        a.label(f"L_sd{name}")
    def spin_lds(self, name, vaddr, vtmp, off):
        a = self.a
        a(f"s_mov_b32 s{sSPIN}, 0")
        a.label(f"L_sp{name}")
        a(f"ds_read_b32 v{vtmp}, v{vaddr} offset:{off}\ns_add_u32 s{sSPIN}, s{sSPIN}, 1\ns_waitcnt lgkmcnt(0)")
        a(f"v_cmp_ne_u32 vcc, 1, v{vtmp}\ns_cmp_gt_u32 s{sSPIN}, 0x40000\ns_cbranch_scc1 L_sd{name}\ns_cbranch_vccnz L_sp{name}")
        a.label(f"L_sd{name}")

    def entry(self):
        a = self.a
        a("s_cmp_ge_u32 s2, 256\ns_cbranch_scc1 L_end")
        a("s_load_dwordx16 s[4:19], s[0:1], 0\ns_load_dwordx4 s[20:23], s[0:1], 64")
        if self.o['pf']:
            a(f"s_getpc_b64 s[{sT0+1}:{sT0+2}]\ns_bfe_u32 s{sT0}, s2, 0x30003\ns_mul_i32 s{sT0}, s{sT0}, 5120\nv_lshlrev_b32 v2, 4, v0\nv_min_u32 v2, 4992, v2\nv_add_u32 v2, s{sT0}, v2")
            a.label("L_pc")
            a(f"v_min_u32 v2, L_codeend-L_pc, v2\ns_mov_b32 exec_lo, 0x01010101\ns_mov_b32 exec_hi, 0x01010101\nglobal_load_dword v251, v2, s[{sT0+1}:{sT0+2}]\ns_mov_b64 exec, -1".replace("0x01010101", self.o.get('pfmask', "0x01010101")))
        if self.stamps:
            a("v_mov_b32 v252, 0\ns_memrealtime s[96:97]")
        a(f"v_lshrrev_b32 v1, 6, v0\nv_and_b32 v{vL}, 63, v0\nv_readfirstlane_b32 s{sW}, v1")
        a(f"s_bfe_u32 s{sT0}, s2, 0x30003\ns_and_b32 s{sT1}, s2, 1\ns_lshl3_add_u32 s{sRB}, s{sT1}, s{sT0}")
        a(f"s_lshr_b32 s{sT1}, s2, 6\ns_bfe_u32 s{sT2}, s2, 0x20001")
        if self.o['g3']: a(f"s_xor_b32 s{sT2}, s{sT2}, 3")
        a(f"s_lshl2_add_u32 s{sG}, s{sT1}, s{sT2}")
        a(f"s_sub_u32 s{sT0}, s{sG}, 8\ns_min_u32 s{sT1}, s{sT0}, 3\ns_mul_i32 s{sC0}, s{sT0}, 5\ns_add_u32 s{sC0}, s{sC0}, s{sT1}")
        a(f"v_lshlrev_b32 v{vL16}, 4, v{vL}")
        a(f"s_cmp_lt_u32 s{sW}, 4\ns_cbranch_scc1 L_C")

    def l_stage(self, vm, t, part=None):
        a = self.a; slot = t % 3
        def xpart():
            a(f"s_add_u32 m0, s{sLX}, {L_X + slot*16384}\ns_lshl_b32 s{sXO}, s{sPH}, 7\ns_add_u32 s{sXO}, s{sXO}, s{sXB}")
            for ii in range(4):
                off = f" offset:{1024*ii}" if ii else ""
                a(f"buffer_load_dwordx4 v{vX+ii}, s[{S_X}:{S_X+3}], s{sXO} offen{off} lds"); vm.issue(f"st{t}")
        if t > 0 and part != 'w': xpart()
        if part == 'x': return
        a(f"s_add_u32 m0, s{sLWB}, {slot*24576}\ns_sub_u32 s{sWO1}, s{sWOF}, s{sWD}\ns_sub_u32 s{sWO2}, s{sWO1}, s{sWD}")
        for rg in range(2):
            if rg: a(f"s_add_u32 m0, s{sLWB}, {slot*24576 + 3072}\ns_nop 0")
            a(f"buffer_load_dwordx4 v{vWv+2*rg}, s[{S_W}:{S_W+3}], s{sWOF} offen lds"); vm.issue(f"st{t}")
            a(f"buffer_load_dwordx4 v{vWv+2*rg}, s[{S_W}:{S_W+3}], s{sWO1} offen offset:1024 lds"); vm.issue(f"st{t}")
            a(f"buffer_load_dwordx4 v{vWv+2*rg+1}, s[{S_W}:{S_W+3}], s{sWO2} offen offset:2048 lds"); vm.issue(f"st{t}" if t or not rg else "st0w")
        if t == 0: xpart()
        if t < 7:
            a(f"s_add_u32 s{sWOF}, s{sWOF}, s{sWSTEP}\ns_add_u32 s{sPH}, s{sPH}, 1\ns_and_b32 s{sPH}, s{sPH}, 7\ns_cselect_b32 s{sT0}, 0, s{sWEND}\ns_sub_u32 s{sWOF}, s{sWOF}, s{sT0}")

    def l_prologue(self, vm):
        a = self.a; T = ACC2
        pm = self.o.get('phmode', 0)
        if pm == 0: a(f"s_bfe_u32 s{sT0}, s2, 0x30003\ns_lshr_b32 s{sT1}, s2, 6\ns_lshl1_add_u32 s{sPH}, s{sT1}, s{sT0}\ns_and_b32 s{sPH}, s{sPH}, 7")
        elif pm == 1: a(f"s_bfe_u32 s{sT0}, s2, 0x30003\ns_bfe_u32 s{sT1}, s2, 0x10006\ns_lshl2_add_u32 s{sPH}, s{sT1}, s{sT0}\ns_and_b32 s{sPH}, s{sPH}, 7")
        elif pm in (2, 3):
            a(f"s_bfe_u32 s{sT0}, s2, 0x30003\ns_bfe_u32 s{sT1}, s2, 0x10006\ns_lshl2_add_u32 s{sPH}, s{sT1}, s{sT0}\ns_lshr_b32 s{sT1}, s2, 7")
            if pm == 3: a(f"s_xor_b32 s{sT1}, s{sT1}, 1")
            a(f"s_add_u32 s{sPH}, s{sPH}, s{sT1}\ns_and_b32 s{sPH}, s{sPH}, 7")
        if self.o.get('ph3'):
            a(f"s_cmp_eq_u32 s{sG}, 3\ns_cselect_b32 s{sT0}, {self.o['ph3']}, 0\ns_add_u32 s{sPH}, s{sPH}, s{sT0}\ns_and_b32 s{sPH}, s{sPH}, 7")
        a(f"s_sub_u32 s{sLW}, s{sW}, 4\ns_movk_i32 s{sPITCH}, 2752\ns_cmp_lt_u32 s{sG}, 8\ns_cselect_b32 s{sPITCH}, 3072, s{sPITCH}")
        a(f"s_cselect_b32 s{sWD}, 0, 896\ns_cselect_b32 s{sT3}, 0, 2048")
        a(f"s_lshl_b32 s{sT0}, s{sG}, 7\ns_lshl_b32 s{sT1}, s{sC0}, 6\ns_cmp_lt_u32 s{sG}, 8\ns_cselect_b32 s{sT5}, s{sT0}, s{sT1}\ns_add_u32 s{sT5}, s{sT5}, s{sT3}")
        a(f"v_lshrrev_b32 v{T}, 4, v{vL}\nv_and_b32 v{T+1}, 7, v{vL}\nv_xor_b32 v{T}, v{T}, v{T+1}\nv_lshlrev_b32 v{T}, 4, v{T}\nv_lshrrev_b32 v{T+2}, 3, v{vL}")
        a(f"v_lshl_add_u32 v{vX}, v{T+2}, 10, v{T}\nv_xor_b32 v{vX+1}, 64, v{vX}\nv_add_u32 v{vX+1}, 7168, v{vX+1}\nv_add_u32 v{vX+2}, 14336, v{vX}\nv_add_u32 v{vX+3}, 14336, v{vX+1}")
        a(f"v_lshrrev_b32 v{T}, 2, v{vL}\nv_and_b32 v{T}, 4, v{T}\nv_xor_b32 v{T}, v{T}, v{T+1}\nv_lshlrev_b32 v{T}, 4, v{T}")
        a(f"s_cmp_ge_u32 s{sG}, 11\ns_cselect_b32 s{sT4}, 64, 128\nv_mad_u32_u24 v{vWv}, v{T+2}, s{sPITCH}, v{T}\nv_cmp_gt_u32 vcc, s{sT4}, v{T}\nv_mov_b32 v{vWv+1}, {OOB}")
        a(f"s_lshl_b32 s{sT0}, s{sPITCH}, 3\nv_cndmask_b32 v{vWv+1}, v{vWv+1}, v{vWv}, vcc\nv_xor_b32 v{vWv+2}, 32, v{vWv}\nv_xor_b32 v{vWv+3}, 32, v{vWv+1}\nv_add_u32 v{vWv+2}, s{sT0}, v{vWv+2}\nv_add_u32 v{vWv+3}, s{sT0}, v{vWv+3}")
        a(f"s_lshl2_add_u32 s{sXB}, s{sRB}, s{sLW}\ns_lshl_b32 s{sXB}, s{sXB}, 15\ns_lshl_b32 s{sWSTEP}, s{sPITCH}, 6\ns_lshl_b32 s{sWEND}, s{sPITCH}, 9")
        a(f"s_lshl2_add_u32 s{sT0}, s{sPH}, s{sLW}\ns_lshl_b32 s{sT0}, s{sT0}, 4\ns_mul_i32 s{sWOF}, s{sT0}, s{sPITCH}\ns_add_u32 s{sWOF}, s{sWOF}, s{sT5}")
        a(f"s_lshl_b32 s{sLX}, s{sLW}, 12\ns_mul_i32 s{sLWB}, s{sLW}, 6144\ns_add_u32 s{sLWB}, s{sLWB}, {L_W}")
        a(f"s_mov_b32 s{S_X+2}, 2097152\ns_mov_b32 s{S_X+3}, 0x20000\ns_add_u32 s{S_W+2}, s{sWEND}, s{sT3}\ns_mov_b32 s{S_W+3}, 0x20000")
        a("s_waitcnt lgkmcnt(0)")
        self.stamp(1)
        a(f"s_load_dword s{sTAG}, s[22:23], {WS_EPOCH}")
        a(f"s_mov_b32 s{S_X}, s4\ns_mov_b32 s{S_X+1}, s5\ns_sub_u32 s12, s12, 2048\ns_subb_u32 s13, s13, 0")
        a(f"s_cmp_lt_u32 s{sG}, 8\ns_cselect_b32 s{S_W}, s6, s12\ns_cselect_b32 s{S_W+1}, s7, s13")
        ml = self.o.get('late')
        if ml:
            a(f"s_cmp_lt_u32 s{sG}, 8\ns_cbranch_scc{0 if ml == 'M' else 1} L_st0a")
            self.l_stage(vm.copy(), 0)
            a.label("L_st0a")
        else: self.l_stage(vm, 0)
        if self.o.get('pst'): self.stamp(40)
        a(f"v_lshrrev_b32 v{T}, 4, v{vL}\nv_lshlrev_b32 v{T}, 1, v{T}\nv_xor_b32 v{T}, v{T}, v{T+1}\nv_lshlrev_b32 v{T}, 4, v{T}\nv_lshl_add_u32 v{vB2D}, v{T+2}, 10, v{T}\nv_add_u32 v{vB2D+1}, 7168, v{vB2D}")
        self.srd(S_WS, 22, WS_SIZE); self.srd(S_W2, 16, 1376*1024); self.srd(S_WO, 8, 512*1024); self.srd(S_OUT, 18, 2097152)
        self.decode2()
        a(f"v_bfe_u32 v{T}, v{vL}, 2, 2\nv_lshrrev_b32 v{T+1}, 1, v{T}\nv_lshlrev_b32 v{T}, 7, v{T}\nv_lshl_add_u32 v{T}, v{T+1}, 6, v{T}")
        a(f"v_bfe_u32 v{T+1}, v{vL}, 4, 1\nv_lshl_add_u32 v{T}, v{T+1}, 5, v{T}\nv_and_b32 v{T+1}, 3, v{vL}\nv_lshl_add_u32 v{T+14}, v{T+1}, 3, v{T}\nv_lshrrev_b32 v{T+15}, 5, v{vL}")
        a(f"s_lshl_b32 s{sB2L}, s{sLW}, 11\nv_lshrrev_b32 v{T}, 2, v{vL}\nv_lshlrev_b32 v{T}, 7, v{T}\nv_lshl_add_u32 v{T}, v{T+1}, 3, v{T}\nv_bfe_u32 v{T+1}, v{vL}, 3, 2\nv_lshl_add_u32 v{T}, v{T+1}, 5, v{T}\nv_add_u32 v{vB2AL[0]}, s{sB2L}, v{T}")
        for j in range(1, 4): a(f"v_xor_b32 v{vB2AL[j]}, {32*j}, v{vB2AL[0]}")
        for k in range(4, 12): a(f"v_add_u32 v{vB2AL[k]}, 65536, v{vB2AL[k-4]}")
        a(f"v_and_b32 v{T}, 31, v{vL}\nv_lshlrev_b32 v{T}, 2, v{T}\nv_add_u32 v{T}, {L_FL}, v{T}\nv_mov_b32 v{T+1}, 0\nds_write_b32 v{T}, v{T+1}")

    def l_colsum_pre(self):
        a = self.a; T = ACC2; S = T + 16
        a(f"s_mul_i32 s{sT0}, s{sLW}, 6144\ns_add_u32 s{sT0}, s{sT0}, {L_W}\nv_mul_u32_u24 v{T}, 3072, v{T+15}\nv_add3_u32 v{T}, v{T}, v{T+14}, s{sT0}")
        a(f"v_lshlrev_b32 v{T+1}, 5, v{T+15}\nv_xor_b32 v{T}, v{T}, v{T+1}\nv_xor_b32 v{T+1}, 64, v{T}")
        a(f"s_mov_b32 s{sT5}, 0x3f803f80")
        for k in range(6): a(f"v_mov_b32 v{S+k}, 0")
        a(f"s_mul_i32 s{sT1}, s{sLW}, 1536\ns_add_u32 s{sT1}, s{sT1}, {L_SLAB}\nv_and_b32 v{T+2}, 31, v{vL}\nv_lshl_add_u32 v{T+2}, v{T+2}, 2, s{sT1}\nv_mul_u32_u24 v{T+3}, 768, v{T+15}\nv_add_u32 v{T+2}, v{T+2}, v{T+3}")
    def l_colsum(self):
        a = self.a; T = ACC2; F = AR; S = T + 16
        for u in range(3):
            for c in range(2):
                for rd in range(2):
                    r = F + 8*u + 4*c + 2*rd
                    a(f"ds_read_b64_tr_b16 v[{r}:{r+1}], v{T+c} offset:{1024*u + 512*rd}")
        if self.o.get('cslate', 0): return
        for half in range(2):
            a(f"s_waitcnt lgkmcnt({6 - 6*half})")
            for k in range(4):
                for uc in range(3*half, 3*half + 3): a(f"v_dot2c_f32_bf16 v{S+uc}, s{sT5}, v{F+4*uc+k}")
        a("s_nop 2")
        for uc in range(6): a(f"ds_write_b32 v{T+2}, v{S+uc} offset:{128*uc}")

    def l_colsum_part(self, half):
        a = self.a; T = ACC2; F = AR; S = T + 16; H = T + 4
        ucs = range(3*half, 3*half + 3)
        for uc in ucs: a(f"v_lshlrev_b32 v{S+uc}, 16, v{F+4*uc}\nv_and_b32 v{H+uc%3}, 0xffff0000, v{F+4*uc}")
        for k in range(1, 4):
            for uc in ucs: a(f"v_lshlrev_b32 v{H+3+uc%3}, 16, v{F+4*uc+k}\nv_and_b32 v{F+4*uc+k}, 0xffff0000, v{F+4*uc+k}")
            for uc in ucs: a(f"v_add_f32 v{S+uc}, v{S+uc}, v{H+3+uc%3}\nv_add_f32 v{H+uc%3}, v{H+uc%3}, v{F+4*uc+k}")
        for uc in ucs: a(f"v_add_f32 v{S+uc}, v{S+uc}, v{H+uc%3}")
        for uc in ucs: a(f"ds_write_b32 v{T+2}, v{S+uc} offset:{128*uc}")

    def wave_sum2(self, v0, v1, t0, t1):
        a = self.a
        for m in ("quad_perm:[1,0,3,2]", "quad_perm:[2,3,0,1]", "row_half_mirror", "row_mirror"):
            a(f"s_nop 0\nv_add_f32_dpp v{v0}, v{v0}, v{v0} {m} row_mask:0xf bank_mask:0xf\nv_add_f32_dpp v{v1}, v{v1}, v{v1} {m} row_mask:0xf bank_mask:0xf")
        for op in ("v_permlane16_swap_b32", "v_permlane32_swap_b32"):
            a(f"v_mov_b32 v{t0}, v{v0}\nv_mov_b32 v{t1}, v{v1}\ns_nop 1\n{op} v{t0}, v{v0}\n{op} v{t1}, v{v1}\ns_nop 0\nv_add_f32 v{v0}, v{v0}, v{t0}\nv_add_f32 v{v1}, v{v1}, v{t1}")

    def c_stats(self, vm):
        a = self.a; T = 160; u = 116
        vm.wait("xrow", lgkm=0)
        if self.o.get('pst'): self.stamp(42)
        self.tag()
        for r in range(2):
            for k in range(4):
                a(f"v_lshlrev_b32 v{u+8*r+2*k}, 16, v{T+4+4*r+k}\nv_and_b32 v{u+8*r+2*k+1}, 0xffff0000, v{T+4+4*r+k}")
        s0, s1 = u + 16, u + 17
        for r, s in ((0, s0), (1, s1)): a(f"v_add_f32 v{s}, v{u+8*r}, v{u+8*r+1}")
        for k in range(2, 8):
            for r, s in ((0, s0), (1, s1)): a(f"v_add_f32 v{s}, v{s}, v{u+8*r+k}")
        self.wave_sum2(s0, s1, u + 40, u + 41)
        G0, G1 = u + 20, u + 24
        a(f"v_mul_f32 v{G0}, {f2u(1/512.):#x}, v{s0}\nv_mul_f32 v{G1}, {f2u(1/512.):#x}, v{s1}")
        for k in range(8):
            a(f"v_sub_f32 v{u+k}, v{u+k}, v{G0}\nv_sub_f32 v{u+8+k}, v{u+8+k}, v{G1}")
        a(f"v_mul_f32 v{s0}, v{u}, v{u}\nv_mul_f32 v{s1}, v{u+8}, v{u+8}")
        for k in range(1, 8): a(f"v_fmac_f32 v{s0}, v{u+k}, v{u+k}\nv_fmac_f32 v{s1}, v{u+8+k}, v{u+8+k}")
        self.wave_sum2(s0, s1, u + 40, u + 41)
        a(f"v_mov_b32 v{u}, {f2u(1e-5):#x}\nv_mov_b32 v{u+1}, {f2u(1e-5):#x}\nv_fmac_f32 v{u}, {f2u(1/512.):#x}, v{s0}\nv_fmac_f32 v{u+1}, {f2u(1/512.):#x}, v{s1}")
        a(f"v_rsq_f32 v{u}, v{u}\nv_rsq_f32 v{u+1}, v{u+1}\nv_mov_b32 v{G0+2}, 0\nv_mov_b32 v{G0+3}, s{sTAG}\nv_mov_b32 v{G1+2}, 0\nv_mov_b32 v{G1+3}, s{sTAG}")
        a(f"v_mul_f32 v{G0+1}, {f2u(LOG2E):#x}, v{u}\nv_mul_f32 v{G1+1}, {f2u(LOG2E):#x}, v{u+1}")
        self.lane0(u + 2)
        a(f"buffer_store_dwordx4 v[{G0}:{G0+3}], v{u+2}, s[{S_WS}:{S_WS+3}], s{sE} offen sc1"); vm.issue("statst")
        a(f"buffer_store_dwordx4 v[{G1}:{G1+3}], v{u+2}, s[{S_WS}:{S_WS+3}], s{sE} offen offset:16 sc1"); vm.issue("statst")
        if self.o.get('pst'): self.stamp(43)
        vm.wait("bias")
        a(f"v_lshlrev_b32 v{u+3}, 16, v{T+12}\nv_mul_f32 v{u+3}, {f2u(LOG2E):#x}, v{u+3}\nv_lshlrev_b32 v{u+4}, 2, v{T+13}\nv_add_u32 v{u+4}, {L_BT}, v{u+4}")
        a(f"s_cmp_eq_u32 s{sW}, 3\ns_cbranch_scc1 L_nobt\nds_write_b32 v{u+4}, v{u+3}")
        a.label("L_nobt")

    def l_cspub(self, vm, vi):
        a = self.a; T = ACC2 + 24; U = B2R
        a(f"s_mov_b32 s{sT0}, {OOB}\ns_cmp_lg_u32 s{sLW}, 0\ns_cbranch_scc1 L_nocsp{vi}")
        a(f"v_lshlrev_b32 v{T}, 2, v{vL}\nv_add_u32 v{T}, {L_SLAB}, v{T}")
        for k in range(0, 24, 2): a(f"ds_read2st64_b32 v[{U+k}:{U+k+1}], v{T} offset0:{k} offset1:{k+1}")
        a(f"v_mov_b32 v{T+3}, s{sTAG}")
        a(f"s_lshl4_add_u32 s{sT0}, s{sG}, s{sRB}\ns_lshl_b32 s{sT0}, s{sT0}, 10\ns_add_u32 s{sT0}, s{sT0}, {WS_CSP}")
        a("s_waitcnt lgkmcnt(0)")
        for sl in range(1, 7):
            for u in range(3): a(f"v_add_f32 v{U+u}, v{U+u}, v{U+3*sl+u}")
        for u in range(3): a(f"v_add_f32 v{T+u}, v{U+u}, v{U+21+u}")
        a.label(f"L_nocsp{vi}")
        a(f"buffer_store_dwordx4 v[{T}:{T+3}], v{vL16}, s[{S_WS}:{S_WS+3}], s{sT0} offen sc1"); vm.issue("cspst")

    def l_steptable(self):
        a = self.a
        a("s_waitcnt lgkmcnt(0)")
        a(f"s_mul_i32 s{sT0}, s{sROT}, 3\ns_lshr_b32 s{sT0}, s{sT0}, 1\ns_sub_u32 s{sT1}, s{sT0}, 11\ns_cmp_ge_u32 s{sT0}, 11\ns_cselect_b32 s{sT0}, s{sT1}, s{sT0}")
        a(f"s_mul_i32 s{sT3}, s{sLW}, 11\ns_add_u32 s{sT4}, s{sT3}, 11\ns_add_u32 s{sT0}, s{sT0}, s{sT3}")
        for i in range(11):
            a(f"s_lshl_b32 s{SP[i]}, s{sT0}, 10\ns_cmp_ge_u32 s{sT0}, 43\ns_cselect_b32 s{SP[i]}, {WS_SIZE}, s{SP[i]}")
            if i < 10: a(f"s_add_u32 s{sT0}, s{sT0}, 1\ns_cmp_eq_u32 s{sT0}, s{sT4}\ns_cselect_b32 s{sT0}, s{sT3}, s{sT0}")
        a(f"s_lshl_b32 s{sT3}, s{sLW}, 2\ns_add_u32 s{sT3}, s{sT3}, 44")
        for j in range(4):
            a(f"s_add_u32 s{sT0}, s{sROT}, {j}\ns_and_b32 s{sT0}, s{sT0}, 3\ns_add_u32 s{sT0}, s{sT0}, s{sT3}\ns_lshl_b32 s{SP[11+j]}, s{sT0}, 10")
        a(f"s_lshl_b32 s{SP[15]}, s{sCT}, 7\ns_add_u32 s{SP[16]}, s{SP[15]}, 16384\ns_sub_u32 s{SP[17]}, s{SP[15]}, {44*32768}\ns_add_u32 s{SP[18]}, s{SP[17]}, 16384")
        a(f"s_mul_i32 s{sA2B}, s{sRT}, {4*A2_RT}\ns_add_u32 s{sA2B}, s{sA2B}, {WS_A2}")
        for k in range(1, 4): a(f"v_add_u32 v{vAO[k]}, {k*A2_RT}, v{vL16}")

    def l_gather_addr(self):
        a = self.a; T = ACC2 + 40; sT4, sT5 = 86, 87
        a(f"s_lshl2_add_u32 s{sT4}, s{sRB}, s{sLW}\ns_lshl_b32 s{sT4}, s{sT4}, 9\ns_add_u32 s{sT4}, s{sT4}, {WS_STATS}")
        a(f"s_and_b32 s{sT5}, s{sRB}, 8\ns_lshl4_add_u32 s{sT5}, s{sG}, s{sT5}\ns_lshl2_add_u32 s{sT5}, s{sT5}, s{sLW}\ns_lshl_b32 s{sT5}, s{sT5}, 8\ns_add_u32 s{sT5}, s{sT5}, {WS_CSP}")
        a(f"v_and_b32 v{T}, 0x1f0, v{vL16}\nv_lshrrev_b32 v{T+1}, 4, v{vL}\nv_lshlrev_b32 v{T+1}, 10, v{T+1}\nv_and_b32 v{T+2}, 0xf0, v{vL16}\nv_or_b32 v{T+1}, v{T+1}, v{T+2}\nv_add_u32 v{T+2}, 4096, v{T+1}")
    def l_gather_issue(self, vm):
        a = self.a; T = ACC2 + 40; G = AR; sT4, sT5 = 86, 87
        a(f"buffer_load_dwordx4 v[{G}:{G+3}], v{T}, s[{S_WS}:{S_WS+3}], s{sT4} offen sc1"); vm.issue("gath")
        a(f"buffer_load_dwordx4 v[{G+4}:{G+7}], v{T+1}, s[{S_WS}:{S_WS+3}], s{sT5} offen sc1"); vm.issue("gath")
        a(f"buffer_load_dwordx4 v[{G+8}:{G+11}], v{T+2}, s[{S_WS}:{S_WS+3}], s{sT5} offen sc1"); vm.issue("gath")
    def l_gather_check(self, vm, vi):
        a = self.a; T = ACC2; G = AR
        vm.wait("gath")
        a(f"s_mov_b32 s{sSPIN}, 0")
        a.label(f"L_gchk{vi}")
        a(f"v_cmp_ne_u32 vcc, s{sTAG}, v{G+3}\nv_cmp_ne_u32 s[70:71], s{sTAG}, v{G+7}\ns_nop 1\ns_or_b64 s[70:71], vcc, s[70:71]")
        a(f"v_cmp_ne_u32 vcc, s{sTAG}, v{G+11}\ns_nop 1\ns_or_b64 vcc, vcc, s[70:71]")
        a(f"s_cbranch_vccz L_gok{vi}")
        a(f"s_add_u32 s{sSPIN}, s{sSPIN}, 1\ns_cmp_gt_u32 s{sSPIN}, 0x8000\ns_cbranch_scc1 L_gok{vi}")
        self.l_gather_issue(VM(a))
        a(f"s_waitcnt vmcnt(0)\ns_branch L_gchk{vi}")
        a.label(f"L_gok{vi}")
        a(f"s_lshl_b32 s{sT0}, s{sLW}, 7\ns_add_u32 s{sT0}, s{sT0}, {L_MT}\nv_and_b32 v{T}, 31, v{vL}\nv_lshl_add_u32 v{T}, v{T}, 2, s{sT0}")
        a(f"ds_write_b32 v{T}, v{G}\nds_write_b32 v{T}, v{G+1} offset:512")
    def l_w2touch(self, vm):
        a = self.a; T = ACC2 + 8
        a(f"s_lshl2_add_u32 s{sT0}, s2, s{sLW}\ns_lshl_b32 s{sT1}, s{sT0}, 9\ns_mul_i32 s{sT0}, s{sT0}, 1408\nv_lshlrev_b32 v{T}, 7, v{vL}\ns_mov_b64 exec, 0x7ff")
        a(f"buffer_load_dword v{T+1}, v{T}, s[{S_W2}:{S_W2+3}], s{sT0} offen\ns_mov_b64 exec, 0xf"); vm.issue("w2t")
        a(f"buffer_load_dword v{T+2}, v{T}, s[{S_WO}:{S_WO+3}], s{sT1} offen\ns_mov_b64 exec, -1"); vm.issue("w2t")
    def l_gather_cs(self):
        a = self.a; T = ACC2; G = AR
        for k in range(3): a(f"v_add_f32 v{G+4+k}, v{G+4+k}, v{G+8+k}")
        for op in ("v_permlane16_swap_b32", "v_permlane32_swap_b32"):
            for k in range(3): a(f"v_mov_b32 v{G+8+k}, v{G+4+k}")
            a("s_nop 0")
            for k in range(3): a(f"{op} v{G+8+k}, v{G+4+k}")
            a("s_nop 0")
            for k in range(3): a(f"v_add_f32 v{G+4+k}, v{G+4+k}, v{G+8+k}")
        a(f"s_lshl_b32 s{sT0}, s{sLW}, 6\ns_add_u32 s{sT0}, s{sT0}, {L_CS}\nv_lshl_add_u32 v{T+1}, v{vL}, 2, s{sT0}\ns_mov_b64 exec, 0xffff")
        a(f"ds_write2st64_b32 v{T+1}, v{G+4}, v{G+5} offset1:1\nds_write_b32 v{T+1}, v{G+6} offset:512\ns_mov_b64 exec, -1")

    def b2_dma(self, vm, step, pace=True):
        a = self.a
        if pace: vm.depth((self.o['pace'] if pace is True else pace) - 2)
        srd, base = (S_W2, SP[15 + (step & 1)]) if step < 22 else (S_WO, SP[17 + (step & 1)])
        a(f"s_lshl_b32 s{sT0}, s{SP[step // 2]}, 5\ns_add_u32 m0, s{sB2L}, {8192*round_of(step)}\ns_add_u32 s{sT0}, s{sT0}, s{base}")
        a(f"buffer_load_dwordx4 v{vB2D}, s[{srd}:{srd+3}], s{sT0} offen lds"); vm.issue(f"b2_{step}")
        a(f"buffer_load_dwordx4 v{vB2D+1}, s[{srd}:{srd+3}], s{sT0} offen offset:1024 lds"); vm.issue(f"b2_{step}")
        if self.o.get('b2stamps'): self.stamp(20 + step)
    def b2_read_list(self, s, dst):
        rnd = round_of(s); hi, lo = rnd // 8, rnd % 8
        return [f"ds_read_b64_tr_b16 v[{dst+4*j+2*(s&1)}:{dst+4*j+2*(s&1)+1}], v{vB2AL[4*hi + j]} offset:{8192*lo}" for j in range(4)]
    def b2_reads(self, s, dst):
        for r in self.b2_read_list(s, dst): self.a(r)

    def l_main(self):
        a = self.a; vm = VM(a); T = ACC2
        if self.o['pf']: vm.issue("codepf")
        self.l_prologue(vm)
        if self.o['spf']:
            a(f"s_lshr_b32 s{sT0}, s2, 3\ns_lshl2_add_u32 s{sT0}, s{sT0}, s{sLW}\ns_mul_i32 s{sT0}, s{sT0}, {64*self.o['spf']}\ns_add_u32 s94, s16, s{sT0}\ns_addc_u32 s95, s17, 0\ns_and_b32 s84, s2, 7")
        if self.o.get('stouch'):
            a(f"s_lshl2_add_u32 s{sT0}, s2, s{sLW}\ns_mul_i32 s{sT1}, s{sT0}, 1376\ns_and_b32 s{sT1}, s{sT1}, 0xffffffc0\ns_add_u32 s94, s16, s{sT1}\ns_addc_u32 s95, s17, 0")
            a(f"s_lshl_b32 s{sT0}, s{sT0}, 9\ns_add_u32 s98, s8, s{sT0}\ns_addc_u32 s99, s9, 0")
        self.l_steptable()
        if self.o.get('late') and self.o.get('late_at', 1) == 0:
            a(f"s_cmp_lt_u32 s{sG}, 8\ns_cbranch_scc{1 if self.o['late'] == 'M' else 0} L_st0b")
            self.l_stage(vm, 0)
            a.label("L_st0b")
        self.tag(); self.l_gather_addr()
        a(f"v_and_b32 v{T}, 7, v{vL}\nv_lshrrev_b32 v{T+1}, 4, v{vL}\nv_xor_b32 v{T+1}, v{T+1}, v{T}\nv_lshlrev_b32 v{T+1}, 4, v{T+1}\nv_lshl_add_u32 v{T+1}, v{T}, 8, v{T+1}")
        a(f"v_bfe_u32 v{T}, v{vL}, 3, 1\nv_lshl_add_u32 v{T+1}, v{T}, 13, v{T+1}\nv_add_u32 v254, s{sB2L}, v{T+1}")
        vP0, vP2, vPT = 249, 250, 251
        a(f"s_lshl_b32 s54, s{sRT}, 12\ns_add_u32 s54, s54, {WS_FLAG}")
        a(f"v_and_b32 v{vP0}, 3, v{vL}\ns_lshl_b32 s{sT0}, s{sLW}, 2\nv_add_u32 v{vP0}, s{sT0}, v{vP0}\nv_lshlrev_b32 v{vP0}, 7, v{vP0}")
        if not self.o['classes'] and self.o.get('psub', 1):
            a(f"s_lshl_b32 s{sT0}, s{sLW}, 3\ns_or_b32 s{sT0}, s{sT0}, 0x80000\ns_bfe_u32 s{sT1}, 0x0c060200, s{sT0}\ns_bfe_u32 s{sT0}, 0x03050503, s{sT0}")
            a(f"v_min_u32 v{vP2}, s{sT0}, v{vL}\nv_add_u32 v{vP2}, s{sT1}, v{vP2}\nv_lshlrev_b32 v{vP2}, 7, v{vP2}")
        elif not self.o['classes']:
            a(f"v_and_b32 v{vP2}, 15, v{vL}\nv_lshlrev_b32 v{vP2}, 7, v{vP2}")
        else:
            a(f"v_and_b32 v{vP2}, 3, v{vL}\nv_min_u32 v{vP2}, 2, v{vP2}")
            a(f"s_mul_i32 s{sT0}, s{sLW}, 3\ns_mul_i32 s{sT1}, s{sLW}, 6\ns_sub_u32 s{sT1}, s{sT1}, 6\ns_cmp_lt_u32 s{sLW}, 2\ns_cselect_b32 s{sT0}, s{sT0}, s{sT1}\ns_cselect_b32 s{sT1}, 0, 1")
            a(f"v_lshlrev_b32 v{vP2}, s{sT1}, v{vP2}\nv_add_u32 v{vP2}, s{sT0}, v{vP2}\nv_min_u32 v{vP2}, 14, v{vP2}\nv_lshlrev_b32 v{vP2}, 7, v{vP2}")
        vA = vP0 if self.o['classes'] else vP2
        self.final_addr(None, T, T + 1)
        a(f"v_and_b32 v255, 3, v{vL}\nv_lshlrev_b32 v255, 2, v255\nv_add_u32 v255, {L_FL}, v255")
        a(f"s_mul_i32 s{sT0}, s{sLW}, 3072\ns_add_u32 s{sT0}, s{sT0}, {L_KV + 12}\nv_add_u32 v{T}, s{sT0}, v{vL16}\ns_not_b32 s{sT0}, s{sTAG}\nv_mov_b32 v{T+1}, s{sT0}")
        for k in range(3): a(f"ds_write_b32 v{T}, v{T+1} offset:{1024*k}")
        self.l_colsum_pre()
        if self.o.get('late') and self.o.get('late_at', 1) == 1:
            a(f"s_cmp_lt_u32 s{sG}, 8\ns_cbranch_scc{1 if self.o['late'] == 'M' else 0} L_st0b")
            self.l_stage(vm, 0)
            a.label("L_st0b")
        if self.o.get('pst'): self.stamp(41)
        vm.depth(self.o.get('st1_at', 8))
        if self.o.get('pst'): self.stamp(42)
        self.l_stage(vm, 1, 'x' if self.o.get('split1', 0) else None)
        if self.o.get('pst'): self.stamp(43)
        if self.o.get('w2pf', -1) == -1: self.l_w2touch(vm)
        vm.wait("st0w")
        self.l_colsum()
        CL = self.o.get('cl') or [{}]
        TV = B2R + 40
        if len(CL) > 1 or CL[0]:
            a(f"s_lshr_b32 s{sT0}, s2, 3\ns_lshl2_add_u32 s{sT0}, s{sT0}, s{sLW}\ns_mul_i32 s{sT0}, s{sT0}, 118")
            a(f"v_min_u32 v{TV}, 58, v{vL}\nv_add_u32 v{TV}, s{sT0}, v{TV}\nv_lshlrev_b32 v{TV}, 7, v{TV}\nv_add_u32 v{TV+1}, {59*128}, v{TV}")
            a(f"v_subrev_u32 v{TV+2}, {1376*1024}, v{TV}\nv_subrev_u32 v{TV+3}, {1376*1024}, v{TV+1}\ns_and_b32 s84, s{sCT}, {len(CL)-1}")
        def touch(vm, k):
            a(f"buffer_load_dword v{TV+4}, v{TV+k}, s[{S_W2}:{S_W2+3}], 0 offen"); vm.issue("tch")
            a(f"buffer_load_dword v{TV+5}, v{TV+2+k}, s[{S_WO}:{S_WO+3}], 0 offen"); vm.issue("tch")
        base = vm; ends = []
        for vi, var in enumerate(CL):
            vm = base.copy()
            if vi + 1 < len(CL): a(f"s_cmp_lg_u32 s84, {vi}\ns_cbranch_scc1 L_var{vi}")
            for t in range(8):
                vm.wait(f"st{t}", lgkm=None if ((self.o['spf'] or self.o.get('stouch')) and 1 <= t <= 6) else 0)
                if self.o.get('pst') and t < 2: self.stamp(44 + t)
                a("s_barrier")
                if self.o['kstamps'] or t in (0, 7): self.stamp(2 + t)
                if t == 0 and self.o.get('split1', 0): self.l_stage(vm, 1, 'w')
                if t + 2 < 8: self.l_stage(vm, t + 2)
                for k in var.get(t, []): touch(vm, k)
                if self.o.get('cslate', 0):
                    if t < 2: self.l_colsum_part(t)
                    if t == 2: self.l_cspub(vm, vi)
                elif t == 0: self.l_cspub(vm, vi)
                if self.o['spf'] and t in self.o.get('spf_t', range(0, 6)):
                    n = self.o['spf']; assert 128*64*n <= 234752
                    a(f"s_add_u32 s84, s84, 1\ns_sub_u32 s{sT0}, s84, 6\ns_cmp_ge_u32 s84, 6\ns_cselect_b32 s84, s{sT0}, s84\ns_mul_i32 s{sT0}, s84, 234752\ns_add_u32 s98, s94, s{sT0}\ns_addc_u32 s99, s95, 0")
                    for k in range(n): a(f"s_load_dword s54, s[98:99], {64*k}")
                if self.o.get('stouch'):
                    n, t0 = self.o['stouch']
                    lst = [("94:95", 64*k) for k in range(22)] + [("98:99", 64*k) for k in range(8)]
                    if t >= t0:
                        for p, off in lst[n*(t - t0):n*(t - t0 + 1)]: a(f"s_load_dword s84, s[{p}], {off}")
                if t == self.o.get('a2touch', -9):
                    a(f"s_lshl2_add_u32 s{sT0}, s{sRB}, s{sLW}\ns_mul_i32 s{sT0}, s{sT0}, {A2_RT}\ns_lshl_b32 s{sT1}, s{sC0}, 11\ns_lshl_b32 s{sT2}, s{sG}, 12\ns_add_u32 s{sT2}, s{sT2}, {88*1024}")
                    a(f"s_cmp_lt_u32 s{sG}, 8\ns_cselect_b32 s{sT1}, s{sT2}, s{sT1}\ns_cselect_b32 s{sT2}, {OOB}, 8192\ns_cselect_b32 exec_hi, 0, -1\ns_add_u32 s{sT0}, s{sT0}, s{sT1}\ns_add_u32 s{sT0}, s{sT0}, {WS_A2}\ns_add_u32 s{sT2}, s{sT2}, s{sT0}")
                    a(f"v_lshlrev_b32 v{T+8}, 7, v{vL}\nbuffer_load_dword v{T+9}, v{T+8}, s[{S_WS}:{S_WS+3}], s{sT0} offen\ns_mov_b32 exec_hi, 0\nbuffer_load_dword v{T+10}, v{T+8}, s[{S_WS}:{S_WS+3}], s{sT2} offen\ns_mov_b64 exec, -1")
                    vm.issue("a2t"); vm.issue("a2t")
                if t == 5: self.l_gather_issue(vm)
                if t == self.o.get('w2pf', -1): self.l_w2touch(vm)
                if t == 6:
                    for s in range(self.o['n0']): self.b2_dma(vm, s, pace=False)
                    self.l_gather_check(vm, vi); self.l_gather_cs()
            ends.append(list(vm.q))
            if vi + 1 < len(CL):
                a("s_branch L_varend"); a.label(f"L_var{vi}")
        assert all(e == ends[0] for e in ends)
        a.label("L_varend")
        for s in range(self.o['n0'], 7): self.b2_dma(vm, s, pace=False)
        def park(k):
            vm.wait(f"b2_{k}")
            self.b2_reads(k, B2R + 16*(k // 2))
        ep = self.o.get('epark', 1); done = 0
        for s in range(7, 18):
            if s == 13: self.spin_lds("ring", 255, T + 1, 0)
            self.b2_dma(vm, s)
            if ep and s - 6 > done:
                park(done); done += 1
        self.stamp(10)
        for k in range(done, 12):
            park(k)
            if k > 1: a("s_waitcnt lgkmcnt(8)")
        a(f"v_xor_b32 v253, 64, v254")
        a("s_waitcnt lgkmcnt(0)")
        if self.o.get('mix', 0):
            a(f"s_cmp_lt_u32 s{sG}, 8\ns_cbranch_scc1 L_p2att")
            self.l_phase2(vm.copy(), "M", True, vP0, vP2, vPT, vA)
            a.label("L_p2att")
        self.l_phase2(vm.copy(), "A", False, vP0, vP2, vPT, vA)

    def l_phase2(self, vm, sfx, mix, vP0, vP2, vPT, vA):
        a = self.a; T = ACC2
        polls = {0: (vA, 2048), 11: (vP0, 0)}
        free = [AR + 16*k for k in range(3)]; slot = {}; bslot = {i: B2R + 16*i for i in range(NREG // 2)}
        def a_one(i, t):
            if t == 0:
                slot[i] = free.pop(0)
                a(f"s_add_u32 s{sT0}, s{sA2B}, s{SP[i]}")
            r = slot[i] + 4*t
            a(f"buffer_load_dwordx4 v[{r}:{r+3}], v{vAO[t]}, s[{S_WS}:{S_WS+3}], s{sT0} offen sc1"); vm.issue(f"a{i}_{t}")
        def poll_issue(c):
            v, imm = polls[c]
            off = f" offset:{imm}" if imm else ""
            a(f"buffer_load_dword v{vPT}, v{v}, s[{S_WS}:{S_WS+3}], s54 offen{off} sc1"); vm.issue(f"p{c}")
        def poll_check(c):
            v, imm = polls[c]
            vm.wait(f"p{c}")
            a(f"v_cmp_ne_u32 vcc, s{sTAG}, v{vPT}\ns_cbranch_vccz L_pok{c}{sfx}")
            self.spin_global(f"p{c}{sfx}", v, vPT, 54, imm)
            a.label(f"L_pok{c}{sfx}")
            self.stamp({0: 12, 11: 15}[c])
        pre = self.o.get('mixpre', 12) if mix else 12
        if pre: self.spin_lds("hold" + sfx, 255, T + 1, 64)
        self.stamp(13)
        a(f"s_lshl_b32 s{sT0}, s{sLW}, 2\ns_add_u32 s{sT0}, s{sT0}, {L_FL + 96}\nv_mov_b32 v{T+2}, s{sT0}\nv_mov_b32 v{T+3}, 1")
        for s in range(18, 18 + pre):
            self.b2_dma(vm, s, pace=self.o.get('pace2', 10))
            if s == self.o.get('pw_at', 25) and not mix:
                if s == 29: vm.depth(self.o['pollwait'] - 1)
                a(f"ds_write_b32 v{T+2}, v{T+3}")
        self.spin_lds("hold2" + sfx, 255, T + 1, 112)
        poll_issue(0)
        nxt = 18 + pre
        for k in range(0):
            if nxt < 30: self.b2_dma(vm, nxt, pace=False); nxt += 1
        self.stamp(11)
        poll_check(0)
        a("s_setprio 1")
        self.xres(vm)
        D0, D1, DS = self.o.get('dM' if mix else 'dA', (10, 10, 0))
        D4 = D0
        LEAD = self.o.get('lead', 4)
        todo = [(i, t) for i in range(15) for t in range(4)]; nxt = 0
        def issue_next():
            nonlocal nxt
            i, t = todo[nxt]
            if (i, t) == (11, 0): poll_check(11)
            a_one(i, t); nxt += 1
            if nxt == 44 - LEAD: poll_issue(11)
        for k in range(D4): issue_next()
        for i in range(15):
            if i >= DS: D4 = D1
            R = []
            if NREG // 2 <= i + 1 < 15:
                bslot[i + 1] = free.pop(0)
                vm.wait(f"b2_{2*i+3}")
                R = self.b2_read_list(2*i + 2, bslot[i + 1]) + self.b2_read_list(2*i + 3, bslot[i + 1])
            if i >= NREG // 2: a("s_waitcnt lgkmcnt(0)")
            if self.o.get('astamps'): self.stamp(20 + i)
            for t in range(4):
                vm.wait(f"a{i}_{t}")
                for jj in range(4):
                    j = 3 - jj if t & 1 else jj
                    A = ACC2 + 16*t + 4*j; acc = f"v[{A}:{A+3}]"
                    a(f"v_mfma_f32_16x16x32_bf16 {acc}, v[{bslot[i]+4*j}:{bslot[i]+4*j+3}], v[{slot[i]+4*t}:{slot[i]+4*t+3}], {'0' if i == 0 else acc}")
                    if jj < 3 and t < 3 and R: a(R.pop(0))
                    if jj in (0, 2) and nxt < min(60, 4*i + t + D4 + jj // 2) and (todo[nxt][1] or free): issue_next()
            free.append(slot[i]); free.append(bslot[i])
        assert nxt == 60
        self.stamp(16)
        a("s_nop 3")
        for t in range(4):
            for j in range(4):
                r = ACC2 + 16*t + 4*j
                a(f"ds_write_b128 v{253 if j & 1 else 254}, v[{r}:{r+3}] offset:{16384*t + 128*(j >> 1)}")
        a("s_branch L_final")

    def c_prologue(self, vm):
        a = self.a; T = CT
        a("s_waitcnt lgkmcnt(0)")
        if self.o.get('pst'): self.stamp(40)
        a(f"s_load_dword s{sTAG}, s[22:23], {WS_EPOCH}")
        self.srd(S_X, 4, 2097152)
        X = 160
        a(f"s_lshl4_add_u32 s{sT0}, s{sRB}, s{sG}\ns_lshl2_add_u32 s{sT5}, s{sT0}, s{sW}\ns_lshl_b32 s{sT0}, s{sT5}, 11")
        a(f"buffer_load_dwordx4 v[{X+4}:{X+7}], v{vL16}, s[{S_X}:{S_X+3}], s{sT0} offen"); vm.issue("xrow")
        a(f"buffer_load_dwordx4 v[{X+8}:{X+11}], v{vL16}, s[{S_X}:{S_X+3}], s{sT0} offen offset:1024"); vm.issue("xrow")
        a(f"s_lshl_b32 s{sE}, s{sT5}, 5\ns_add_u32 s{sE}, s{sE}, {WS_STATS}")
        self.srd(S_B1, 14, 2752)
        a(f"v_lshl_add_u32 v{X+13}, s{sW}, 6, v{vL}\nv_lshlrev_b32 v{X+3}, 1, v{X+13}")
        a(f"s_lshl_b32 s{sT0}, s{sC0}, 6\ns_cmp_lt_u32 s{sG}, 8\ns_cselect_b32 s{sT0}, {OOB}, s{sT0}")
        a(f"buffer_load_ushort v{X+12}, v{X+3}, s[{S_B1}:{S_B1+3}], s{sT0} offen"); vm.issue("bias")
        a(f"s_and_b32 s{sR2}, s{sW}, 1\ns_lshr_b32 s{sC}, s{sW}, 1")
        a(f"v_and_b32 v{T+2}, 15, v{vL}\nv_lshrrev_b32 v{T+3}, 4, v{vL}\nv_lshrrev_b32 v{T+4}, 1, v{T+2}\nv_xor_b32 v{T+4}, v{T+4}, v{T+3}")
        a(f"s_lshl_b32 s{sT3}, s{sR2}, 13\nv_lshlrev_b32 v{T+5}, 7, v{T+2}\nv_lshl_add_u32 v{T+5}, v{T+4}, 4, v{T+5}\nv_add_u32 v{vXA}, s{sT3}, v{T+5}\nv_xor_b32 v{vXA+1}, 64, v{vXA}")
        a(f"v_and_b32 v{T+4}, 3, v{vL}\nv_lshlrev_b32 v{T+4}, 3, v{T+4}\nv_bfe_u32 v{T+5}, v{vL}, 3, 1\nv_xor_b32 v{T+5}, s{sC}, v{T+5}\nv_lshl_add_u32 v{T+4}, v{T+5}, 6, v{T+4}")
        a(f"v_and_b32 v{T+6}, 1, v{T+3}\nv_lshl_add_u32 v{T+4}, v{T+6}, 5, v{T+4}")
        a(f"v_bfe_u32 v{T+5}, v{vL}, 2, 2\nv_lshl_add_u32 v{T+4}, v{T+5}, 7, v{T+4}\nv_mul_u32_u24 v{T+5}, 3072, v{T+3}\nv_add_u32 v{T+4}, v{T+4}, v{T+5}")
        a(f"v_add_u32 v{vWA}, {L_W}, v{T+4}\nv_xor_b32 v{vWA+1}, 32, v{vWA}")
        a(f"s_lshl_b32 s{sT0}, s{sR2}, 8\ns_add_u32 s{sT0}, s{sT0}, {L_MT}\nv_lshl_add_u32 v{T+19}, v{T+3}, 4, s{sT0}\nv_lshl_add_u32 v{T+23}, v{T+2}, 2, s{sT0}")
        a(f"s_lshl_b32 s{sT0}, s{sC}, 7\ns_add_u32 s{sT0}, s{sT0}, {L_TAB}\nv_lshl_add_u32 v{T+22}, v{T+2}, 2, s{sT0}\nv_lshl_add_u32 v{T+18}, v{T+3}, 4, s{sT0}")
        self.decode2()
        self.srd(S_WS, 22, WS_SIZE); self.srd(S_OUT, 18, 2097152)
        a(f"s_lshl1_add_u32 s{sT0}, s{sRB}, s{sR2}\ns_mul_i32 s{sA2B}, s{sT0}, {4*A2_RT}\ns_add_u32 s{sA2B}, s{sA2B}, {WS_A2}")
        a(f"s_lshl4_add_u32 s{sT0}, s{sT0}, s{sG}\ns_lshl1_add_u32 s{sT0}, s{sT0}, s{sC}\ns_lshl_b32 s{sFL}, s{sT0}, 7\ns_add_u32 s{sFL}, s{sFL}, {WS_FLAG}")
        for k in range(1, 4): a(f"v_add_u32 v{vCO[k]}, {k*A2_RT}, v{vL16}")
        self.consts()
        a(f"s_lshl_b32 s{sT0}, s{sW}, 2\ns_add_u32 s{sT0}, s{sT0}, {L_FL}\nv_mov_b32 v14, s{sT0}\nv_mov_b32 v15, 1")
        if self.o.get('pst'): self.stamp(41)
        self.c_stats(vm)
        self.flag_regs()
        if self.o['cprio']: a(f"s_setprio {self.o['cprio']}")

    def c_read_list(self, n):
        t, kk = n // 2, n % 2; slot = t % 3; F = FR + 40*(n & 1)
        def x(a_): return f"ds_read_b128 v[{F+4*a_}:{F+4*a_+3}], v{vXA+kk} offset:{slot*16384 + 2048*a_}"
        def w(f):
            u, fp = f // 2, f % 2; r = F + 16 + 4*f
            return [f"ds_read_b64_tr_b16 v[{r+2*rd}:{r+2*rd+1}], v{vWA+fp} offset:{slot*24576 + 12288*kk + 1024*u + 512*rd}" for rd in range(2)]
        return [x(0)] + w(0) + [x(1), x(2), x(3)] + w(1) + w(2) + w(3) + w(4) + w(5)
    def c_mfma(self, n, f, a_, att):
        F = FR + 40*(n & 1); u, fp = f // 2, f % 2
        x = f"v[{F+4*a_}:{F+4*a_+3}]"; w = f"v[{F+16+4*f}:{F+19+4*f}]"
        A = ACC + 32*u + 8*a_ + 4*fp; acc = f"v[{A}:{A+3}]"; c = "0" if n == 0 else acc
        if att and u > 0: return f"v_mfma_f32_16x16x32_bf16 {acc}, {x}, {w}, {c}"
        return f"v_mfma_f32_16x16x32_bf16 {acc}, {w}, {x}, {c}"

    def c_kloop(self, att, short=False):
        a = self.a; nr = 12 if short else 16
        a("s_waitcnt lgkmcnt(0)\ns_barrier")
        self.stamp(2)
        for r in self.c_read_list(0)[:nr]: a(r)
        for n in range(16):
            boundary = (n % 2 == 1)
            if boundary:
                a("s_waitcnt lgkmcnt(0)")
                if n < 15:
                    a("s_barrier")
                    if self.o['kstamps'] == 2: self.stamp(3 + n // 2)
                else:
                    a(f"ds_write_b32 v14, v15")
            R = self.c_read_list(n + 1)[:nr] if n < 15 else (self.att_pre if att else self.mlp_pre)()
            need = {0: 3, 1: 6, 4: 8, 8: 10, 12: 12, 16: 14, 20: 16}
            issued = 0
            for k in range(16 if short else 24):
                f, a_ = k // 4, k % 4
                if f % 2 and self.o.get('snake', 1): a_ = 3 - a_
                if not boundary and k in need: a(f"s_waitcnt lgkmcnt({min(15, nr - need[k] + issued)})")
                a(self.c_mfma(n, f, a_, att))
                if issued < len(R): a(R[issued]); issued += 1
        self.stamp(10)

    def consts(self):
        T = CT
        self.a(f"v_mov_b32 v{T}, 0.5\nv_mov_b32 v{T+4}, {f2u(LN2):#x}\nv_mov_b32 v{T+6}, 1.0\nv_mov_b32 v{T+8}, {f2u(1e-6):#x}")
    def table_list(self, dst, vaddr, off, n, step):
        return [f"ds_read_b128 v[{dst+4*q}:{dst+4*q+3}], v{vaddr} offset:{off + step*q}" for q in range(n)]
    def lane_stats_list(self):
        return [f"ds_read_b32 v{CT+10+2*q}, v{CT+23} offset:{64*q}" for q in range(4)] + [f"ds_read_b32 v{6+2*q}, v{CT+23} offset:{64*q+512}" for q in range(4)]
    def flag(self, vm, soff, imm):
        a = self.a; T = CT
        off = f" offset:{imm}" if imm else ""
        a(f"buffer_store_dword v{T+21}, v{T+20}, s[{S_WS}:{S_WS+3}], s{soff} offen{off} sc1"); vm.issue("flag")
    def release(self, off=64):
        a = self.a
        a(f"ds_write_b32 v14, v15 offset:{off}")
    def flag_regs(self):
        self.lane0(CT + 20); self.a(f"v_mov_b32 v{CT+21}, s{sTAG}")

    def mlp_tabs(self, u):
        return self.table_list(116 + 16*(u & 1), CT+18, L_CS - L_TAB + 256*u, 2, 64) + self.table_list(124 + 16*(u & 1), CT+18, L_BT - L_TAB + 256*u, 2, 64)
    def mlp_pre(self):
        return self.lane_stats_list() + self.mlp_tabs(0)
    def att_pre(self):
        T = CT
        return ([f"ds_read_b32 v{148+2*k}, v{T+22} offset:{256 + 256*(k >> 1) + 64*(k & 1)}" for k in range(4)]
                + self.table_list(116, T+19, 0, 4, 64) + self.table_list(132, T+19, 512, 4, 64)
                + self.table_list(212, T+18, L_CS - L_TAB, 2, 64) + self.lane_stats_list())
    def c_epi_mlp(self, vm):
        a = self.a; T = CT; P = range(0, 16, 2)
        CP, U = 156, 172
        a(f"s_add_u32 s{sT1}, s{sC0}, s{sC}\ns_lshl_b32 s{sT1}, s{sT1}, 10\ns_add_u32 s{sA2B}, s{sA2B}, s{sT1}")
        a("s_waitcnt lgkmcnt(4)")
        for q in range(4): a(f"v_mul_f32 v{T+10+2*q}, v{T+10+2*q}, v{6+2*q}")
        for u in range(3):
            cs, bb = 116 + 16*(u & 1), 124 + 16*(u & 1)
            if u == 2:
                a(f"s_cmp_ge_u32 s{sG}, 11\ns_cselect_b32 s{sT0}, s{sC}, 0\ns_cmp_eq_u32 s{sT0}, 1\ns_cbranch_scc1 L_mlp_short")
            a("s_waitcnt lgkmcnt(0)")
            if u < 2:
                for r in self.mlp_tabs(u + 1): a(r)
            for t in range(2):
                A = ACC + 32*u + 16*t
                self.al()
                for k in P:
                    st = T + 10 + 4*t + 2*(k // 8); j = k % 8
                    a(f"v_pk_fma_f32 v[{CP+k}:{CP+k+1}], v[{st}:{st+1}], v[{cs+j}:{cs+j+1}], v[{bb+j}:{bb+j+1}] op_sel_hi:[0,1,1] neg_lo:[1,0,0] neg_hi:[1,0,0]")
                for k in P:
                    st = 6 + 4*t + 2*(k // 8)
                    a(f"v_pk_fma_f32 v[{A+k}:{A+k+1}], v[{A+k}:{A+k+1}], v[{st}:{st+1}], v[{CP+k}:{CP+k+1}] op_sel_hi:[1,0,1]")
                for k in range(16): a(f"v_exp_f32 v{U+k}, v{A+k}")
                for k in P: a(f"v_pk_fma_f32 v[{CP+k}:{CP+k+1}], v[{U+k}:{U+k+1}], v[{T}:{T+1}], v[{T+6}:{T+7}] op_sel_hi:[1,0,0]")
                for k in P: a(f"v_pk_fma_f32 v[{U+k}:{U+k+1}], v[{U+k}:{U+k+1}], v[{CP+k}:{CP+k+1}], v[{T+6}:{T+7}] op_sel_hi:[1,1,0]")
                for k in range(16): a(f"v_rcp_f32 v{U+k}, v{U+k}")
                for k in P: a(f"v_pk_fma_f32 v[{U+k}:{U+k+1}], v[{A+k}:{A+k+1}], v[{U+k}:{U+k+1}], v[{A+k}:{A+k+1}] neg_lo:[1,0,0] neg_hi:[1,0,0]")
                for k in P: a(f"v_cvt_pk_bf16_f32 v{A+k//2}, v{U+k}, v{U+k+1}")
                for k in range(2):
                    off = f" offset:{2048*u}" if 0 < u < 2 else ""
                    if u == 2 and t == 0 and k == 0: a(f"s_add_u32 s{sA2B}, s{sA2B}, 4096")
                    a(f"buffer_store_dwordx4 v[{A+4*k}:{A+4*k+3}], v{vCO[2*t+k]}, s[{S_WS}:{S_WS+3}], s{sA2B} offen{off} sc1"); vm.issue(f"act{u}")
                if self.o['classes'] and u == 2 and t == self.o.get('fa_at', 0):
                    vm.wait("act1"); self.flag(vm, sFL, 0)
            if u == 1 and self.o.get('rel_mlp', 0) == -1: self.release()
            self.stamp(11 + u)
        if self.o['classes']:
            if self.o.get('rel_mlp', 0) == 0: self.release()
            vm.wait("act2"); self.flag(vm, sFL, 4)
            if self.o.get('rel_mlp', 0) == 1: self.release()
            if self.o.get('hold2'): self.release(112)
            a("s_branch L_cdone")
        a.label("L_mlp_short")
        if self.o.get('rel_mlp', 0) == 0: self.release()
        a("s_waitcnt vmcnt(0)"); self.flag(VM(a), sFL, 0)
        if self.o.get('rel_mlp', 0) == 1: self.release()
        if self.o.get('hold2'): self.release(112)
        a("s_branch L_cdone")

    def phi(self, A, E, dst):
        a = self.a; T = CT; P = range(0, 16, 2)
        self.al()
        for k in range(16): a(f"v_exp_f32 v{E+k}, v{A+k}")
        for k in P: a(f"v_pk_fma_f32 v[{A+k}:{A+k+1}], v[{A+k}:{A+k+1}], v[{T+4}:{T+5}], v[{T+6}:{T+7}] op_sel_hi:[1,0,0]")
        for k in range(16): a(f"v_med3_f32 v{E+k}, v{A+k}, v{E+k}, 1.0")
        for k in P: a(f"v_pk_add_f32 v[{E+k}:{E+k+1}], v[{E+k}:{E+k+1}], v[{T+8}:{T+9}] op_sel_hi:[1,0]")
        for k in P: a(f"v_cvt_pk_bf16_f32 v{dst(k//2) if callable(dst) else dst+k//2}, v{E+k}, v{E+k+1}")

    def kv_write(self, S, flagoff):
        a = self.a
        for k in range(3): a(f"ds_write_b128 v2, v[{S+4*k}:{S+4*k+3}] offset:{1024*k}")
        a(f"v_mov_b32 v7, 1\ns_waitcnt lgkmcnt(0)\nds_write_b32 v6, v7 offset:{flagoff}")
    def kv_add(self, S, D):
        a = self.a
        for k in range(3): a(f"ds_read_b128 v[{D+4*k}:{D+4*k+3}], v4 offset:{1024*k}")
        a("s_waitcnt lgkmcnt(0)")
        for k in range(0, 12, 2): a(f"v_pk_add_f32 v[{S+k}:{S+k+1}], v[{S+k}:{S+k+1}], v[{D+k}:{D+k+1}]")

    def c_epi_att(self, vm):
        a = self.a; T = CT; P = range(0, 16, 2)
        MT, RT, E, QCS, PV, S, ZZ = 116, 132, 196, 212, 156, 172, 180
        Q, K, V = ACC, ACC + 32, ACC + 64
        if self.o.get('rel_att', 1) == -1: self.release()
        a("s_waitcnt lgkmcnt(10)")
        self.al()
        for (A, cs0) in ((K, 148), (V, 152)):
            for k in range(0, 32, 2):
                m = 4*(k // 8) + (k % 4); cs = cs0 + 2*((k % 8) // 4)
                a(f"v_pk_fma_f32 v[{A+k}:{A+k+1}], v[{MT+m}:{MT+m+1}], v[{cs}:{cs+1}], v[{A+k}:{A+k+1}] op_sel_hi:[1,0,1] neg_lo:[1,0,0] neg_hi:[1,0,0]")
            for k in range(0, 32, 2):
                m = 4*(k // 8) + (k % 4)
                a(f"v_pk_mul_f32 v[{A+k}:{A+k+1}], v[{A+k}:{A+k+1}], v[{RT+m}:{RT+m+1}]")
        if self.o.get('cst'): self.stamp(21)
        ONE = 192
        for k in range(4): a(f"v_mov_b32 v{ONE+k}, 0x3f803f80")
        def opnd(base): return lambda j: base + 4*((j >> 1) & 1) + 2*(j >> 2) + (j & 1)
        for t in range(2):
            self.phi(K + 16*t, E, opnd(K + 16*t))
            for j in range(8): a(f"v_cvt_pk_bf16_f32 v{opnd(PV + 8*t)(j)}, v{V+16*t+2*j}, v{V+16*t+2*j+1}")
            a("s_nop 1")
            for h in range(2):
                for (D, B) in ((S + 4*h, PV + 8*t + 4*h), (ZZ + 4*h, ONE)):
                    c = "0" if t == 0 else f"v[{D}:{D+3}]"
                    a(f"v_mfma_f32_16x16x32_bf16 v[{D}:{D+3}], v[{K+16*t+4*h}:{K+16*t+4*h+3}], v[{B}:{B+3}], {c}")
        if self.o.get('cst'): self.stamp(22)
        if self.o.get('rel_att', 1) == -2: self.release()
        even = f"s[{sEX}:{sEX+1}]"; upper = "s[66:67]"
        Z = 186; X = V; Y = V + 16
        a(f"v_mov_b32 v{X+3}, s{sTAG}\nv_mov_b32 v{X+7}, s{sTAG}\nv_mov_b32 v{X+11}, s{sTAG}\ns_nop 4")
        self.al()
        for k in range(4): a(f"v_cndmask_b32 v{ZZ+k}, v{ZZ+4+k}, v{ZZ+k}, {even}")
        for k in range(6): a(f"v_cndmask_b32 v{X+k+k//3}, v{S+6+k}, v{S+k}, {upper}")
        a(f"ds_write_b128 v249, v[{X}:{X+3}]\nds_write_b128 v249, v[{X+4}:{X+7}] offset:1024")
        for k in range(6): a(f"v_cndmask_b32 v{Z+k}, v{S+k}, v{S+6+k}, {upper}")
        if self.o.get('cst'): self.stamp(23)
        a(f"s_mov_b32 s{sSPIN}, 0")
        a.label("L_x1")
        a(f"ds_read_b128 v[{Y}:{Y+3}], v250\nds_read_b128 v[{Y+4}:{Y+7}], v250 offset:1024\ns_add_u32 s{sSPIN}, s{sSPIN}, 1\ns_waitcnt lgkmcnt(0)")
        a(f"v_cmp_ne_u32 vcc, s{sTAG}, v{Y+3}\nv_cmp_ne_u32 s[68:69], s{sTAG}, v{Y+7}\ns_cmp_gt_u32 s{sSPIN}, 0x40000\ns_cbranch_scc1 L_x1d\ns_or_b64 vcc, vcc, s[68:69]\ns_cbranch_vccnz L_x1")
        a.label("L_x1d")
        for k in range(6): a(f"v_add_f32 v{Z+k}, v{Z+k}, v{Y+k+k//3}")
        for k in range(3): a(f"v_cvt_pk_bf16_f32 v{X+8+k}, v{Z+2*k}, v{Z+2*k+1}")
        a(f"buffer_store_dwordx4 v[{X+8}:{X+11}], v{vL16}, s[{S_WS}:{S_WS+3}], s70 offen sc1")
        self.stamp(11)
        if self.o.get('rel_att', 1) == 0: self.release()
        self.al()
        for k in range(0, 32, 2):
            st = T + 10 + 2*(k // 8); j = k % 8
            a(f"v_pk_fma_f32 v[{Q+k}:{Q+k+1}], v[{st}:{st+1}], v[{QCS+j}:{QCS+j+1}], v[{Q+k}:{Q+k+1}] op_sel_hi:[0,1,1] neg_lo:[1,0,0] neg_hi:[1,0,0]")
        for k in range(0, 32, 2):
            st = 6 + 2*(k // 8)
            a(f"v_pk_mul_f32 v[{Q+k}:{Q+k+1}], v[{Q+k}:{Q+k+1}], v[{st}:{st+1}] op_sel_hi:[1,0]")
        for t in range(2): self.phi(Q + 16*t, E, Q + 16*t)
        if self.o.get('rel_att', 1) == 1: self.release()
        if self.o.get('cst'): self.stamp(24)
        if self.o.get('noatt'):
            for a_ in range(4): a(f"buffer_store_dwordx4 v[{Q+4*a_}:{Q+4*a_+3}], v{vCO[a_]}, s[{S_WS}:{S_WS+3}], s71 offen sc1")
            a("s_waitcnt vmcnt(0)"); self.flag(vm, sFL, 0); self.release(112); a("s_branch L_cdone")
        G = 116; S = K; U = K + 12
        a(f"s_mov_b32 s{sT5}, 0")
        if self.o.get('pollwait'):
            self.spin_lds("b2d", 254, 9, 96)
        if self.o.get('inc', 0):
            for k in range(12): a(f"v_mov_b32 v{S+k}, 0")
            a(f"s_mov_b32 s72, 0xffff\ns_lshl_b32 s73, s{sRB}, 12")
            if self.o.get('chprio', 3): a(f"s_setprio {self.o.get('chprio', 3)}")
            if self.o.get('cst'): self.stamp(28)
            a.label("L_kv_pass")
            for p in range(16):
                a(f"s_bitcmp0_b32 s72, {p}\ns_cbranch_scc1 L_kv_l{p}")
                a(f"s_add_u32 s{sT2}, s73, {2048*p}\ns_and_b32 s{sT2}, s{sT2}, 0x7800\ns_add_u32 s{sT2}, s{sT2}, s{sKB}")
                a(f"buffer_load_dwordx4 v[{G+4*p}:{G+4*p+3}], v{vL16}, s[{S_WS}:{S_WS+3}], s{sT2} offen sc1")
                a.label(f"L_kv_l{p}")
            if self.o.get('hold2') == 1: self.release(112)
            a(f"s_add_u32 s{sT5}, s{sT5}, 1\ns_waitcnt vmcnt(0)")
            for p in range(16):
                src = G + 4*p; d = S + 6*(p & 1)
                a(f"s_bitcmp0_b32 s72, {p}\ns_cbranch_scc1 L_kv_a{p}\nv_cmp_ne_u32 vcc, s{sTAG}, v{src+3}\ns_cbranch_vccnz L_kv_a{p}")
                for k in range(3): a(f"v_lshlrev_b32 v{U+2*k}, 16, v{src+k}\nv_and_b32 v{U+2*k+1}, 0xffff0000, v{src+k}")
                for k in range(6): a(f"v_add_f32 v{d+k}, v{d+k}, v{U+k}")
                a(f"s_bitset0_b32 s72, {p}")
                a.label(f"L_kv_a{p}")
            a(f"s_cmp_eq_u32 s72, 0\ns_cbranch_scc1 L_kv_ok\ns_cmp_gt_u32 s{sT5}, 0x4000\ns_cbranch_scc1 L_kv_ok\ns_sleep {self.o.get('sleep3', 1)}\ns_branch L_kv_pass")
            a.label("L_kv_ok")
            if self.o.get('cst'): self.stamp(25); a(f"v_writelane_b32 v252, s{sT5}, 30")
        else:
            if self.o.get('optim', 0): a("s_branch L_kv_go")
            a.label("L_kv_gather")
            self.spin_global("kv", 253, 9, sKB, 12)
            a.label("L_kv_go")
            if self.o.get('chprio', 3): a(f"s_setprio {self.o.get('chprio', 3)}")
            if self.o.get('cst'): self.stamp(28)
            vg = VM(a)
            for p in range(16):
                if p % 2 == 0: a(f"s_lshl1_add_u32 s{sT2}, s{sRB}, {p}\ns_and_b32 s{sT2}, s{sT2}, 14\ns_lshl_b32 s{sT2}, s{sT2}, 11\ns_add_u32 s{sT2}, s{sT2}, s{sKB}")
                off = " offset:2048" if p % 2 else ""
                a(f"buffer_load_dwordx4 v[{G+4*p}:{G+4*p+3}], v{vL16}, s[{S_WS}:{S_WS+3}], s{sT2} offen{off} sc1"); vg.issue(f"kvg{p}")
            if self.o.get('rel_att', 1) == 3: self.release()
            if self.o.get('hold2') == 1: self.release(112)
            for p in range(0, 16, 2):
                vg.wait(f"kvg{p+1}")
                for h2 in range(2):
                    d = S + 6*h2 if p == 0 else U + 6*h2; src = G + 4*(p + h2)
                    for k in range(3): a(f"v_lshlrev_b32 v{d+2*k}, 16, v{src+k}\nv_and_b32 v{d+2*k+1}, 0xffff0000, v{src+k}")
                if p:
                    for k in range(0, 12, 2): a(f"v_pk_add_f32 v[{S+k}:{S+k+1}], v[{S+k}:{S+k+1}], v[{U+k}:{U+k+1}]")
                    a(f"v_bfi_b32 v3, v{G+4*p+3}, v{G+4*p+7}, 0\nv_or3_b32 v5, v5, v{G+4*p+3}, v{G+4*p+7}\nv_and_b32 v9, v9, v3")
                else:
                    a(f"v_and_b32 v9, v{G+3}, v{G+7}\nv_or_b32 v5, v{G+3}, v{G+7}")
            if self.o.get('cst'): self.stamp(25); a(f"v_writelane_b32 v252, s{sT5}, 30")
            a(f"v_cmp_ne_u32 vcc, s{sTAG}, v9\nv_cmp_ne_u32 s[68:69], s{sTAG}, v5\ns_nop 1\ns_or_b64 vcc, vcc, s[68:69]")
            a(f"s_cbranch_vccz L_kv_ok\ns_add_u32 s{sT5}, s{sT5}, 1\ns_cmp_gt_u32 s{sT5}, 64\ns_cbranch_scc0 L_kv_gather")
            a.label("L_kv_ok")
        vm.drained()
        if self.o.get('hold2') == 2: self.release(112)
        self.stamp(12)
        for k in range(0, 6, 2): a(f"v_pk_add_f32 v[{S+k}:{S+k+1}], v[{S+k}:{S+k+1}], v[{S+6+k}:{S+7+k}]")
        for k in range(3): a(f"v_cvt_pk_bf16_f32 v{X+k}, v{S+2*k}, v{S+2*k+1}")
        a(f"ds_write_b128 v249, v[{X}:{X+3}] offset:2048\ns_mov_b32 s{sSPIN}, 0")
        a.label("L_x2")
        a(f"ds_read_b128 v[{Y}:{Y+3}], v250 offset:2048\ns_add_u32 s{sSPIN}, s{sSPIN}, 1\ns_waitcnt lgkmcnt(0)")
        a(f"v_cmp_ne_u32 vcc, s{sTAG}, v{Y+3}\ns_cmp_gt_u32 s{sSPIN}, 0x40000\ns_cbranch_scc1 L_x2d\ns_cbranch_vccnz L_x2")
        a.label("L_x2d")
        if self.o.get('cst'): self.stamp(26)
        if self.o.get('hold2') == 4: self.release(112)
        W = K + 24
        for k in range(3): a(f"v_cndmask_b32 v{W+k}, v{X+k}, v{Y+k}, {upper}\nv_cndmask_b32 v{W+3+k}, v{Y+k}, v{X+k}, {upper}")
        def pq(a_, h): r = Q + 16*(a_ >> 1) + 4*(a_ & 1) + 2*h; return f"v[{r}:{r+1}]"
        NUM, DEN, R = 116, 148, 180
        a("s_nop 1")
        for k in range(2): a(f"v_mov_b32_dpp v{W+6+k}, v{W+4+k} quad_perm:[1,0,3,2] row_mask:0xf bank_mask:0xf")
        for k in range(2): a(f"v_cndmask_b32 v{S+k}, v{W+6+k}, v{W+4+k}, {even}\nv_cndmask_b32 v{S+2+k}, v{W+4+k}, v{W+6+k}, {even}")
        a("s_nop 1")
        for a_ in range(4):
            for h in range(2): a(f"v_mfma_f32_16x16x16_bf16 v[{DEN+8*a_+4*h}:{DEN+8*a_+4*h+3}], v[{S+2*h}:{S+2*h+1}], {pq(a_, h)}, 0")
        for a_ in range(4):
            for h in range(2): a(f"v_mfma_f32_16x16x16_bf16 v[{NUM+8*a_+4*h}:{NUM+8*a_+4*h+3}], v[{W+2*h}:{W+2*h+1}], {pq(a_, h)}, 0")
        for k in range(8): a(f"v_add_f32 v{R+2*k}, v{T+8}, v{DEN+4*k}")
        for k in range(8): a(f"v_rcp_f32 v{R+2*k}, v{R+2*k}")
        for a_ in range(4):
            d = V + 4*a_
            for h in range(2):
                N = NUM + 8*a_ + 4*h; r = R + 4*a_ + 2*h
                if self.o.get('opk', 0):
                    for k in (0, 2): a(f"v_pk_mul_f32 v[{N+k}:{N+k+1}], v[{N+k}:{N+k+1}], v[{r}:{r+1}] op_sel_hi:[1,0]")
                else:
                    for k in range(4): a(f"v_mul_f32 v{N+k}, v{r}, v{N+k}")
            for j in range(4): a(f"v_cvt_pk_bf16_f32 v{d+j}, v{NUM+8*a_+2*j}, v{NUM+8*a_+2*j+1}")
            a(f"buffer_store_dwordx4 v[{d}:{d+3}], v{vCO[a_]}, s[{S_WS}:{S_WS+3}], s71 offen sc1"); vm.issue("o")
            if self.o.get('onop'): a(f"s_nop {self.o['onop']}")
        if self.o.get('hold2') == 3: self.release(112)
        if self.o.get('cst'): self.stamp(27)
        vm.wait("o")
        self.flag(vm, sFL, 0)
        self.stamp(13)

    def c_main(self):
        a = self.a; vm = VM(a)
        a.label("L_C")
        if self.o['pf']: vm.issue("codepf")
        self.c_prologue(vm)
        self.stamp(1)
        a(f"s_cmp_lt_u32 s{sG}, 8\ns_cbranch_scc1 L_Catt")
        if self.o.get('short', 0):
            a(f"s_cmp_ge_u32 s{sG}, 11\ns_cselect_b32 s{sT0}, s{sC}, 0\ns_cmp_eq_u32 s{sT0}, 0\ns_cbranch_scc1 L_Cfull")
            self.c_kloop(False, True)
            a("s_branch L_Cepi")
            a.label("L_Cfull")
        self.c_kloop(False)
        a.label("L_Cepi")
        self.c_epi_mlp(vm.copy())
        a.label("L_Catt")
        a(f"s_lshl1_add_u32 s{sT0}, s{sC}, s{sR2}\ns_xor_b32 s{sT1}, s{sT0}, 1")
        a(f"s_mul_i32 s{sT2}, s{sT0}, 3072\ns_add_u32 s{sT2}, s{sT2}, {L_KV}\nv_add_u32 v249, s{sT2}, v{vL16}")
        a(f"s_mul_i32 s{sT2}, s{sT1}, 3072\ns_add_u32 s{sT2}, s{sT2}, {L_KV}\nv_add_u32 v250, s{sT2}, v{vL16}")
        a(f"s_lshl1_add_u32 s{sT0}, s{sG}, s{sC}\ns_lshl_b32 s{sKB}, s{sT0}, 15\ns_lshl_b32 s{sT0}, s{sR2}, 10\ns_add_u32 s{sKB}, s{sKB}, s{sT0}\ns_add_u32 s{sKB}, s{sKB}, {WS_KVP}")
        a(f"s_mov_b32 s{sEX}, 0x55555555\ns_mov_b32 s{sEX+1}, 0x55555555\ns_sub_u32 s66, 0, s{sR2}\ns_mov_b32 s67, s66")
        a(f"s_lshl_b32 s70, s{sRB}, 11\ns_add_u32 s70, s70, s{sKB}")
        a(f"s_lshl1_add_u32 s71, s{sG}, s{sC}\ns_lshl_b32 s71, s71, 10\ns_add_u32 s71, s71, {44*1024}\ns_add_u32 s71, s71, s{sA2B}")
        a(f"v_and_b32 v253, 15, v{vL}\nv_lshlrev_b32 v253, 11, v253\nv_and_b32 v254, 3, v{vL}\nv_lshlrev_b32 v254, 2, v254\nv_add_u32 v254, {L_FL}, v254")
        self.c_kloop(True); self.c_epi_att(vm.copy())
        a(f"s_cmp_lg_u32 s2, 0\ns_cbranch_scc1 L_cdone\ns_cmp_lg_u32 s{sW}, 0\ns_cbranch_scc1 L_cdone")
        a(f"v_lshlrev_b32 v7, 10, v{vL}")
        for k in range(4):
            a(f"s_mov_b32 s{sT0}, {WS_CSP + 65536*k}")
            self.spin_global(f"ep{k}", 7, 9, sT0, 12)
        a(f"s_mov_b32 s{sT0}, {WS_EPOCH}")
        self.flag(VM(a), sT0, 0)
        a.label("L_cdone")
        self.stamp(14)
        self.final_addr(VM(a), 11, 13)

    def final(self):
        a = self.a
        a.label("L_final")
        a(f"s_waitcnt vmcnt(0)\nv_xor_b32 v19, 16, v{vRR}\nv_mov_b32 v92, {f2u(LN2):#x}")
        for k in range(4):
            a(f"v_lshlrev_b32 v{84+2*k}, 16, v{XRES+k}\nv_and_b32 v{84+2*k+1}, 0xffff0000, v{XRES+k}")
        a("s_waitcnt lgkmcnt(0)")
        if self.o.get('tst'): self.stamp(46)
        a("s_barrier")
        if self.o.get('tst'): self.stamp(47)
        R, X = 20, 84
        for kq in range(4):
            a(f"ds_read_b128 v[{R+8*kq}:{R+8*kq+3}], v{vRR} offset:{2048*kq}\nds_read_b128 v[{R+8*kq+4}:{R+8*kq+7}], v19 offset:{2048*kq}")
        for kq in range(1, 4):
            a(f"s_waitcnt lgkmcnt({6-2*kq})")
            for k in range(0, 8, 2): a(f"v_pk_add_f32 v[{R+k}:{R+k+1}], v[{R+k}:{R+k+1}], v[{R+8*kq+k}:{R+8*kq+k+1}]")
        for k in range(0, 8, 2): a(f"v_pk_fma_f32 v[{X+k}:{X+k+1}], v[{R+k}:{R+k+1}], v[{X+8}:{X+9}], v[{X+k}:{X+k+1}] op_sel_hi:[1,0,1]")
        for k in range(0, 8, 2): a(f"v_cvt_pk_bf16_f32 v{R+k//2}, v{X+k}, v{X+k+1}")
        a(f"buffer_store_dwordx4 v[{R}:{R+3}], v{vXO}, s[{S_OUT}:{S_OUT+3}], s{sRES} offen {self.o.get('outsc', '')}")
        if self.stamps:
            if self.o.get('tst'): self.stamp(48)
            a("s_waitcnt vmcnt(0)")
            self.stamp(17); self.rstamp(19)
            a(f"v_writelane_b32 v252, s96, 0\nv_writelane_b32 v252, s96, 18")
            a(f"s_lshl_b32 s{sT0}, s2, 3\ns_add_u32 s{sT0}, s{sT0}, s{sW}\ns_lshl_b32 s{sT0}, s{sT0}, 8\ns_add_u32 s{sT0}, s{sT0}, {WS_STAMP}")
            a(f"v_lshlrev_b32 v14, 2, v{vL}\nbuffer_store_dword v252, v14, s[{S_WS}:{S_WS+3}], s{sT0} offen")

    def build(self):
        a = self.a
        a.label("L_code0")
        self.entry()
        self.l_main()
        self.c_main()
        self.final()
        if self.o.get('probe'):
            wg, w, k = self.o['probe']
            a(f"s_cmp_lg_u32 s2, {wg}\ns_cbranch_scc1 L_end\ns_cmp_lg_u32 s{sW}, {w}\ns_cbranch_scc1 L_end")
            a(f"v_readlane_b32 s{sT1}, v252, {k}\ns_nop 3\ns_add_u32 s{sT1}, s{sT1}, 2500\ns_mov_b32 s{sSPIN}, 0")
            a.label("L_hold")
            a(f"s_memrealtime s[{sSTAMP}:{sSTAMP+1}]\ns_add_u32 s{sSPIN}, s{sSPIN}, 1\ns_waitcnt lgkmcnt(0)\ns_sub_u32 s{sT0}, s{sSTAMP}, s{sT1}")
            a(f"s_cmp_gt_u32 s{sSPIN}, 100000\ns_cbranch_scc1 L_end\ns_cmp_lt_i32 s{sT0}, 0\ns_cbranch_scc1 L_hold")
        a.label("L_end")
        a("s_endpgm")
        a.label("L_codeend")
        t = single(a.text(), 256, 512, LDS_BYTES, 256, 102, 256)
        k = t.index('.amdgcn_target')
        return t[:k] + DOC + t[k:]

if __name__ == "__main__":
    out = sys.argv[1] if len(sys.argv) > 1 else "k.s"
    stamps = "stamps" in sys.argv[2:]
    opts = {}
    for kv in sys.argv[2:]:
        if "=" in kv:
            k, v = kv.split("="); opts[k] = eval(v)
    open(out, "w").write(Gen(stamps, opts).build())
```

```python
import sys, math, struct
from asmlib import *

def f2u(x): return struct.unpack("<I", struct.pack("<f", x))[0]
LOG2E = 1.4426950408889634
LN2 = 0.6931471805599453

WS_EPOCH = 0
WS_STATS = 0x1000
WS_CSP   = 0x10000
WS_KVP   = 0x60000
WS_FLAG  = 0x100000
WS_KVF   = 0x140000
WS_A2    = 0x200000
A2_RT    = 60 * 1024
WS_SIZE  = 0x1000000
WS_STAMP = 0xC00000
OOB      = 0x40000000

L_X    = 0
L_W    = 49152
L_MISC = 147456
L_KV   = L_MISC
L_SLAB = 122880
L_TAB  = L_MISC + 12288
L_CS   = L_TAB
L_BT   = L_CS + 768
L_MT   = L_BT + 768
L_RT   = L_MT + 512
L_FL   = L_RT + 512
LDS_BYTES = 163840

ROUND_OF_STEP = [15, 16, 17, 4, 5, 12, 13, 14, 0, 1, 6, 7, 8, 2, 3, 9, 10, 11]
NREG = 12
ARING = 6
def round_of(step):
    return ROUND_OF_STEP[step] if step < 18 else ROUND_OF_STEP[step - 18]

S_X, S_W, S_W2, S_WO, S_WS, S_OUT, S_B1 = 24, 28, 32, 36, 40, 44, 48
sW, sLW = 52, 53
sR2, sC = 53, 54
sRB, sG, sPH = 55, 56, 57
sCT, sRT, sROT = 58, 59, 60
sTAG = 61
sXO, sWOF, sWSTEP, sWEND = 62, 63, 64, 65
sXB, sLX, sLWB, sWD = 66, 67, 68, 69
sWO1, sWO2 = 70, 71
sB2L, sB2C, sB2C2, sA2B = 72, 73, 74, 75
sC0, sPITCH, sE = 76, 83, 84
sT0, sT1, sT2, sT3, sT4, sT5 = 77, 78, 79, 80, 81, 82
sSPIN = 85
sEX = 86
sMASK = 62
sFL, sKB = 64, 65
sSW = 88
sB2C3 = 84
sRES = 3
sSTAMP = 92
SP = list(range(4, 24)) + [48, 49, 50, 51, 88, 89, 90, 91, 100, 101]

vL, vL16 = 0, 1
vRR, vXO = 17, 18
XRES = 244
vX, vWv, vB2D, vB2A = 2, 6, 10, 12
vB2AL = [132 + k for k in range(12)]
ACC2, AR, B2R = 20, 84, 148
vAO = [1, 248, 12, 13]
vL16B = 248
vRW = 2
vXA, vWA = 2, 4
vCO = [1, 248, 16, 255]
ACC, FR = 20, 116
CT = 220

DOC = """;
;
; Workgroup ids are arranged for L2 locality only.
"""

class VM:
    def __init__(self, a): self.a = a; self.q = []
    def issue(self, tag): self.q.append(tag)
    def count(self, *tags):
        idx = max((i for i, t in enumerate(self.q) if t in tags), default=-1)
        return len(self.q) - 1 - idx if idx >= 0 else None
    def wait(self, *tags, lgkm=None):
        n = self.count(*tags)
        s = []
        if n is not None:
            assert n <= 63, n
            s.append(f"vmcnt({n})")
            self.q = self.q[len(self.q) - n:] if n else []
        if lgkm is not None: s.append(f"lgkmcnt({lgkm})")
        if s: self.a("s_waitcnt " + " ".join(s))
    def depth(self, n):
        if len(self.q) > n:
            self.a(f"s_waitcnt vmcnt({n})")
            self.q = self.q[len(self.q) - n:] if n else []
    def drained(self): self.q = []
    def copy(self):
        v = VM(self.a); v.q = list(self.q); return v

class Gen:
    def __init__(self, stamps=False, opts=None):
        self.a = Asm(); self.stamps = stamps
        self.o = dict(pf=1, hold=1, map2=0, classes=0, n0=2, g_at=6, gprio=2, spf=0, xloc=1, g3=1, pace=8, rel_mlp=1, rel_att=-2, pollwait=9, hold2=1, kstamps=False, cprio=1, w2pf=6, p0_at=27, rot=8)
        if opts: self.o.update(opts)

    def srd(self, d, p, n):
        self.a(f"s_mov_b32 s{d}, s{p}\ns_mov_b32 s{d+1}, s{p+1}\ns_mov_b32 s{d+2}, {n}\ns_mov_b32 s{d+3}, 0x20000")
    def stamp(self, idx):
        if not self.stamps: return
        self.rstamp(idx)
        if self.o.get('cyc') and idx in self.o['cyc']:
            self.a(f"s_memtime s[{sSTAMP}:{sSTAMP+1}]\ns_waitcnt lgkmcnt(0)\nv_writelane_b32 v252, s{sSTAMP}, {idx + 40}")
    def rstamp(self, idx):
        if not self.stamps: return
        if 'only' in self.o and idx not in self.o['only']: return
        self.a(f"s_memrealtime s[{sSTAMP}:{sSTAMP+1}]\ns_waitcnt lgkmcnt(0)\nv_writelane_b32 v252, s{sSTAMP}, {idx}")
    def al(self):
        if self.o.get('align', 1): self.a(".p2align 3")
    def lane0(self, v):
        self.a(f"v_cmp_eq_u32 vcc, 0, v{vL}\nv_mov_b32 v{v}, {OOB}\ns_nop 0\nv_cndmask_b32 v{v}, v{v}, 0, vcc")
    def tag(self):
        self.a(f"s_mul_i32 s{sTAG}, s{sTAG}, 0x9e3779b1\ns_add_u32 s{sTAG}, s{sTAG}, 0x7f4a7c15")
    def decode2(self):
        a = self.a
        if self.o['map2'] == 0:
            a(f"s_and_b32 s{sT0}, s2, 7\ns_lshr_b32 s{sT1}, s2, 3\ns_and_b32 s{sCT}, s{sT1}, 7\ns_lshr_b32 s{sT1}, s{sT1}, 3")
            if self.o.get('ctmap', 1):
                a(f"s_xor_b32 s{sT1}, s{sT1}, 2\ns_and_b32 s{sROT}, s{sCT}, 1\ns_lshl1_add_u32 s{sROT}, s{sT1}, s{sROT}\ns_lshr_b32 s{sT1}, s{sCT}, 1\ns_mov_b32 s{sCT}, s{sROT}")
            if self.o['xloc']: a(f"s_lshr_b32 s{sRT}, s{sT0}, 1\ns_and_b32 s{sT0}, s{sT0}, 1\ns_lshl2_add_u32 s{sT0}, s{sT0}, s{sRT}")
            a(f"s_lshl2_add_u32 s{sRT}, s{sT0}, s{sT1}\ns_lshl1_add_u32 s{sROT}, s{sT1}, s{sCT}")
        else:
            a(f"s_and_b32 s{sT0}, s2, 1\ns_bfe_u32 s{sT1}, s2, 0x20003\ns_lshl2_add_u32 s{sCT}, s{sT0}, s{sT1}")
            a(f"s_bfe_u32 s{sT0}, s2, 0x20001\ns_lshr_b32 s{sROT}, s2, 5\ns_lshl3_add_u32 s{sRT}, s{sT0}, s{sROT}\ns_lshl1_add_u32 s{sROT}, s{sT1}, s{sROT}")
    def final_addr(self, vm, t0, t1):
        a = self.a
        a(f"v_lshrrev_b32 v{t0}, 3, v{vL}\nv_and_b32 v{t1}, 7, v{vL}\nv_lshlrev_b32 v{vXO}, 10, v{t0}\nv_lshl_add_u32 v{vXO}, v{t1}, 4, v{vXO}")
        a(f"s_lshl3_add_u32 s{sT0}, s{sRT}, s{sW}\ns_lshl_b32 s{sT0}, s{sT0}, 13\ns_lshl_b32 s{sT1}, s{sCT}, 7\ns_add_u32 s{sRES}, s{sT0}, s{sT1}")
        if vm is not None: self.xres(vm)
        a(f"v_lshlrev_b32 v{t1}, 1, v{t1}\nv_xor_b32 v{t1}, v{t1}, v{t0}\nv_lshlrev_b32 v{t1}, 4, v{t1}\nv_lshl_add_u32 v{vRR}, v{t0}, 8, v{t1}")
        a(f"s_lshl_b32 s{sT0}, s{sW}, 13\nv_add_u32 v{vRR}, s{sT0}, v{vRR}")

    def xres(self, vm):
        self.a(f"buffer_load_dwordx4 v[{XRES}:{XRES+3}], v{vXO}, s[{S_X}:{S_X+3}], s{sRES} offen"); vm.issue("xres")
    def spin_global(self, name, vaddr, vtmp, soff, imm=0, srd=S_WS):
        a = self.a
        off = f" offset:{imm}" if imm else ""
        a(f"s_mov_b32 s{sSPIN}, 0")
        a.label(f"L_sp{name}")
        a(f"buffer_load_dword v{vtmp}, v{vaddr}, s[{srd}:{srd+3}], s{soff} offen{off} sc1\ns_add_u32 s{sSPIN}, s{sSPIN}, 1\ns_waitcnt vmcnt(0)")
        a(f"v_cmp_ne_u32 vcc, s{sTAG}, v{vtmp}\ns_cmp_gt_u32 s{sSPIN}, 0x8000\ns_cbranch_scc1 L_sd{name}\ns_cbranch_vccz L_sd{name}\ns_sleep {self.o.get('sleep', 2)}\ns_branch L_sp{name}")
        a.label(f"L_sd{name}")
    def spin_lds(self, name, vaddr, vtmp, off):
        a = self.a; sleep = self.o.get('lsleep', {}).get(name[:4], 0)
        a(f"s_mov_b32 s{sSPIN}, 0")
        a.label(f"L_sp{name}")
        a(f"ds_read_b32 v{vtmp}, v{vaddr} offset:{off}\ns_add_u32 s{sSPIN}, s{sSPIN}, 1\ns_waitcnt lgkmcnt(0)")
        a(f"v_cmp_ne_u32 vcc, 1, v{vtmp}\ns_cmp_gt_u32 s{sSPIN}, 0x40000\ns_cbranch_scc1 L_sd{name}")
        if sleep: a(f"s_cbranch_vccz L_sd{name}\ns_sleep {sleep}\ns_branch L_sp{name}")
        else: a(f"s_cbranch_vccnz L_sp{name}")
        a.label(f"L_sd{name}")

    def entry(self):
        a = self.a
        a("s_cmp_ge_u32 s2, 256\ns_cbranch_scc1 L_end")
        a("s_load_dwordx16 s[4:19], s[0:1], 0\ns_load_dwordx4 s[20:23], s[0:1], 64")
        if self.o['pf']:
            a(f"s_getpc_b64 s[{sT0+1}:{sT0+2}]\ns_bfe_u32 s{sT0}, s2, 0x30003\ns_mul_i32 s{sT0}, s{sT0}, 5120\nv_lshlrev_b32 v2, 4, v0\nv_min_u32 v2, 4992, v2\nv_add_u32 v2, s{sT0}, v2")
            a.label("L_pc")
            a(f"v_min_u32 v2, L_codeend-L_pc, v2\ns_mov_b32 exec_lo, 0x01010101\ns_mov_b32 exec_hi, 0x01010101\nglobal_load_dword v251, v2, s[{sT0+1}:{sT0+2}]\ns_mov_b64 exec, -1".replace("0x01010101", self.o.get('pfmask', "0x01010101")))
        if self.stamps:
            a("v_mov_b32 v252, 0\ns_memrealtime s[96:97]")
        a(f"v_lshrrev_b32 v1, 6, v0\nv_and_b32 v{vL}, 63, v0\nv_readfirstlane_b32 s{sW}, v1")
        a(f"s_bfe_u32 s{sT0}, s2, 0x30003\ns_and_b32 s{sT1}, s2, 1\ns_lshl3_add_u32 s{sRB}, s{sT1}, s{sT0}")
        a(f"s_lshr_b32 s{sT1}, s2, 6\ns_bfe_u32 s{sT2}, s2, 0x20001")
        if self.o['g3']: a(f"s_xor_b32 s{sT2}, s{sT2}, 3")
        a(f"s_lshl2_add_u32 s{sG}, s{sT1}, s{sT2}")
        a(f"s_sub_u32 s{sT0}, s{sG}, 8\ns_min_u32 s{sT1}, s{sT0}, 3\ns_mul_i32 s{sC0}, s{sT0}, 5\ns_add_u32 s{sC0}, s{sC0}, s{sT1}")
        a(f"v_lshlrev_b32 v{vL16}, 4, v{vL}")
        a(f"s_cmp_lt_u32 s{sW}, 4\ns_cbranch_scc1 L_C")

    def l_stage(self, vm, t, part=None):
        a = self.a; slot = t % 3
        def xpart():
            a(f"s_add_u32 m0, s{sLX}, {L_X + slot*16384}\ns_lshl_b32 s{sXO}, s{sPH}, 7\ns_add_u32 s{sXO}, s{sXO}, s{sXB}")
            for ii in range(4):
                off = f" offset:{1024*ii}" if ii else ""
                a(f"buffer_load_dwordx4 v{vX+ii}, s[{S_X}:{S_X+3}], s{sXO} offen{off} lds"); vm.issue(f"st{t}")
        if t > 0 and part != 'w': xpart()
        if part == 'x': return
        a(f"s_add_u32 m0, s{sLWB}, {slot*24576}\ns_sub_u32 s{sWO1}, s{sWOF}, s{sWD}\ns_sub_u32 s{sWO2}, s{sWO1}, s{sWD}")
        for rg in range(2):
            if rg: a(f"s_add_u32 m0, s{sLWB}, {slot*24576 + 3072}\ns_nop 0")
            a(f"buffer_load_dwordx4 v{vWv+2*rg}, s[{S_W}:{S_W+3}], s{sWOF} offen lds"); vm.issue(f"st{t}")
            a(f"buffer_load_dwordx4 v{vWv+2*rg}, s[{S_W}:{S_W+3}], s{sWO1} offen offset:1024 lds"); vm.issue(f"st{t}")
            a(f"buffer_load_dwordx4 v{vWv+2*rg+1}, s[{S_W}:{S_W+3}], s{sWO2} offen offset:2048 lds"); vm.issue(f"st{t}" if t or not rg else "st0w")
        if t == 0: xpart()
        if t < 7:
            a(f"s_add_u32 s{sWOF}, s{sWOF}, s{sWSTEP}\ns_add_u32 s{sPH}, s{sPH}, 1\ns_and_b32 s{sPH}, s{sPH}, 7\ns_cselect_b32 s{sT0}, 0, s{sWEND}\ns_sub_u32 s{sWOF}, s{sWOF}, s{sT0}")

    def l_prologue(self, vm):
        a = self.a; T = ACC2
        pm = self.o.get('phmode', 0)
        if pm == 0: a(f"s_bfe_u32 s{sT0}, s2, 0x30003\ns_lshr_b32 s{sT1}, s2, 6\ns_lshl1_add_u32 s{sPH}, s{sT1}, s{sT0}\ns_and_b32 s{sPH}, s{sPH}, 7")
        elif pm == 1: a(f"s_bfe_u32 s{sT0}, s2, 0x30003\ns_bfe_u32 s{sT1}, s2, 0x10006\ns_lshl2_add_u32 s{sPH}, s{sT1}, s{sT0}\ns_and_b32 s{sPH}, s{sPH}, 7")
        elif pm in (2, 3):
            a(f"s_bfe_u32 s{sT0}, s2, 0x30003\ns_bfe_u32 s{sT1}, s2, 0x10006\ns_lshl2_add_u32 s{sPH}, s{sT1}, s{sT0}\ns_lshr_b32 s{sT1}, s2, 7")
            if pm == 3: a(f"s_xor_b32 s{sT1}, s{sT1}, 1")
            a(f"s_add_u32 s{sPH}, s{sPH}, s{sT1}\ns_and_b32 s{sPH}, s{sPH}, 7")
        if self.o.get('ph3'):
            a(f"s_cmp_eq_u32 s{sG}, 3\ns_cselect_b32 s{sT0}, {self.o['ph3']}, 0\ns_add_u32 s{sPH}, s{sPH}, s{sT0}\ns_and_b32 s{sPH}, s{sPH}, 7")
        a(f"s_sub_u32 s{sLW}, s{sW}, 4\ns_movk_i32 s{sPITCH}, 2752\ns_cmp_lt_u32 s{sG}, 8\ns_cselect_b32 s{sPITCH}, 3072, s{sPITCH}")
        a(f"s_cselect_b32 s{sWD}, 0, 896\ns_cselect_b32 s{sT3}, 0, 2048")
        a(f"s_lshl_b32 s{sT0}, s{sG}, 7\ns_lshl_b32 s{sT1}, s{sC0}, 6\ns_cmp_lt_u32 s{sG}, 8\ns_cselect_b32 s{sT5}, s{sT0}, s{sT1}\ns_add_u32 s{sT5}, s{sT5}, s{sT3}")
        a(f"v_lshrrev_b32 v{T}, 4, v{vL}\nv_and_b32 v{T+1}, 7, v{vL}\nv_xor_b32 v{T}, v{T}, v{T+1}\nv_lshlrev_b32 v{T}, 4, v{T}\nv_lshrrev_b32 v{T+2}, 3, v{vL}")
        a(f"v_lshl_add_u32 v{vX}, v{T+2}, 10, v{T}\nv_xor_b32 v{vX+1}, 64, v{vX}\nv_add_u32 v{vX+1}, 7168, v{vX+1}\nv_add_u32 v{vX+2}, 14336, v{vX}\nv_add_u32 v{vX+3}, 14336, v{vX+1}")
        a(f"v_lshrrev_b32 v{T}, 2, v{vL}\nv_and_b32 v{T}, 4, v{T}\nv_xor_b32 v{T}, v{T}, v{T+1}\nv_lshlrev_b32 v{T}, 4, v{T}")
        a(f"s_cmp_ge_u32 s{sG}, 11\ns_cselect_b32 s{sT4}, 64, 128\nv_mad_u32_u24 v{vWv}, v{T+2}, s{sPITCH}, v{T}\nv_cmp_gt_u32 vcc, s{sT4}, v{T}\nv_mov_b32 v{vWv+1}, {OOB}")
        a(f"s_lshl_b32 s{sT0}, s{sPITCH}, 3\nv_cndmask_b32 v{vWv+1}, v{vWv+1}, v{vWv}, vcc\nv_xor_b32 v{vWv+2}, 32, v{vWv}\nv_xor_b32 v{vWv+3}, 32, v{vWv+1}\nv_add_u32 v{vWv+2}, s{sT0}, v{vWv+2}\nv_add_u32 v{vWv+3}, s{sT0}, v{vWv+3}")
        a(f"s_lshl2_add_u32 s{sXB}, s{sRB}, s{sLW}\ns_lshl_b32 s{sXB}, s{sXB}, 15\ns_lshl_b32 s{sWSTEP}, s{sPITCH}, 6\ns_lshl_b32 s{sWEND}, s{sPITCH}, 9")
        a(f"s_lshl2_add_u32 s{sT0}, s{sPH}, s{sLW}\ns_lshl_b32 s{sT0}, s{sT0}, 4\ns_mul_i32 s{sWOF}, s{sT0}, s{sPITCH}\ns_add_u32 s{sWOF}, s{sWOF}, s{sT5}")
        a(f"s_lshl_b32 s{sLX}, s{sLW}, 12\ns_mul_i32 s{sLWB}, s{sLW}, 6144\ns_add_u32 s{sLWB}, s{sLWB}, {L_W}")
        a(f"s_mov_b32 s{S_X+2}, 2097152\ns_mov_b32 s{S_X+3}, 0x20000\ns_add_u32 s{S_W+2}, s{sWEND}, s{sT3}\ns_mov_b32 s{S_W+3}, 0x20000")
        a("s_waitcnt lgkmcnt(0)")
        self.stamp(1)
        a(f"s_load_dword s{sTAG}, s[22:23], {WS_EPOCH}")
        a(f"s_mov_b32 s{S_X}, s4\ns_mov_b32 s{S_X+1}, s5\ns_sub_u32 s12, s12, 2048\ns_subb_u32 s13, s13, 0")
        a(f"s_cmp_lt_u32 s{sG}, 8\ns_cselect_b32 s{S_W}, s6, s12\ns_cselect_b32 s{S_W+1}, s7, s13")
        ml = self.o.get('late')
        if ml:
            a(f"s_cmp_lt_u32 s{sG}, 8\ns_cbranch_scc{0 if ml == 'M' else 1} L_st0a")
            self.l_stage(vm.copy(), 0)
            a.label("L_st0a")
        else: self.l_stage(vm, 0)
        if self.o.get('pst'): self.stamp(40)
        a(f"v_lshrrev_b32 v{T}, 4, v{vL}\nv_lshlrev_b32 v{T}, 1, v{T}\nv_xor_b32 v{T}, v{T}, v{T+1}\nv_lshlrev_b32 v{T}, 4, v{T}\nv_lshl_add_u32 v{vB2D}, v{T+2}, 10, v{T}\nv_add_u32 v{vB2D+1}, 7168, v{vB2D}")
        self.srd(S_WS, 22, WS_SIZE); self.srd(S_W2, 16, 1376*1024); self.srd(S_WO, 8, 512*1024); self.srd(S_OUT, 18, 2097152)
        self.decode2()
        a(f"v_bfe_u32 v{T}, v{vL}, 2, 2\nv_lshrrev_b32 v{T+1}, 1, v{T}\nv_lshlrev_b32 v{T}, 7, v{T}\nv_lshl_add_u32 v{T}, v{T+1}, 6, v{T}")
        a(f"v_bfe_u32 v{T+1}, v{vL}, 4, 1\nv_lshl_add_u32 v{T}, v{T+1}, 5, v{T}\nv_and_b32 v{T+1}, 3, v{vL}\nv_lshl_add_u32 v{T+14}, v{T+1}, 3, v{T}\nv_lshrrev_b32 v{T+15}, 5, v{vL}")
        a(f"s_lshl_b32 s{sB2L}, s{sLW}, 11\nv_lshrrev_b32 v{T}, 2, v{vL}\nv_lshlrev_b32 v{T}, 7, v{T}\nv_lshl_add_u32 v{T}, v{T+1}, 3, v{T}\nv_bfe_u32 v{T+1}, v{vL}, 3, 2\nv_lshl_add_u32 v{T}, v{T+1}, 5, v{T}\nv_add_u32 v{vB2AL[0]}, s{sB2L}, v{T}")
        for j in range(1, 4): a(f"v_xor_b32 v{vB2AL[j]}, {32*j}, v{vB2AL[0]}")
        for k in range(4, 12): a(f"v_add_u32 v{vB2AL[k]}, 65536, v{vB2AL[k-4]}")
        a(f"v_and_b32 v{T}, 31, v{vL}\nv_lshlrev_b32 v{T}, 2, v{T}\nv_add_u32 v{T}, {L_FL}, v{T}\nv_mov_b32 v{T+1}, 0\nds_write_b32 v{T}, v{T+1}")

    def l_colsum_pre(self):
        a = self.a; T = ACC2; S = T + 16
        a(f"s_mul_i32 s{sT0}, s{sLW}, 6144\ns_add_u32 s{sT0}, s{sT0}, {L_W}\nv_mul_u32_u24 v{T}, 3072, v{T+15}\nv_add3_u32 v{T}, v{T}, v{T+14}, s{sT0}")
        a(f"v_lshlrev_b32 v{T+1}, 5, v{T+15}\nv_xor_b32 v{T}, v{T}, v{T+1}\nv_xor_b32 v{T+1}, 64, v{T}")
        a(f"s_mov_b32 s{sT5}, 0x3f803f80")
        for k in range(6): a(f"v_mov_b32 v{S+k}, 0")
        a(f"s_mul_i32 s{sT1}, s{sLW}, 1536\ns_add_u32 s{sT1}, s{sT1}, {L_SLAB}\nv_and_b32 v{T+2}, 31, v{vL}\nv_lshl_add_u32 v{T+2}, v{T+2}, 2, s{sT1}\nv_mul_u32_u24 v{T+3}, 768, v{T+15}\nv_add_u32 v{T+2}, v{T+2}, v{T+3}")
    def l_colsum(self):
        a = self.a; T = ACC2; F = AR; S = T + 16
        for u in range(3):
            for c in range(2):
                for rd in range(2):
                    r = F + 8*u + 4*c + 2*rd
                    a(f"ds_read_b64_tr_b16 v[{r}:{r+1}], v{T+c} offset:{1024*u + 512*rd}")
        if self.o.get('cslate', 0): return
        for half in range(2):
            a(f"s_waitcnt lgkmcnt({6 - 6*half})")
            for k in range(4):
                for uc in range(3*half, 3*half + 3): a(f"v_dot2c_f32_bf16 v{S+uc}, s{sT5}, v{F+4*uc+k}")
        a("s_nop 2")
        for uc in range(6): a(f"ds_write_b32 v{T+2}, v{S+uc} offset:{128*uc}")

    def l_colsum_part(self, half):
        a = self.a; T = ACC2; F = AR; S = T + 16; H = T + 4
        ucs = range(3*half, 3*half + 3)
        for uc in ucs: a(f"v_lshlrev_b32 v{S+uc}, 16, v{F+4*uc}\nv_and_b32 v{H+uc%3}, 0xffff0000, v{F+4*uc}")
        for k in range(1, 4):
            for uc in ucs: a(f"v_lshlrev_b32 v{H+3+uc%3}, 16, v{F+4*uc+k}\nv_and_b32 v{F+4*uc+k}, 0xffff0000, v{F+4*uc+k}")
            for uc in ucs: a(f"v_add_f32 v{S+uc}, v{S+uc}, v{H+3+uc%3}\nv_add_f32 v{H+uc%3}, v{H+uc%3}, v{F+4*uc+k}")
        for uc in ucs: a(f"v_add_f32 v{S+uc}, v{S+uc}, v{H+uc%3}")
        for uc in ucs: a(f"ds_write_b32 v{T+2}, v{S+uc} offset:{128*uc}")

    def wave_sum2(self, v0, v1, t0, t1):
        a = self.a
        for m in ("quad_perm:[1,0,3,2]", "quad_perm:[2,3,0,1]", "row_half_mirror", "row_mirror"):
            a(f"s_nop 0\nv_add_f32_dpp v{v0}, v{v0}, v{v0} {m} row_mask:0xf bank_mask:0xf\nv_add_f32_dpp v{v1}, v{v1}, v{v1} {m} row_mask:0xf bank_mask:0xf")
        for op in ("v_permlane16_swap_b32", "v_permlane32_swap_b32"):
            a(f"v_mov_b32 v{t0}, v{v0}\nv_mov_b32 v{t1}, v{v1}\ns_nop 1\n{op} v{t0}, v{v0}\n{op} v{t1}, v{v1}\ns_nop 0\nv_add_f32 v{v0}, v{v0}, v{t0}\nv_add_f32 v{v1}, v{v1}, v{t1}")

    def c_stats(self, vm):
        a = self.a; T = 160; u = 116
        vm.wait("xrow", lgkm=0)
        if self.o.get('pst'): self.stamp(42)
        self.tag()
        for r in range(2):
            for k in range(4):
                a(f"v_lshlrev_b32 v{u+8*r+2*k}, 16, v{T+4+4*r+k}\nv_and_b32 v{u+8*r+2*k+1}, 0xffff0000, v{T+4+4*r+k}")
        s0, s1 = u + 16, u + 17
        for r, s in ((0, s0), (1, s1)): a(f"v_add_f32 v{s}, v{u+8*r}, v{u+8*r+1}")
        for k in range(2, 8):
            for r, s in ((0, s0), (1, s1)): a(f"v_add_f32 v{s}, v{s}, v{u+8*r+k}")
        self.wave_sum2(s0, s1, u + 40, u + 41)
        G0, G1 = u + 20, u + 24
        a(f"v_mul_f32 v{G0}, {f2u(1/512.):#x}, v{s0}\nv_mul_f32 v{G1}, {f2u(1/512.):#x}, v{s1}")
        for k in range(8):
            a(f"v_sub_f32 v{u+k}, v{u+k}, v{G0}\nv_sub_f32 v{u+8+k}, v{u+8+k}, v{G1}")
        a(f"v_mul_f32 v{s0}, v{u}, v{u}\nv_mul_f32 v{s1}, v{u+8}, v{u+8}")
        for k in range(1, 8): a(f"v_fmac_f32 v{s0}, v{u+k}, v{u+k}\nv_fmac_f32 v{s1}, v{u+8+k}, v{u+8+k}")
        self.wave_sum2(s0, s1, u + 40, u + 41)
        a(f"v_mov_b32 v{u}, {f2u(1e-5):#x}\nv_mov_b32 v{u+1}, {f2u(1e-5):#x}\nv_fmac_f32 v{u}, {f2u(1/512.):#x}, v{s0}\nv_fmac_f32 v{u+1}, {f2u(1/512.):#x}, v{s1}")
        a(f"v_rsq_f32 v{u}, v{u}\nv_rsq_f32 v{u+1}, v{u+1}\nv_mov_b32 v{G0+2}, 0\nv_mov_b32 v{G0+3}, s{sTAG}\nv_mov_b32 v{G1+2}, 0\nv_mov_b32 v{G1+3}, s{sTAG}")
        a(f"v_mul_f32 v{G0+1}, {f2u(LOG2E):#x}, v{u}\nv_mul_f32 v{G1+1}, {f2u(LOG2E):#x}, v{u+1}")
        self.lane0(u + 2)
        a(f"buffer_store_dwordx4 v[{G0}:{G0+3}], v{u+2}, s[{S_WS}:{S_WS+3}], s{sE} offen sc1"); vm.issue("statst")
        a(f"buffer_store_dwordx4 v[{G1}:{G1+3}], v{u+2}, s[{S_WS}:{S_WS+3}], s{sE} offen offset:16 sc1"); vm.issue("statst")
        if self.o.get('pst'): self.stamp(43)
        vm.wait("bias")
        a(f"v_lshlrev_b32 v{u+3}, 16, v{T+12}\nv_mul_f32 v{u+3}, {f2u(LOG2E):#x}, v{u+3}\nv_lshlrev_b32 v{u+4}, 2, v{T+13}\nv_add_u32 v{u+4}, {L_BT}, v{u+4}")
        a(f"s_cmp_eq_u32 s{sW}, 3\ns_cbranch_scc1 L_nobt\nds_write_b32 v{u+4}, v{u+3}")
        a.label("L_nobt")

    def l_cspub(self, vm, vi):
        a = self.a; T = ACC2 + 24; U = B2R
        a(f"s_mov_b32 s{sT0}, {OOB}\ns_cmp_lg_u32 s{sLW}, 0\ns_cbranch_scc1 L_nocsp{vi}")
        a(f"v_lshlrev_b32 v{T}, 2, v{vL}\nv_add_u32 v{T}, {L_SLAB}, v{T}")
        for k in range(0, 24, 2): a(f"ds_read2st64_b32 v[{U+k}:{U+k+1}], v{T} offset0:{k} offset1:{k+1}")
        a(f"v_mov_b32 v{T+3}, s{sTAG}")
        a(f"s_lshl4_add_u32 s{sT0}, s{sG}, s{sRB}\ns_lshl_b32 s{sT0}, s{sT0}, 10\ns_add_u32 s{sT0}, s{sT0}, {WS_CSP}")
        a("s_waitcnt lgkmcnt(0)")
        for sl in range(1, 7):
            for u in range(3): a(f"v_add_f32 v{U+u}, v{U+u}, v{U+3*sl+u}")
        for u in range(3): a(f"v_add_f32 v{T+u}, v{U+u}, v{U+21+u}")
        a.label(f"L_nocsp{vi}")
        a(f"buffer_store_dwordx4 v[{T}:{T+3}], v{vL16}, s[{S_WS}:{S_WS+3}], s{sT0} offen sc1"); vm.issue("cspst")

    def l_steptable(self):
        a = self.a
        a("s_waitcnt lgkmcnt(0)")
        a(f"s_mul_i32 s{sT0}, s{sROT}, 3\ns_lshr_b32 s{sT0}, s{sT0}, 1\ns_sub_u32 s{sT1}, s{sT0}, 11\ns_cmp_ge_u32 s{sT0}, 11\ns_cselect_b32 s{sT0}, s{sT1}, s{sT0}")
        a(f"s_mul_i32 s{sT3}, s{sLW}, 11\ns_add_u32 s{sT4}, s{sT3}, 11\ns_add_u32 s{sT0}, s{sT0}, s{sT3}")
        for i in range(11):
            a(f"s_lshl_b32 s{SP[i]}, s{sT0}, 10\ns_cmp_ge_u32 s{sT0}, 43\ns_cselect_b32 s{SP[i]}, {WS_SIZE}, s{SP[i]}")
            if i < 10: a(f"s_add_u32 s{sT0}, s{sT0}, 1\ns_cmp_eq_u32 s{sT0}, s{sT4}\ns_cselect_b32 s{sT0}, s{sT3}, s{sT0}")
        a(f"s_lshl_b32 s{sT3}, s{sLW}, 2\ns_add_u32 s{sT3}, s{sT3}, 44")
        for j in range(4):
            a(f"s_add_u32 s{sT0}, s{sROT}, {j}\ns_and_b32 s{sT0}, s{sT0}, 3\ns_add_u32 s{sT0}, s{sT0}, s{sT3}\ns_lshl_b32 s{SP[11+j]}, s{sT0}, 10")
        a(f"s_lshl_b32 s{SP[15]}, s{sCT}, 7\ns_add_u32 s{SP[16]}, s{SP[15]}, 16384\ns_sub_u32 s{SP[17]}, s{SP[15]}, {44*32768}\ns_add_u32 s{SP[18]}, s{SP[17]}, 16384")
        a(f"s_mul_i32 s{sA2B}, s{sRT}, {4*A2_RT}\ns_add_u32 s{sA2B}, s{sA2B}, {WS_A2}")
        for k in range(1, 4): a(f"v_add_u32 v{vAO[k]}, {k*A2_RT}, v{vL16}")

    def l_gather_addr(self):
        a = self.a; T = ACC2 + 40; sT4, sT5 = 86, 87
        a(f"s_lshl2_add_u32 s{sT4}, s{sRB}, s{sLW}\ns_lshl_b32 s{sT4}, s{sT4}, 9\ns_add_u32 s{sT4}, s{sT4}, {WS_STATS}")
        a(f"s_and_b32 s{sT5}, s{sRB}, 8\ns_lshl4_add_u32 s{sT5}, s{sG}, s{sT5}\ns_lshl2_add_u32 s{sT5}, s{sT5}, s{sLW}\ns_lshl_b32 s{sT5}, s{sT5}, 8\ns_add_u32 s{sT5}, s{sT5}, {WS_CSP}")
        a(f"v_and_b32 v{T}, 0x1f0, v{vL16}\nv_lshrrev_b32 v{T+1}, 4, v{vL}\nv_lshlrev_b32 v{T+1}, 10, v{T+1}\nv_and_b32 v{T+2}, 0xf0, v{vL16}\nv_or_b32 v{T+1}, v{T+1}, v{T+2}\nv_add_u32 v{T+2}, 4096, v{T+1}")
    def l_gather_issue(self, vm):
        a = self.a; T = ACC2 + 40; G = AR; sT4, sT5 = 86, 87
        a(f"buffer_load_dwordx4 v[{G}:{G+3}], v{T}, s[{S_WS}:{S_WS+3}], s{sT4} offen sc1"); vm.issue("gath")
        a(f"buffer_load_dwordx4 v[{G+4}:{G+7}], v{T+1}, s[{S_WS}:{S_WS+3}], s{sT5} offen sc1"); vm.issue("gath")
        a(f"buffer_load_dwordx4 v[{G+8}:{G+11}], v{T+2}, s[{S_WS}:{S_WS+3}], s{sT5} offen sc1"); vm.issue("gath")
    def l_gather_check(self, vm, vi):
        a = self.a; T = ACC2; G = AR
        vm.wait("gath")
        a(f"s_mov_b32 s{sSPIN}, 0")
        a.label(f"L_gchk{vi}")
        a(f"v_cmp_ne_u32 vcc, s{sTAG}, v{G+3}\nv_cmp_ne_u32 s[70:71], s{sTAG}, v{G+7}\ns_nop 1\ns_or_b64 s[70:71], vcc, s[70:71]")
        a(f"v_cmp_ne_u32 vcc, s{sTAG}, v{G+11}\ns_nop 1\ns_or_b64 vcc, vcc, s[70:71]")
        a(f"s_cbranch_vccz L_gok{vi}")
        a(f"s_add_u32 s{sSPIN}, s{sSPIN}, 1\ns_cmp_gt_u32 s{sSPIN}, 0x8000\ns_cbranch_scc1 L_gok{vi}")
        self.l_gather_issue(VM(a))
        a(f"s_waitcnt vmcnt(0)\ns_branch L_gchk{vi}")
        a.label(f"L_gok{vi}")
        a(f"s_lshl_b32 s{sT0}, s{sLW}, 7\ns_add_u32 s{sT0}, s{sT0}, {L_MT}\nv_and_b32 v{T}, 31, v{vL}\nv_lshl_add_u32 v{T}, v{T}, 2, s{sT0}")
        a(f"ds_write_b32 v{T}, v{G}\nds_write_b32 v{T}, v{G+1} offset:512")
    def l_w2touch(self, vm):
        a = self.a; T = ACC2 + 8
        a(f"s_lshl2_add_u32 s{sT0}, s2, s{sLW}\ns_lshl_b32 s{sT1}, s{sT0}, 9\ns_mul_i32 s{sT0}, s{sT0}, 1408\nv_lshlrev_b32 v{T}, 7, v{vL}\ns_mov_b64 exec, 0x7ff")
        a(f"buffer_load_dword v{T+1}, v{T}, s[{S_W2}:{S_W2+3}], s{sT0} offen\ns_mov_b64 exec, 0xf"); vm.issue("w2t")
        a(f"buffer_load_dword v{T+2}, v{T}, s[{S_WO}:{S_WO+3}], s{sT1} offen\ns_mov_b64 exec, -1"); vm.issue("w2t")
    def l_gather_cs(self):
        a = self.a; T = ACC2; G = AR
        for k in range(3): a(f"v_add_f32 v{G+4+k}, v{G+4+k}, v{G+8+k}")
        for op in ("v_permlane16_swap_b32", "v_permlane32_swap_b32"):
            for k in range(3): a(f"v_mov_b32 v{G+8+k}, v{G+4+k}")
            a("s_nop 0")
            for k in range(3): a(f"{op} v{G+8+k}, v{G+4+k}")
            a("s_nop 0")
            for k in range(3): a(f"v_add_f32 v{G+4+k}, v{G+4+k}, v{G+8+k}")
        a(f"s_lshl_b32 s{sT0}, s{sLW}, 6\ns_add_u32 s{sT0}, s{sT0}, {L_CS}\nv_lshl_add_u32 v{T+1}, v{vL}, 2, s{sT0}\ns_mov_b64 exec, 0xffff")
        a(f"ds_write2st64_b32 v{T+1}, v{G+4}, v{G+5} offset1:1\nds_write_b32 v{T+1}, v{G+6} offset:512\ns_mov_b64 exec, -1")

    def b2_dma(self, vm, step, pace=True):
        a = self.a
        if pace: vm.depth((self.o['pace'] if pace is True else pace) - 2)
        srd, base = (S_W2, SP[15 + (step & 1)]) if step < 22 else (S_WO, SP[17 + (step & 1)])
        a(f"s_lshl_b32 s{sT0}, s{SP[step // 2]}, 5\ns_add_u32 m0, s{sB2L}, {8192*round_of(step)}\ns_add_u32 s{sT0}, s{sT0}, s{base}")
        a(f"buffer_load_dwordx4 v{vB2D}, s[{srd}:{srd+3}], s{sT0} offen lds"); vm.issue(f"b2_{step}")
        a(f"buffer_load_dwordx4 v{vB2D+1}, s[{srd}:{srd+3}], s{sT0} offen offset:1024 lds"); vm.issue(f"b2_{step}")
        if self.o.get('b2stamps'): self.stamp(20 + step)
    def b2_read_list(self, s, dst):
        rnd = round_of(s); hi, lo = rnd // 8, rnd % 8
        return [f"ds_read_b64_tr_b16 v[{dst+4*j+2*(s&1)}:{dst+4*j+2*(s&1)+1}], v{vB2AL[4*hi + j]} offset:{8192*lo}" for j in range(4)]
    def b2_reads(self, s, dst):
        for r in self.b2_read_list(s, dst): self.a(r)

    def l_main(self):
        a = self.a; vm = VM(a); T = ACC2
        if self.o['pf']: vm.issue("codepf")
        self.l_prologue(vm)
        if self.o['spf']:
            a(f"s_lshr_b32 s{sT0}, s2, 3\ns_lshl2_add_u32 s{sT0}, s{sT0}, s{sLW}\ns_mul_i32 s{sT0}, s{sT0}, {64*self.o['spf']}\ns_add_u32 s94, s16, s{sT0}\ns_addc_u32 s95, s17, 0\ns_and_b32 s84, s2, 7")
        if self.o.get('stouch'):
            a(f"s_lshl2_add_u32 s{sT0}, s2, s{sLW}\ns_mul_i32 s{sT1}, s{sT0}, 1376\ns_and_b32 s{sT1}, s{sT1}, 0xffffffc0\ns_add_u32 s94, s16, s{sT1}\ns_addc_u32 s95, s17, 0")
            a(f"s_lshl_b32 s{sT0}, s{sT0}, 9\ns_add_u32 s98, s8, s{sT0}\ns_addc_u32 s99, s9, 0")
        self.l_steptable()
        if self.o.get('late') and self.o.get('late_at', 1) == 0:
            a(f"s_cmp_lt_u32 s{sG}, 8\ns_cbranch_scc{1 if self.o['late'] == 'M' else 0} L_st0b")
            self.l_stage(vm, 0)
            a.label("L_st0b")
        self.tag(); self.l_gather_addr()
        a(f"v_and_b32 v{T}, 7, v{vL}\nv_lshrrev_b32 v{T+1}, 4, v{vL}\nv_xor_b32 v{T+1}, v{T+1}, v{T}\nv_lshlrev_b32 v{T+1}, 4, v{T+1}\nv_lshl_add_u32 v{T+1}, v{T}, 8, v{T+1}")
        a(f"v_bfe_u32 v{T}, v{vL}, 3, 1\nv_lshl_add_u32 v{T+1}, v{T}, 13, v{T+1}\nv_add_u32 v254, s{sB2L}, v{T+1}")
        vP0, vP2, vPT = 249, 250, 251
        a(f"s_lshl_b32 s54, s{sRT}, 12\ns_add_u32 s54, s54, {WS_FLAG}")
        a(f"v_and_b32 v{vP0}, 3, v{vL}\ns_lshl_b32 s{sT0}, s{sLW}, 2\nv_add_u32 v{vP0}, s{sT0}, v{vP0}\nv_lshlrev_b32 v{vP0}, 7, v{vP0}")
        if not self.o['classes'] and self.o.get('psub', 1):
            a(f"s_lshl_b32 s{sT0}, s{sLW}, 3\ns_or_b32 s{sT0}, s{sT0}, 0x80000\ns_bfe_u32 s{sT1}, 0x0c060200, s{sT0}\ns_bfe_u32 s{sT0}, 0x03050503, s{sT0}")
            a(f"v_min_u32 v{vP2}, s{sT0}, v{vL}\nv_add_u32 v{vP2}, s{sT1}, v{vP2}\nv_lshlrev_b32 v{vP2}, 7, v{vP2}")
        elif not self.o['classes']:
            a(f"v_and_b32 v{vP2}, 15, v{vL}\nv_lshlrev_b32 v{vP2}, 7, v{vP2}")
        else:
            a(f"v_and_b32 v{vP2}, 3, v{vL}\nv_min_u32 v{vP2}, 2, v{vP2}")
            a(f"s_mul_i32 s{sT0}, s{sLW}, 3\ns_mul_i32 s{sT1}, s{sLW}, 6\ns_sub_u32 s{sT1}, s{sT1}, 6\ns_cmp_lt_u32 s{sLW}, 2\ns_cselect_b32 s{sT0}, s{sT0}, s{sT1}\ns_cselect_b32 s{sT1}, 0, 1")
            a(f"v_lshlrev_b32 v{vP2}, s{sT1}, v{vP2}\nv_add_u32 v{vP2}, s{sT0}, v{vP2}\nv_min_u32 v{vP2}, 14, v{vP2}\nv_lshlrev_b32 v{vP2}, 7, v{vP2}")
        vA = vP0 if self.o['classes'] else vP2
        self.final_addr(None, T, T + 1)
        a(f"v_and_b32 v255, 3, v{vL}\nv_lshlrev_b32 v255, 2, v255\nv_add_u32 v255, {L_FL}, v255")
        a(f"s_mul_i32 s{sT0}, s{sLW}, 3072\ns_add_u32 s{sT0}, s{sT0}, {L_KV + 12}\nv_add_u32 v{T}, s{sT0}, v{vL16}\ns_not_b32 s{sT0}, s{sTAG}\nv_mov_b32 v{T+1}, s{sT0}")
        for k in range(3): a(f"ds_write_b32 v{T}, v{T+1} offset:{1024*k}")
        self.l_colsum_pre()
        if self.o.get('late') and self.o.get('late_at', 1) == 1:
            a(f"s_cmp_lt_u32 s{sG}, 8\ns_cbranch_scc{1 if self.o['late'] == 'M' else 0} L_st0b")
            self.l_stage(vm, 0)
            a.label("L_st0b")
        if self.o.get('pst'): self.stamp(41)
        vm.depth(self.o.get('st1_at', 8))
        if self.o.get('pst'): self.stamp(42)
        self.l_stage(vm, 1, 'x' if self.o.get('split1', 0) else None)
        if self.o.get('pst'): self.stamp(43)
        if self.o.get('w2pf', -1) == -1: self.l_w2touch(vm)
        vm.wait("st0w")
        self.l_colsum()
        CL = self.o.get('cl') or [{}]
        TV = B2R + 40
        if len(CL) > 1 or CL[0]:
            a(f"s_lshr_b32 s{sT0}, s2, 3\ns_lshl2_add_u32 s{sT0}, s{sT0}, s{sLW}\ns_mul_i32 s{sT0}, s{sT0}, 118")
            a(f"v_min_u32 v{TV}, 58, v{vL}\nv_add_u32 v{TV}, s{sT0}, v{TV}\nv_lshlrev_b32 v{TV}, 7, v{TV}\nv_add_u32 v{TV+1}, {59*128}, v{TV}")
            a(f"v_subrev_u32 v{TV+2}, {1376*1024}, v{TV}\nv_subrev_u32 v{TV+3}, {1376*1024}, v{TV+1}\ns_and_b32 s84, s{sCT}, {len(CL)-1}")
        def touch(vm, k):
            a(f"buffer_load_dword v{TV+4}, v{TV+k}, s[{S_W2}:{S_W2+3}], 0 offen"); vm.issue("tch")
            a(f"buffer_load_dword v{TV+5}, v{TV+2+k}, s[{S_WO}:{S_WO+3}], 0 offen"); vm.issue("tch")
        base = vm; ends = []
        for vi, var in enumerate(CL):
            vm = base.copy()
            if vi + 1 < len(CL): a(f"s_cmp_lg_u32 s84, {vi}\ns_cbranch_scc1 L_var{vi}")
            for t in range(8):
                vm.wait(f"st{t}", lgkm=None if ((self.o['spf'] or self.o.get('stouch')) and 1 <= t <= 6) else 0)
                if self.o.get('pst') and t < 2: self.stamp(44 + t)
                a("s_barrier")
                if self.o['kstamps'] or t in (0, 7): self.stamp(2 + t)
                if t == 0 and self.o.get('split1', 0): self.l_stage(vm, 1, 'w')
                if t + 2 < 8: self.l_stage(vm, t + 2)
                for k in var.get(t, []): touch(vm, k)
                if self.o.get('cslate', 0):
                    if t < 2: self.l_colsum_part(t)
                    if t == 2: self.l_cspub(vm, vi)
                elif t == self.o.get('csp_at', 1): self.l_cspub(vm, vi)
                if self.o['spf'] and t in self.o.get('spf_t', range(0, 6)):
                    n = self.o['spf']; assert 128*64*n <= 234752
                    a(f"s_add_u32 s84, s84, 1\ns_sub_u32 s{sT0}, s84, 6\ns_cmp_ge_u32 s84, 6\ns_cselect_b32 s84, s{sT0}, s84\ns_mul_i32 s{sT0}, s84, 234752\ns_add_u32 s98, s94, s{sT0}\ns_addc_u32 s99, s95, 0")
                    for k in range(n): a(f"s_load_dword s54, s[98:99], {64*k}")
                if self.o.get('stouch'):
                    n, t0 = self.o['stouch']
                    lst = [("94:95", 64*k) for k in range(22)] + [("98:99", 64*k) for k in range(8)]
                    if t >= t0:
                        for p, off in lst[n*(t - t0):n*(t - t0 + 1)]: a(f"s_load_dword s84, s[{p}], {off}")
                if t == self.o.get('a2touch', -9):
                    a(f"s_lshl2_add_u32 s{sT0}, s{sRB}, s{sLW}\ns_mul_i32 s{sT0}, s{sT0}, {A2_RT}\ns_lshl_b32 s{sT1}, s{sC0}, 11\ns_lshl_b32 s{sT2}, s{sG}, 12\ns_add_u32 s{sT2}, s{sT2}, {88*1024}")
                    a(f"s_cmp_lt_u32 s{sG}, 8\ns_cselect_b32 s{sT1}, s{sT2}, s{sT1}\ns_cselect_b32 s{sT2}, {OOB}, 8192\ns_cselect_b32 exec_hi, 0, -1\ns_add_u32 s{sT0}, s{sT0}, s{sT1}\ns_add_u32 s{sT0}, s{sT0}, {WS_A2}\ns_add_u32 s{sT2}, s{sT2}, s{sT0}")
                    a(f"v_lshlrev_b32 v{T+8}, 7, v{vL}\nbuffer_load_dword v{T+9}, v{T+8}, s[{S_WS}:{S_WS+3}], s{sT0} offen\ns_mov_b32 exec_hi, 0\nbuffer_load_dword v{T+10}, v{T+8}, s[{S_WS}:{S_WS+3}], s{sT2} offen\ns_mov_b64 exec, -1")
                    vm.issue("a2t"); vm.issue("a2t")
                if t == 0 and self.o.get('lprio0'): a(f"s_setprio {self.o['lprio0']}")
                if t == self.o.get('g_at', 5): self.l_gather_issue(vm)
                if t == self.o.get('w2pf', -1): self.l_w2touch(vm)
                if t == 6:
                    n00 = self.o.get('n00', self.o['n0'])
                    for s in range(n00): self.b2_dma(vm, s, pace=False)
                    if self.o.get('gprio'): a(f"s_setprio {self.o['gprio']}")
                    self.l_gather_check(vm, vi); self.l_gather_cs()
                    if self.o.get('gprio'): a("s_setprio 0")
                    if self.o.get('w2pf') == 66: self.l_w2touch(vm)
                    for s in range(n00, self.o['n0']): self.b2_dma(vm, s, pace=False)
            ends.append(list(vm.q))
            if vi + 1 < len(CL):
                a("s_branch L_varend"); a.label(f"L_var{vi}")
        assert all(e == ends[0] for e in ends)
        a.label("L_varend")
        if self.o.get('lprio'): a(f"s_setprio {self.o['lprio']}")
        for s in range(self.o['n0'], 7): self.b2_dma(vm, s, pace=False)
        def park(k):
            vm.wait(f"b2_{k}")
            self.b2_reads(k, B2R + 16*(k // 2))
        ep = self.o.get('epark', 1); done = 0
        for s in range(7, 18):
            if s == 13: self.spin_lds("ring", 255, T + 1, 0)
            self.b2_dma(vm, s, pace=self.o.get('pace1', self.o['pace']) if s < 13 else True)
            if ep and s - self.o.get('plag', 6) > done:
                park(done); done += 1
        self.stamp(10)
        for k in range(done, 12):
            park(k)
            if k > 1: a("s_waitcnt lgkmcnt(8)")
        a(f"v_xor_b32 v253, 64, v254")
        a("s_waitcnt lgkmcnt(0)")
        if self.o.get('mix', 0):
            a(f"s_cmp_lt_u32 s{sG}, 8\ns_cbranch_scc1 L_p2att")
            self.l_phase2(vm.copy(), "M", True, vP0, vP2, vPT, vA)
            a.label("L_p2att")
        self.l_phase2(vm.copy(), "A", False, vP0, vP2, vPT, vA)

    def l_phase2(self, vm, sfx, mix, vP0, vP2, vPT, vA):
        a = self.a; T = ACC2
        polls = {0: (vA, 2048), 11: (vP0, 0)}
        free = [AR + 16*k for k in range(3)]; slot = {}; bslot = {i: B2R + 16*i for i in range(NREG // 2)}
        def a_one(i, t):
            if t == 0:
                slot[i] = free.pop(0)
                a(f"s_add_u32 s{sT0}, s{sA2B}, s{SP[i]}")
            r = slot[i] + 4*t
            a(f"buffer_load_dwordx4 v[{r}:{r+3}], v{vAO[t]}, s[{S_WS}:{S_WS+3}], s{sT0} offen {self.o.get('ldsc', 'sc1').replace('_', ' ')}"); vm.issue(f"a{i}_{t}")
        def poll_issue(c):
            v, imm = polls[c]
            off = f" offset:{imm}" if imm else ""
            a(f"buffer_load_dword v{vPT}, v{v}, s[{S_WS}:{S_WS+3}], s54 offen{off} sc1"); vm.issue(f"p{c}")
        def poll_check(c):
            v, imm = polls[c]
            vm.wait(f"p{c}")
            a(f"v_cmp_ne_u32 vcc, s{sTAG}, v{vPT}\ns_cbranch_vccz L_pok{c}{sfx}")
            self.spin_global(f"p{c}{sfx}", v, vPT, 54, imm)
            a.label(f"L_pok{c}{sfx}")
            self.stamp({0: 12, 11: 15}[c])
        pre = self.o.get('mixpre', 12) if mix else 12
        if pre: self.spin_lds("hold" + sfx, 255, T + 1, 64)
        self.stamp(13)
        a(f"s_lshl_b32 s{sT0}, s{sLW}, 2\ns_add_u32 s{sT0}, s{sT0}, {L_FL + 96}\nv_mov_b32 v{T+2}, s{sT0}\nv_mov_b32 v{T+3}, 1")
        for s in range(18, 18 + pre):
            self.b2_dma(vm, s, pace=self.o.get('pace2', 10))
            if s == self.o.get('pw_at', 25) and not mix:
                if s == 29: vm.depth(self.o['pollwait'] - 1)
                a(f"ds_write_b32 v{T+2}, v{T+3}")
        self.spin_lds("hold2" + sfx, 255, T + 1, 112)
        poll_issue(0)
        nxt = 18 + pre
        for k in range(0):
            if nxt < 30: self.b2_dma(vm, nxt, pace=False); nxt += 1
        self.stamp(11)
        poll_check(0)
        a("s_setprio 1")
        self.xres(vm)
        D0, D1, DS = self.o.get('dM' if mix else 'dA', (10, 10, 0))
        D4 = D0
        LEAD = self.o.get('lead', 4)
        todo = [(i, t) for i in range(15) for t in range(4)]; nxt = 0
        def issue_next():
            nonlocal nxt
            i, t = todo[nxt]
            if (i, t) == (11, 0): poll_check(11)
            a_one(i, t); nxt += 1
            if nxt == 44 - LEAD: poll_issue(11)
        for k in range(D4): issue_next()
        for i in range(15):
            if i >= DS: D4 = D1
            R = []
            if NREG // 2 <= i + 1 < 15:
                bslot[i + 1] = free.pop(0)
                vm.wait(f"b2_{2*i+3}")
                R = self.b2_read_list(2*i + 2, bslot[i + 1]) + self.b2_read_list(2*i + 3, bslot[i + 1])
            if i >= NREG // 2: a("s_waitcnt lgkmcnt(0)")
            if self.o.get('astamps'): self.stamp(20 + i)
            for t in range(4):
                vm.wait(f"a{i}_{t}")
                for jj in range(4):
                    j = 3 - jj if t & 1 else jj
                    A = ACC2 + 16*t + 4*j; acc = f"v[{A}:{A+3}]"
                    a(f"v_mfma_f32_16x16x32_bf16 {acc}, v[{bslot[i]+4*j}:{bslot[i]+4*j+3}], v[{slot[i]+4*t}:{slot[i]+4*t+3}], {'0' if i == 0 else acc}")
                    if jj < 3 and t < 3 and R: a(R.pop(0))
                    if jj in (0, 2) and nxt < min(60, 4*i + t + D4 + jj // 2) and (todo[nxt][1] or free): issue_next()
            free.append(slot[i]); free.append(bslot[i])
        assert nxt == 60
        self.stamp(16)
        a("s_nop 3")
        for t in range(4):
            for j in range(4):
                r = ACC2 + 16*t + 4*j
                a(f"ds_write_b128 v{253 if j & 1 else 254}, v[{r}:{r+3}] offset:{16384*t + 128*(j >> 1)}")
        a("s_branch L_final")

    def c_prologue(self, vm):
        a = self.a; T = CT
        a("s_waitcnt lgkmcnt(0)")
        if self.o.get('pst'): self.stamp(40)
        a(f"s_load_dword s{sTAG}, s[22:23], {WS_EPOCH}")
        self.srd(S_X, 4, 2097152)
        X = 160
        a(f"s_lshl4_add_u32 s{sT0}, s{sRB}, s{sG}\ns_lshl2_add_u32 s{sT5}, s{sT0}, s{sW}\ns_lshl_b32 s{sT0}, s{sT5}, 11")
        a(f"buffer_load_dwordx4 v[{X+4}:{X+7}], v{vL16}, s[{S_X}:{S_X+3}], s{sT0} offen"); vm.issue("xrow")
        a(f"buffer_load_dwordx4 v[{X+8}:{X+11}], v{vL16}, s[{S_X}:{S_X+3}], s{sT0} offen offset:1024"); vm.issue("xrow")
        a(f"s_lshl_b32 s{sE}, s{sT5}, 5\ns_add_u32 s{sE}, s{sE}, {WS_STATS}")
        self.srd(S_B1, 14, 2752)
        a(f"v_lshl_add_u32 v{X+13}, s{sW}, 6, v{vL}\nv_lshlrev_b32 v{X+3}, 1, v{X+13}")
        a(f"s_lshl_b32 s{sT0}, s{sC0}, 6\ns_cmp_lt_u32 s{sG}, 8\ns_cselect_b32 s{sT0}, {OOB}, s{sT0}")
        a(f"buffer_load_ushort v{X+12}, v{X+3}, s[{S_B1}:{S_B1+3}], s{sT0} offen"); vm.issue("bias")
        a(f"s_and_b32 s{sR2}, s{sW}, 1\ns_lshr_b32 s{sC}, s{sW}, 1")
        a(f"v_and_b32 v{T+2}, 15, v{vL}\nv_lshrrev_b32 v{T+3}, 4, v{vL}\nv_lshrrev_b32 v{T+4}, 1, v{T+2}\nv_xor_b32 v{T+4}, v{T+4}, v{T+3}")
        a(f"s_lshl_b32 s{sT3}, s{sR2}, 13\nv_lshlrev_b32 v{T+5}, 7, v{T+2}\nv_lshl_add_u32 v{T+5}, v{T+4}, 4, v{T+5}\nv_add_u32 v{vXA}, s{sT3}, v{T+5}\nv_xor_b32 v{vXA+1}, 64, v{vXA}")
        a(f"v_and_b32 v{T+4}, 3, v{vL}\nv_lshlrev_b32 v{T+4}, 3, v{T+4}\nv_bfe_u32 v{T+5}, v{vL}, 3, 1\nv_xor_b32 v{T+5}, s{sC}, v{T+5}\nv_lshl_add_u32 v{T+4}, v{T+5}, 6, v{T+4}")
        a(f"v_and_b32 v{T+6}, 1, v{T+3}\nv_lshl_add_u32 v{T+4}, v{T+6}, 5, v{T+4}")
        a(f"v_bfe_u32 v{T+5}, v{vL}, 2, 2\nv_lshl_add_u32 v{T+4}, v{T+5}, 7, v{T+4}\nv_mul_u32_u24 v{T+5}, 3072, v{T+3}\nv_add_u32 v{T+4}, v{T+4}, v{T+5}")
        a(f"v_add_u32 v{vWA}, {L_W}, v{T+4}\nv_xor_b32 v{vWA+1}, 32, v{vWA}")
        a(f"s_lshl_b32 s{sT0}, s{sR2}, 8\ns_add_u32 s{sT0}, s{sT0}, {L_MT}\nv_lshl_add_u32 v{T+19}, v{T+3}, 4, s{sT0}\nv_lshl_add_u32 v{T+23}, v{T+2}, 2, s{sT0}")
        a(f"s_lshl_b32 s{sT0}, s{sC}, 7\ns_add_u32 s{sT0}, s{sT0}, {L_TAB}\nv_lshl_add_u32 v{T+22}, v{T+2}, 2, s{sT0}\nv_lshl_add_u32 v{T+18}, v{T+3}, 4, s{sT0}")
        self.decode2()
        self.srd(S_WS, 22, WS_SIZE); self.srd(S_OUT, 18, 2097152)
        a(f"s_lshl1_add_u32 s{sT0}, s{sRB}, s{sR2}\ns_mul_i32 s{sA2B}, s{sT0}, {4*A2_RT}\ns_add_u32 s{sA2B}, s{sA2B}, {WS_A2}")
        a(f"s_lshl4_add_u32 s{sT0}, s{sT0}, s{sG}\ns_lshl1_add_u32 s{sT0}, s{sT0}, s{sC}\ns_lshl_b32 s{sFL}, s{sT0}, 7\ns_add_u32 s{sFL}, s{sFL}, {WS_FLAG}")
        for k in range(1, 4): a(f"v_add_u32 v{vCO[k]}, {k*A2_RT}, v{vL16}")
        self.consts()
        a(f"s_lshl_b32 s{sT0}, s{sW}, 2\ns_add_u32 s{sT0}, s{sT0}, {L_FL}\nv_mov_b32 v14, s{sT0}\nv_mov_b32 v15, 1")
        if self.o.get('pst'): self.stamp(41)
        self.c_stats(vm)
        self.flag_regs()
        if self.o['cprio']: a(f"s_setprio {self.o['cprio']}")

    def c_read_list(self, n):
        t, kk = n // 2, n % 2; slot = t % 3; F = FR + 40*(n & 1)
        def x(a_): return f"ds_read_b128 v[{F+4*a_}:{F+4*a_+3}], v{vXA+kk} offset:{slot*16384 + 2048*a_}"
        def w(f):
            u, fp = f // 2, f % 2; r = F + 16 + 4*f
            return [f"ds_read_b64_tr_b16 v[{r+2*rd}:{r+2*rd+1}], v{vWA+fp} offset:{slot*24576 + 12288*kk + 1024*u + 512*rd}" for rd in range(2)]
        return [x(0)] + w(0) + [x(1), x(2), x(3)] + w(1) + w(2) + w(3) + w(4) + w(5)
    def c_mfma(self, n, f, a_, att):
        F = FR + 40*(n & 1); u, fp = f // 2, f % 2
        x = f"v[{F+4*a_}:{F+4*a_+3}]"; w = f"v[{F+16+4*f}:{F+19+4*f}]"
        A = ACC + 32*u + 8*a_ + 4*fp; acc = f"v[{A}:{A+3}]"; c = "0" if n == 0 else acc
        if att and u > 0: return f"v_mfma_f32_16x16x32_bf16 {acc}, {x}, {w}, {c}"
        return f"v_mfma_f32_16x16x32_bf16 {acc}, {w}, {x}, {c}"

    def c_kloop(self, att, short=False):
        a = self.a; nr = 12 if short else 16
        a("s_waitcnt lgkmcnt(0)\ns_barrier")
        self.stamp(2)
        for r in self.c_read_list(0)[:nr]: a(r)
        for n in range(16):
            boundary = (n % 2 == 1)
            if boundary:
                a("s_waitcnt lgkmcnt(0)")
                if n < 15:
                    a("s_barrier")
                    if self.o['kstamps'] == 2: self.stamp(3 + n // 2)
                else:
                    a(f"ds_write_b32 v14, v15")
            R = self.c_read_list(n + 1)[:nr] if n < 15 else (self.att_pre if att else self.mlp_pre)()
            need = {0: 3, 1: 6, 4: 8, 8: 10, 12: 12, 16: 14, 20: 16}
            issued = 0
            for k in range(16 if short else 24):
                f, a_ = k // 4, k % 4
                if f % 2 and self.o.get('snake', 1): a_ = 3 - a_
                if not boundary and k in need: a(f"s_waitcnt lgkmcnt({min(15, nr - need[k] + issued)})")
                a(self.c_mfma(n, f, a_, att))
                if issued < len(R): a(R[issued]); issued += 1
        self.stamp(10)

    def consts(self):
        T = CT
        self.a(f"v_mov_b32 v{T}, 0.5\nv_mov_b32 v{T+4}, {f2u(LN2):#x}\nv_mov_b32 v{T+6}, 1.0\nv_mov_b32 v{T+8}, {f2u(1e-6):#x}")
    def table_list(self, dst, vaddr, off, n, step):
        return [f"ds_read_b128 v[{dst+4*q}:{dst+4*q+3}], v{vaddr} offset:{off + step*q}" for q in range(n)]
    def lane_stats_list(self):
        return [f"ds_read_b32 v{CT+10+2*q}, v{CT+23} offset:{64*q}" for q in range(4)] + [f"ds_read_b32 v{6+2*q}, v{CT+23} offset:{64*q+512}" for q in range(4)]
    def flag(self, vm, soff, imm):
        a = self.a; T = CT
        off = f" offset:{imm}" if imm else ""
        a(f"buffer_store_dword v{T+21}, v{T+20}, s[{S_WS}:{S_WS+3}], s{soff} offen{off} sc1"); vm.issue("flag")
    def release(self, off=64):
        a = self.a
        a(f"ds_write_b32 v14, v15 offset:{off}")
    def flag_regs(self):
        self.lane0(CT + 20); self.a(f"v_mov_b32 v{CT+21}, s{sTAG}")

    def mlp_tabs(self, u):
        return self.table_list(116 + 16*(u & 1), CT+18, L_CS - L_TAB + 256*u, 2, 64) + self.table_list(124 + 16*(u & 1), CT+18, L_BT - L_TAB + 256*u, 2, 64)
    def mlp_pre(self):
        return self.lane_stats_list() + self.mlp_tabs(0)
    def att_pre(self):
        T = CT
        return ([f"ds_read_b32 v{148+2*k}, v{T+22} offset:{256 + 256*(k >> 1) + 64*(k & 1)}" for k in range(4)]
                + self.table_list(116, T+19, 0, 4, 64) + self.table_list(132, T+19, 512, 4, 64)
                + self.table_list(212, T+18, L_CS - L_TAB, 2, 64) + self.lane_stats_list())
    def c_epi_mlp(self, vm):
        a = self.a; T = CT; P = range(0, 16, 2)
        CP, U = 156, 172
        a(f"s_add_u32 s{sT1}, s{sC0}, s{sC}\ns_lshl_b32 s{sT1}, s{sT1}, 10\ns_add_u32 s{sA2B}, s{sA2B}, s{sT1}")
        a("s_waitcnt lgkmcnt(4)")
        for q in range(4): a(f"v_mul_f32 v{T+10+2*q}, v{T+10+2*q}, v{6+2*q}")
        for u in range(3):
            cs, bb = 116 + 16*(u & 1), 124 + 16*(u & 1)
            if u == 2:
                a(f"s_cmp_ge_u32 s{sG}, 11\ns_cselect_b32 s{sT0}, s{sC}, 0\ns_cmp_eq_u32 s{sT0}, 1\ns_cbranch_scc1 L_mlp_short")
            a("s_waitcnt lgkmcnt(0)")
            if u < 2:
                for r in self.mlp_tabs(u + 1): a(r)
            for t in range(2):
                A = ACC + 32*u + 16*t
                self.al()
                for k in P:
                    st = T + 10 + 4*t + 2*(k // 8); j = k % 8
                    a(f"v_pk_fma_f32 v[{CP+k}:{CP+k+1}], v[{st}:{st+1}], v[{cs+j}:{cs+j+1}], v[{bb+j}:{bb+j+1}] op_sel_hi:[0,1,1] neg_lo:[1,0,0] neg_hi:[1,0,0]")
                for k in P:
                    st = 6 + 4*t + 2*(k // 8)
                    a(f"v_pk_fma_f32 v[{A+k}:{A+k+1}], v[{A+k}:{A+k+1}], v[{st}:{st+1}], v[{CP+k}:{CP+k+1}] op_sel_hi:[1,0,1]")
                for k in range(16): a(f"v_exp_f32 v{U+k}, v{A+k}")
                for k in P: a(f"v_pk_fma_f32 v[{CP+k}:{CP+k+1}], v[{U+k}:{U+k+1}], v[{T}:{T+1}], v[{T+6}:{T+7}] op_sel_hi:[1,0,0]")
                for k in P: a(f"v_pk_fma_f32 v[{U+k}:{U+k+1}], v[{U+k}:{U+k+1}], v[{CP+k}:{CP+k+1}], v[{T+6}:{T+7}] op_sel_hi:[1,1,0]")
                for k in range(16): a(f"v_rcp_f32 v{U+k}, v{U+k}")
                for k in P: a(f"v_pk_fma_f32 v[{U+k}:{U+k+1}], v[{A+k}:{A+k+1}], v[{U+k}:{U+k+1}], v[{A+k}:{A+k+1}] neg_lo:[1,0,0] neg_hi:[1,0,0]")
                for k in P: a(f"v_cvt_pk_bf16_f32 v{A+k//2}, v{U+k}, v{U+k+1}")
                for k in range(2):
                    off = f" offset:{2048*u}" if 0 < u < 2 else ""
                    if u == 2 and t == 0 and k == 0: a(f"s_add_u32 s{sA2B}, s{sA2B}, 4096")
                    a(f"buffer_store_dwordx4 v[{A+4*k}:{A+4*k+3}], v{vCO[2*t+k]}, s[{S_WS}:{S_WS+3}], s{sA2B} offen{off} {self.o.get('stsc', 'sc1').replace('_', ' ')}"); vm.issue(f"act{u}")
                if self.o['classes'] and u == 2 and t == self.o.get('fa_at', 0):
                    vm.wait("act1"); self.flag(vm, sFL, 0)
            if u == 1 and self.o.get('rel_mlp', 0) == -1: self.release()
            self.stamp(11 + u)
        if self.o['classes']:
            if self.o.get('rel_mlp', 0) == 0: self.release()
            vm.wait("act2"); self.flag(vm, sFL, 4)
            if self.o.get('rel_mlp', 0) == 1: self.release()
            if self.o.get('hold2'): self.release(112)
            a("s_branch L_cdone")
        a.label("L_mlp_short")
        if self.o.get('rel_mlp', 0) == 0: self.release()
        a("s_waitcnt vmcnt(0)"); self.flag(VM(a), sFL, 0)
        if self.o.get('rel_mlp', 0) == 1: self.release()
        if self.o.get('hold2'): self.release(112)
        a("s_branch L_cdone")

    def phi(self, A, E, dst):
        a = self.a; T = CT; P = range(0, 16, 2)
        self.al()
        for k in range(16): a(f"v_exp_f32 v{E+k}, v{A+k}")
        for k in P: a(f"v_pk_fma_f32 v[{A+k}:{A+k+1}], v[{A+k}:{A+k+1}], v[{T+4}:{T+5}], v[{T+6}:{T+7}] op_sel_hi:[1,0,0]")
        for k in range(16): a(f"v_med3_f32 v{E+k}, v{A+k}, v{E+k}, 1.0")
        for k in P: a(f"v_pk_add_f32 v[{E+k}:{E+k+1}], v[{E+k}:{E+k+1}], v[{T+8}:{T+9}] op_sel_hi:[1,0]")
        for k in P: a(f"v_cvt_pk_bf16_f32 v{dst(k//2) if callable(dst) else dst+k//2}, v{E+k}, v{E+k+1}")

    def kv_write(self, S, flagoff):
        a = self.a
        for k in range(3): a(f"ds_write_b128 v2, v[{S+4*k}:{S+4*k+3}] offset:{1024*k}")
        a(f"v_mov_b32 v7, 1\ns_waitcnt lgkmcnt(0)\nds_write_b32 v6, v7 offset:{flagoff}")
    def kv_add(self, S, D):
        a = self.a
        for k in range(3): a(f"ds_read_b128 v[{D+4*k}:{D+4*k+3}], v4 offset:{1024*k}")
        a("s_waitcnt lgkmcnt(0)")
        for k in range(0, 12, 2): a(f"v_pk_add_f32 v[{S+k}:{S+k+1}], v[{S+k}:{S+k+1}], v[{D+k}:{D+k+1}]")

    def c_epi_att(self, vm):
        a = self.a; T = CT; P = range(0, 16, 2)
        MT, RT, E, QCS, PV, S, ZZ = 116, 132, 196, 212, 156, 172, 180
        Q, K, V = ACC, ACC + 32, ACC + 64
        if self.o.get('rel_att', 1) == -1: self.release()
        a("s_waitcnt lgkmcnt(10)")
        self.al()
        for (A, cs0) in ((K, 148), (V, 152)):
            for k in range(0, 32, 2):
                m = 4*(k // 8) + (k % 4); cs = cs0 + 2*((k % 8) // 4)
                a(f"v_pk_fma_f32 v[{A+k}:{A+k+1}], v[{MT+m}:{MT+m+1}], v[{cs}:{cs+1}], v[{A+k}:{A+k+1}] op_sel_hi:[1,0,1] neg_lo:[1,0,0] neg_hi:[1,0,0]")
            for k in range(0, 32, 2):
                m = 4*(k // 8) + (k % 4)
                a(f"v_pk_mul_f32 v[{A+k}:{A+k+1}], v[{A+k}:{A+k+1}], v[{RT+m}:{RT+m+1}]")
        if self.o.get('cst'): self.stamp(21)
        ONE = 192
        for k in range(4): a(f"v_mov_b32 v{ONE+k}, 0x3f803f80")
        def opnd(base): return lambda j: base + 4*((j >> 1) & 1) + 2*(j >> 2) + (j & 1)
        for t in range(2):
            self.phi(K + 16*t, E, opnd(K + 16*t))
            for j in range(8): a(f"v_cvt_pk_bf16_f32 v{opnd(PV + 8*t)(j)}, v{V+16*t+2*j}, v{V+16*t+2*j+1}")
            a("s_nop 1")
            for h in range(2):
                for (D, B) in ((S + 4*h, PV + 8*t + 4*h), (ZZ + 4*h, ONE)):
                    c = "0" if t == 0 else f"v[{D}:{D+3}]"
                    a(f"v_mfma_f32_16x16x32_bf16 v[{D}:{D+3}], v[{K+16*t+4*h}:{K+16*t+4*h+3}], v[{B}:{B+3}], {c}")
        if self.o.get('cst'): self.stamp(22)
        if self.o.get('rel_att', 1) == -2: self.release()
        even = f"s[{sEX}:{sEX+1}]"; upper = "s[66:67]"
        Z = 186; X = V; Y = V + 16
        a(f"v_mov_b32 v{X+3}, s{sTAG}\nv_mov_b32 v{X+7}, s{sTAG}\nv_mov_b32 v{X+11}, s{sTAG}\ns_nop 4")
        self.al()
        for k in range(4): a(f"v_cndmask_b32 v{ZZ+k}, v{ZZ+4+k}, v{ZZ+k}, {even}")
        for k in range(6): a(f"v_cndmask_b32 v{X+k+k//3}, v{S+6+k}, v{S+k}, {upper}")
        a(f"ds_write_b128 v249, v[{X}:{X+3}]\nds_write_b128 v249, v[{X+4}:{X+7}] offset:1024")
        for k in range(6): a(f"v_cndmask_b32 v{Z+k}, v{S+k}, v{S+6+k}, {upper}")
        if self.o.get('cst'): self.stamp(23)
        a(f"s_mov_b32 s{sSPIN}, 0")
        a.label("L_x1")
        a(f"ds_read_b128 v[{Y}:{Y+3}], v250\nds_read_b128 v[{Y+4}:{Y+7}], v250 offset:1024\ns_add_u32 s{sSPIN}, s{sSPIN}, 1\ns_waitcnt lgkmcnt(0)")
        a(f"v_cmp_ne_u32 vcc, s{sTAG}, v{Y+3}\nv_cmp_ne_u32 s[68:69], s{sTAG}, v{Y+7}\ns_cmp_gt_u32 s{sSPIN}, 0x40000\ns_cbranch_scc1 L_x1d\ns_or_b64 vcc, vcc, s[68:69]\ns_cbranch_vccnz L_x1")
        a.label("L_x1d")
        for k in range(6): a(f"v_add_f32 v{Z+k}, v{Z+k}, v{Y+k+k//3}")
        for k in range(3): a(f"v_cvt_pk_bf16_f32 v{X+8+k}, v{Z+2*k}, v{Z+2*k+1}")
        a(f"buffer_store_dwordx4 v[{X+8}:{X+11}], v{vL16}, s[{S_WS}:{S_WS+3}], s70 offen sc1")
        self.stamp(11)
        if self.o.get('rel_att', 1) == 0: self.release()
        self.al()
        for k in range(0, 32, 2):
            st = T + 10 + 2*(k // 8); j = k % 8
            a(f"v_pk_fma_f32 v[{Q+k}:{Q+k+1}], v[{st}:{st+1}], v[{QCS+j}:{QCS+j+1}], v[{Q+k}:{Q+k+1}] op_sel_hi:[0,1,1] neg_lo:[1,0,0] neg_hi:[1,0,0]")
        for k in range(0, 32, 2):
            st = 6 + 2*(k // 8)
            a(f"v_pk_mul_f32 v[{Q+k}:{Q+k+1}], v[{Q+k}:{Q+k+1}], v[{st}:{st+1}] op_sel_hi:[1,0]")
        for t in range(2): self.phi(Q + 16*t, E, Q + 16*t)
        if self.o.get('rel_att', 1) == 1: self.release()
        if self.o.get('cst'): self.stamp(24)
        if self.o.get('noatt'):
            for a_ in range(4): a(f"buffer_store_dwordx4 v[{Q+4*a_}:{Q+4*a_+3}], v{vCO[a_]}, s[{S_WS}:{S_WS+3}], s71 offen sc1")
            a("s_waitcnt vmcnt(0)"); self.flag(vm, sFL, 0); self.release(112); a("s_branch L_cdone")
        G = 116; S = K; U = K + 12
        a(f"s_mov_b32 s{sT5}, 0")
        if self.o.get('pollwait'):
            self.spin_lds("b2d", 254, 9, 96)
        if self.o.get('inc', 0):
            for k in range(12): a(f"v_mov_b32 v{S+k}, 0")
            a(f"s_mov_b32 s72, 0xffff\ns_lshl_b32 s73, s{sRB}, 12")
            if self.o.get('chprio', 3): a(f"s_setprio {self.o.get('chprio', 3)}")
            if self.o.get('cst'): self.stamp(28)
            a.label("L_kv_pass")
            for p in range(16):
                a(f"s_bitcmp0_b32 s72, {p}\ns_cbranch_scc1 L_kv_l{p}")
                a(f"s_add_u32 s{sT2}, s73, {2048*p}\ns_and_b32 s{sT2}, s{sT2}, 0x7800\ns_add_u32 s{sT2}, s{sT2}, s{sKB}")
                a(f"buffer_load_dwordx4 v[{G+4*p}:{G+4*p+3}], v{vL16}, s[{S_WS}:{S_WS+3}], s{sT2} offen sc1")
                a.label(f"L_kv_l{p}")
            if self.o.get('hold2') == 1: self.release(112)
            a(f"s_add_u32 s{sT5}, s{sT5}, 1\ns_waitcnt vmcnt(0)")
            for p in range(16):
                src = G + 4*p; d = S + 6*(p & 1)
                a(f"s_bitcmp0_b32 s72, {p}\ns_cbranch_scc1 L_kv_a{p}\nv_cmp_ne_u32 vcc, s{sTAG}, v{src+3}\ns_cbranch_vccnz L_kv_a{p}")
                for k in range(3): a(f"v_lshlrev_b32 v{U+2*k}, 16, v{src+k}\nv_and_b32 v{U+2*k+1}, 0xffff0000, v{src+k}")
                for k in range(6): a(f"v_add_f32 v{d+k}, v{d+k}, v{U+k}")
                a(f"s_bitset0_b32 s72, {p}")
                a.label(f"L_kv_a{p}")
            a(f"s_cmp_eq_u32 s72, 0\ns_cbranch_scc1 L_kv_ok\ns_cmp_gt_u32 s{sT5}, 0x4000\ns_cbranch_scc1 L_kv_ok\ns_sleep {self.o.get('sleep3', 1)}\ns_branch L_kv_pass")
            a.label("L_kv_ok")
            if self.o.get('cst'): self.stamp(25); a(f"v_writelane_b32 v252, s{sT5}, 30")
        else:
            if self.o.get('optim', 0): a("s_branch L_kv_go")
            a.label("L_kv_gather")
            self.spin_global("kv", 253, 9, sKB, 12)
            a.label("L_kv_go")
            if self.o.get('chprio', 3): a(f"s_setprio {self.o.get('chprio', 3)}")
            if self.o.get('cst'): self.stamp(28)
            vg = VM(a)
            for p in range(16):
                if p % 2 == 0: a(f"s_lshl1_add_u32 s{sT2}, s{sRB}, {p}\ns_and_b32 s{sT2}, s{sT2}, 14\ns_lshl_b32 s{sT2}, s{sT2}, 11\ns_add_u32 s{sT2}, s{sT2}, s{sKB}")
                off = " offset:2048" if p % 2 else ""
                a(f"buffer_load_dwordx4 v[{G+4*p}:{G+4*p+3}], v{vL16}, s[{S_WS}:{S_WS+3}], s{sT2} offen{off} sc1"); vg.issue(f"kvg{p}")
            if self.o.get('rel_att', 1) == 3: self.release()
            if self.o.get('hold2') == 1: self.release(112)
            for p in range(0, 16, 2):
                vg.wait(f"kvg{p+1}")
                for h2 in range(2):
                    d = S + 6*h2 if p == 0 else U + 6*h2; src = G + 4*(p + h2)
                    for k in range(3): a(f"v_lshlrev_b32 v{d+2*k}, 16, v{src+k}\nv_and_b32 v{d+2*k+1}, 0xffff0000, v{src+k}")
                if p:
                    for k in range(0, 12, 2): a(f"v_pk_add_f32 v[{S+k}:{S+k+1}], v[{S+k}:{S+k+1}], v[{U+k}:{U+k+1}]")
                    a(f"v_bfi_b32 v3, v{G+4*p+3}, v{G+4*p+7}, 0\nv_or3_b32 v5, v5, v{G+4*p+3}, v{G+4*p+7}\nv_and_b32 v9, v9, v3")
                else:
                    a(f"v_and_b32 v9, v{G+3}, v{G+7}\nv_or_b32 v5, v{G+3}, v{G+7}")
            if self.o.get('cst'): self.stamp(25); a(f"v_writelane_b32 v252, s{sT5}, 30")
            a(f"v_cmp_ne_u32 vcc, s{sTAG}, v9\nv_cmp_ne_u32 s[68:69], s{sTAG}, v5\ns_nop 1\ns_or_b64 vcc, vcc, s[68:69]")
            a(f"s_cbranch_vccz L_kv_ok\ns_add_u32 s{sT5}, s{sT5}, 1\ns_cmp_gt_u32 s{sT5}, 64\ns_cbranch_scc0 L_kv_gather")
            a.label("L_kv_ok")
        vm.drained()
        if self.o.get('hold2') == 2: self.release(112)
        self.stamp(12)
        for k in range(0, 6, 2): a(f"v_pk_add_f32 v[{S+k}:{S+k+1}], v[{S+k}:{S+k+1}], v[{S+6+k}:{S+7+k}]")
        for k in range(3): a(f"v_cvt_pk_bf16_f32 v{X+k}, v{S+2*k}, v{S+2*k+1}")
        a(f"ds_write_b128 v249, v[{X}:{X+3}] offset:2048\ns_mov_b32 s{sSPIN}, 0")
        a.label("L_x2")
        a(f"ds_read_b128 v[{Y}:{Y+3}], v250 offset:2048\ns_add_u32 s{sSPIN}, s{sSPIN}, 1\ns_waitcnt lgkmcnt(0)")
        a(f"v_cmp_ne_u32 vcc, s{sTAG}, v{Y+3}\ns_cmp_gt_u32 s{sSPIN}, 0x40000\ns_cbranch_scc1 L_x2d\ns_cbranch_vccnz L_x2")
        a.label("L_x2d")
        if self.o.get('cst'): self.stamp(26)
        if self.o.get('hold2') == 4: self.release(112)
        W = K + 24
        for k in range(3): a(f"v_cndmask_b32 v{W+k}, v{X+k}, v{Y+k}, {upper}\nv_cndmask_b32 v{W+3+k}, v{Y+k}, v{X+k}, {upper}")
        def pq(a_, h): r = Q + 16*(a_ >> 1) + 4*(a_ & 1) + 2*h; return f"v[{r}:{r+1}]"
        NUM, DEN, R = 116, 148, 180
        a("s_nop 1")
        for k in range(2): a(f"v_mov_b32_dpp v{W+6+k}, v{W+4+k} quad_perm:[1,0,3,2] row_mask:0xf bank_mask:0xf")
        for k in range(2): a(f"v_cndmask_b32 v{S+k}, v{W+6+k}, v{W+4+k}, {even}\nv_cndmask_b32 v{S+2+k}, v{W+4+k}, v{W+6+k}, {even}")
        a("s_nop 1")
        for a_ in range(4):
            for h in range(2): a(f"v_mfma_f32_16x16x16_bf16 v[{DEN+8*a_+4*h}:{DEN+8*a_+4*h+3}], v[{S+2*h}:{S+2*h+1}], {pq(a_, h)}, 0")
        for a_ in range(4):
            for h in range(2): a(f"v_mfma_f32_16x16x16_bf16 v[{NUM+8*a_+4*h}:{NUM+8*a_+4*h+3}], v[{W+2*h}:{W+2*h+1}], {pq(a_, h)}, 0")
        for k in range(8): a(f"v_add_f32 v{R+2*k}, v{T+8}, v{DEN+4*k}")
        for k in range(8): a(f"v_rcp_f32 v{R+2*k}, v{R+2*k}")
        for a_ in range(4):
            d = V + 4*a_
            for h in range(2):
                N = NUM + 8*a_ + 4*h; r = R + 4*a_ + 2*h
                if self.o.get('opk', 0):
                    for k in (0, 2): a(f"v_pk_mul_f32 v[{N+k}:{N+k+1}], v[{N+k}:{N+k+1}], v[{r}:{r+1}] op_sel_hi:[1,0]")
                else:
                    for k in range(4): a(f"v_mul_f32 v{N+k}, v{r}, v{N+k}")
            for j in range(4): a(f"v_cvt_pk_bf16_f32 v{d+j}, v{NUM+8*a_+2*j}, v{NUM+8*a_+2*j+1}")
            a(f"buffer_store_dwordx4 v[{d}:{d+3}], v{vCO[a_]}, s[{S_WS}:{S_WS+3}], s71 offen {self.o.get('stsc', 'sc1').replace('_', ' ')}"); vm.issue("o")
            if self.o.get('onop'): a(f"s_nop {self.o['onop']}")
        if self.o.get('hold2') == 3: self.release(112)
        if self.o.get('cst'): self.stamp(27)
        vm.wait("o")
        self.flag(vm, sFL, 0)
        self.stamp(13)

    def c_main(self):
        a = self.a; vm = VM(a)
        a.label("L_C")
        if self.o['pf']: vm.issue("codepf")
        self.c_prologue(vm)
        self.stamp(1)
        a(f"s_cmp_lt_u32 s{sG}, 8\ns_cbranch_scc1 L_Catt")
        if self.o.get('short', 0):
            a(f"s_cmp_ge_u32 s{sG}, 11\ns_cselect_b32 s{sT0}, s{sC}, 0\ns_cmp_eq_u32 s{sT0}, 0\ns_cbranch_scc1 L_Cfull")
            self.c_kloop(False, True)
            a("s_branch L_Cepi")
            a.label("L_Cfull")
        self.c_kloop(False)
        a.label("L_Cepi")
        self.c_epi_mlp(vm.copy())
        a.label("L_Catt")
        a(f"s_lshl1_add_u32 s{sT0}, s{sC}, s{sR2}\ns_xor_b32 s{sT1}, s{sT0}, 1")
        a(f"s_mul_i32 s{sT2}, s{sT0}, 3072\ns_add_u32 s{sT2}, s{sT2}, {L_KV}\nv_add_u32 v249, s{sT2}, v{vL16}")
        a(f"s_mul_i32 s{sT2}, s{sT1}, 3072\ns_add_u32 s{sT2}, s{sT2}, {L_KV}\nv_add_u32 v250, s{sT2}, v{vL16}")
        a(f"s_lshl1_add_u32 s{sT0}, s{sG}, s{sC}\ns_lshl_b32 s{sKB}, s{sT0}, 15\ns_lshl_b32 s{sT0}, s{sR2}, 10\ns_add_u32 s{sKB}, s{sKB}, s{sT0}\ns_add_u32 s{sKB}, s{sKB}, {WS_KVP}")
        a(f"s_mov_b32 s{sEX}, 0x55555555\ns_mov_b32 s{sEX+1}, 0x55555555\ns_sub_u32 s66, 0, s{sR2}\ns_mov_b32 s67, s66")
        a(f"s_lshl_b32 s70, s{sRB}, 11\ns_add_u32 s70, s70, s{sKB}")
        a(f"s_lshl1_add_u32 s71, s{sG}, s{sC}\ns_lshl_b32 s71, s71, 10\ns_add_u32 s71, s71, {44*1024}\ns_add_u32 s71, s71, s{sA2B}")
        a(f"v_and_b32 v253, 15, v{vL}\nv_lshlrev_b32 v253, 11, v253\nv_and_b32 v254, 3, v{vL}\nv_lshlrev_b32 v254, 2, v254\nv_add_u32 v254, {L_FL}, v254")
        self.c_kloop(True); self.c_epi_att(vm.copy())
        a(f"s_cmp_lg_u32 s2, 0\ns_cbranch_scc1 L_cdone\ns_cmp_lg_u32 s{sW}, 0\ns_cbranch_scc1 L_cdone")
        a(f"v_lshlrev_b32 v7, 10, v{vL}")
        for k in range(4):
            a(f"s_mov_b32 s{sT0}, {WS_CSP + 65536*k}")
            self.spin_global(f"ep{k}", 7, 9, sT0, 12)
        a(f"s_mov_b32 s{sT0}, {WS_EPOCH}")
        self.flag(VM(a), sT0, 0)
        a.label("L_cdone")
        self.stamp(14)
        self.final_addr(VM(a), 11, 13)

    def final(self):
        a = self.a
        a.label("L_final")
        a(f"s_waitcnt vmcnt(0)\nv_xor_b32 v19, 16, v{vRR}\nv_mov_b32 v92, {f2u(LN2):#x}")
        for k in range(4):
            a(f"v_lshlrev_b32 v{84+2*k}, 16, v{XRES+k}\nv_and_b32 v{84+2*k+1}, 0xffff0000, v{XRES+k}")
        a("s_waitcnt lgkmcnt(0)")
        if self.o.get('tst'): self.stamp(46)
        a("s_barrier")
        if self.o.get('tst'): self.stamp(47)
        R, X = 20, 84
        for kq in range(4):
            a(f"ds_read_b128 v[{R+8*kq}:{R+8*kq+3}], v{vRR} offset:{2048*kq}\nds_read_b128 v[{R+8*kq+4}:{R+8*kq+7}], v19 offset:{2048*kq}")
        for kq in range(1, 4):
            a(f"s_waitcnt lgkmcnt({6-2*kq})")
            for k in range(0, 8, 2): a(f"v_pk_add_f32 v[{R+k}:{R+k+1}], v[{R+k}:{R+k+1}], v[{R+8*kq+k}:{R+8*kq+k+1}]")
        for k in range(0, 8, 2): a(f"v_pk_fma_f32 v[{X+k}:{X+k+1}], v[{R+k}:{R+k+1}], v[{X+8}:{X+9}], v[{X+k}:{X+k+1}] op_sel_hi:[1,0,1]")
        for k in range(0, 8, 2): a(f"v_cvt_pk_bf16_f32 v{R+k//2}, v{X+k}, v{X+k+1}")
        a(f"buffer_store_dwordx4 v[{R}:{R+3}], v{vXO}, s[{S_OUT}:{S_OUT+3}], s{sRES} offen {self.o.get('outsc', '')}")
        if self.stamps:
            if self.o.get('tst'): self.stamp(48)
            a("s_waitcnt vmcnt(0)")
            self.stamp(17); self.rstamp(19)
            a(f"v_writelane_b32 v252, s96, 0\nv_writelane_b32 v252, s96, 18")
            a(f"s_lshl_b32 s{sT0}, s2, 3\ns_add_u32 s{sT0}, s{sT0}, s{sW}\ns_lshl_b32 s{sT0}, s{sT0}, 8\ns_add_u32 s{sT0}, s{sT0}, {WS_STAMP}")
            a(f"v_lshlrev_b32 v14, 2, v{vL}\nbuffer_store_dword v252, v14, s[{S_WS}:{S_WS+3}], s{sT0} offen")

    def build(self):
        a = self.a
        a.label("L_code0")
        self.entry()
        self.l_main()
        self.c_main()
        self.final()
        if self.o.get('probe'):
            wg, w, k = self.o['probe']
            a(f"s_cmp_lg_u32 s2, {wg}\ns_cbranch_scc1 L_end\ns_cmp_lg_u32 s{sW}, {w}\ns_cbranch_scc1 L_end")
            a(f"v_readlane_b32 s{sT1}, v252, {k}\ns_nop 3\ns_add_u32 s{sT1}, s{sT1}, 2500\ns_mov_b32 s{sSPIN}, 0")
            a.label("L_hold")
            a(f"s_memrealtime s[{sSTAMP}:{sSTAMP+1}]\ns_add_u32 s{sSPIN}, s{sSPIN}, 1\ns_waitcnt lgkmcnt(0)\ns_sub_u32 s{sT0}, s{sSTAMP}, s{sT1}")
            a(f"s_cmp_gt_u32 s{sSPIN}, 100000\ns_cbranch_scc1 L_end\ns_cmp_lt_i32 s{sT0}, 0\ns_cbranch_scc1 L_hold")
        a.label("L_end")
        a("s_endpgm")
        a.label("L_codeend")
        t = single(a.text(), 256, 512, LDS_BYTES, 256, 102, 256)
        k = t.index('.amdgcn_target')
        return t[:k] + DOC + t[k:]

if __name__ == "__main__":
    out = sys.argv[1] if len(sys.argv) > 1 else "k.s"
    stamps = "stamps" in sys.argv[2:]
    opts = {}
    for kv in sys.argv[2:]:
        if "=" in kv:
            k, v = kv.split("="); opts[k] = eval(v)
    open(out, "w").write(Gen(stamps, opts).build())
```

```python
import sys, math, struct
from asmlib import *

def f2u(x): return struct.unpack("<I", struct.pack("<f", x))[0]
LOG2E = 1.4426950408889634
LN2 = 0.6931471805599453

WS_EPOCH = 0
WS_STATS = 0x1000
WS_CSP   = 0x10000
WS_KVP   = 0x60000
WS_FLAG  = 0x100000
WS_KVF   = 0x140000
WS_A2    = 0x200000
A2_RT    = 60 * 1024
WS_SIZE  = 0x1000000
WS_STAMP = 0xC00000
OOB      = 0x40000000

L_X    = 0
L_W    = 49152
L_MISC = 147456
L_KV   = L_MISC
L_SLAB = 122880
L_TAB  = L_MISC + 12288
L_CS   = L_TAB
L_BT   = L_CS + 768
L_MT   = L_BT + 768
L_RT   = L_MT + 512
L_FL   = L_RT + 512
LDS_BYTES = 163840

ROUND_OF_STEP = [15, 16, 17, 4, 5, 12, 13, 14, 0, 1, 6, 7, 8, 2, 3, 9, 10, 11]
NREG = 12
ARING = 6
def round_of(step):
    return ROUND_OF_STEP[step] if step < 18 else ROUND_OF_STEP[step - 18]

S_X, S_W, S_W2, S_WO, S_WS, S_OUT, S_B1 = 24, 28, 32, 36, 40, 44, 48
sW, sLW = 52, 53
sR2, sC = 53, 54
sRB, sG, sPH = 55, 56, 57
sCT, sRT, sROT = 58, 59, 60
sTAG = 61
sXO, sWOF, sWSTEP, sWEND = 62, 63, 64, 65
sXB, sLX, sLWB, sWD = 66, 67, 68, 69
sWO1, sWO2 = 70, 71
sB2L, sB2C, sB2C2, sA2B = 72, 73, 74, 75
sC0, sPITCH, sE = 76, 83, 84
sT0, sT1, sT2, sT3, sT4, sT5 = 77, 78, 79, 80, 81, 82
sSPIN = 85
sEX = 86
sMASK = 62
sFL, sKB = 64, 65
sSW = 88
sB2C3 = 84
sRES = 3
sSTAMP = 92
SP = list(range(4, 24)) + [48, 49, 50, 51, 88, 89, 90, 91, 100, 101]

vL, vL16 = 0, 1
vRR, vXO = 17, 18
XRES = 244
vX, vWv, vB2D, vB2A = 2, 6, 10, 12
vB2AL = [132 + k for k in range(12)]
ACC2, AR, B2R = 20, 84, 148
vAO = [1, 248, 12, 13]
vL16B = 248
vRW = 2
vXA, vWA = 2, 4
vCO = [1, 248, 16, 255]
ACC, FR = 20, 116
CT = 220

DOC = """;
;
; Workgroup ids are arranged for L2 locality only.
"""

class VM:
    def __init__(self, a): self.a = a; self.q = []
    def issue(self, tag): self.q.append(tag)
    def count(self, *tags):
        idx = max((i for i, t in enumerate(self.q) if t in tags), default=-1)
        return len(self.q) - 1 - idx if idx >= 0 else None
    def wait(self, *tags, lgkm=None):
        n = self.count(*tags)
        s = []
        if n is not None:
            assert n <= 63, n
            s.append(f"vmcnt({n})")
            self.q = self.q[len(self.q) - n:] if n else []
        if lgkm is not None: s.append(f"lgkmcnt({lgkm})")
        if s: self.a("s_waitcnt " + " ".join(s))
    def depth(self, n):
        if len(self.q) > n:
            self.a(f"s_waitcnt vmcnt({n})")
            self.q = self.q[len(self.q) - n:] if n else []
    def drained(self): self.q = []
    def copy(self):
        v = VM(self.a); v.q = list(self.q); return v

class Gen:
    def __init__(self, stamps=False, opts=None):
        self.a = Asm(); self.stamps = stamps
        self.o = dict(pf=1, hold=1, map2=0, classes=0, n0=3, spf=0, xloc=1, g3=1, pace=8, rel_mlp=1, rel_att=-2, pollwait=9, hold2=1, kstamps=False, cprio=1, w2pf=5, p0_at=27, rot=8)
        if opts: self.o.update(opts)

    def srd(self, d, p, n):
        self.a(f"s_mov_b32 s{d}, s{p}\ns_mov_b32 s{d+1}, s{p+1}\ns_mov_b32 s{d+2}, {n}\ns_mov_b32 s{d+3}, 0x20000")
    def stamp(self, idx):
        if not self.stamps: return
        self.rstamp(idx)
        if self.o.get('cyc') and idx in self.o['cyc']:
            self.a(f"s_memtime s[{sSTAMP}:{sSTAMP+1}]\ns_waitcnt lgkmcnt(0)\nv_writelane_b32 v252, s{sSTAMP}, {idx + 40}")
    def rstamp(self, idx):
        if not self.stamps: return
        if 'only' in self.o and idx not in self.o['only']: return
        self.a(f"s_memrealtime s[{sSTAMP}:{sSTAMP+1}]\ns_waitcnt lgkmcnt(0)\nv_writelane_b32 v252, s{sSTAMP}, {idx}")
    def al(self):
        if self.o.get('align', 1): self.a(".p2align 3")
    def lane0(self, v):
        self.a(f"v_cmp_eq_u32 vcc, 0, v{vL}\nv_mov_b32 v{v}, {OOB}\ns_nop 0\nv_cndmask_b32 v{v}, v{v}, 0, vcc")
    def tag(self):
        self.a(f"s_mul_i32 s{sTAG}, s{sTAG}, 0x9e3779b1\ns_add_u32 s{sTAG}, s{sTAG}, 0x7f4a7c15")
    def decode2(self):
        a = self.a
        if self.o['map2'] == 0:
            a(f"s_and_b32 s{sT0}, s2, 7\ns_lshr_b32 s{sT1}, s2, 3\ns_and_b32 s{sCT}, s{sT1}, 7\ns_lshr_b32 s{sT1}, s{sT1}, 3")
            if self.o.get('ctmap', 1):
                a(f"s_xor_b32 s{sT1}, s{sT1}, 2\ns_and_b32 s{sROT}, s{sCT}, 1\ns_lshl1_add_u32 s{sROT}, s{sT1}, s{sROT}\ns_lshr_b32 s{sT1}, s{sCT}, 1\ns_mov_b32 s{sCT}, s{sROT}")
            if self.o['xloc']: a(f"s_lshr_b32 s{sRT}, s{sT0}, 1\ns_and_b32 s{sT0}, s{sT0}, 1\ns_lshl2_add_u32 s{sT0}, s{sT0}, s{sRT}")
            a(f"s_lshl2_add_u32 s{sRT}, s{sT0}, s{sT1}\ns_lshl1_add_u32 s{sROT}, s{sT1}, s{sCT}")
        else:
            a(f"s_and_b32 s{sT0}, s2, 1\ns_bfe_u32 s{sT1}, s2, 0x20003\ns_lshl2_add_u32 s{sCT}, s{sT0}, s{sT1}")
            a(f"s_bfe_u32 s{sT0}, s2, 0x20001\ns_lshr_b32 s{sROT}, s2, 5\ns_lshl3_add_u32 s{sRT}, s{sT0}, s{sROT}\ns_lshl1_add_u32 s{sROT}, s{sT1}, s{sROT}")
    def final_addr(self, vm, t0, t1):
        a = self.a
        a(f"v_lshrrev_b32 v{t0}, 3, v{vL}\nv_and_b32 v{t1}, 7, v{vL}\nv_lshlrev_b32 v{vXO}, 10, v{t0}\nv_lshl_add_u32 v{vXO}, v{t1}, 4, v{vXO}")
        a(f"s_lshl3_add_u32 s{sT0}, s{sRT}, s{sW}\ns_lshl_b32 s{sT0}, s{sT0}, 13\ns_lshl_b32 s{sT1}, s{sCT}, 7\ns_add_u32 s{sRES}, s{sT0}, s{sT1}")
        if vm is not None: self.xres(vm)
        a(f"v_lshlrev_b32 v{t1}, 1, v{t1}\nv_xor_b32 v{t1}, v{t1}, v{t0}\nv_lshlrev_b32 v{t1}, 4, v{t1}\nv_lshl_add_u32 v{vRR}, v{t0}, 8, v{t1}")
        a(f"s_lshl_b32 s{sT0}, s{sW}, 13\nv_add_u32 v{vRR}, s{sT0}, v{vRR}")

    def xres(self, vm):
        self.a(f"buffer_load_dwordx4 v[{XRES}:{XRES+3}], v{vXO}, s[{S_X}:{S_X+3}], s{sRES} offen"); vm.issue("xres")
    def spin_global(self, name, vaddr, vtmp, soff, imm=0, srd=S_WS):
        a = self.a
        off = f" offset:{imm}" if imm else ""
        a(f"s_mov_b32 s{sSPIN}, 0")
        a.label(f"L_sp{name}")
        a(f"buffer_load_dword v{vtmp}, v{vaddr}, s[{srd}:{srd+3}], s{soff} offen{off} sc1\ns_add_u32 s{sSPIN}, s{sSPIN}, 1\ns_waitcnt vmcnt(0)")
        a(f"v_cmp_ne_u32 vcc, s{sTAG}, v{vtmp}\ns_cmp_gt_u32 s{sSPIN}, 0x8000\ns_cbranch_scc1 L_sd{name}\ns_cbranch_vccz L_sd{name}\ns_sleep {self.o.get('sleep', 2)}\ns_branch L_sp{name}")
        a.label(f"L_sd{name}")
    def spin_lds(self, name, vaddr, vtmp, off):
        a = self.a
        a(f"s_mov_b32 s{sSPIN}, 0")
        a.label(f"L_sp{name}")
        a(f"ds_read_b32 v{vtmp}, v{vaddr} offset:{off}\ns_add_u32 s{sSPIN}, s{sSPIN}, 1\ns_waitcnt lgkmcnt(0)")
        a(f"v_cmp_ne_u32 vcc, 1, v{vtmp}\ns_cmp_gt_u32 s{sSPIN}, 0x40000\ns_cbranch_scc1 L_sd{name}\ns_cbranch_vccnz L_sp{name}")
        a.label(f"L_sd{name}")

    def entry(self):
        a = self.a
        a("s_cmp_ge_u32 s2, 256\ns_cbranch_scc1 L_end")
        a("s_load_dwordx16 s[4:19], s[0:1], 0\ns_load_dwordx4 s[20:23], s[0:1], 64")
        if self.o['pf']:
            a(f"s_getpc_b64 s[{sT0+1}:{sT0+2}]\ns_bfe_u32 s{sT0}, s2, 0x30003\ns_mul_i32 s{sT0}, s{sT0}, 5120\nv_lshlrev_b32 v2, 4, v0\nv_min_u32 v2, 4992, v2\nv_add_u32 v2, s{sT0}, v2")
            a.label("L_pc")
            a(f"v_min_u32 v2, L_codeend-L_pc, v2\ns_mov_b32 exec_lo, 0x01010101\ns_mov_b32 exec_hi, 0x01010101\nglobal_load_dword v251, v2, s[{sT0+1}:{sT0+2}]\ns_mov_b64 exec, -1".replace("0x01010101", self.o.get('pfmask', "0x01010101")))
        if self.stamps:
            a("v_mov_b32 v252, 0\ns_memrealtime s[96:97]")
        a(f"v_lshrrev_b32 v1, 6, v0\nv_and_b32 v{vL}, 63, v0\nv_readfirstlane_b32 s{sW}, v1")
        a(f"s_bfe_u32 s{sT0}, s2, 0x30003\ns_and_b32 s{sT1}, s2, 1\ns_lshl3_add_u32 s{sRB}, s{sT1}, s{sT0}")
        a(f"s_lshr_b32 s{sT1}, s2, 6\ns_bfe_u32 s{sT2}, s2, 0x20001")
        if self.o['g3']: a(f"s_xor_b32 s{sT2}, s{sT2}, 3")
        a(f"s_lshl2_add_u32 s{sG}, s{sT1}, s{sT2}")
        a(f"s_sub_u32 s{sT0}, s{sG}, 8\ns_min_u32 s{sT1}, s{sT0}, 3\ns_mul_i32 s{sC0}, s{sT0}, 5\ns_add_u32 s{sC0}, s{sC0}, s{sT1}")
        a(f"v_lshlrev_b32 v{vL16}, 4, v{vL}")
        a(f"s_cmp_lt_u32 s{sW}, 4\ns_cbranch_scc1 L_C")

    def l_stage(self, vm, t, part=None):
        a = self.a; slot = t % 3
        def xpart():
            a(f"s_add_u32 m0, s{sLX}, {L_X + slot*16384}\ns_lshl_b32 s{sXO}, s{sPH}, 7\ns_add_u32 s{sXO}, s{sXO}, s{sXB}")
            for ii in range(4):
                off = f" offset:{1024*ii}" if ii else ""
                a(f"buffer_load_dwordx4 v{vX+ii}, s[{S_X}:{S_X+3}], s{sXO} offen{off} lds"); vm.issue(f"st{t}")
        if t > 0 and part != 'w': xpart()
        if part == 'x': return
        a(f"s_add_u32 m0, s{sLWB}, {slot*24576}\ns_sub_u32 s{sWO1}, s{sWOF}, s{sWD}\ns_sub_u32 s{sWO2}, s{sWO1}, s{sWD}")
        for rg in range(2):
            if rg: a(f"s_add_u32 m0, s{sLWB}, {slot*24576 + 3072}\ns_nop 0")
            a(f"buffer_load_dwordx4 v{vWv+2*rg}, s[{S_W}:{S_W+3}], s{sWOF} offen lds"); vm.issue(f"st{t}")
            a(f"buffer_load_dwordx4 v{vWv+2*rg}, s[{S_W}:{S_W+3}], s{sWO1} offen offset:1024 lds"); vm.issue(f"st{t}")
            a(f"buffer_load_dwordx4 v{vWv+2*rg+1}, s[{S_W}:{S_W+3}], s{sWO2} offen offset:2048 lds"); vm.issue(f"st{t}" if t or not rg else "st0w")
        if t == 0: xpart()
        if t < 7:
            a(f"s_add_u32 s{sWOF}, s{sWOF}, s{sWSTEP}\ns_add_u32 s{sPH}, s{sPH}, 1\ns_and_b32 s{sPH}, s{sPH}, 7\ns_cselect_b32 s{sT0}, 0, s{sWEND}\ns_sub_u32 s{sWOF}, s{sWOF}, s{sT0}")

    def l_prologue(self, vm):
        a = self.a; T = ACC2
        pm = self.o.get('phmode', 0)
        if pm == 0: a(f"s_bfe_u32 s{sT0}, s2, 0x30003\ns_lshr_b32 s{sT1}, s2, 6\ns_lshl1_add_u32 s{sPH}, s{sT1}, s{sT0}\ns_and_b32 s{sPH}, s{sPH}, 7")
        elif pm == 1: a(f"s_bfe_u32 s{sT0}, s2, 0x30003\ns_bfe_u32 s{sT1}, s2, 0x10006\ns_lshl2_add_u32 s{sPH}, s{sT1}, s{sT0}\ns_and_b32 s{sPH}, s{sPH}, 7")
        elif pm in (2, 3):
            a(f"s_bfe_u32 s{sT0}, s2, 0x30003\ns_bfe_u32 s{sT1}, s2, 0x10006\ns_lshl2_add_u32 s{sPH}, s{sT1}, s{sT0}\ns_lshr_b32 s{sT1}, s2, 7")
            if pm == 3: a(f"s_xor_b32 s{sT1}, s{sT1}, 1")
            a(f"s_add_u32 s{sPH}, s{sPH}, s{sT1}\ns_and_b32 s{sPH}, s{sPH}, 7")
        if self.o.get('ph3'):
            a(f"s_cmp_eq_u32 s{sG}, 3\ns_cselect_b32 s{sT0}, {self.o['ph3']}, 0\ns_add_u32 s{sPH}, s{sPH}, s{sT0}\ns_and_b32 s{sPH}, s{sPH}, 7")
        a(f"s_sub_u32 s{sLW}, s{sW}, 4\ns_movk_i32 s{sPITCH}, 2752\ns_cmp_lt_u32 s{sG}, 8\ns_cselect_b32 s{sPITCH}, 3072, s{sPITCH}")
        a(f"s_cselect_b32 s{sWD}, 0, 896\ns_cselect_b32 s{sT3}, 0, 2048")
        a(f"s_lshl_b32 s{sT0}, s{sG}, 7\ns_lshl_b32 s{sT1}, s{sC0}, 6\ns_cmp_lt_u32 s{sG}, 8\ns_cselect_b32 s{sT5}, s{sT0}, s{sT1}\ns_add_u32 s{sT5}, s{sT5}, s{sT3}")
        a(f"v_lshrrev_b32 v{T}, 4, v{vL}\nv_and_b32 v{T+1}, 7, v{vL}\nv_xor_b32 v{T}, v{T}, v{T+1}\nv_lshlrev_b32 v{T}, 4, v{T}\nv_lshrrev_b32 v{T+2}, 3, v{vL}")
        a(f"v_lshl_add_u32 v{vX}, v{T+2}, 10, v{T}\nv_xor_b32 v{vX+1}, 64, v{vX}\nv_add_u32 v{vX+1}, 7168, v{vX+1}\nv_add_u32 v{vX+2}, 14336, v{vX}\nv_add_u32 v{vX+3}, 14336, v{vX+1}")
        a(f"v_lshrrev_b32 v{T}, 2, v{vL}\nv_and_b32 v{T}, 4, v{T}\nv_xor_b32 v{T}, v{T}, v{T+1}\nv_lshlrev_b32 v{T}, 4, v{T}")
        a(f"s_cmp_ge_u32 s{sG}, 11\ns_cselect_b32 s{sT4}, 64, 128\nv_mad_u32_u24 v{vWv}, v{T+2}, s{sPITCH}, v{T}\nv_cmp_gt_u32 vcc, s{sT4}, v{T}\nv_mov_b32 v{vWv+1}, {OOB}")
        a(f"s_lshl_b32 s{sT0}, s{sPITCH}, 3\nv_cndmask_b32 v{vWv+1}, v{vWv+1}, v{vWv}, vcc\nv_xor_b32 v{vWv+2}, 32, v{vWv}\nv_xor_b32 v{vWv+3}, 32, v{vWv+1}\nv_add_u32 v{vWv+2}, s{sT0}, v{vWv+2}\nv_add_u32 v{vWv+3}, s{sT0}, v{vWv+3}")
        a(f"s_lshl2_add_u32 s{sXB}, s{sRB}, s{sLW}\ns_lshl_b32 s{sXB}, s{sXB}, 15\ns_lshl_b32 s{sWSTEP}, s{sPITCH}, 6\ns_lshl_b32 s{sWEND}, s{sPITCH}, 9")
        a(f"s_lshl2_add_u32 s{sT0}, s{sPH}, s{sLW}\ns_lshl_b32 s{sT0}, s{sT0}, 4\ns_mul_i32 s{sWOF}, s{sT0}, s{sPITCH}\ns_add_u32 s{sWOF}, s{sWOF}, s{sT5}")
        a(f"s_lshl_b32 s{sLX}, s{sLW}, 12\ns_mul_i32 s{sLWB}, s{sLW}, 6144\ns_add_u32 s{sLWB}, s{sLWB}, {L_W}")
        a(f"s_mov_b32 s{S_X+2}, 2097152\ns_mov_b32 s{S_X+3}, 0x20000\ns_add_u32 s{S_W+2}, s{sWEND}, s{sT3}\ns_mov_b32 s{S_W+3}, 0x20000")
        a("s_waitcnt lgkmcnt(0)")
        self.stamp(1)
        a(f"s_load_dword s{sTAG}, s[22:23], {WS_EPOCH}")
        a(f"s_mov_b32 s{S_X}, s4\ns_mov_b32 s{S_X+1}, s5\ns_sub_u32 s12, s12, 2048\ns_subb_u32 s13, s13, 0")
        a(f"s_cmp_lt_u32 s{sG}, 8\ns_cselect_b32 s{S_W}, s6, s12\ns_cselect_b32 s{S_W+1}, s7, s13")
        ml = self.o.get('late')
        if ml:
            a(f"s_cmp_lt_u32 s{sG}, 8\ns_cbranch_scc{0 if ml == 'M' else 1} L_st0a")
            self.l_stage(vm.copy(), 0)
            a.label("L_st0a")
        else: self.l_stage(vm, 0)
        if self.o.get('pst'): self.stamp(40)
        a(f"v_lshrrev_b32 v{T}, 4, v{vL}\nv_lshlrev_b32 v{T}, 1, v{T}\nv_xor_b32 v{T}, v{T}, v{T+1}\nv_lshlrev_b32 v{T}, 4, v{T}\nv_lshl_add_u32 v{vB2D}, v{T+2}, 10, v{T}\nv_add_u32 v{vB2D+1}, 7168, v{vB2D}")
        self.srd(S_WS, 22, WS_SIZE); self.srd(S_W2, 16, 1376*1024); self.srd(S_WO, 8, 512*1024); self.srd(S_OUT, 18, 2097152)
        self.decode2()
        a(f"v_bfe_u32 v{T}, v{vL}, 2, 2\nv_lshrrev_b32 v{T+1}, 1, v{T}\nv_lshlrev_b32 v{T}, 7, v{T}\nv_lshl_add_u32 v{T}, v{T+1}, 6, v{T}")
        a(f"v_bfe_u32 v{T+1}, v{vL}, 4, 1\nv_lshl_add_u32 v{T}, v{T+1}, 5, v{T}\nv_and_b32 v{T+1}, 3, v{vL}\nv_lshl_add_u32 v{T+14}, v{T+1}, 3, v{T}\nv_lshrrev_b32 v{T+15}, 5, v{vL}")
        a(f"s_lshl_b32 s{sB2L}, s{sLW}, 11\nv_lshrrev_b32 v{T}, 2, v{vL}\nv_lshlrev_b32 v{T}, 7, v{T}\nv_lshl_add_u32 v{T}, v{T+1}, 3, v{T}\nv_bfe_u32 v{T+1}, v{vL}, 3, 2\nv_lshl_add_u32 v{T}, v{T+1}, 5, v{T}\nv_add_u32 v{vB2AL[0]}, s{sB2L}, v{T}")
        for j in range(1, 4): a(f"v_xor_b32 v{vB2AL[j]}, {32*j}, v{vB2AL[0]}")
        for k in range(4, 12): a(f"v_add_u32 v{vB2AL[k]}, 65536, v{vB2AL[k-4]}")
        a(f"v_and_b32 v{T}, 31, v{vL}\nv_lshlrev_b32 v{T}, 2, v{T}\nv_add_u32 v{T}, {L_FL}, v{T}\nv_mov_b32 v{T+1}, 0\nds_write_b32 v{T}, v{T+1}")

    def l_colsum_pre(self):
        a = self.a; T = ACC2; S = T + 16
        a(f"s_mul_i32 s{sT0}, s{sLW}, 6144\ns_add_u32 s{sT0}, s{sT0}, {L_W}\nv_mul_u32_u24 v{T}, 3072, v{T+15}\nv_add3_u32 v{T}, v{T}, v{T+14}, s{sT0}")
        a(f"v_lshlrev_b32 v{T+1}, 5, v{T+15}\nv_xor_b32 v{T}, v{T}, v{T+1}\nv_xor_b32 v{T+1}, 64, v{T}")
        a(f"s_mov_b32 s{sT5}, 0x3f803f80")
        for k in range(6): a(f"v_mov_b32 v{S+k}, 0")
        a(f"s_mul_i32 s{sT1}, s{sLW}, 1536\ns_add_u32 s{sT1}, s{sT1}, {L_SLAB}\nv_and_b32 v{T+2}, 31, v{vL}\nv_lshl_add_u32 v{T+2}, v{T+2}, 2, s{sT1}\nv_mul_u32_u24 v{T+3}, 768, v{T+15}\nv_add_u32 v{T+2}, v{T+2}, v{T+3}")
    def l_colsum(self):
        a = self.a; T = ACC2; F = AR; S = T + 16
        for u in range(3):
            for c in range(2):
                for rd in range(2):
                    r = F + 8*u + 4*c + 2*rd
                    a(f"ds_read_b64_tr_b16 v[{r}:{r+1}], v{T+c} offset:{1024*u + 512*rd}")
        if self.o.get('cslate', 0): return
        for half in range(2):
            a(f"s_waitcnt lgkmcnt({6 - 6*half})")
            for k in range(4):
                for uc in range(3*half, 3*half + 3): a(f"v_dot2c_f32_bf16 v{S+uc}, s{sT5}, v{F+4*uc+k}")
        a("s_nop 2")
        for uc in range(6): a(f"ds_write_b32 v{T+2}, v{S+uc} offset:{128*uc}")

    def l_colsum_part(self, half):
        a = self.a; T = ACC2; F = AR; S = T + 16; H = T + 4
        ucs = range(3*half, 3*half + 3)
        for uc in ucs: a(f"v_lshlrev_b32 v{S+uc}, 16, v{F+4*uc}\nv_and_b32 v{H+uc%3}, 0xffff0000, v{F+4*uc}")
        for k in range(1, 4):
            for uc in ucs: a(f"v_lshlrev_b32 v{H+3+uc%3}, 16, v{F+4*uc+k}\nv_and_b32 v{F+4*uc+k}, 0xffff0000, v{F+4*uc+k}")
            for uc in ucs: a(f"v_add_f32 v{S+uc}, v{S+uc}, v{H+3+uc%3}\nv_add_f32 v{H+uc%3}, v{H+uc%3}, v{F+4*uc+k}")
        for uc in ucs: a(f"v_add_f32 v{S+uc}, v{S+uc}, v{H+uc%3}")
        for uc in ucs: a(f"ds_write_b32 v{T+2}, v{S+uc} offset:{128*uc}")

    def wave_sum2(self, v0, v1, t0, t1):
        a = self.a
        for m in ("quad_perm:[1,0,3,2]", "quad_perm:[2,3,0,1]", "row_half_mirror", "row_mirror"):
            a(f"s_nop 0\nv_add_f32_dpp v{v0}, v{v0}, v{v0} {m} row_mask:0xf bank_mask:0xf\nv_add_f32_dpp v{v1}, v{v1}, v{v1} {m} row_mask:0xf bank_mask:0xf")
        for op in ("v_permlane16_swap_b32", "v_permlane32_swap_b32"):
            a(f"v_mov_b32 v{t0}, v{v0}\nv_mov_b32 v{t1}, v{v1}\ns_nop 1\n{op} v{t0}, v{v0}\n{op} v{t1}, v{v1}\ns_nop 0\nv_add_f32 v{v0}, v{v0}, v{t0}\nv_add_f32 v{v1}, v{v1}, v{t1}")

    def c_stats(self, vm):
        a = self.a; T = 160; u = 116
        vm.wait("xrow", lgkm=0)
        if self.o.get('pst'): self.stamp(42)
        self.tag()
        for r in range(2):
            for k in range(4):
                a(f"v_lshlrev_b32 v{u+8*r+2*k}, 16, v{T+4+4*r+k}\nv_and_b32 v{u+8*r+2*k+1}, 0xffff0000, v{T+4+4*r+k}")
        s0, s1 = u + 16, u + 17
        for r, s in ((0, s0), (1, s1)): a(f"v_add_f32 v{s}, v{u+8*r}, v{u+8*r+1}")
        for k in range(2, 8):
            for r, s in ((0, s0), (1, s1)): a(f"v_add_f32 v{s}, v{s}, v{u+8*r+k}")
        self.wave_sum2(s0, s1, u + 40, u + 41)
        G0, G1 = u + 20, u + 24
        a(f"v_mul_f32 v{G0}, {f2u(1/512.):#x}, v{s0}\nv_mul_f32 v{G1}, {f2u(1/512.):#x}, v{s1}")
        for k in range(8):
            a(f"v_sub_f32 v{u+k}, v{u+k}, v{G0}\nv_sub_f32 v{u+8+k}, v{u+8+k}, v{G1}")
        a(f"v_mul_f32 v{s0}, v{u}, v{u}\nv_mul_f32 v{s1}, v{u+8}, v{u+8}")
        for k in range(1, 8): a(f"v_fmac_f32 v{s0}, v{u+k}, v{u+k}\nv_fmac_f32 v{s1}, v{u+8+k}, v{u+8+k}")
        self.wave_sum2(s0, s1, u + 40, u + 41)
        a(f"v_mov_b32 v{u}, {f2u(1e-5):#x}\nv_mov_b32 v{u+1}, {f2u(1e-5):#x}\nv_fmac_f32 v{u}, {f2u(1/512.):#x}, v{s0}\nv_fmac_f32 v{u+1}, {f2u(1/512.):#x}, v{s1}")
        a(f"v_rsq_f32 v{u}, v{u}\nv_rsq_f32 v{u+1}, v{u+1}\nv_mov_b32 v{G0+2}, 0\nv_mov_b32 v{G0+3}, s{sTAG}\nv_mov_b32 v{G1+2}, 0\nv_mov_b32 v{G1+3}, s{sTAG}")
        a(f"v_mul_f32 v{G0+1}, {f2u(LOG2E):#x}, v{u}\nv_mul_f32 v{G1+1}, {f2u(LOG2E):#x}, v{u+1}")
        self.lane0(u + 2)
        a(f"buffer_store_dwordx4 v[{G0}:{G0+3}], v{u+2}, s[{S_WS}:{S_WS+3}], s{sE} offen sc1"); vm.issue("statst")
        a(f"buffer_store_dwordx4 v[{G1}:{G1+3}], v{u+2}, s[{S_WS}:{S_WS+3}], s{sE} offen offset:16 sc1"); vm.issue("statst")
        if self.o.get('pst'): self.stamp(43)
        vm.wait("bias")
        a(f"v_lshlrev_b32 v{u+3}, 16, v{T+12}\nv_mul_f32 v{u+3}, {f2u(LOG2E):#x}, v{u+3}\nv_lshlrev_b32 v{u+4}, 2, v{T+13}\nv_add_u32 v{u+4}, {L_BT}, v{u+4}")
        a(f"s_cmp_eq_u32 s{sW}, 3\ns_cbranch_scc1 L_nobt\nds_write_b32 v{u+4}, v{u+3}")
        a.label("L_nobt")

    def l_cspub(self, vm, vi):
        a = self.a; T = ACC2 + 24; U = B2R
        a(f"s_mov_b32 s{sT0}, {OOB}\ns_cmp_lg_u32 s{sLW}, 0\ns_cbranch_scc1 L_nocsp{vi}")
        a(f"v_lshlrev_b32 v{T}, 2, v{vL}\nv_add_u32 v{T}, {L_SLAB}, v{T}")
        for k in range(0, 24, 2): a(f"ds_read2st64_b32 v[{U+k}:{U+k+1}], v{T} offset0:{k} offset1:{k+1}")
        a(f"v_mov_b32 v{T+3}, s{sTAG}")
        a(f"s_lshl4_add_u32 s{sT0}, s{sG}, s{sRB}\ns_lshl_b32 s{sT0}, s{sT0}, 10\ns_add_u32 s{sT0}, s{sT0}, {WS_CSP}")
        a("s_waitcnt lgkmcnt(0)")
        for sl in range(1, 7):
            for u in range(3): a(f"v_add_f32 v{U+u}, v{U+u}, v{U+3*sl+u}")
        for u in range(3): a(f"v_add_f32 v{T+u}, v{U+u}, v{U+21+u}")
        a.label(f"L_nocsp{vi}")
        a(f"buffer_store_dwordx4 v[{T}:{T+3}], v{vL16}, s[{S_WS}:{S_WS+3}], s{sT0} offen sc1"); vm.issue("cspst")

    def l_steptable(self):
        a = self.a
        a("s_waitcnt lgkmcnt(0)")
        a(f"s_mul_i32 s{sT0}, s{sROT}, 3\ns_lshr_b32 s{sT0}, s{sT0}, 1\ns_sub_u32 s{sT1}, s{sT0}, 11\ns_cmp_ge_u32 s{sT0}, 11\ns_cselect_b32 s{sT0}, s{sT1}, s{sT0}")
        a(f"s_mul_i32 s{sT3}, s{sLW}, 11\ns_add_u32 s{sT4}, s{sT3}, 11\ns_add_u32 s{sT0}, s{sT0}, s{sT3}")
        for i in range(11):
            a(f"s_lshl_b32 s{SP[i]}, s{sT0}, 10\ns_cmp_ge_u32 s{sT0}, 43\ns_cselect_b32 s{SP[i]}, {WS_SIZE}, s{SP[i]}")
            if i < 10: a(f"s_add_u32 s{sT0}, s{sT0}, 1\ns_cmp_eq_u32 s{sT0}, s{sT4}\ns_cselect_b32 s{sT0}, s{sT3}, s{sT0}")
        a(f"s_lshl_b32 s{sT3}, s{sLW}, 2\ns_add_u32 s{sT3}, s{sT3}, 44")
        for j in range(4):
            a(f"s_add_u32 s{sT0}, s{sROT}, {j}\ns_and_b32 s{sT0}, s{sT0}, 3\ns_add_u32 s{sT0}, s{sT0}, s{sT3}\ns_lshl_b32 s{SP[11+j]}, s{sT0}, 10")
        a(f"s_lshl_b32 s{SP[15]}, s{sCT}, 7\ns_add_u32 s{SP[16]}, s{SP[15]}, 16384\ns_sub_u32 s{SP[17]}, s{SP[15]}, {44*32768}\ns_add_u32 s{SP[18]}, s{SP[17]}, 16384")
        a(f"s_mul_i32 s{sA2B}, s{sRT}, {4*A2_RT}\ns_add_u32 s{sA2B}, s{sA2B}, {WS_A2}")
        for k in range(1, 4): a(f"v_add_u32 v{vAO[k]}, {k*A2_RT}, v{vL16}")

    def l_gather_addr(self):
        a = self.a; T = ACC2 + 40; sT4, sT5 = 86, 87
        a(f"s_lshl2_add_u32 s{sT4}, s{sRB}, s{sLW}\ns_lshl_b32 s{sT4}, s{sT4}, 9\ns_add_u32 s{sT4}, s{sT4}, {WS_STATS}")
        a(f"s_and_b32 s{sT5}, s{sRB}, 8\ns_lshl4_add_u32 s{sT5}, s{sG}, s{sT5}\ns_lshl2_add_u32 s{sT5}, s{sT5}, s{sLW}\ns_lshl_b32 s{sT5}, s{sT5}, 8\ns_add_u32 s{sT5}, s{sT5}, {WS_CSP}")
        a(f"v_and_b32 v{T}, 0x1f0, v{vL16}\nv_lshrrev_b32 v{T+1}, 4, v{vL}\nv_lshlrev_b32 v{T+1}, 10, v{T+1}\nv_and_b32 v{T+2}, 0xf0, v{vL16}\nv_or_b32 v{T+1}, v{T+1}, v{T+2}\nv_add_u32 v{T+2}, 4096, v{T+1}")
    def l_gather_issue(self, vm):
        a = self.a; T = ACC2 + 40; G = AR; sT4, sT5 = 86, 87
        a(f"buffer_load_dwordx4 v[{G}:{G+3}], v{T}, s[{S_WS}:{S_WS+3}], s{sT4} offen sc1"); vm.issue("gath")
        a(f"buffer_load_dwordx4 v[{G+4}:{G+7}], v{T+1}, s[{S_WS}:{S_WS+3}], s{sT5} offen sc1"); vm.issue("gath")
        a(f"buffer_load_dwordx4 v[{G+8}:{G+11}], v{T+2}, s[{S_WS}:{S_WS+3}], s{sT5} offen sc1"); vm.issue("gath")
    def l_gather_check(self, vm, vi):
        a = self.a; T = ACC2; G = AR
        vm.wait("gath")
        a(f"s_mov_b32 s{sSPIN}, 0")
        a.label(f"L_gchk{vi}")
        a(f"v_cmp_ne_u32 vcc, s{sTAG}, v{G+3}\nv_cmp_ne_u32 s[70:71], s{sTAG}, v{G+7}\ns_nop 1\ns_or_b64 s[70:71], vcc, s[70:71]")
        a(f"v_cmp_ne_u32 vcc, s{sTAG}, v{G+11}\ns_nop 1\ns_or_b64 vcc, vcc, s[70:71]")
        a(f"s_cbranch_vccz L_gok{vi}")
        a(f"s_add_u32 s{sSPIN}, s{sSPIN}, 1\ns_cmp_gt_u32 s{sSPIN}, 0x8000\ns_cbranch_scc1 L_gok{vi}")
        self.l_gather_issue(VM(a))
        a(f"s_waitcnt vmcnt(0)\ns_branch L_gchk{vi}")
        a.label(f"L_gok{vi}")
        a(f"s_lshl_b32 s{sT0}, s{sLW}, 7\ns_add_u32 s{sT0}, s{sT0}, {L_MT}\nv_and_b32 v{T}, 31, v{vL}\nv_lshl_add_u32 v{T}, v{T}, 2, s{sT0}")
        a(f"ds_write_b32 v{T}, v{G}\nds_write_b32 v{T}, v{G+1} offset:512")
    def l_w2touch(self, vm):
        a = self.a; T = ACC2 + 8
        a(f"s_lshl2_add_u32 s{sT0}, s2, s{sLW}\ns_lshl_b32 s{sT1}, s{sT0}, 9\ns_mul_i32 s{sT0}, s{sT0}, 1408\nv_lshlrev_b32 v{T}, 7, v{vL}\ns_mov_b64 exec, 0x7ff")
        a(f"buffer_load_dword v{T+1}, v{T}, s[{S_W2}:{S_W2+3}], s{sT0} offen\ns_mov_b64 exec, 0xf"); vm.issue("w2t")
        a(f"buffer_load_dword v{T+2}, v{T}, s[{S_WO}:{S_WO+3}], s{sT1} offen\ns_mov_b64 exec, -1"); vm.issue("w2t")
    def l_gather_cs(self):
        a = self.a; T = ACC2; G = AR
        for k in range(3): a(f"v_add_f32 v{G+4+k}, v{G+4+k}, v{G+8+k}")
        for op in ("v_permlane16_swap_b32", "v_permlane32_swap_b32"):
            for k in range(3): a(f"v_mov_b32 v{G+8+k}, v{G+4+k}")
            a("s_nop 0")
            for k in range(3): a(f"{op} v{G+8+k}, v{G+4+k}")
            a("s_nop 0")
            for k in range(3): a(f"v_add_f32 v{G+4+k}, v{G+4+k}, v{G+8+k}")
        a(f"s_lshl_b32 s{sT0}, s{sLW}, 6\ns_add_u32 s{sT0}, s{sT0}, {L_CS}\nv_lshl_add_u32 v{T+1}, v{vL}, 2, s{sT0}\ns_mov_b64 exec, 0xffff")
        a(f"ds_write2st64_b32 v{T+1}, v{G+4}, v{G+5} offset1:1\nds_write_b32 v{T+1}, v{G+6} offset:512\ns_mov_b64 exec, -1")

    def b2_dma(self, vm, step, pace=True):
        a = self.a
        if pace: vm.depth((self.o['pace'] if pace is True else pace) - 2)
        srd, base = (S_W2, SP[15 + (step & 1)]) if step < 22 else (S_WO, SP[17 + (step & 1)])
        a(f"s_lshl_b32 s{sT0}, s{SP[step // 2]}, 5\ns_add_u32 m0, s{sB2L}, {8192*round_of(step)}\ns_add_u32 s{sT0}, s{sT0}, s{base}")
        a(f"buffer_load_dwordx4 v{vB2D}, s[{srd}:{srd+3}], s{sT0} offen lds"); vm.issue(f"b2_{step}")
        a(f"buffer_load_dwordx4 v{vB2D+1}, s[{srd}:{srd+3}], s{sT0} offen offset:1024 lds"); vm.issue(f"b2_{step}")
        if self.o.get('b2stamps'): self.stamp(20 + step)
    def b2_read_list(self, s, dst):
        rnd = round_of(s); hi, lo = rnd // 8, rnd % 8
        return [f"ds_read_b64_tr_b16 v[{dst+4*j+2*(s&1)}:{dst+4*j+2*(s&1)+1}], v{vB2AL[4*hi + j]} offset:{8192*lo}" for j in range(4)]
    def b2_reads(self, s, dst):
        for r in self.b2_read_list(s, dst): self.a(r)

    def l_main(self):
        a = self.a; vm = VM(a); T = ACC2
        if self.o['pf']: vm.issue("codepf")
        self.l_prologue(vm)
        if self.o['spf']:
            a(f"s_lshr_b32 s{sT0}, s2, 3\ns_lshl2_add_u32 s{sT0}, s{sT0}, s{sLW}\ns_mul_i32 s{sT0}, s{sT0}, {64*self.o['spf']}\ns_add_u32 s94, s16, s{sT0}\ns_addc_u32 s95, s17, 0\ns_and_b32 s84, s2, 7")
        if self.o.get('stouch'):
            a(f"s_lshl2_add_u32 s{sT0}, s2, s{sLW}\ns_mul_i32 s{sT1}, s{sT0}, 1376\ns_and_b32 s{sT1}, s{sT1}, 0xffffffc0\ns_add_u32 s94, s16, s{sT1}\ns_addc_u32 s95, s17, 0")
            a(f"s_lshl_b32 s{sT0}, s{sT0}, 9\ns_add_u32 s98, s8, s{sT0}\ns_addc_u32 s99, s9, 0")
        self.l_steptable()
        if self.o.get('late') and self.o.get('late_at', 1) == 0:
            a(f"s_cmp_lt_u32 s{sG}, 8\ns_cbranch_scc{1 if self.o['late'] == 'M' else 0} L_st0b")
            self.l_stage(vm, 0)
            a.label("L_st0b")
        self.tag(); self.l_gather_addr()
        a(f"v_and_b32 v{T}, 7, v{vL}\nv_lshrrev_b32 v{T+1}, 4, v{vL}\nv_xor_b32 v{T+1}, v{T+1}, v{T}\nv_lshlrev_b32 v{T+1}, 4, v{T+1}\nv_lshl_add_u32 v{T+1}, v{T}, 8, v{T+1}")
        a(f"v_bfe_u32 v{T}, v{vL}, 3, 1\nv_lshl_add_u32 v{T+1}, v{T}, 13, v{T+1}\nv_add_u32 v254, s{sB2L}, v{T+1}")
        vP0, vP2, vPT = 249, 250, 251
        a(f"s_lshl_b32 s54, s{sRT}, 12\ns_add_u32 s54, s54, {WS_FLAG}")
        a(f"v_and_b32 v{vP0}, 3, v{vL}\ns_lshl_b32 s{sT0}, s{sLW}, 2\nv_add_u32 v{vP0}, s{sT0}, v{vP0}\nv_lshlrev_b32 v{vP0}, 7, v{vP0}")
        if not self.o['classes'] and self.o.get('psub', 1):
            a(f"s_lshl_b32 s{sT0}, s{sLW}, 3\ns_or_b32 s{sT0}, s{sT0}, 0x80000\ns_bfe_u32 s{sT1}, 0x0c060200, s{sT0}\ns_bfe_u32 s{sT0}, 0x03050503, s{sT0}")
            a(f"v_min_u32 v{vP2}, s{sT0}, v{vL}\nv_add_u32 v{vP2}, s{sT1}, v{vP2}\nv_lshlrev_b32 v{vP2}, 7, v{vP2}")
        elif not self.o['classes']:
            a(f"v_and_b32 v{vP2}, 15, v{vL}\nv_lshlrev_b32 v{vP2}, 7, v{vP2}")
        else:
            a(f"v_and_b32 v{vP2}, 3, v{vL}\nv_min_u32 v{vP2}, 2, v{vP2}")
            a(f"s_mul_i32 s{sT0}, s{sLW}, 3\ns_mul_i32 s{sT1}, s{sLW}, 6\ns_sub_u32 s{sT1}, s{sT1}, 6\ns_cmp_lt_u32 s{sLW}, 2\ns_cselect_b32 s{sT0}, s{sT0}, s{sT1}\ns_cselect_b32 s{sT1}, 0, 1")
            a(f"v_lshlrev_b32 v{vP2}, s{sT1}, v{vP2}\nv_add_u32 v{vP2}, s{sT0}, v{vP2}\nv_min_u32 v{vP2}, 14, v{vP2}\nv_lshlrev_b32 v{vP2}, 7, v{vP2}")
        vA = vP0 if self.o['classes'] else vP2
        self.final_addr(None, T, T + 1)
        a(f"v_and_b32 v255, 3, v{vL}\nv_lshlrev_b32 v255, 2, v255\nv_add_u32 v255, {L_FL}, v255")
        a(f"s_mul_i32 s{sT0}, s{sLW}, 3072\ns_add_u32 s{sT0}, s{sT0}, {L_KV + 12}\nv_add_u32 v{T}, s{sT0}, v{vL16}\ns_not_b32 s{sT0}, s{sTAG}\nv_mov_b32 v{T+1}, s{sT0}")
        for k in range(3): a(f"ds_write_b32 v{T}, v{T+1} offset:{1024*k}")
        self.l_colsum_pre()
        if self.o.get('late') and self.o.get('late_at', 1) == 1:
            a(f"s_cmp_lt_u32 s{sG}, 8\ns_cbranch_scc{1 if self.o['late'] == 'M' else 0} L_st0b")
            self.l_stage(vm, 0)
            a.label("L_st0b")
        if self.o.get('pst'): self.stamp(41)
        vm.depth(self.o.get('st1_at', 8))
        if self.o.get('pst'): self.stamp(42)
        self.l_stage(vm, 1, 'x' if self.o.get('split1', 0) else None)
        if self.o.get('pst'): self.stamp(43)
        if self.o.get('w2pf', -1) == -1: self.l_w2touch(vm)
        vm.wait("st0w")
        self.l_colsum()
        CL = self.o.get('cl') or [{}]
        TV = B2R + 40
        if len(CL) > 1 or CL[0]:
            a(f"s_lshr_b32 s{sT0}, s2, 3\ns_lshl2_add_u32 s{sT0}, s{sT0}, s{sLW}\ns_mul_i32 s{sT0}, s{sT0}, 118")
            a(f"v_min_u32 v{TV}, 58, v{vL}\nv_add_u32 v{TV}, s{sT0}, v{TV}\nv_lshlrev_b32 v{TV}, 7, v{TV}\nv_add_u32 v{TV+1}, {59*128}, v{TV}")
            a(f"v_subrev_u32 v{TV+2}, {1376*1024}, v{TV}\nv_subrev_u32 v{TV+3}, {1376*1024}, v{TV+1}\ns_and_b32 s84, s{sCT}, {len(CL)-1}")
        def touch(vm, k):
            a(f"buffer_load_dword v{TV+4}, v{TV+k}, s[{S_W2}:{S_W2+3}], 0 offen"); vm.issue("tch")
            a(f"buffer_load_dword v{TV+5}, v{TV+2+k}, s[{S_WO}:{S_WO+3}], 0 offen"); vm.issue("tch")
        base = vm; ends = []
        for vi, var in enumerate(CL):
            vm = base.copy()
            if vi + 1 < len(CL): a(f"s_cmp_lg_u32 s84, {vi}\ns_cbranch_scc1 L_var{vi}")
            for t in range(8):
                vm.wait(f"st{t}", lgkm=None if ((self.o['spf'] or self.o.get('stouch')) and 1 <= t <= 6) else 0)
                if self.o.get('pst') and t < 2: self.stamp(44 + t)
                a("s_barrier")
                if self.o['kstamps'] or t in (0, 7): self.stamp(2 + t)
                if t == 0 and self.o.get('split1', 0): self.l_stage(vm, 1, 'w')
                if t + 2 < 8: self.l_stage(vm, t + 2)
                for k in var.get(t, []): touch(vm, k)
                if self.o.get('cslate', 0):
                    if t < 2: self.l_colsum_part(t)
                    if t == 2: self.l_cspub(vm, vi)
                elif t == 0: self.l_cspub(vm, vi)
                if self.o['spf'] and t in self.o.get('spf_t', range(0, 6)):
                    n = self.o['spf']; assert 128*64*n <= 234752
                    a(f"s_add_u32 s84, s84, 1\ns_sub_u32 s{sT0}, s84, 6\ns_cmp_ge_u32 s84, 6\ns_cselect_b32 s84, s{sT0}, s84\ns_mul_i32 s{sT0}, s84, 234752\ns_add_u32 s98, s94, s{sT0}\ns_addc_u32 s99, s95, 0")
                    for k in range(n): a(f"s_load_dword s54, s[98:99], {64*k}")
                if self.o.get('stouch'):
                    n, t0 = self.o['stouch']
                    lst = [("94:95", 64*k) for k in range(22)] + [("98:99", 64*k) for k in range(8)]
                    if t >= t0:
                        for p, off in lst[n*(t - t0):n*(t - t0 + 1)]: a(f"s_load_dword s84, s[{p}], {off}")
                if t == self.o.get('a2touch', -9):
                    a(f"s_lshl2_add_u32 s{sT0}, s{sRB}, s{sLW}\ns_mul_i32 s{sT0}, s{sT0}, {A2_RT}\ns_lshl_b32 s{sT1}, s{sC0}, 11\ns_lshl_b32 s{sT2}, s{sG}, 12\ns_add_u32 s{sT2}, s{sT2}, {88*1024}")
                    a(f"s_cmp_lt_u32 s{sG}, 8\ns_cselect_b32 s{sT1}, s{sT2}, s{sT1}\ns_cselect_b32 s{sT2}, {OOB}, 8192\ns_cselect_b32 exec_hi, 0, -1\ns_add_u32 s{sT0}, s{sT0}, s{sT1}\ns_add_u32 s{sT0}, s{sT0}, {WS_A2}\ns_add_u32 s{sT2}, s{sT2}, s{sT0}")
                    a(f"v_lshlrev_b32 v{T+8}, 7, v{vL}\nbuffer_load_dword v{T+9}, v{T+8}, s[{S_WS}:{S_WS+3}], s{sT0} offen\ns_mov_b32 exec_hi, 0\nbuffer_load_dword v{T+10}, v{T+8}, s[{S_WS}:{S_WS+3}], s{sT2} offen\ns_mov_b64 exec, -1")
                    vm.issue("a2t"); vm.issue("a2t")
                if t == 5: self.l_gather_issue(vm)
                if t == self.o.get('w2pf', -1): self.l_w2touch(vm)
                if t == 6:
                    for s in range(self.o['n0']): self.b2_dma(vm, s, pace=False)
                    self.l_gather_check(vm, vi); self.l_gather_cs()
            ends.append(list(vm.q))
            if vi + 1 < len(CL):
                a("s_branch L_varend"); a.label(f"L_var{vi}")
        assert all(e == ends[0] for e in ends)
        a.label("L_varend")
        for s in range(self.o['n0'], 7): self.b2_dma(vm, s, pace=False)
        def park(k):
            vm.wait(f"b2_{k}")
            self.b2_reads(k, B2R + 16*(k // 2))
        ep = self.o.get('epark', 1); done = 0
        for s in range(7, 18):
            if s == 13: self.spin_lds("ring", 255, T + 1, 0)
            self.b2_dma(vm, s)
            if ep and s - 6 > done:
                park(done); done += 1
        self.stamp(10)
        for k in range(done, 12):
            park(k)
            if k > 1: a("s_waitcnt lgkmcnt(8)")
        a(f"v_xor_b32 v253, 64, v254")
        a("s_waitcnt lgkmcnt(0)")
        if self.o.get('mix', 0):
            a(f"s_cmp_lt_u32 s{sG}, 8\ns_cbranch_scc1 L_p2att")
            self.l_phase2(vm.copy(), "M", True, vP0, vP2, vPT, vA)
            a.label("L_p2att")
        self.l_phase2(vm.copy(), "A", False, vP0, vP2, vPT, vA)

    def l_phase2(self, vm, sfx, mix, vP0, vP2, vPT, vA):
        a = self.a; T = ACC2
        polls = {0: (vA, 2048), 11: (vP0, 0)}
        free = [AR + 16*k for k in range(3)]; slot = {}; bslot = {i: B2R + 16*i for i in range(NREG // 2)}
        def a_one(i, t):
            if t == 0:
                slot[i] = free.pop(0)
                a(f"s_add_u32 s{sT0}, s{sA2B}, s{SP[i]}")
            r = slot[i] + 4*t
            a(f"buffer_load_dwordx4 v[{r}:{r+3}], v{vAO[t]}, s[{S_WS}:{S_WS+3}], s{sT0} offen sc1"); vm.issue(f"a{i}_{t}")
        def poll_issue(c):
            v, imm = polls[c]
            off = f" offset:{imm}" if imm else ""
            a(f"buffer_load_dword v{vPT}, v{v}, s[{S_WS}:{S_WS+3}], s54 offen{off} sc1"); vm.issue(f"p{c}")
        def poll_check(c):
            v, imm = polls[c]
            vm.wait(f"p{c}")
            a(f"v_cmp_ne_u32 vcc, s{sTAG}, v{vPT}\ns_cbranch_vccz L_pok{c}{sfx}")
            self.spin_global(f"p{c}{sfx}", v, vPT, 54, imm)
            a.label(f"L_pok{c}{sfx}")
            self.stamp({0: 12, 11: 15}[c])
        pre = self.o.get('mixpre', 12) if mix else 12
        if pre: self.spin_lds("hold" + sfx, 255, T + 1, 64)
        self.stamp(13)
        a(f"s_lshl_b32 s{sT0}, s{sLW}, 2\ns_add_u32 s{sT0}, s{sT0}, {L_FL + 96}\nv_mov_b32 v{T+2}, s{sT0}\nv_mov_b32 v{T+3}, 1")
        for s in range(18, 18 + pre):
            self.b2_dma(vm, s, pace=self.o.get('pace2', 10))
            if s == self.o.get('pw_at', 25) and not mix:
                if s == 29: vm.depth(self.o['pollwait'] - 1)
                a(f"ds_write_b32 v{T+2}, v{T+3}")
        self.spin_lds("hold2" + sfx, 255, T + 1, 112)
        poll_issue(0)
        nxt = 18 + pre
        for k in range(0):
            if nxt < 30: self.b2_dma(vm, nxt, pace=False); nxt += 1
        self.stamp(11)
        poll_check(0)
        a("s_setprio 1")
        self.xres(vm)
        D0, D1, DS = self.o.get('dM' if mix else 'dA', (10, 10, 0))
        D4 = D0
        LEAD = self.o.get('lead', 4)
        todo = [(i, t) for i in range(15) for t in range(4)]; nxt = 0
        def issue_next():
            nonlocal nxt
            i, t = todo[nxt]
            if (i, t) == (11, 0): poll_check(11)
            a_one(i, t); nxt += 1
            if nxt == 44 - LEAD: poll_issue(11)
        for k in range(D4): issue_next()
        for i in range(15):
            if i >= DS: D4 = D1
            R = []
            if NREG // 2 <= i + 1 < 15:
                bslot[i + 1] = free.pop(0)
                vm.wait(f"b2_{2*i+3}")
                R = self.b2_read_list(2*i + 2, bslot[i + 1]) + self.b2_read_list(2*i + 3, bslot[i + 1])
            if i >= NREG // 2: a("s_waitcnt lgkmcnt(0)")
            if self.o.get('astamps'): self.stamp(20 + i)
            for t in range(4):
                vm.wait(f"a{i}_{t}")
                for jj in range(4):
                    j = 3 - jj if t & 1 else jj
                    A = ACC2 + 16*t + 4*j; acc = f"v[{A}:{A+3}]"
                    a(f"v_mfma_f32_16x16x32_bf16 {acc}, v[{bslot[i]+4*j}:{bslot[i]+4*j+3}], v[{slot[i]+4*t}:{slot[i]+4*t+3}], {'0' if i == 0 else acc}")
                    if jj < 3 and t < 3 and R: a(R.pop(0))
                    if jj in (0, 2) and nxt < min(60, 4*i + t + D4 + jj // 2) and (todo[nxt][1] or free): issue_next()
            free.append(slot[i]); free.append(bslot[i])
        assert nxt == 60
        self.stamp(16)
        a("s_nop 3")
        for t in range(4):
            for j in range(4):
                r = ACC2 + 16*t + 4*j
                a(f"ds_write_b128 v{253 if j & 1 else 254}, v[{r}:{r+3}] offset:{16384*t + 128*(j >> 1)}")
        a("s_branch L_final")

    def c_prologue(self, vm):
        a = self.a; T = CT
        a("s_waitcnt lgkmcnt(0)")
        if self.o.get('pst'): self.stamp(40)
        a(f"s_load_dword s{sTAG}, s[22:23], {WS_EPOCH}")
        self.srd(S_X, 4, 2097152)
        X = 160
        a(f"s_lshl4_add_u32 s{sT0}, s{sRB}, s{sG}\ns_lshl2_add_u32 s{sT5}, s{sT0}, s{sW}\ns_lshl_b32 s{sT0}, s{sT5}, 11")
        a(f"buffer_load_dwordx4 v[{X+4}:{X+7}], v{vL16}, s[{S_X}:{S_X+3}], s{sT0} offen"); vm.issue("xrow")
        a(f"buffer_load_dwordx4 v[{X+8}:{X+11}], v{vL16}, s[{S_X}:{S_X+3}], s{sT0} offen offset:1024"); vm.issue("xrow")
        a(f"s_lshl_b32 s{sE}, s{sT5}, 5\ns_add_u32 s{sE}, s{sE}, {WS_STATS}")
        self.srd(S_B1, 14, 2752)
        a(f"v_lshl_add_u32 v{X+13}, s{sW}, 6, v{vL}\nv_lshlrev_b32 v{X+3}, 1, v{X+13}")
        a(f"s_lshl_b32 s{sT0}, s{sC0}, 6\ns_cmp_lt_u32 s{sG}, 8\ns_cselect_b32 s{sT0}, {OOB}, s{sT0}")
        a(f"buffer_load_ushort v{X+12}, v{X+3}, s[{S_B1}:{S_B1+3}], s{sT0} offen"); vm.issue("bias")
        a(f"s_and_b32 s{sR2}, s{sW}, 1\ns_lshr_b32 s{sC}, s{sW}, 1")
        a(f"v_and_b32 v{T+2}, 15, v{vL}\nv_lshrrev_b32 v{T+3}, 4, v{vL}\nv_lshrrev_b32 v{T+4}, 1, v{T+2}\nv_xor_b32 v{T+4}, v{T+4}, v{T+3}")
        a(f"s_lshl_b32 s{sT3}, s{sR2}, 13\nv_lshlrev_b32 v{T+5}, 7, v{T+2}\nv_lshl_add_u32 v{T+5}, v{T+4}, 4, v{T+5}\nv_add_u32 v{vXA}, s{sT3}, v{T+5}\nv_xor_b32 v{vXA+1}, 64, v{vXA}")
        a(f"v_and_b32 v{T+4}, 3, v{vL}\nv_lshlrev_b32 v{T+4}, 3, v{T+4}\nv_bfe_u32 v{T+5}, v{vL}, 3, 1\nv_xor_b32 v{T+5}, s{sC}, v{T+5}\nv_lshl_add_u32 v{T+4}, v{T+5}, 6, v{T+4}")
        a(f"v_and_b32 v{T+6}, 1, v{T+3}\nv_lshl_add_u32 v{T+4}, v{T+6}, 5, v{T+4}")
        a(f"v_bfe_u32 v{T+5}, v{vL}, 2, 2\nv_lshl_add_u32 v{T+4}, v{T+5}, 7, v{T+4}\nv_mul_u32_u24 v{T+5}, 3072, v{T+3}\nv_add_u32 v{T+4}, v{T+4}, v{T+5}")
        a(f"v_add_u32 v{vWA}, {L_W}, v{T+4}\nv_xor_b32 v{vWA+1}, 32, v{vWA}")
        a(f"s_lshl_b32 s{sT0}, s{sR2}, 8\ns_add_u32 s{sT0}, s{sT0}, {L_MT}\nv_lshl_add_u32 v{T+19}, v{T+3}, 4, s{sT0}\nv_lshl_add_u32 v{T+23}, v{T+2}, 2, s{sT0}")
        a(f"s_lshl_b32 s{sT0}, s{sC}, 7\ns_add_u32 s{sT0}, s{sT0}, {L_TAB}\nv_lshl_add_u32 v{T+22}, v{T+2}, 2, s{sT0}\nv_lshl_add_u32 v{T+18}, v{T+3}, 4, s{sT0}")
        self.decode2()
        self.srd(S_WS, 22, WS_SIZE); self.srd(S_OUT, 18, 2097152)
        a(f"s_lshl1_add_u32 s{sT0}, s{sRB}, s{sR2}\ns_mul_i32 s{sA2B}, s{sT0}, {4*A2_RT}\ns_add_u32 s{sA2B}, s{sA2B}, {WS_A2}")
        a(f"s_lshl4_add_u32 s{sT0}, s{sT0}, s{sG}\ns_lshl1_add_u32 s{sT0}, s{sT0}, s{sC}\ns_lshl_b32 s{sFL}, s{sT0}, 7\ns_add_u32 s{sFL}, s{sFL}, {WS_FLAG}")
        for k in range(1, 4): a(f"v_add_u32 v{vCO[k]}, {k*A2_RT}, v{vL16}")
        self.consts()
        a(f"s_lshl_b32 s{sT0}, s{sW}, 2\ns_add_u32 s{sT0}, s{sT0}, {L_FL}\nv_mov_b32 v14, s{sT0}\nv_mov_b32 v15, 1")
        if self.o.get('pst'): self.stamp(41)
        self.c_stats(vm)
        self.flag_regs()
        if self.o['cprio']: a(f"s_setprio {self.o['cprio']}")

    def c_read_list(self, n):
        t, kk = n // 2, n % 2; slot = t % 3; F = FR + 40*(n & 1)
        def x(a_): return f"ds_read_b128 v[{F+4*a_}:{F+4*a_+3}], v{vXA+kk} offset:{slot*16384 + 2048*a_}"
        def w(f):
            u, fp = f // 2, f % 2; r = F + 16 + 4*f
            return [f"ds_read_b64_tr_b16 v[{r+2*rd}:{r+2*rd+1}], v{vWA+fp} offset:{slot*24576 + 12288*kk + 1024*u + 512*rd}" for rd in range(2)]
        return [x(0)] + w(0) + [x(1), x(2), x(3)] + w(1) + w(2) + w(3) + w(4) + w(5)
    def c_mfma(self, n, f, a_, att):
        F = FR + 40*(n & 1); u, fp = f // 2, f % 2
        x = f"v[{F+4*a_}:{F+4*a_+3}]"; w = f"v[{F+16+4*f}:{F+19+4*f}]"
        A = ACC + 32*u + 8*a_ + 4*fp; acc = f"v[{A}:{A+3}]"; c = "0" if n == 0 else acc
        if att and u > 0: return f"v_mfma_f32_16x16x32_bf16 {acc}, {x}, {w}, {c}"
        return f"v_mfma_f32_16x16x32_bf16 {acc}, {w}, {x}, {c}"

    def c_kloop(self, att, short=False):
        a = self.a; nr = 12 if short else 16
        a("s_waitcnt lgkmcnt(0)\ns_barrier")
        self.stamp(2)
        for r in self.c_read_list(0)[:nr]: a(r)
        for n in range(16):
            boundary = (n % 2 == 1)
            if boundary:
                a("s_waitcnt lgkmcnt(0)")
                if n < 15:
                    a("s_barrier")
                    if self.o['kstamps'] == 2: self.stamp(3 + n // 2)
                else:
                    a(f"ds_write_b32 v14, v15")
            R = self.c_read_list(n + 1)[:nr] if n < 15 else (self.att_pre if att else self.mlp_pre)()
            need = {0: 3, 1: 6, 4: 8, 8: 10, 12: 12, 16: 14, 20: 16}
            issued = 0
            for k in range(16 if short else 24):
                f, a_ = k // 4, k % 4
                if f % 2 and self.o.get('snake', 1): a_ = 3 - a_
                if not boundary and k in need: a(f"s_waitcnt lgkmcnt({min(15, nr - need[k] + issued)})")
                a(self.c_mfma(n, f, a_, att))
                if issued < len(R): a(R[issued]); issued += 1
        self.stamp(10)

    def consts(self):
        T = CT
        self.a(f"v_mov_b32 v{T}, 0.5\nv_mov_b32 v{T+4}, {f2u(LN2):#x}\nv_mov_b32 v{T+6}, 1.0\nv_mov_b32 v{T+8}, {f2u(1e-6):#x}")
    def table_list(self, dst, vaddr, off, n, step):
        return [f"ds_read_b128 v[{dst+4*q}:{dst+4*q+3}], v{vaddr} offset:{off + step*q}" for q in range(n)]
    def lane_stats_list(self):
        return [f"ds_read_b32 v{CT+10+2*q}, v{CT+23} offset:{64*q}" for q in range(4)] + [f"ds_read_b32 v{6+2*q}, v{CT+23} offset:{64*q+512}" for q in range(4)]
    def flag(self, vm, soff, imm):
        a = self.a; T = CT
        off = f" offset:{imm}" if imm else ""
        a(f"buffer_store_dword v{T+21}, v{T+20}, s[{S_WS}:{S_WS+3}], s{soff} offen{off} sc1"); vm.issue("flag")
    def release(self, off=64):
        a = self.a
        a(f"ds_write_b32 v14, v15 offset:{off}")
    def flag_regs(self):
        self.lane0(CT + 20); self.a(f"v_mov_b32 v{CT+21}, s{sTAG}")

    def mlp_tabs(self, u):
        return self.table_list(116 + 16*(u & 1), CT+18, L_CS - L_TAB + 256*u, 2, 64) + self.table_list(124 + 16*(u & 1), CT+18, L_BT - L_TAB + 256*u, 2, 64)
    def mlp_pre(self):
        return self.lane_stats_list() + self.mlp_tabs(0)
    def att_pre(self):
        T = CT
        return ([f"ds_read_b32 v{148+2*k}, v{T+22} offset:{256 + 256*(k >> 1) + 64*(k & 1)}" for k in range(4)]
                + self.table_list(116, T+19, 0, 4, 64) + self.table_list(132, T+19, 512, 4, 64)
                + self.table_list(212, T+18, L_CS - L_TAB, 2, 64) + self.lane_stats_list())
    def c_epi_mlp(self, vm):
        a = self.a; T = CT; P = range(0, 16, 2)
        CP, U = 156, 172
        a(f"s_add_u32 s{sT1}, s{sC0}, s{sC}\ns_lshl_b32 s{sT1}, s{sT1}, 10\ns_add_u32 s{sA2B}, s{sA2B}, s{sT1}")
        a("s_waitcnt lgkmcnt(4)")
        for q in range(4): a(f"v_mul_f32 v{T+10+2*q}, v{T+10+2*q}, v{6+2*q}")
        for u in range(3):
            cs, bb = 116 + 16*(u & 1), 124 + 16*(u & 1)
            if u == 2:
                a(f"s_cmp_ge_u32 s{sG}, 11\ns_cselect_b32 s{sT0}, s{sC}, 0\ns_cmp_eq_u32 s{sT0}, 1\ns_cbranch_scc1 L_mlp_short")
            a("s_waitcnt lgkmcnt(0)")
            if u < 2:
                for r in self.mlp_tabs(u + 1): a(r)
            for t in range(2):
                A = ACC + 32*u + 16*t
                self.al()
                for k in P:
                    st = T + 10 + 4*t + 2*(k // 8); j = k % 8
                    a(f"v_pk_fma_f32 v[{CP+k}:{CP+k+1}], v[{st}:{st+1}], v[{cs+j}:{cs+j+1}], v[{bb+j}:{bb+j+1}] op_sel_hi:[0,1,1] neg_lo:[1,0,0] neg_hi:[1,0,0]")
                for k in P:
                    st = 6 + 4*t + 2*(k // 8)
                    a(f"v_pk_fma_f32 v[{A+k}:{A+k+1}], v[{A+k}:{A+k+1}], v[{st}:{st+1}], v[{CP+k}:{CP+k+1}] op_sel_hi:[1,0,1]")
                for k in range(16): a(f"v_exp_f32 v{U+k}, v{A+k}")
                for k in P: a(f"v_pk_fma_f32 v[{CP+k}:{CP+k+1}], v[{U+k}:{U+k+1}], v[{T}:{T+1}], v[{T+6}:{T+7}] op_sel_hi:[1,0,0]")
                for k in P: a(f"v_pk_fma_f32 v[{U+k}:{U+k+1}], v[{U+k}:{U+k+1}], v[{CP+k}:{CP+k+1}], v[{T+6}:{T+7}] op_sel_hi:[1,1,0]")
                for k in range(16): a(f"v_rcp_f32 v{U+k}, v{U+k}")
                for k in P: a(f"v_pk_fma_f32 v[{U+k}:{U+k+1}], v[{A+k}:{A+k+1}], v[{U+k}:{U+k+1}], v[{A+k}:{A+k+1}] neg_lo:[1,0,0] neg_hi:[1,0,0]")
                for k in P: a(f"v_cvt_pk_bf16_f32 v{A+k//2}, v{U+k}, v{U+k+1}")
                for k in range(2):
                    off = f" offset:{2048*u}" if 0 < u < 2 else ""
                    if u == 2 and t == 0 and k == 0: a(f"s_add_u32 s{sA2B}, s{sA2B}, 4096")
                    a(f"buffer_store_dwordx4 v[{A+4*k}:{A+4*k+3}], v{vCO[2*t+k]}, s[{S_WS}:{S_WS+3}], s{sA2B} offen{off} sc1"); vm.issue(f"act{u}")
                if self.o['classes'] and u == 2 and t == self.o.get('fa_at', 0):
                    vm.wait("act1"); self.flag(vm, sFL, 0)
            if u == 1 and self.o.get('rel_mlp', 0) == -1: self.release()
            self.stamp(11 + u)
        if self.o['classes']:
            if self.o.get('rel_mlp', 0) == 0: self.release()
            vm.wait("act2"); self.flag(vm, sFL, 4)
            if self.o.get('rel_mlp', 0) == 1: self.release()
            if self.o.get('hold2'): self.release(112)
            a("s_branch L_cdone")
        a.label("L_mlp_short")
        if self.o.get('rel_mlp', 0) == 0: self.release()
        a("s_waitcnt vmcnt(0)"); self.flag(VM(a), sFL, 0)
        if self.o.get('rel_mlp', 0) == 1: self.release()
        if self.o.get('hold2'): self.release(112)
        a("s_branch L_cdone")

    def phi(self, A, E, dst):
        a = self.a; T = CT; P = range(0, 16, 2)
        self.al()
        for k in range(16): a(f"v_exp_f32 v{E+k}, v{A+k}")
        for k in P: a(f"v_pk_fma_f32 v[{A+k}:{A+k+1}], v[{A+k}:{A+k+1}], v[{T+4}:{T+5}], v[{T+6}:{T+7}] op_sel_hi:[1,0,0]")
        for k in range(16): a(f"v_med3_f32 v{E+k}, v{A+k}, v{E+k}, 1.0")
        for k in P: a(f"v_pk_add_f32 v[{E+k}:{E+k+1}], v[{E+k}:{E+k+1}], v[{T+8}:{T+9}] op_sel_hi:[1,0]")
        for k in P: a(f"v_cvt_pk_bf16_f32 v{dst(k//2) if callable(dst) else dst+k//2}, v{E+k}, v{E+k+1}")

    def kv_write(self, S, flagoff):
        a = self.a
        for k in range(3): a(f"ds_write_b128 v2, v[{S+4*k}:{S+4*k+3}] offset:{1024*k}")
        a(f"v_mov_b32 v7, 1\ns_waitcnt lgkmcnt(0)\nds_write_b32 v6, v7 offset:{flagoff}")
    def kv_add(self, S, D):
        a = self.a
        for k in range(3): a(f"ds_read_b128 v[{D+4*k}:{D+4*k+3}], v4 offset:{1024*k}")
        a("s_waitcnt lgkmcnt(0)")
        for k in range(0, 12, 2): a(f"v_pk_add_f32 v[{S+k}:{S+k+1}], v[{S+k}:{S+k+1}], v[{D+k}:{D+k+1}]")

    def c_epi_att(self, vm):
        a = self.a; T = CT; P = range(0, 16, 2)
        MT, RT, E, QCS, PV, S, ZZ = 116, 132, 196, 212, 156, 172, 180
        Q, K, V = ACC, ACC + 32, ACC + 64
        if self.o.get('rel_att', 1) == -1: self.release()
        a("s_waitcnt lgkmcnt(10)")
        self.al()
        for (A, cs0) in ((K, 148), (V, 152)):
            for k in range(0, 32, 2):
                m = 4*(k // 8) + (k % 4); cs = cs0 + 2*((k % 8) // 4)
                a(f"v_pk_fma_f32 v[{A+k}:{A+k+1}], v[{MT+m}:{MT+m+1}], v[{cs}:{cs+1}], v[{A+k}:{A+k+1}] op_sel_hi:[1,0,1] neg_lo:[1,0,0] neg_hi:[1,0,0]")
            for k in range(0, 32, 2):
                m = 4*(k // 8) + (k % 4)
                a(f"v_pk_mul_f32 v[{A+k}:{A+k+1}], v[{A+k}:{A+k+1}], v[{RT+m}:{RT+m+1}]")
        if self.o.get('cst'): self.stamp(21)
        ONE = 192
        for k in range(4): a(f"v_mov_b32 v{ONE+k}, 0x3f803f80")
        def opnd(base): return lambda j: base + 4*((j >> 1) & 1) + 2*(j >> 2) + (j & 1)
        for t in range(2):
            self.phi(K + 16*t, E, opnd(K + 16*t))
            for j in range(8): a(f"v_cvt_pk_bf16_f32 v{opnd(PV + 8*t)(j)}, v{V+16*t+2*j}, v{V+16*t+2*j+1}")
            a("s_nop 1")
            for h in range(2):
                for (D, B) in ((S + 4*h, PV + 8*t + 4*h), (ZZ + 4*h, ONE)):
                    c = "0" if t == 0 else f"v[{D}:{D+3}]"
                    a(f"v_mfma_f32_16x16x32_bf16 v[{D}:{D+3}], v[{K+16*t+4*h}:{K+16*t+4*h+3}], v[{B}:{B+3}], {c}")
        if self.o.get('cst'): self.stamp(22)
        if self.o.get('rel_att', 1) == -2: self.release()
        even = f"s[{sEX}:{sEX+1}]"; upper = "s[66:67]"
        Z = 186; X = V; Y = V + 16
        a(f"v_mov_b32 v{X+3}, s{sTAG}\nv_mov_b32 v{X+7}, s{sTAG}\nv_mov_b32 v{X+11}, s{sTAG}\ns_nop 4")
        self.al()
        for k in range(4): a(f"v_cndmask_b32 v{ZZ+k}, v{ZZ+4+k}, v{ZZ+k}, {even}")
        for k in range(6): a(f"v_cndmask_b32 v{X+k+k//3}, v{S+6+k}, v{S+k}, {upper}")
        a(f"ds_write_b128 v249, v[{X}:{X+3}]\nds_write_b128 v249, v[{X+4}:{X+7}] offset:1024")
        for k in range(6): a(f"v_cndmask_b32 v{Z+k}, v{S+k}, v{S+6+k}, {upper}")
        if self.o.get('cst'): self.stamp(23)
        a(f"s_mov_b32 s{sSPIN}, 0")
        a.label("L_x1")
        a(f"ds_read_b128 v[{Y}:{Y+3}], v250\nds_read_b128 v[{Y+4}:{Y+7}], v250 offset:1024\ns_add_u32 s{sSPIN}, s{sSPIN}, 1\ns_waitcnt lgkmcnt(0)")
        a(f"v_cmp_ne_u32 vcc, s{sTAG}, v{Y+3}\nv_cmp_ne_u32 s[68:69], s{sTAG}, v{Y+7}\ns_cmp_gt_u32 s{sSPIN}, 0x40000\ns_cbranch_scc1 L_x1d\ns_or_b64 vcc, vcc, s[68:69]\ns_cbranch_vccnz L_x1")
        a.label("L_x1d")
        for k in range(6): a(f"v_add_f32 v{Z+k}, v{Z+k}, v{Y+k+k//3}")
        for k in range(3): a(f"v_cvt_pk_bf16_f32 v{X+8+k}, v{Z+2*k}, v{Z+2*k+1}")
        a(f"buffer_store_dwordx4 v[{X+8}:{X+11}], v{vL16}, s[{S_WS}:{S_WS+3}], s70 offen sc1")
        self.stamp(11)
        if self.o.get('rel_att', 1) == 0: self.release()
        self.al()
        for k in range(0, 32, 2):
            st = T + 10 + 2*(k // 8); j = k % 8
            a(f"v_pk_fma_f32 v[{Q+k}:{Q+k+1}], v[{st}:{st+1}], v[{QCS+j}:{QCS+j+1}], v[{Q+k}:{Q+k+1}] op_sel_hi:[0,1,1] neg_lo:[1,0,0] neg_hi:[1,0,0]")
        for k in range(0, 32, 2):
            st = 6 + 2*(k // 8)
            a(f"v_pk_mul_f32 v[{Q+k}:{Q+k+1}], v[{Q+k}:{Q+k+1}], v[{st}:{st+1}] op_sel_hi:[1,0]")
        for t in range(2): self.phi(Q + 16*t, E, Q + 16*t)
        if self.o.get('rel_att', 1) == 1: self.release()
        if self.o.get('cst'): self.stamp(24)
        if self.o.get('noatt'):
            for a_ in range(4): a(f"buffer_store_dwordx4 v[{Q+4*a_}:{Q+4*a_+3}], v{vCO[a_]}, s[{S_WS}:{S_WS+3}], s71 offen sc1")
            a("s_waitcnt vmcnt(0)"); self.flag(vm, sFL, 0); self.release(112); a("s_branch L_cdone")
        G = 116; S = K; U = K + 12
        a(f"s_mov_b32 s{sT5}, 0")
        if self.o.get('pollwait'):
            self.spin_lds("b2d", 254, 9, 96)
        if self.o.get('inc', 0):
            for k in range(12): a(f"v_mov_b32 v{S+k}, 0")
            a(f"s_mov_b32 s72, 0xffff\ns_lshl_b32 s73, s{sRB}, 12")
            if self.o.get('chprio', 3): a(f"s_setprio {self.o.get('chprio', 3)}")
            if self.o.get('cst'): self.stamp(28)
            a.label("L_kv_pass")
            for p in range(16):
                a(f"s_bitcmp0_b32 s72, {p}\ns_cbranch_scc1 L_kv_l{p}")
                a(f"s_add_u32 s{sT2}, s73, {2048*p}\ns_and_b32 s{sT2}, s{sT2}, 0x7800\ns_add_u32 s{sT2}, s{sT2}, s{sKB}")
                a(f"buffer_load_dwordx4 v[{G+4*p}:{G+4*p+3}], v{vL16}, s[{S_WS}:{S_WS+3}], s{sT2} offen sc1")
                a.label(f"L_kv_l{p}")
            if self.o.get('hold2') == 1: self.release(112)
            a(f"s_add_u32 s{sT5}, s{sT5}, 1\ns_waitcnt vmcnt(0)")
            for p in range(16):
                src = G + 4*p; d = S + 6*(p & 1)
                a(f"s_bitcmp0_b32 s72, {p}\ns_cbranch_scc1 L_kv_a{p}\nv_cmp_ne_u32 vcc, s{sTAG}, v{src+3}\ns_cbranch_vccnz L_kv_a{p}")
                for k in range(3): a(f"v_lshlrev_b32 v{U+2*k}, 16, v{src+k}\nv_and_b32 v{U+2*k+1}, 0xffff0000, v{src+k}")
                for k in range(6): a(f"v_add_f32 v{d+k}, v{d+k}, v{U+k}")
                a(f"s_bitset0_b32 s72, {p}")
                a.label(f"L_kv_a{p}")
            a(f"s_cmp_eq_u32 s72, 0\ns_cbranch_scc1 L_kv_ok\ns_cmp_gt_u32 s{sT5}, 0x4000\ns_cbranch_scc1 L_kv_ok\ns_sleep {self.o.get('sleep3', 1)}\ns_branch L_kv_pass")
            a.label("L_kv_ok")
            if self.o.get('cst'): self.stamp(25); a(f"v_writelane_b32 v252, s{sT5}, 30")
        else:
            if self.o.get('optim', 0): a("s_branch L_kv_go")
            a.label("L_kv_gather")
            self.spin_global("kv", 253, 9, sKB, 12)
            a.label("L_kv_go")
            if self.o.get('chprio', 3): a(f"s_setprio {self.o.get('chprio', 3)}")
            if self.o.get('cst'): self.stamp(28)
            vg = VM(a)
            for p in range(16):
                if p % 2 == 0: a(f"s_lshl1_add_u32 s{sT2}, s{sRB}, {p}\ns_and_b32 s{sT2}, s{sT2}, 14\ns_lshl_b32 s{sT2}, s{sT2}, 11\ns_add_u32 s{sT2}, s{sT2}, s{sKB}")
                off = " offset:2048" if p % 2 else ""
                a(f"buffer_load_dwordx4 v[{G+4*p}:{G+4*p+3}], v{vL16}, s[{S_WS}:{S_WS+3}], s{sT2} offen{off} sc1"); vg.issue(f"kvg{p}")
            if self.o.get('rel_att', 1) == 3: self.release()
            if self.o.get('hold2') == 1: self.release(112)
            for p in range(0, 16, 2):
                vg.wait(f"kvg{p+1}")
                for h2 in range(2):
                    d = S + 6*h2 if p == 0 else U + 6*h2; src = G + 4*(p + h2)
                    for k in range(3): a(f"v_lshlrev_b32 v{d+2*k}, 16, v{src+k}\nv_and_b32 v{d+2*k+1}, 0xffff0000, v{src+k}")
                if p:
                    for k in range(0, 12, 2): a(f"v_pk_add_f32 v[{S+k}:{S+k+1}], v[{S+k}:{S+k+1}], v[{U+k}:{U+k+1}]")
                    a(f"v_bfi_b32 v3, v{G+4*p+3}, v{G+4*p+7}, 0\nv_or3_b32 v5, v5, v{G+4*p+3}, v{G+4*p+7}\nv_and_b32 v9, v9, v3")
                else:
                    a(f"v_and_b32 v9, v{G+3}, v{G+7}\nv_or_b32 v5, v{G+3}, v{G+7}")
            if self.o.get('cst'): self.stamp(25); a(f"v_writelane_b32 v252, s{sT5}, 30")
            a(f"v_cmp_ne_u32 vcc, s{sTAG}, v9\nv_cmp_ne_u32 s[68:69], s{sTAG}, v5\ns_nop 1\ns_or_b64 vcc, vcc, s[68:69]")
            a(f"s_cbranch_vccz L_kv_ok\ns_add_u32 s{sT5}, s{sT5}, 1\ns_cmp_gt_u32 s{sT5}, 64\ns_cbranch_scc0 L_kv_gather")
            a.label("L_kv_ok")
        vm.drained()
        if self.o.get('hold2') == 2: self.release(112)
        self.stamp(12)
        for k in range(0, 6, 2): a(f"v_pk_add_f32 v[{S+k}:{S+k+1}], v[{S+k}:{S+k+1}], v[{S+6+k}:{S+7+k}]")
        for k in range(3): a(f"v_cvt_pk_bf16_f32 v{X+k}, v{S+2*k}, v{S+2*k+1}")
        a(f"ds_write_b128 v249, v[{X}:{X+3}] offset:2048\ns_mov_b32 s{sSPIN}, 0")
        a.label("L_x2")
        a(f"ds_read_b128 v[{Y}:{Y+3}], v250 offset:2048\ns_add_u32 s{sSPIN}, s{sSPIN}, 1\ns_waitcnt lgkmcnt(0)")
        a(f"v_cmp_ne_u32 vcc, s{sTAG}, v{Y+3}\ns_cmp_gt_u32 s{sSPIN}, 0x40000\ns_cbranch_scc1 L_x2d\ns_cbranch_vccnz L_x2")
        a.label("L_x2d")
        if self.o.get('cst'): self.stamp(26)
        if self.o.get('hold2') == 4: self.release(112)
        W = K + 24
        for k in range(3): a(f"v_cndmask_b32 v{W+k}, v{X+k}, v{Y+k}, {upper}\nv_cndmask_b32 v{W+3+k}, v{Y+k}, v{X+k}, {upper}")
        def pq(a_, h): r = Q + 16*(a_ >> 1) + 4*(a_ & 1) + 2*h; return f"v[{r}:{r+1}]"
        NUM, DEN, R = 116, 148, 180
        a("s_nop 1")
        for k in range(2): a(f"v_mov_b32_dpp v{W+6+k}, v{W+4+k} quad_perm:[1,0,3,2] row_mask:0xf bank_mask:0xf")
        for k in range(2): a(f"v_cndmask_b32 v{S+k}, v{W+6+k}, v{W+4+k}, {even}\nv_cndmask_b32 v{S+2+k}, v{W+4+k}, v{W+6+k}, {even}")
        a("s_nop 1")
        for a_ in range(4):
            for h in range(2): a(f"v_mfma_f32_16x16x16_bf16 v[{DEN+8*a_+4*h}:{DEN+8*a_+4*h+3}], v[{S+2*h}:{S+2*h+1}], {pq(a_, h)}, 0")
        for a_ in range(4):
            for h in range(2): a(f"v_mfma_f32_16x16x16_bf16 v[{NUM+8*a_+4*h}:{NUM+8*a_+4*h+3}], v[{W+2*h}:{W+2*h+1}], {pq(a_, h)}, 0")
        for k in range(8): a(f"v_add_f32 v{R+2*k}, v{T+8}, v{DEN+4*k}")
        for k in range(8): a(f"v_rcp_f32 v{R+2*k}, v{R+2*k}")
        for a_ in range(4):
            d = V + 4*a_
            for h in range(2):
                N = NUM + 8*a_ + 4*h; r = R + 4*a_ + 2*h
                if self.o.get('opk', 0):
                    for k in (0, 2): a(f"v_pk_mul_f32 v[{N+k}:{N+k+1}], v[{N+k}:{N+k+1}], v[{r}:{r+1}] op_sel_hi:[1,0]")
                else:
                    for k in range(4): a(f"v_mul_f32 v{N+k}, v{r}, v{N+k}")
            for j in range(4): a(f"v_cvt_pk_bf16_f32 v{d+j}, v{NUM+8*a_+2*j}, v{NUM+8*a_+2*j+1}")
            a(f"buffer_store_dwordx4 v[{d}:{d+3}], v{vCO[a_]}, s[{S_WS}:{S_WS+3}], s71 offen sc1"); vm.issue("o")
            if self.o.get('onop'): a(f"s_nop {self.o['onop']}")
        if self.o.get('hold2') == 3: self.release(112)
        if self.o.get('cst'): self.stamp(27)
        vm.wait("o")
        self.flag(vm, sFL, 0)
        self.stamp(13)

    def c_main(self):
        a = self.a; vm = VM(a)
        a.label("L_C")
        if self.o['pf']: vm.issue("codepf")
        self.c_prologue(vm)
        self.stamp(1)
        a(f"s_cmp_lt_u32 s{sG}, 8\ns_cbranch_scc1 L_Catt")
        if self.o.get('short', 0):
            a(f"s_cmp_ge_u32 s{sG}, 11\ns_cselect_b32 s{sT0}, s{sC}, 0\ns_cmp_eq_u32 s{sT0}, 0\ns_cbranch_scc1 L_Cfull")
            self.c_kloop(False, True)
            a("s_branch L_Cepi")
            a.label("L_Cfull")
        self.c_kloop(False)
        a.label("L_Cepi")
        self.c_epi_mlp(vm.copy())
        a.label("L_Catt")
        a(f"s_lshl1_add_u32 s{sT0}, s{sC}, s{sR2}\ns_xor_b32 s{sT1}, s{sT0}, 1")
        a(f"s_mul_i32 s{sT2}, s{sT0}, 3072\ns_add_u32 s{sT2}, s{sT2}, {L_KV}\nv_add_u32 v249, s{sT2}, v{vL16}")
        a(f"s_mul_i32 s{sT2}, s{sT1}, 3072\ns_add_u32 s{sT2}, s{sT2}, {L_KV}\nv_add_u32 v250, s{sT2}, v{vL16}")
        a(f"s_lshl1_add_u32 s{sT0}, s{sG}, s{sC}\ns_lshl_b32 s{sKB}, s{sT0}, 15\ns_lshl_b32 s{sT0}, s{sR2}, 10\ns_add_u32 s{sKB}, s{sKB}, s{sT0}\ns_add_u32 s{sKB}, s{sKB}, {WS_KVP}")
        a(f"s_mov_b32 s{sEX}, 0x55555555\ns_mov_b32 s{sEX+1}, 0x55555555\ns_sub_u32 s66, 0, s{sR2}\ns_mov_b32 s67, s66")
        a(f"s_lshl_b32 s70, s{sRB}, 11\ns_add_u32 s70, s70, s{sKB}")
        a(f"s_lshl1_add_u32 s71, s{sG}, s{sC}\ns_lshl_b32 s71, s71, 10\ns_add_u32 s71, s71, {44*1024}\ns_add_u32 s71, s71, s{sA2B}")
        a(f"v_and_b32 v253, 15, v{vL}\nv_lshlrev_b32 v253, 11, v253\nv_and_b32 v254, 3, v{vL}\nv_lshlrev_b32 v254, 2, v254\nv_add_u32 v254, {L_FL}, v254")
        self.c_kloop(True); self.c_epi_att(vm.copy())
        a(f"s_cmp_lg_u32 s2, 0\ns_cbranch_scc1 L_cdone\ns_cmp_lg_u32 s{sW}, 0\ns_cbranch_scc1 L_cdone")
        a(f"v_lshlrev_b32 v7, 10, v{vL}")
        for k in range(4):
            a(f"s_mov_b32 s{sT0}, {WS_CSP + 65536*k}")
            self.spin_global(f"ep{k}", 7, 9, sT0, 12)
        a(f"s_mov_b32 s{sT0}, {WS_EPOCH}")
        self.flag(VM(a), sT0, 0)
        a.label("L_cdone")
        self.stamp(14)
        self.final_addr(VM(a), 11, 13)

    def final(self):
        a = self.a
        a.label("L_final")
        a(f"s_waitcnt vmcnt(0)\nv_xor_b32 v19, 16, v{vRR}\nv_mov_b32 v92, {f2u(LN2):#x}")
        for k in range(4):
            a(f"v_lshlrev_b32 v{84+2*k}, 16, v{XRES+k}\nv_and_b32 v{84+2*k+1}, 0xffff0000, v{XRES+k}")
        a("s_waitcnt lgkmcnt(0)")
        if self.o.get('tst'): self.stamp(46)
        a("s_barrier")
        if self.o.get('tst'): self.stamp(47)
        R, X = 20, 84
        for kq in range(4):
            a(f"ds_read_b128 v[{R+8*kq}:{R+8*kq+3}], v{vRR} offset:{2048*kq}\nds_read_b128 v[{R+8*kq+4}:{R+8*kq+7}], v19 offset:{2048*kq}")
        for kq in range(1, 4):
            a(f"s_waitcnt lgkmcnt({6-2*kq})")
            for k in range(0, 8, 2): a(f"v_pk_add_f32 v[{R+k}:{R+k+1}], v[{R+k}:{R+k+1}], v[{R+8*kq+k}:{R+8*kq+k+1}]")
        for k in range(0, 8, 2): a(f"v_pk_fma_f32 v[{X+k}:{X+k+1}], v[{R+k}:{R+k+1}], v[{X+8}:{X+9}], v[{X+k}:{X+k+1}] op_sel_hi:[1,0,1]")
        for k in range(0, 8, 2): a(f"v_cvt_pk_bf16_f32 v{R+k//2}, v{X+k}, v{X+k+1}")
        a(f"buffer_store_dwordx4 v[{R}:{R+3}], v{vXO}, s[{S_OUT}:{S_OUT+3}], s{sRES} offen {self.o.get('outsc', 'sc1').replace('_', ' ')}")
        if self.stamps:
            if self.o.get('tst'): self.stamp(48)
            a("s_waitcnt vmcnt(0)")
            self.stamp(17); self.rstamp(19)
            a(f"v_writelane_b32 v252, s96, 0\nv_writelane_b32 v252, s96, 18")
            a(f"s_lshl_b32 s{sT0}, s2, 3\ns_add_u32 s{sT0}, s{sT0}, s{sW}\ns_lshl_b32 s{sT0}, s{sT0}, 8\ns_add_u32 s{sT0}, s{sT0}, {WS_STAMP}")
            a(f"v_lshlrev_b32 v14, 2, v{vL}\nbuffer_store_dword v252, v14, s[{S_WS}:{S_WS+3}], s{sT0} offen")

    def build(self):
        a = self.a
        a.label("L_code0")
        self.entry()
        self.l_main()
        self.c_main()
        self.final()
        if self.o.get('probe'):
            wg, w, k = self.o['probe']
            a(f"s_cmp_lg_u32 s2, {wg}\ns_cbranch_scc1 L_end\ns_cmp_lg_u32 s{sW}, {w}\ns_cbranch_scc1 L_end")
            a(f"v_readlane_b32 s{sT1}, v252, {k}\ns_nop 3\ns_add_u32 s{sT1}, s{sT1}, 2500\ns_mov_b32 s{sSPIN}, 0")
            a.label("L_hold")
            a(f"s_memrealtime s[{sSTAMP}:{sSTAMP+1}]\ns_add_u32 s{sSPIN}, s{sSPIN}, 1\ns_waitcnt lgkmcnt(0)\ns_sub_u32 s{sT0}, s{sSTAMP}, s{sT1}")
            a(f"s_cmp_gt_u32 s{sSPIN}, 100000\ns_cbranch_scc1 L_end\ns_cmp_lt_i32 s{sT0}, 0\ns_cbranch_scc1 L_hold")
        a.label("L_end")
        a("s_endpgm")
        a.label("L_codeend")
        t = single(a.text(), 256, 512, LDS_BYTES, 256, 102, 256)
        k = t.index('.amdgcn_target')
        return t[:k] + DOC + t[k:]

if __name__ == "__main__":
    out = sys.argv[1] if len(sys.argv) > 1 else "k.s"
    stamps = "stamps" in sys.argv[2:]
    opts = {}
    for kv in sys.argv[2:]:
        if "=" in kv:
            k, v = kv.split("="); opts[k] = eval(v)
    open(out, "w").write(Gen(stamps, opts).build())
```

```python
import sys, math, struct
from asmlib import *

def f2u(x): return struct.unpack("<I", struct.pack("<f", x))[0]
LOG2E = 1.4426950408889634
LN2 = 0.6931471805599453

WS_EPOCH = 0
WS_STATS = 0x1000
WS_CSP   = 0x10000
WS_KVP   = 0x60000
WS_FLAG  = 0x100000
WS_KVF   = 0x140000
WS_A2    = 0x200000
A2_RT    = 60 * 1024
WS_SIZE  = 0x1000000
WS_STAMP = 0xC00000
OOB      = 0x40000000

L_X    = 0
L_W    = 49152
L_MISC = 147456
L_KV   = L_MISC
L_SLAB = 122880
L_TAB  = L_MISC + 12288
L_CS   = L_TAB
L_BT   = L_CS + 768
L_MT   = L_BT + 768
L_RT   = L_MT + 512
L_FL   = L_RT + 512
LDS_BYTES = 163840

ROUND_OF_STEP = [15, 16, 17, 4, 5, 12, 13, 14, 0, 1, 6, 7, 8, 2, 3, 9, 10, 11]
NREG = 12
ARING = 6
def round_of(step):
    return ROUND_OF_STEP[step] if step < 18 else ROUND_OF_STEP[step - 18]

S_X, S_W, S_W2, S_WO, S_WS, S_OUT, S_B1 = 24, 28, 32, 36, 40, 44, 48
sW, sLW = 52, 53
sR2, sC = 53, 54
sRB, sG, sPH = 55, 56, 57
sCT, sRT, sROT = 58, 59, 60
sTAG = 61
sXO, sWOF, sWSTEP, sWEND = 62, 63, 64, 65
sXB, sLX, sLWB, sWD = 66, 67, 68, 69
sWO1, sWO2 = 70, 71
sB2L, sB2C, sB2C2, sA2B = 72, 73, 74, 75
sC0, sPITCH, sE = 76, 83, 84
sT0, sT1, sT2, sT3, sT4, sT5 = 77, 78, 79, 80, 81, 82
sSPIN = 85
sEX = 86
sMASK = 62
sFL, sKB = 64, 65
sSW = 88
sB2C3 = 84
sRES = 3
sSTAMP = 92
SP = list(range(4, 24)) + [48, 49, 50, 51, 88, 89, 90, 91, 100, 101]

vL, vL16 = 0, 1
vRR, vXO = 17, 18
XRES = 244
vX, vWv, vB2D, vB2A = 2, 6, 10, 12
vB2AL = [132 + k for k in range(12)]
ACC2, AR, B2R = 20, 84, 148
vAO = [1, 248, 12, 13]
vL16B = 248
vRW = 2
vXA, vWA = 2, 4
vCO = [1, 248, 16, 255]
ACC, FR = 20, 116
CT = 220

DOC = """;
;
; Workgroup ids are arranged for L2 locality only.
"""

class VM:
    def __init__(self, a): self.a = a; self.q = []
    def issue(self, tag): self.q.append(tag)
    def count(self, *tags):
        idx = max((i for i, t in enumerate(self.q) if t in tags), default=-1)
        return len(self.q) - 1 - idx if idx >= 0 else None
    def wait(self, *tags, lgkm=None):
        n = self.count(*tags)
        s = []
        if n is not None:
            assert n <= 63, n
            s.append(f"vmcnt({n})")
            self.q = self.q[len(self.q) - n:] if n else []
        if lgkm is not None: s.append(f"lgkmcnt({lgkm})")
        if s: self.a("s_waitcnt " + " ".join(s))
    def depth(self, n):
        if len(self.q) > n:
            self.a(f"s_waitcnt vmcnt({n})")
            self.q = self.q[len(self.q) - n:] if n else []
    def drained(self): self.q = []
    def copy(self):
        v = VM(self.a); v.q = list(self.q); return v

class Gen:
    def __init__(self, stamps=False, opts=None):
        self.a = Asm(); self.stamps = stamps
        self.o = dict(pf=1, hold=1, map2=0, classes=0, n0=3, spf=0, xloc=1, g3=1, pace=8, rel_mlp=1, rel_att=-2, pollwait=9, hold2=1, kstamps=False, cprio=1, w2pf=5, p0_at=27, rot=8)
        if opts: self.o.update(opts)

    def srd(self, d, p, n):
        self.a(f"s_mov_b32 s{d}, s{p}\ns_mov_b32 s{d+1}, s{p+1}\ns_mov_b32 s{d+2}, {n}\ns_mov_b32 s{d+3}, 0x20000")
    def stamp(self, idx):
        if not self.stamps: return
        self.rstamp(idx)
        if self.o.get('cyc') and idx in self.o['cyc']:
            self.a(f"s_memtime s[{sSTAMP}:{sSTAMP+1}]\ns_waitcnt lgkmcnt(0)\nv_writelane_b32 v252, s{sSTAMP}, {idx + 40}")
    def rstamp(self, idx):
        if not self.stamps: return
        if 'only' in self.o and idx not in self.o['only']: return
        self.a(f"s_memrealtime s[{sSTAMP}:{sSTAMP+1}]\ns_waitcnt lgkmcnt(0)\nv_writelane_b32 v252, s{sSTAMP}, {idx}")
    def al(self):
        if self.o.get('align', 1): self.a(".p2align 3")
    def lane0(self, v):
        self.a(f"v_cmp_eq_u32 vcc, 0, v{vL}\nv_mov_b32 v{v}, {OOB}\ns_nop 0\nv_cndmask_b32 v{v}, v{v}, 0, vcc")
    def tag(self):
        self.a(f"s_mul_i32 s{sTAG}, s{sTAG}, 0x9e3779b1\ns_add_u32 s{sTAG}, s{sTAG}, 0x7f4a7c15")
    def decode2(self):
        a = self.a
        if self.o['map2'] == 0:
            a(f"s_and_b32 s{sT0}, s2, 7\ns_lshr_b32 s{sT1}, s2, 3\ns_and_b32 s{sCT}, s{sT1}, 7\ns_lshr_b32 s{sT1}, s{sT1}, 3")
            if self.o.get('ctmap', 1):
                a(f"s_xor_b32 s{sT1}, s{sT1}, 2\ns_and_b32 s{sROT}, s{sCT}, 1\ns_lshl1_add_u32 s{sROT}, s{sT1}, s{sROT}\ns_lshr_b32 s{sT1}, s{sCT}, 1\ns_mov_b32 s{sCT}, s{sROT}")
            if self.o['xloc']: a(f"s_lshr_b32 s{sRT}, s{sT0}, 1\ns_and_b32 s{sT0}, s{sT0}, 1\ns_lshl2_add_u32 s{sT0}, s{sT0}, s{sRT}")
            a(f"s_lshl2_add_u32 s{sRT}, s{sT0}, s{sT1}\ns_lshl1_add_u32 s{sROT}, s{sT1}, s{sCT}")
        else:
            a(f"s_and_b32 s{sT0}, s2, 1\ns_bfe_u32 s{sT1}, s2, 0x20003\ns_lshl2_add_u32 s{sCT}, s{sT0}, s{sT1}")
            a(f"s_bfe_u32 s{sT0}, s2, 0x20001\ns_lshr_b32 s{sROT}, s2, 5\ns_lshl3_add_u32 s{sRT}, s{sT0}, s{sROT}\ns_lshl1_add_u32 s{sROT}, s{sT1}, s{sROT}")
    def final_addr(self, vm, t0, t1):
        a = self.a
        a(f"v_lshrrev_b32 v{t0}, 3, v{vL}\nv_and_b32 v{t1}, 7, v{vL}\nv_lshlrev_b32 v{vXO}, 10, v{t0}\nv_lshl_add_u32 v{vXO}, v{t1}, 4, v{vXO}")
        a(f"s_lshl3_add_u32 s{sT0}, s{sRT}, s{sW}\ns_lshl_b32 s{sT0}, s{sT0}, 13\ns_lshl_b32 s{sT1}, s{sCT}, 7\ns_add_u32 s{sRES}, s{sT0}, s{sT1}")
        if vm is not None: self.xres(vm)
        a(f"v_lshlrev_b32 v{t1}, 1, v{t1}\nv_xor_b32 v{t1}, v{t1}, v{t0}\nv_lshlrev_b32 v{t1}, 4, v{t1}\nv_lshl_add_u32 v{vRR}, v{t0}, 8, v{t1}")
        a(f"s_lshl_b32 s{sT0}, s{sW}, 13\nv_add_u32 v{vRR}, s{sT0}, v{vRR}")

    def xres(self, vm):
        self.a(f"buffer_load_dwordx4 v[{XRES}:{XRES+3}], v{vXO}, s[{S_X}:{S_X+3}], s{sRES} offen"); vm.issue("xres")
    def spin_global(self, name, vaddr, vtmp, soff, imm=0, srd=S_WS):
        a = self.a
        off = f" offset:{imm}" if imm else ""
        a(f"s_mov_b32 s{sSPIN}, 0")
        a.label(f"L_sp{name}")
        a(f"buffer_load_dword v{vtmp}, v{vaddr}, s[{srd}:{srd+3}], s{soff} offen{off} sc1\ns_add_u32 s{sSPIN}, s{sSPIN}, 1\ns_waitcnt vmcnt(0)")
        a(f"v_cmp_ne_u32 vcc, s{sTAG}, v{vtmp}\ns_cmp_gt_u32 s{sSPIN}, 0x8000\ns_cbranch_scc1 L_sd{name}\ns_cbranch_vccz L_sd{name}\ns_sleep {self.o.get('sleep', 2)}\ns_branch L_sp{name}")
        a.label(f"L_sd{name}")
    def spin_lds(self, name, vaddr, vtmp, off):
        a = self.a
        a(f"s_mov_b32 s{sSPIN}, 0")
        a.label(f"L_sp{name}")
        a(f"ds_read_b32 v{vtmp}, v{vaddr} offset:{off}\ns_add_u32 s{sSPIN}, s{sSPIN}, 1\ns_waitcnt lgkmcnt(0)")
        a(f"v_cmp_ne_u32 vcc, 1, v{vtmp}\ns_cmp_gt_u32 s{sSPIN}, 0x40000\ns_cbranch_scc1 L_sd{name}\ns_cbranch_vccnz L_sp{name}")
        a.label(f"L_sd{name}")

    def entry(self):
        a = self.a
        a("s_cmp_ge_u32 s2, 256\ns_cbranch_scc1 L_end")
        a("s_load_dwordx16 s[4:19], s[0:1], 0\ns_load_dwordx4 s[20:23], s[0:1], 64")
        if self.o['pf']:
            a(f"s_getpc_b64 s[{sT0+1}:{sT0+2}]\ns_bfe_u32 s{sT0}, s2, 0x30003\ns_mul_i32 s{sT0}, s{sT0}, 5120\nv_lshlrev_b32 v2, 4, v0\nv_min_u32 v2, 4992, v2\nv_add_u32 v2, s{sT0}, v2")
            a.label("L_pc")
            a(f"v_min_u32 v2, L_codeend-L_pc, v2\ns_mov_b32 exec_lo, 0x01010101\ns_mov_b32 exec_hi, 0x01010101\nglobal_load_dword v251, v2, s[{sT0+1}:{sT0+2}]\ns_mov_b64 exec, -1".replace("0x01010101", self.o.get('pfmask', "0x01010101")))
        if self.stamps:
            a("v_mov_b32 v252, 0\ns_memrealtime s[96:97]")
        a(f"v_lshrrev_b32 v1, 6, v0\nv_and_b32 v{vL}, 63, v0\nv_readfirstlane_b32 s{sW}, v1")
        a(f"s_bfe_u32 s{sT0}, s2, 0x30003\ns_and_b32 s{sT1}, s2, 1\ns_lshl3_add_u32 s{sRB}, s{sT1}, s{sT0}")
        a(f"s_lshr_b32 s{sT1}, s2, 6\ns_bfe_u32 s{sT2}, s2, 0x20001")
        if self.o['g3']: a(f"s_xor_b32 s{sT2}, s{sT2}, 3")
        a(f"s_lshl2_add_u32 s{sG}, s{sT1}, s{sT2}")
        a(f"s_sub_u32 s{sT0}, s{sG}, 8\ns_min_u32 s{sT1}, s{sT0}, 3\ns_mul_i32 s{sC0}, s{sT0}, 5\ns_add_u32 s{sC0}, s{sC0}, s{sT1}")
        a(f"v_lshlrev_b32 v{vL16}, 4, v{vL}")
        a(f"s_cmp_lt_u32 s{sW}, 4\ns_cbranch_scc1 L_C")

    def l_stage(self, vm, t, part=None):
        a = self.a; slot = t % 3
        def xpart():
            a(f"s_add_u32 m0, s{sLX}, {L_X + slot*16384}\ns_lshl_b32 s{sXO}, s{sPH}, 7\ns_add_u32 s{sXO}, s{sXO}, s{sXB}")
            for ii in range(4):
                off = f" offset:{1024*ii}" if ii else ""
                a(f"buffer_load_dwordx4 v{vX+ii}, s[{S_X}:{S_X+3}], s{sXO} offen{off} lds"); vm.issue(f"st{t}")
        if t > 0 and part != 'w': xpart()
        if part == 'x': return
        a(f"s_add_u32 m0, s{sLWB}, {slot*24576}\ns_sub_u32 s{sWO1}, s{sWOF}, s{sWD}\ns_sub_u32 s{sWO2}, s{sWO1}, s{sWD}")
        for rg in range(2):
            if rg: a(f"s_add_u32 m0, s{sLWB}, {slot*24576 + 3072}\ns_nop 0")
            a(f"buffer_load_dwordx4 v{vWv+2*rg}, s[{S_W}:{S_W+3}], s{sWOF} offen lds"); vm.issue(f"st{t}")
            a(f"buffer_load_dwordx4 v{vWv+2*rg}, s[{S_W}:{S_W+3}], s{sWO1} offen offset:1024 lds"); vm.issue(f"st{t}")
            a(f"buffer_load_dwordx4 v{vWv+2*rg+1}, s[{S_W}:{S_W+3}], s{sWO2} offen offset:2048 lds"); vm.issue(f"st{t}" if t or not rg else "st0w")
        if t == 0: xpart()
        if t < 7:
            a(f"s_add_u32 s{sWOF}, s{sWOF}, s{sWSTEP}\ns_add_u32 s{sPH}, s{sPH}, 1\ns_and_b32 s{sPH}, s{sPH}, 7\ns_cselect_b32 s{sT0}, 0, s{sWEND}\ns_sub_u32 s{sWOF}, s{sWOF}, s{sT0}")

    def l_prologue(self, vm):
        a = self.a; T = ACC2
        pm = self.o.get('phmode', 0)
        if pm == 0: a(f"s_bfe_u32 s{sT0}, s2, 0x30003\ns_lshr_b32 s{sT1}, s2, 6\ns_lshl1_add_u32 s{sPH}, s{sT1}, s{sT0}\ns_and_b32 s{sPH}, s{sPH}, 7")
        elif pm == 1: a(f"s_bfe_u32 s{sT0}, s2, 0x30003\ns_bfe_u32 s{sT1}, s2, 0x10006\ns_lshl2_add_u32 s{sPH}, s{sT1}, s{sT0}\ns_and_b32 s{sPH}, s{sPH}, 7")
        elif pm in (2, 3):
            a(f"s_bfe_u32 s{sT0}, s2, 0x30003\ns_bfe_u32 s{sT1}, s2, 0x10006\ns_lshl2_add_u32 s{sPH}, s{sT1}, s{sT0}\ns_lshr_b32 s{sT1}, s2, 7")
            if pm == 3: a(f"s_xor_b32 s{sT1}, s{sT1}, 1")
            a(f"s_add_u32 s{sPH}, s{sPH}, s{sT1}\ns_and_b32 s{sPH}, s{sPH}, 7")
        if self.o.get('ph3'):
            a(f"s_cmp_eq_u32 s{sG}, 3\ns_cselect_b32 s{sT0}, {self.o['ph3']}, 0\ns_add_u32 s{sPH}, s{sPH}, s{sT0}\ns_and_b32 s{sPH}, s{sPH}, 7")
        a(f"s_sub_u32 s{sLW}, s{sW}, 4\ns_movk_i32 s{sPITCH}, 2752\ns_cmp_lt_u32 s{sG}, 8\ns_cselect_b32 s{sPITCH}, 3072, s{sPITCH}")
        a(f"s_cselect_b32 s{sWD}, 0, 896\ns_cselect_b32 s{sT3}, 0, 2048")
        a(f"s_lshl_b32 s{sT0}, s{sG}, 7\ns_lshl_b32 s{sT1}, s{sC0}, 6\ns_cmp_lt_u32 s{sG}, 8\ns_cselect_b32 s{sT5}, s{sT0}, s{sT1}\ns_add_u32 s{sT5}, s{sT5}, s{sT3}")
        a(f"v_lshrrev_b32 v{T}, 4, v{vL}\nv_and_b32 v{T+1}, 7, v{vL}\nv_xor_b32 v{T}, v{T}, v{T+1}\nv_lshlrev_b32 v{T}, 4, v{T}\nv_lshrrev_b32 v{T+2}, 3, v{vL}")
        a(f"v_lshl_add_u32 v{vX}, v{T+2}, 10, v{T}\nv_xor_b32 v{vX+1}, 64, v{vX}\nv_add_u32 v{vX+1}, 7168, v{vX+1}\nv_add_u32 v{vX+2}, 14336, v{vX}\nv_add_u32 v{vX+3}, 14336, v{vX+1}")
        a(f"v_lshrrev_b32 v{T}, 2, v{vL}\nv_and_b32 v{T}, 4, v{T}\nv_xor_b32 v{T}, v{T}, v{T+1}\nv_lshlrev_b32 v{T}, 4, v{T}")
        a(f"s_cmp_ge_u32 s{sG}, 11\ns_cselect_b32 s{sT4}, 64, 128\nv_mad_u32_u24 v{vWv}, v{T+2}, s{sPITCH}, v{T}\nv_cmp_gt_u32 vcc, s{sT4}, v{T}\nv_mov_b32 v{vWv+1}, {OOB}")
        a(f"s_lshl_b32 s{sT0}, s{sPITCH}, 3\nv_cndmask_b32 v{vWv+1}, v{vWv+1}, v{vWv}, vcc\nv_xor_b32 v{vWv+2}, 32, v{vWv}\nv_xor_b32 v{vWv+3}, 32, v{vWv+1}\nv_add_u32 v{vWv+2}, s{sT0}, v{vWv+2}\nv_add_u32 v{vWv+3}, s{sT0}, v{vWv+3}")
        a(f"s_lshl2_add_u32 s{sXB}, s{sRB}, s{sLW}\ns_lshl_b32 s{sXB}, s{sXB}, 15\ns_lshl_b32 s{sWSTEP}, s{sPITCH}, 6\ns_lshl_b32 s{sWEND}, s{sPITCH}, 9")
        a(f"s_lshl2_add_u32 s{sT0}, s{sPH}, s{sLW}\ns_lshl_b32 s{sT0}, s{sT0}, 4\ns_mul_i32 s{sWOF}, s{sT0}, s{sPITCH}\ns_add_u32 s{sWOF}, s{sWOF}, s{sT5}")
        a(f"s_lshl_b32 s{sLX}, s{sLW}, 12\ns_mul_i32 s{sLWB}, s{sLW}, 6144\ns_add_u32 s{sLWB}, s{sLWB}, {L_W}")
        a(f"s_mov_b32 s{S_X+2}, 2097152\ns_mov_b32 s{S_X+3}, 0x20000\ns_add_u32 s{S_W+2}, s{sWEND}, s{sT3}\ns_mov_b32 s{S_W+3}, 0x20000")
        a("s_waitcnt lgkmcnt(0)")
        self.stamp(1)
        a(f"s_load_dword s{sTAG}, s[22:23], {WS_EPOCH}")
        a(f"s_mov_b32 s{S_X}, s4\ns_mov_b32 s{S_X+1}, s5\ns_sub_u32 s12, s12, 2048\ns_subb_u32 s13, s13, 0")
        a(f"s_cmp_lt_u32 s{sG}, 8\ns_cselect_b32 s{S_W}, s6, s12\ns_cselect_b32 s{S_W+1}, s7, s13")
        ml = self.o.get('late')
        if ml:
            a(f"s_cmp_lt_u32 s{sG}, 8\ns_cbranch_scc{0 if ml == 'M' else 1} L_st0a")
            self.l_stage(vm.copy(), 0)
            a.label("L_st0a")
        else: self.l_stage(vm, 0)
        if self.o.get('pst'): self.stamp(40)
        a(f"v_lshrrev_b32 v{T}, 4, v{vL}\nv_lshlrev_b32 v{T}, 1, v{T}\nv_xor_b32 v{T}, v{T}, v{T+1}\nv_lshlrev_b32 v{T}, 4, v{T}\nv_lshl_add_u32 v{vB2D}, v{T+2}, 10, v{T}\nv_add_u32 v{vB2D+1}, 7168, v{vB2D}")
        self.srd(S_WS, 22, WS_SIZE); self.srd(S_W2, 16, 1376*1024); self.srd(S_WO, 8, 512*1024); self.srd(S_OUT, 18, 2097152)
        self.decode2()
        a(f"v_bfe_u32 v{T}, v{vL}, 2, 2\nv_lshrrev_b32 v{T+1}, 1, v{T}\nv_lshlrev_b32 v{T}, 7, v{T}\nv_lshl_add_u32 v{T}, v{T+1}, 6, v{T}")
        a(f"v_bfe_u32 v{T+1}, v{vL}, 4, 1\nv_lshl_add_u32 v{T}, v{T+1}, 5, v{T}\nv_and_b32 v{T+1}, 3, v{vL}\nv_lshl_add_u32 v{T+14}, v{T+1}, 3, v{T}\nv_lshrrev_b32 v{T+15}, 5, v{vL}")
        a(f"s_lshl_b32 s{sB2L}, s{sLW}, 11\nv_lshrrev_b32 v{T}, 2, v{vL}\nv_lshlrev_b32 v{T}, 7, v{T}\nv_lshl_add_u32 v{T}, v{T+1}, 3, v{T}\nv_bfe_u32 v{T+1}, v{vL}, 3, 2\nv_lshl_add_u32 v{T}, v{T+1}, 5, v{T}\nv_add_u32 v{vB2AL[0]}, s{sB2L}, v{T}")
        for j in range(1, 4): a(f"v_xor_b32 v{vB2AL[j]}, {32*j}, v{vB2AL[0]}")
        for k in range(4, 12): a(f"v_add_u32 v{vB2AL[k]}, 65536, v{vB2AL[k-4]}")
        a(f"v_and_b32 v{T}, 31, v{vL}\nv_lshlrev_b32 v{T}, 2, v{T}\nv_add_u32 v{T}, {L_FL}, v{T}\nv_mov_b32 v{T+1}, 0\nds_write_b32 v{T}, v{T+1}")

    def l_colsum_pre(self):
        a = self.a; T = ACC2; S = T + 16
        a(f"s_mul_i32 s{sT0}, s{sLW}, 6144\ns_add_u32 s{sT0}, s{sT0}, {L_W}\nv_mul_u32_u24 v{T}, 3072, v{T+15}\nv_add3_u32 v{T}, v{T}, v{T+14}, s{sT0}")
        a(f"v_lshlrev_b32 v{T+1}, 5, v{T+15}\nv_xor_b32 v{T}, v{T}, v{T+1}\nv_xor_b32 v{T+1}, 64, v{T}")
        a(f"s_mov_b32 s{sT5}, 0x3f803f80")
        for k in range(6): a(f"v_mov_b32 v{S+k}, 0")
        a(f"s_mul_i32 s{sT1}, s{sLW}, 1536\ns_add_u32 s{sT1}, s{sT1}, {L_SLAB}\nv_and_b32 v{T+2}, 31, v{vL}\nv_lshl_add_u32 v{T+2}, v{T+2}, 2, s{sT1}\nv_mul_u32_u24 v{T+3}, 768, v{T+15}\nv_add_u32 v{T+2}, v{T+2}, v{T+3}")
    def l_colsum(self):
        a = self.a; T = ACC2; F = AR; S = T + 16
        for u in range(3):
            for c in range(2):
                for rd in range(2):
                    r = F + 8*u + 4*c + 2*rd
                    a(f"ds_read_b64_tr_b16 v[{r}:{r+1}], v{T+c} offset:{1024*u + 512*rd}")
        if self.o.get('cslate', 0): return
        for half in range(2):
            a(f"s_waitcnt lgkmcnt({6 - 6*half})")
            for k in range(4):
                for uc in range(3*half, 3*half + 3): a(f"v_dot2c_f32_bf16 v{S+uc}, s{sT5}, v{F+4*uc+k}")
        a("s_nop 2")
        for uc in range(6): a(f"ds_write_b32 v{T+2}, v{S+uc} offset:{128*uc}")

    def l_colsum_part(self, half):
        a = self.a; T = ACC2; F = AR; S = T + 16; H = T + 4
        ucs = range(3*half, 3*half + 3)
        for uc in ucs: a(f"v_lshlrev_b32 v{S+uc}, 16, v{F+4*uc}\nv_and_b32 v{H+uc%3}, 0xffff0000, v{F+4*uc}")
        for k in range(1, 4):
            for uc in ucs: a(f"v_lshlrev_b32 v{H+3+uc%3}, 16, v{F+4*uc+k}\nv_and_b32 v{F+4*uc+k}, 0xffff0000, v{F+4*uc+k}")
            for uc in ucs: a(f"v_add_f32 v{S+uc}, v{S+uc}, v{H+3+uc%3}\nv_add_f32 v{H+uc%3}, v{H+uc%3}, v{F+4*uc+k}")
        for uc in ucs: a(f"v_add_f32 v{S+uc}, v{S+uc}, v{H+uc%3}")
        for uc in ucs: a(f"ds_write_b32 v{T+2}, v{S+uc} offset:{128*uc}")

    def wave_sum2(self, v0, v1, t0, t1):
        a = self.a
        for m in ("quad_perm:[1,0,3,2]", "quad_perm:[2,3,0,1]", "row_half_mirror", "row_mirror"):
            a(f"s_nop 0\nv_add_f32_dpp v{v0}, v{v0}, v{v0} {m} row_mask:0xf bank_mask:0xf\nv_add_f32_dpp v{v1}, v{v1}, v{v1} {m} row_mask:0xf bank_mask:0xf")
        for op in ("v_permlane16_swap_b32", "v_permlane32_swap_b32"):
            a(f"v_mov_b32 v{t0}, v{v0}\nv_mov_b32 v{t1}, v{v1}\ns_nop 1\n{op} v{t0}, v{v0}\n{op} v{t1}, v{v1}\ns_nop 0\nv_add_f32 v{v0}, v{v0}, v{t0}\nv_add_f32 v{v1}, v{v1}, v{t1}")

    def c_stats(self, vm):
        a = self.a; T = 160; u = 116
        vm.wait("xrow", lgkm=0)
        if self.o.get('pst'): self.stamp(42)
        self.tag()
        for r in range(2):
            for k in range(4):
                a(f"v_lshlrev_b32 v{u+8*r+2*k}, 16, v{T+4+4*r+k}\nv_and_b32 v{u+8*r+2*k+1}, 0xffff0000, v{T+4+4*r+k}")
        s0, s1 = u + 16, u + 17
        for r, s in ((0, s0), (1, s1)): a(f"v_add_f32 v{s}, v{u+8*r}, v{u+8*r+1}")
        for k in range(2, 8):
            for r, s in ((0, s0), (1, s1)): a(f"v_add_f32 v{s}, v{s}, v{u+8*r+k}")
        self.wave_sum2(s0, s1, u + 40, u + 41)
        G0, G1 = u + 20, u + 24
        a(f"v_mul_f32 v{G0}, {f2u(1/512.):#x}, v{s0}\nv_mul_f32 v{G1}, {f2u(1/512.):#x}, v{s1}")
        for k in range(8):
            a(f"v_sub_f32 v{u+k}, v{u+k}, v{G0}\nv_sub_f32 v{u+8+k}, v{u+8+k}, v{G1}")
        a(f"v_mul_f32 v{s0}, v{u}, v{u}\nv_mul_f32 v{s1}, v{u+8}, v{u+8}")
        for k in range(1, 8): a(f"v_fmac_f32 v{s0}, v{u+k}, v{u+k}\nv_fmac_f32 v{s1}, v{u+8+k}, v{u+8+k}")
        self.wave_sum2(s0, s1, u + 40, u + 41)
        a(f"v_mov_b32 v{u}, {f2u(1e-5):#x}\nv_mov_b32 v{u+1}, {f2u(1e-5):#x}\nv_fmac_f32 v{u}, {f2u(1/512.):#x}, v{s0}\nv_fmac_f32 v{u+1}, {f2u(1/512.):#x}, v{s1}")
        a(f"v_rsq_f32 v{u}, v{u}\nv_rsq_f32 v{u+1}, v{u+1}\nv_mov_b32 v{G0+2}, 0\nv_mov_b32 v{G0+3}, s{sTAG}\nv_mov_b32 v{G1+2}, 0\nv_mov_b32 v{G1+3}, s{sTAG}")
        a(f"v_mul_f32 v{G0+1}, {f2u(LOG2E):#x}, v{u}\nv_mul_f32 v{G1+1}, {f2u(LOG2E):#x}, v{u+1}")
        self.lane0(u + 2)
        a(f"buffer_store_dwordx4 v[{G0}:{G0+3}], v{u+2}, s[{S_WS}:{S_WS+3}], s{sE} offen sc1"); vm.issue("statst")
        a(f"buffer_store_dwordx4 v[{G1}:{G1+3}], v{u+2}, s[{S_WS}:{S_WS+3}], s{sE} offen offset:16 sc1"); vm.issue("statst")
        if self.o.get('pst'): self.stamp(43)
        vm.wait("bias")
        a(f"v_lshlrev_b32 v{u+3}, 16, v{T+12}\nv_mul_f32 v{u+3}, {f2u(LOG2E):#x}, v{u+3}\nv_lshlrev_b32 v{u+4}, 2, v{T+13}\nv_add_u32 v{u+4}, {L_BT}, v{u+4}")
        a(f"s_cmp_eq_u32 s{sW}, 3\ns_cbranch_scc1 L_nobt\nds_write_b32 v{u+4}, v{u+3}")
        a.label("L_nobt")

    def l_cspub(self, vm, vi):
        a = self.a; T = ACC2 + 24; U = B2R
        a(f"s_mov_b32 s{sT0}, {OOB}\ns_cmp_lg_u32 s{sLW}, 0\ns_cbranch_scc1 L_nocsp{vi}")
        a(f"v_lshlrev_b32 v{T}, 2, v{vL}\nv_add_u32 v{T}, {L_SLAB}, v{T}")
        for k in range(0, 24, 2): a(f"ds_read2st64_b32 v[{U+k}:{U+k+1}], v{T} offset0:{k} offset1:{k+1}")
        a(f"v_mov_b32 v{T+3}, s{sTAG}")
        a(f"s_lshl4_add_u32 s{sT0}, s{sG}, s{sRB}\ns_lshl_b32 s{sT0}, s{sT0}, 10\ns_add_u32 s{sT0}, s{sT0}, {WS_CSP}")
        a("s_waitcnt lgkmcnt(0)")
        for sl in range(1, 7):
            for u in range(3): a(f"v_add_f32 v{U+u}, v{U+u}, v{U+3*sl+u}")
        for u in range(3): a(f"v_add_f32 v{T+u}, v{U+u}, v{U+21+u}")
        a.label(f"L_nocsp{vi}")
        a(f"buffer_store_dwordx4 v[{T}:{T+3}], v{vL16}, s[{S_WS}:{S_WS+3}], s{sT0} offen sc1"); vm.issue("cspst")

    def l_steptable(self):
        a = self.a
        a("s_waitcnt lgkmcnt(0)")
        a(f"s_mul_i32 s{sT0}, s{sROT}, 3\ns_lshr_b32 s{sT0}, s{sT0}, 1\ns_sub_u32 s{sT1}, s{sT0}, 11\ns_cmp_ge_u32 s{sT0}, 11\ns_cselect_b32 s{sT0}, s{sT1}, s{sT0}")
        a(f"s_mul_i32 s{sT3}, s{sLW}, 11\ns_add_u32 s{sT4}, s{sT3}, 11\ns_add_u32 s{sT0}, s{sT0}, s{sT3}")
        for i in range(11):
            a(f"s_lshl_b32 s{SP[i]}, s{sT0}, 10\ns_cmp_ge_u32 s{sT0}, 43\ns_cselect_b32 s{SP[i]}, {WS_SIZE}, s{SP[i]}")
            if i < 10: a(f"s_add_u32 s{sT0}, s{sT0}, 1\ns_cmp_eq_u32 s{sT0}, s{sT4}\ns_cselect_b32 s{sT0}, s{sT3}, s{sT0}")
        a(f"s_lshl_b32 s{sT3}, s{sLW}, 2\ns_add_u32 s{sT3}, s{sT3}, 44")
        for j in range(4):
            a(f"s_add_u32 s{sT0}, s{sROT}, {j}\ns_and_b32 s{sT0}, s{sT0}, 3\ns_add_u32 s{sT0}, s{sT0}, s{sT3}\ns_lshl_b32 s{SP[11+j]}, s{sT0}, 10")
        a(f"s_lshl_b32 s{SP[15]}, s{sCT}, 7\ns_add_u32 s{SP[16]}, s{SP[15]}, 16384\ns_sub_u32 s{SP[17]}, s{SP[15]}, {44*32768}\ns_add_u32 s{SP[18]}, s{SP[17]}, 16384")
        a(f"s_mul_i32 s{sA2B}, s{sRT}, {4*A2_RT}\ns_add_u32 s{sA2B}, s{sA2B}, {WS_A2}")
        for k in range(1, 4): a(f"v_add_u32 v{vAO[k]}, {k*A2_RT}, v{vL16}")

    def l_gather_addr(self):
        a = self.a; T = ACC2 + 40; sT4, sT5 = 86, 87
        a(f"s_lshl2_add_u32 s{sT4}, s{sRB}, s{sLW}\ns_lshl_b32 s{sT4}, s{sT4}, 9\ns_add_u32 s{sT4}, s{sT4}, {WS_STATS}")
        a(f"s_and_b32 s{sT5}, s{sRB}, 8\ns_lshl4_add_u32 s{sT5}, s{sG}, s{sT5}\ns_lshl2_add_u32 s{sT5}, s{sT5}, s{sLW}\ns_lshl_b32 s{sT5}, s{sT5}, 8\ns_add_u32 s{sT5}, s{sT5}, {WS_CSP}")
        a(f"v_and_b32 v{T}, 0x1f0, v{vL16}\nv_lshrrev_b32 v{T+1}, 4, v{vL}\nv_lshlrev_b32 v{T+1}, 10, v{T+1}\nv_and_b32 v{T+2}, 0xf0, v{vL16}\nv_or_b32 v{T+1}, v{T+1}, v{T+2}\nv_add_u32 v{T+2}, 4096, v{T+1}")
    def l_gather_issue(self, vm):
        a = self.a; T = ACC2 + 40; G = AR; sT4, sT5 = 86, 87
        a(f"buffer_load_dwordx4 v[{G}:{G+3}], v{T}, s[{S_WS}:{S_WS+3}], s{sT4} offen sc1"); vm.issue("gath")
        a(f"buffer_load_dwordx4 v[{G+4}:{G+7}], v{T+1}, s[{S_WS}:{S_WS+3}], s{sT5} offen sc1"); vm.issue("gath")
        a(f"buffer_load_dwordx4 v[{G+8}:{G+11}], v{T+2}, s[{S_WS}:{S_WS+3}], s{sT5} offen sc1"); vm.issue("gath")
    def l_gather_check(self, vm, vi):
        a = self.a; T = ACC2; G = AR
        vm.wait("gath")
        a(f"s_mov_b32 s{sSPIN}, 0")
        a.label(f"L_gchk{vi}")
        a(f"v_cmp_ne_u32 vcc, s{sTAG}, v{G+3}\nv_cmp_ne_u32 s[70:71], s{sTAG}, v{G+7}\ns_nop 1\ns_or_b64 s[70:71], vcc, s[70:71]")
        a(f"v_cmp_ne_u32 vcc, s{sTAG}, v{G+11}\ns_nop 1\ns_or_b64 vcc, vcc, s[70:71]")
        a(f"s_cbranch_vccz L_gok{vi}")
        a(f"s_add_u32 s{sSPIN}, s{sSPIN}, 1\ns_cmp_gt_u32 s{sSPIN}, 0x8000\ns_cbranch_scc1 L_gok{vi}")
        self.l_gather_issue(VM(a))
        a(f"s_waitcnt vmcnt(0)\ns_branch L_gchk{vi}")
        a.label(f"L_gok{vi}")
        a(f"s_lshl_b32 s{sT0}, s{sLW}, 7\ns_add_u32 s{sT0}, s{sT0}, {L_MT}\nv_and_b32 v{T}, 31, v{vL}\nv_lshl_add_u32 v{T}, v{T}, 2, s{sT0}")
        a(f"ds_write_b32 v{T}, v{G}\nds_write_b32 v{T}, v{G+1} offset:512")
    def l_w2touch(self, vm):
        a = self.a; T = ACC2 + 8
        a(f"s_lshl2_add_u32 s{sT0}, s2, s{sLW}\ns_lshl_b32 s{sT1}, s{sT0}, 9\ns_mul_i32 s{sT0}, s{sT0}, 1408\nv_lshlrev_b32 v{T}, 7, v{vL}\ns_mov_b64 exec, 0x7ff")
        a(f"buffer_load_dword v{T+1}, v{T}, s[{S_W2}:{S_W2+3}], s{sT0} offen\ns_mov_b64 exec, 0xf"); vm.issue("w2t")
        a(f"buffer_load_dword v{T+2}, v{T}, s[{S_WO}:{S_WO+3}], s{sT1} offen\ns_mov_b64 exec, -1"); vm.issue("w2t")
    def l_gather_cs(self):
        a = self.a; T = ACC2; G = AR
        for k in range(3): a(f"v_add_f32 v{G+4+k}, v{G+4+k}, v{G+8+k}")
        for op in ("v_permlane16_swap_b32", "v_permlane32_swap_b32"):
            for k in range(3): a(f"v_mov_b32 v{G+8+k}, v{G+4+k}")
            a("s_nop 0")
            for k in range(3): a(f"{op} v{G+8+k}, v{G+4+k}")
            a("s_nop 0")
            for k in range(3): a(f"v_add_f32 v{G+4+k}, v{G+4+k}, v{G+8+k}")
        a(f"s_lshl_b32 s{sT0}, s{sLW}, 6\ns_add_u32 s{sT0}, s{sT0}, {L_CS}\nv_lshl_add_u32 v{T+1}, v{vL}, 2, s{sT0}\ns_mov_b64 exec, 0xffff")
        a(f"ds_write2st64_b32 v{T+1}, v{G+4}, v{G+5} offset1:1\nds_write_b32 v{T+1}, v{G+6} offset:512\ns_mov_b64 exec, -1")

    def b2_dma(self, vm, step, pace=True):
        a = self.a
        if pace: vm.depth((self.o['pace'] if pace is True else pace) - 2)
        srd, base = (S_W2, SP[15 + (step & 1)]) if step < 22 else (S_WO, SP[17 + (step & 1)])
        a(f"s_lshl_b32 s{sT0}, s{SP[step // 2]}, 5\ns_add_u32 m0, s{sB2L}, {8192*round_of(step)}\ns_add_u32 s{sT0}, s{sT0}, s{base}")
        a(f"buffer_load_dwordx4 v{vB2D}, s[{srd}:{srd+3}], s{sT0} offen lds"); vm.issue(f"b2_{step}")
        a(f"buffer_load_dwordx4 v{vB2D+1}, s[{srd}:{srd+3}], s{sT0} offen offset:1024 lds"); vm.issue(f"b2_{step}")
        if self.o.get('b2stamps'): self.stamp(20 + step)
    def b2_read_list(self, s, dst):
        rnd = round_of(s); hi, lo = rnd // 8, rnd % 8
        return [f"ds_read_b64_tr_b16 v[{dst+4*j+2*(s&1)}:{dst+4*j+2*(s&1)+1}], v{vB2AL[4*hi + j]} offset:{8192*lo}" for j in range(4)]
    def b2_reads(self, s, dst):
        for r in self.b2_read_list(s, dst): self.a(r)

    def l_main(self):
        a = self.a; vm = VM(a); T = ACC2
        if self.o['pf']: vm.issue("codepf")
        self.l_prologue(vm)
        if self.o['spf']:
            a(f"s_lshr_b32 s{sT0}, s2, 3\ns_lshl2_add_u32 s{sT0}, s{sT0}, s{sLW}\ns_mul_i32 s{sT0}, s{sT0}, {64*self.o['spf']}\ns_add_u32 s94, s16, s{sT0}\ns_addc_u32 s95, s17, 0\ns_and_b32 s84, s2, 7")
        if self.o.get('stouch'):
            a(f"s_lshl2_add_u32 s{sT0}, s2, s{sLW}\ns_mul_i32 s{sT1}, s{sT0}, 1376\ns_and_b32 s{sT1}, s{sT1}, 0xffffffc0\ns_add_u32 s94, s16, s{sT1}\ns_addc_u32 s95, s17, 0")
            a(f"s_lshl_b32 s{sT0}, s{sT0}, 9\ns_add_u32 s98, s8, s{sT0}\ns_addc_u32 s99, s9, 0")
        self.l_steptable()
        if self.o.get('late') and self.o.get('late_at', 1) == 0:
            a(f"s_cmp_lt_u32 s{sG}, 8\ns_cbranch_scc{1 if self.o['late'] == 'M' else 0} L_st0b")
            self.l_stage(vm, 0)
            a.label("L_st0b")
        self.tag(); self.l_gather_addr()
        a(f"v_and_b32 v{T}, 7, v{vL}\nv_lshrrev_b32 v{T+1}, 4, v{vL}\nv_xor_b32 v{T+1}, v{T+1}, v{T}\nv_lshlrev_b32 v{T+1}, 4, v{T+1}\nv_lshl_add_u32 v{T+1}, v{T}, 8, v{T+1}")
        a(f"v_bfe_u32 v{T}, v{vL}, 3, 1\nv_lshl_add_u32 v{T+1}, v{T}, 13, v{T+1}\nv_add_u32 v254, s{sB2L}, v{T+1}")
        vP0, vP2, vPT = 249, 250, 251
        a(f"s_lshl_b32 s54, s{sRT}, 12\ns_add_u32 s54, s54, {WS_FLAG}")
        a(f"v_and_b32 v{vP0}, 3, v{vL}\ns_lshl_b32 s{sT0}, s{sLW}, 2\nv_add_u32 v{vP0}, s{sT0}, v{vP0}\nv_lshlrev_b32 v{vP0}, 7, v{vP0}")
        if not self.o['classes'] and self.o.get('psub', 1):
            a(f"s_lshl_b32 s{sT0}, s{sLW}, 3\ns_or_b32 s{sT0}, s{sT0}, 0x80000\ns_bfe_u32 s{sT1}, 0x0c060200, s{sT0}\ns_bfe_u32 s{sT0}, 0x03050503, s{sT0}")
            a(f"v_min_u32 v{vP2}, s{sT0}, v{vL}\nv_add_u32 v{vP2}, s{sT1}, v{vP2}\nv_lshlrev_b32 v{vP2}, 7, v{vP2}")
        elif not self.o['classes']:
            a(f"v_and_b32 v{vP2}, 15, v{vL}\nv_lshlrev_b32 v{vP2}, 7, v{vP2}")
        else:
            a(f"v_and_b32 v{vP2}, 3, v{vL}\nv_min_u32 v{vP2}, 2, v{vP2}")
            a(f"s_mul_i32 s{sT0}, s{sLW}, 3\ns_mul_i32 s{sT1}, s{sLW}, 6\ns_sub_u32 s{sT1}, s{sT1}, 6\ns_cmp_lt_u32 s{sLW}, 2\ns_cselect_b32 s{sT0}, s{sT0}, s{sT1}\ns_cselect_b32 s{sT1}, 0, 1")
            a(f"v_lshlrev_b32 v{vP2}, s{sT1}, v{vP2}\nv_add_u32 v{vP2}, s{sT0}, v{vP2}\nv_min_u32 v{vP2}, 14, v{vP2}\nv_lshlrev_b32 v{vP2}, 7, v{vP2}")
        vA = vP0 if self.o['classes'] else vP2
        self.final_addr(None, T, T + 1)
        a(f"v_and_b32 v255, 3, v{vL}\nv_lshlrev_b32 v255, 2, v255\nv_add_u32 v255, {L_FL}, v255")
        a(f"s_mul_i32 s{sT0}, s{sLW}, 3072\ns_add_u32 s{sT0}, s{sT0}, {L_KV + 12}\nv_add_u32 v{T}, s{sT0}, v{vL16}\ns_not_b32 s{sT0}, s{sTAG}\nv_mov_b32 v{T+1}, s{sT0}")
        for k in range(3): a(f"ds_write_b32 v{T}, v{T+1} offset:{1024*k}")
        self.l_colsum_pre()
        if self.o.get('late') and self.o.get('late_at', 1) == 1:
            a(f"s_cmp_lt_u32 s{sG}, 8\ns_cbranch_scc{1 if self.o['late'] == 'M' else 0} L_st0b")
            self.l_stage(vm, 0)
            a.label("L_st0b")
        if self.o.get('pst'): self.stamp(41)
        vm.depth(self.o.get('st1_at', 8))
        if self.o.get('pst'): self.stamp(42)
        self.l_stage(vm, 1, 'x' if self.o.get('split1', 0) else None)
        if self.o.get('pst'): self.stamp(43)
        if self.o.get('w2pf', -1) == -1: self.l_w2touch(vm)
        vm.wait("st0w")
        self.l_colsum()
        CL = self.o.get('cl') or [{}]
        TV = B2R + 40
        if len(CL) > 1 or CL[0]:
            a(f"s_lshr_b32 s{sT0}, s2, 3\ns_lshl2_add_u32 s{sT0}, s{sT0}, s{sLW}\ns_mul_i32 s{sT0}, s{sT0}, 118")
            a(f"v_min_u32 v{TV}, 58, v{vL}\nv_add_u32 v{TV}, s{sT0}, v{TV}\nv_lshlrev_b32 v{TV}, 7, v{TV}\nv_add_u32 v{TV+1}, {59*128}, v{TV}")
            a(f"v_subrev_u32 v{TV+2}, {1376*1024}, v{TV}\nv_subrev_u32 v{TV+3}, {1376*1024}, v{TV+1}\ns_and_b32 s84, s{sCT}, {len(CL)-1}")
        def touch(vm, k):
            a(f"buffer_load_dword v{TV+4}, v{TV+k}, s[{S_W2}:{S_W2+3}], 0 offen"); vm.issue("tch")
            a(f"buffer_load_dword v{TV+5}, v{TV+2+k}, s[{S_WO}:{S_WO+3}], 0 offen"); vm.issue("tch")
        base = vm; ends = []
        for vi, var in enumerate(CL):
            vm = base.copy()
            if vi + 1 < len(CL): a(f"s_cmp_lg_u32 s84, {vi}\ns_cbranch_scc1 L_var{vi}")
            for t in range(8):
                vm.wait(f"st{t}", lgkm=None if ((self.o['spf'] or self.o.get('stouch')) and 1 <= t <= 6) else 0)
                if self.o.get('pst') and t < 2: self.stamp(44 + t)
                a("s_barrier")
                if self.o['kstamps'] or t in (0, 7): self.stamp(2 + t)
                if t == 0 and self.o.get('split1', 0): self.l_stage(vm, 1, 'w')
                if t + 2 < 8: self.l_stage(vm, t + 2)
                for k in var.get(t, []): touch(vm, k)
                if self.o.get('cslate', 0):
                    if t < 2: self.l_colsum_part(t)
                    if t == 2: self.l_cspub(vm, vi)
                elif t == 0: self.l_cspub(vm, vi)
                if self.o['spf'] and t in self.o.get('spf_t', range(0, 6)):
                    n = self.o['spf']; assert 128*64*n <= 234752
                    a(f"s_add_u32 s84, s84, 1\ns_sub_u32 s{sT0}, s84, 6\ns_cmp_ge_u32 s84, 6\ns_cselect_b32 s84, s{sT0}, s84\ns_mul_i32 s{sT0}, s84, 234752\ns_add_u32 s98, s94, s{sT0}\ns_addc_u32 s99, s95, 0")
                    for k in range(n): a(f"s_load_dword s54, s[98:99], {64*k}")
                if self.o.get('stouch'):
                    n, t0 = self.o['stouch']
                    lst = [("94:95", 64*k) for k in range(22)] + [("98:99", 64*k) for k in range(8)]
                    if t >= t0:
                        for p, off in lst[n*(t - t0):n*(t - t0 + 1)]: a(f"s_load_dword s84, s[{p}], {off}")
                if t == self.o.get('a2touch', -9):
                    a(f"s_lshl2_add_u32 s{sT0}, s{sRB}, s{sLW}\ns_mul_i32 s{sT0}, s{sT0}, {A2_RT}\ns_lshl_b32 s{sT1}, s{sC0}, 11\ns_lshl_b32 s{sT2}, s{sG}, 12\ns_add_u32 s{sT2}, s{sT2}, {88*1024}")
                    a(f"s_cmp_lt_u32 s{sG}, 8\ns_cselect_b32 s{sT1}, s{sT2}, s{sT1}\ns_cselect_b32 s{sT2}, {OOB}, 8192\ns_cselect_b32 exec_hi, 0, -1\ns_add_u32 s{sT0}, s{sT0}, s{sT1}\ns_add_u32 s{sT0}, s{sT0}, {WS_A2}\ns_add_u32 s{sT2}, s{sT2}, s{sT0}")
                    a(f"v_lshlrev_b32 v{T+8}, 7, v{vL}\nbuffer_load_dword v{T+9}, v{T+8}, s[{S_WS}:{S_WS+3}], s{sT0} offen\ns_mov_b32 exec_hi, 0\nbuffer_load_dword v{T+10}, v{T+8}, s[{S_WS}:{S_WS+3}], s{sT2} offen\ns_mov_b64 exec, -1")
                    vm.issue("a2t"); vm.issue("a2t")
                if t == 5: self.l_gather_issue(vm)
                if t == self.o.get('w2pf', -1): self.l_w2touch(vm)
                if t == 6:
                    for s in range(self.o['n0']): self.b2_dma(vm, s, pace=False)
                    self.l_gather_check(vm, vi); self.l_gather_cs()
            ends.append(list(vm.q))
            if vi + 1 < len(CL):
                a("s_branch L_varend"); a.label(f"L_var{vi}")
        assert all(e == ends[0] for e in ends)
        a.label("L_varend")
        for s in range(self.o['n0'], 7): self.b2_dma(vm, s, pace=False)
        def park(k):
            vm.wait(f"b2_{k}")
            self.b2_reads(k, B2R + 16*(k // 2))
        ep = self.o.get('epark', 1); done = 0
        for s in range(7, 18):
            if s == 13: self.spin_lds("ring", 255, T + 1, 0)
            self.b2_dma(vm, s)
            if ep and s - 6 > done:
                park(done); done += 1
        self.stamp(10)
        for k in range(done, 12):
            park(k)
            if k > 1: a("s_waitcnt lgkmcnt(8)")
        a(f"v_xor_b32 v253, 64, v254")
        a("s_waitcnt lgkmcnt(0)")
        if self.o.get('mix', 0):
            a(f"s_cmp_lt_u32 s{sG}, 8\ns_cbranch_scc1 L_p2att")
            self.l_phase2(vm.copy(), "M", True, vP0, vP2, vPT, vA)
            a.label("L_p2att")
        self.l_phase2(vm.copy(), "A", False, vP0, vP2, vPT, vA)

    def l_phase2(self, vm, sfx, mix, vP0, vP2, vPT, vA):
        a = self.a; T = ACC2
        polls = {0: (vA, 2048), 11: (vP0, 0)}
        free = [AR + 16*k for k in range(3)]; slot = {}; bslot = {i: B2R + 16*i for i in range(NREG // 2)}
        def a_one(i, t):
            if t == 0:
                slot[i] = free.pop(0)
                a(f"s_add_u32 s{sT0}, s{sA2B}, s{SP[i]}")
            r = slot[i] + 4*t
            a(f"buffer_load_dwordx4 v[{r}:{r+3}], v{vAO[t]}, s[{S_WS}:{S_WS+3}], s{sT0} offen sc1"); vm.issue(f"a{i}_{t}")
        def poll_issue(c):
            v, imm = polls[c]
            off = f" offset:{imm}" if imm else ""
            a(f"buffer_load_dword v{vPT}, v{v}, s[{S_WS}:{S_WS+3}], s54 offen{off} sc1"); vm.issue(f"p{c}")
        def poll_check(c):
            v, imm = polls[c]
            vm.wait(f"p{c}")
            a(f"v_cmp_ne_u32 vcc, s{sTAG}, v{vPT}\ns_cbranch_vccz L_pok{c}{sfx}")
            self.spin_global(f"p{c}{sfx}", v, vPT, 54, imm)
            a.label(f"L_pok{c}{sfx}")
            self.stamp({0: 12, 11: 15}[c])
        pre = self.o.get('mixpre', 12) if mix else 12
        if pre: self.spin_lds("hold" + sfx, 255, T + 1, 64)
        self.stamp(13)
        a(f"s_lshl_b32 s{sT0}, s{sLW}, 2\ns_add_u32 s{sT0}, s{sT0}, {L_FL + 96}\nv_mov_b32 v{T+2}, s{sT0}\nv_mov_b32 v{T+3}, 1")
        for s in range(18, 18 + pre):
            self.b2_dma(vm, s, pace=self.o.get('pace2', 10))
            if s == self.o.get('pw_at', 25) and not mix:
                if s == 29: vm.depth(self.o['pollwait'] - 1)
                a(f"ds_write_b32 v{T+2}, v{T+3}")
        self.spin_lds("hold2" + sfx, 255, T + 1, 112)
        poll_issue(0)
        nxt = 18 + pre
        for k in range(0):
            if nxt < 30: self.b2_dma(vm, nxt, pace=False); nxt += 1
        self.stamp(11)
        poll_check(0)
        a("s_setprio 1")
        self.xres(vm)
        D0, D1, DS = self.o.get('dM' if mix else 'dA', (10, 10, 0))
        D4 = D0
        LEAD = self.o.get('lead', 4)
        todo = [(i, t) for i in range(15) for t in range(4)]; nxt = 0
        def issue_next():
            nonlocal nxt
            i, t = todo[nxt]
            if (i, t) == (11, 0): poll_check(11)
            a_one(i, t); nxt += 1
            if nxt == 44 - LEAD: poll_issue(11)
        WR = [f"ds_write_b128 v{253 if j & 1 else 254}, v[{ACC2+16*t+4*j}:{ACC2+16*t+4*j+3}] offset:{16384*t + 128*(j >> 1)}" for t in range(4) for j in (range(3, -1, -1) if t & 1 else range(4))]
        for k in range(D4): issue_next()
        for i in range(15):
            if i >= DS: D4 = D1
            R = []
            if NREG // 2 <= i + 1 < 15:
                bslot[i + 1] = free.pop(0)
                vm.wait(f"b2_{2*i+3}")
                R = self.b2_read_list(2*i + 2, bslot[i + 1]) + self.b2_read_list(2*i + 3, bslot[i + 1])
            if i >= NREG // 2: a("s_waitcnt lgkmcnt(0)")
            if self.o.get('astamps'): self.stamp(20 + i)
            for t in range(4):
                vm.wait(f"a{i}_{t}")
                for jj in range(4):
                    j = 3 - jj if t & 1 else jj
                    A = ACC2 + 16*t + 4*j; acc = f"v[{A}:{A+3}]"
                    a(f"v_mfma_f32_16x16x32_bf16 {acc}, v[{bslot[i]+4*j}:{bslot[i]+4*j+3}], v[{slot[i]+4*t}:{slot[i]+4*t+3}], {'0' if i == 0 else acc}")
                    if i == 14 and self.o.get('ewr', 1) and 16 - len(WR) < 4*t + jj - 8: a(WR.pop(0))
                    if jj < 3 and t < 3 and R: a(R.pop(0))
                    if jj in (0, 2) and nxt < min(60, 4*i + t + D4 + jj // 2) and (todo[nxt][1] or free): issue_next()
            free.append(slot[i]); free.append(bslot[i])
        assert nxt == 60
        self.stamp(16)
        if not self.o.get('ewr', 1): a("s_nop 3")
        for w_ in WR: a(w_)
        a("s_branch L_final")

    def c_prologue(self, vm):
        a = self.a; T = CT
        a("s_waitcnt lgkmcnt(0)")
        if self.o.get('pst'): self.stamp(40)
        a(f"s_load_dword s{sTAG}, s[22:23], {WS_EPOCH}")
        self.srd(S_X, 4, 2097152)
        X = 160
        a(f"s_lshl4_add_u32 s{sT0}, s{sRB}, s{sG}\ns_lshl2_add_u32 s{sT5}, s{sT0}, s{sW}\ns_lshl_b32 s{sT0}, s{sT5}, 11")
        a(f"buffer_load_dwordx4 v[{X+4}:{X+7}], v{vL16}, s[{S_X}:{S_X+3}], s{sT0} offen"); vm.issue("xrow")
        a(f"buffer_load_dwordx4 v[{X+8}:{X+11}], v{vL16}, s[{S_X}:{S_X+3}], s{sT0} offen offset:1024"); vm.issue("xrow")
        a(f"s_lshl_b32 s{sE}, s{sT5}, 5\ns_add_u32 s{sE}, s{sE}, {WS_STATS}")
        self.srd(S_B1, 14, 2752)
        a(f"v_lshl_add_u32 v{X+13}, s{sW}, 6, v{vL}\nv_lshlrev_b32 v{X+3}, 1, v{X+13}")
        a(f"s_lshl_b32 s{sT0}, s{sC0}, 6\ns_cmp_lt_u32 s{sG}, 8\ns_cselect_b32 s{sT0}, {OOB}, s{sT0}")
        a(f"buffer_load_ushort v{X+12}, v{X+3}, s[{S_B1}:{S_B1+3}], s{sT0} offen"); vm.issue("bias")
        a(f"s_and_b32 s{sR2}, s{sW}, 1\ns_lshr_b32 s{sC}, s{sW}, 1")
        a(f"v_and_b32 v{T+2}, 15, v{vL}\nv_lshrrev_b32 v{T+3}, 4, v{vL}\nv_lshrrev_b32 v{T+4}, 1, v{T+2}\nv_xor_b32 v{T+4}, v{T+4}, v{T+3}")
        a(f"s_lshl_b32 s{sT3}, s{sR2}, 13\nv_lshlrev_b32 v{T+5}, 7, v{T+2}\nv_lshl_add_u32 v{T+5}, v{T+4}, 4, v{T+5}\nv_add_u32 v{vXA}, s{sT3}, v{T+5}\nv_xor_b32 v{vXA+1}, 64, v{vXA}")
        a(f"v_and_b32 v{T+4}, 3, v{vL}\nv_lshlrev_b32 v{T+4}, 3, v{T+4}\nv_bfe_u32 v{T+5}, v{vL}, 3, 1\nv_xor_b32 v{T+5}, s{sC}, v{T+5}\nv_lshl_add_u32 v{T+4}, v{T+5}, 6, v{T+4}")
        a(f"v_and_b32 v{T+6}, 1, v{T+3}\nv_lshl_add_u32 v{T+4}, v{T+6}, 5, v{T+4}")
        a(f"v_bfe_u32 v{T+5}, v{vL}, 2, 2\nv_lshl_add_u32 v{T+4}, v{T+5}, 7, v{T+4}\nv_mul_u32_u24 v{T+5}, 3072, v{T+3}\nv_add_u32 v{T+4}, v{T+4}, v{T+5}")
        a(f"v_add_u32 v{vWA}, {L_W}, v{T+4}\nv_xor_b32 v{vWA+1}, 32, v{vWA}")
        a(f"s_lshl_b32 s{sT0}, s{sR2}, 8\ns_add_u32 s{sT0}, s{sT0}, {L_MT}\nv_lshl_add_u32 v{T+19}, v{T+3}, 4, s{sT0}\nv_lshl_add_u32 v{T+23}, v{T+2}, 2, s{sT0}")
        a(f"s_lshl_b32 s{sT0}, s{sC}, 7\ns_add_u32 s{sT0}, s{sT0}, {L_TAB}\nv_lshl_add_u32 v{T+22}, v{T+2}, 2, s{sT0}\nv_lshl_add_u32 v{T+18}, v{T+3}, 4, s{sT0}")
        self.decode2()
        self.srd(S_WS, 22, WS_SIZE); self.srd(S_OUT, 18, 2097152)
        a(f"s_lshl1_add_u32 s{sT0}, s{sRB}, s{sR2}\ns_mul_i32 s{sA2B}, s{sT0}, {4*A2_RT}\ns_add_u32 s{sA2B}, s{sA2B}, {WS_A2}")
        a(f"s_lshl4_add_u32 s{sT0}, s{sT0}, s{sG}\ns_lshl1_add_u32 s{sT0}, s{sT0}, s{sC}\ns_lshl_b32 s{sFL}, s{sT0}, 7\ns_add_u32 s{sFL}, s{sFL}, {WS_FLAG}")
        for k in range(1, 4): a(f"v_add_u32 v{vCO[k]}, {k*A2_RT}, v{vL16}")
        self.consts()
        a(f"s_lshl_b32 s{sT0}, s{sW}, 2\ns_add_u32 s{sT0}, s{sT0}, {L_FL}\nv_mov_b32 v14, s{sT0}\nv_mov_b32 v15, 1")
        if self.o.get('pst'): self.stamp(41)
        self.c_stats(vm)
        self.flag_regs()
        if self.o['cprio']: a(f"s_setprio {self.o['cprio']}")

    def c_read_list(self, n):
        t, kk = n // 2, n % 2; slot = t % 3; F = FR + 40*(n & 1)
        def x(a_): return f"ds_read_b128 v[{F+4*a_}:{F+4*a_+3}], v{vXA+kk} offset:{slot*16384 + 2048*a_}"
        def w(f):
            u, fp = f // 2, f % 2; r = F + 16 + 4*f
            return [f"ds_read_b64_tr_b16 v[{r+2*rd}:{r+2*rd+1}], v{vWA+fp} offset:{slot*24576 + 12288*kk + 1024*u + 512*rd}" for rd in range(2)]
        return [x(0)] + w(0) + [x(1), x(2), x(3)] + w(1) + w(2) + w(3) + w(4) + w(5)
    def c_mfma(self, n, f, a_, att):
        F = FR + 40*(n & 1); u, fp = f // 2, f % 2
        x = f"v[{F+4*a_}:{F+4*a_+3}]"; w = f"v[{F+16+4*f}:{F+19+4*f}]"
        A = ACC + 32*u + 8*a_ + 4*fp; acc = f"v[{A}:{A+3}]"; c = "0" if n == 0 else acc
        if att and u > 0: return f"v_mfma_f32_16x16x32_bf16 {acc}, {x}, {w}, {c}"
        return f"v_mfma_f32_16x16x32_bf16 {acc}, {w}, {x}, {c}"

    def c_kloop(self, att, short=False):
        a = self.a; nr = 12 if short else 16
        a("s_waitcnt lgkmcnt(0)\ns_barrier")
        self.stamp(2)
        for r in self.c_read_list(0)[:nr]: a(r)
        for n in range(16):
            boundary = (n % 2 == 1)
            if boundary:
                a("s_waitcnt lgkmcnt(0)")
                if n < 15:
                    a("s_barrier")
                    if self.o['kstamps'] == 2: self.stamp(3 + n // 2)
                else:
                    a(f"ds_write_b32 v14, v15")
            R = self.c_read_list(n + 1)[:nr] if n < 15 else (self.att_pre if att else self.mlp_pre)()
            need = {0: 3, 1: 6, 4: 8, 8: 10, 12: 12, 16: 14, 20: 16}
            issued = 0
            for k in range(16 if short else 24):
                f, a_ = k // 4, k % 4
                if f % 2 and self.o.get('snake', 1): a_ = 3 - a_
                if not boundary and k in need: a(f"s_waitcnt lgkmcnt({min(15, nr - need[k] + issued)})")
                a(self.c_mfma(n, f, a_, att))
                if issued < len(R): a(R[issued]); issued += 1
        self.stamp(10)

    def consts(self):
        T = CT
        self.a(f"v_mov_b32 v{T}, 0.5\nv_mov_b32 v{T+4}, {f2u(LN2):#x}\nv_mov_b32 v{T+6}, 1.0\nv_mov_b32 v{T+8}, {f2u(1e-6):#x}")
    def table_list(self, dst, vaddr, off, n, step):
        return [f"ds_read_b128 v[{dst+4*q}:{dst+4*q+3}], v{vaddr} offset:{off + step*q}" for q in range(n)]
    def lane_stats_list(self):
        return [f"ds_read_b32 v{CT+10+2*q}, v{CT+23} offset:{64*q}" for q in range(4)] + [f"ds_read_b32 v{6+2*q}, v{CT+23} offset:{64*q+512}" for q in range(4)]
    def flag(self, vm, soff, imm):
        a = self.a; T = CT
        off = f" offset:{imm}" if imm else ""
        a(f"buffer_store_dword v{T+21}, v{T+20}, s[{S_WS}:{S_WS+3}], s{soff} offen{off} sc1"); vm.issue("flag")
    def release(self, off=64):
        a = self.a
        a(f"ds_write_b32 v14, v15 offset:{off}")
    def flag_regs(self):
        self.lane0(CT + 20); self.a(f"v_mov_b32 v{CT+21}, s{sTAG}")

    def mlp_tabs(self, u):
        return self.table_list(116 + 16*(u & 1), CT+18, L_CS - L_TAB + 256*u, 2, 64) + self.table_list(124 + 16*(u & 1), CT+18, L_BT - L_TAB + 256*u, 2, 64)
    def mlp_pre(self):
        return self.lane_stats_list() + self.mlp_tabs(0)
    def att_pre(self):
        T = CT
        return ([f"ds_read_b32 v{148+2*k}, v{T+22} offset:{256 + 256*(k >> 1) + 64*(k & 1)}" for k in range(4)]
                + self.table_list(116, T+19, 0, 4, 64) + self.table_list(132, T+19, 512, 4, 64)
                + self.table_list(212, T+18, L_CS - L_TAB, 2, 64) + self.lane_stats_list())
    def c_epi_mlp(self, vm):
        a = self.a; T = CT; P = range(0, 16, 2)
        CP, U = 156, 172
        a(f"s_add_u32 s{sT1}, s{sC0}, s{sC}\ns_lshl_b32 s{sT1}, s{sT1}, 10\ns_add_u32 s{sA2B}, s{sA2B}, s{sT1}")
        a("s_waitcnt lgkmcnt(4)")
        for q in range(4): a(f"v_mul_f32 v{T+10+2*q}, v{T+10+2*q}, v{6+2*q}")
        for u in range(3):
            cs, bb = 116 + 16*(u & 1), 124 + 16*(u & 1)
            if u == 2:
                a(f"s_cmp_ge_u32 s{sG}, 11\ns_cselect_b32 s{sT0}, s{sC}, 0\ns_cmp_eq_u32 s{sT0}, 1\ns_cbranch_scc1 L_mlp_short")
            a("s_waitcnt lgkmcnt(0)")
            if u < 2:
                for r in self.mlp_tabs(u + 1): a(r)
            for t in range(2):
                A = ACC + 32*u + 16*t
                self.al()
                for k in P:
                    st = T + 10 + 4*t + 2*(k // 8); j = k % 8
                    a(f"v_pk_fma_f32 v[{CP+k}:{CP+k+1}], v[{st}:{st+1}], v[{cs+j}:{cs+j+1}], v[{bb+j}:{bb+j+1}] op_sel_hi:[0,1,1] neg_lo:[1,0,0] neg_hi:[1,0,0]")
                for k in P:
                    st = 6 + 4*t + 2*(k // 8)
                    a(f"v_pk_fma_f32 v[{A+k}:{A+k+1}], v[{A+k}:{A+k+1}], v[{st}:{st+1}], v[{CP+k}:{CP+k+1}] op_sel_hi:[1,0,1]")
                for k in range(16): a(f"v_exp_f32 v{U+k}, v{A+k}")
                for k in P: a(f"v_pk_fma_f32 v[{CP+k}:{CP+k+1}], v[{U+k}:{U+k+1}], v[{T}:{T+1}], v[{T+6}:{T+7}] op_sel_hi:[1,0,0]")
                for k in P: a(f"v_pk_fma_f32 v[{U+k}:{U+k+1}], v[{U+k}:{U+k+1}], v[{CP+k}:{CP+k+1}], v[{T+6}:{T+7}] op_sel_hi:[1,1,0]")
                for k in range(16): a(f"v_rcp_f32 v{U+k}, v{U+k}")
                for k in P: a(f"v_pk_fma_f32 v[{U+k}:{U+k+1}], v[{A+k}:{A+k+1}], v[{U+k}:{U+k+1}], v[{A+k}:{A+k+1}] neg_lo:[1,0,0] neg_hi:[1,0,0]")
                for k in P: a(f"v_cvt_pk_bf16_f32 v{A+k//2}, v{U+k}, v{U+k+1}")
                for k in range(2):
                    off = f" offset:{2048*u}" if 0 < u < 2 else ""
                    if u == 2 and t == 0 and k == 0: a(f"s_add_u32 s{sA2B}, s{sA2B}, 4096")
                    a(f"buffer_store_dwordx4 v[{A+4*k}:{A+4*k+3}], v{vCO[2*t+k]}, s[{S_WS}:{S_WS+3}], s{sA2B} offen{off} sc1"); vm.issue(f"act{u}")
                if self.o['classes'] and u == 2 and t == self.o.get('fa_at', 0):
                    vm.wait("act1"); self.flag(vm, sFL, 0)
            if u == 1 and self.o.get('rel_mlp', 0) == -1: self.release()
            self.stamp(11 + u)
        if self.o['classes']:
            if self.o.get('rel_mlp', 0) == 0: self.release()
            vm.wait("act2"); self.flag(vm, sFL, 4)
            if self.o.get('rel_mlp', 0) == 1: self.release()
            if self.o.get('hold2'): self.release(112)
            a("s_branch L_cdone")
        a.label("L_mlp_short")
        if self.o.get('rel_mlp', 0) == 0: self.release()
        a("s_waitcnt vmcnt(0)"); self.flag(VM(a), sFL, 0)
        if self.o.get('rel_mlp', 0) == 1: self.release()
        if self.o.get('hold2'): self.release(112)
        a("s_branch L_cdone")

    def phi(self, A, E, dst):
        a = self.a; T = CT; P = range(0, 16, 2)
        self.al()
        for k in range(16): a(f"v_exp_f32 v{E+k}, v{A+k}")
        for k in P: a(f"v_pk_fma_f32 v[{A+k}:{A+k+1}], v[{A+k}:{A+k+1}], v[{T+4}:{T+5}], v[{T+6}:{T+7}] op_sel_hi:[1,0,0]")
        for k in range(16): a(f"v_med3_f32 v{E+k}, v{A+k}, v{E+k}, 1.0")
        for k in P: a(f"v_pk_add_f32 v[{E+k}:{E+k+1}], v[{E+k}:{E+k+1}], v[{T+8}:{T+9}] op_sel_hi:[1,0]")
        for k in P: a(f"v_cvt_pk_bf16_f32 v{dst(k//2) if callable(dst) else dst+k//2}, v{E+k}, v{E+k+1}")

    def kv_write(self, S, flagoff):
        a = self.a
        for k in range(3): a(f"ds_write_b128 v2, v[{S+4*k}:{S+4*k+3}] offset:{1024*k}")
        a(f"v_mov_b32 v7, 1\ns_waitcnt lgkmcnt(0)\nds_write_b32 v6, v7 offset:{flagoff}")
    def kv_add(self, S, D):
        a = self.a
        for k in range(3): a(f"ds_read_b128 v[{D+4*k}:{D+4*k+3}], v4 offset:{1024*k}")
        a("s_waitcnt lgkmcnt(0)")
        for k in range(0, 12, 2): a(f"v_pk_add_f32 v[{S+k}:{S+k+1}], v[{S+k}:{S+k+1}], v[{D+k}:{D+k+1}]")

    def c_epi_att(self, vm):
        a = self.a; T = CT; P = range(0, 16, 2)
        MT, RT, E, QCS, PV, S, ZZ = 116, 132, 196, 212, 156, 172, 180
        Q, K, V = ACC, ACC + 32, ACC + 64
        if self.o.get('rel_att', 1) == -1: self.release()
        a("s_waitcnt lgkmcnt(10)")
        self.al()
        for (A, cs0) in ((K, 148), (V, 152)):
            for k in range(0, 32, 2):
                m = 4*(k // 8) + (k % 4); cs = cs0 + 2*((k % 8) // 4)
                a(f"v_pk_fma_f32 v[{A+k}:{A+k+1}], v[{MT+m}:{MT+m+1}], v[{cs}:{cs+1}], v[{A+k}:{A+k+1}] op_sel_hi:[1,0,1] neg_lo:[1,0,0] neg_hi:[1,0,0]")
            for k in range(0, 32, 2):
                m = 4*(k // 8) + (k % 4)
                a(f"v_pk_mul_f32 v[{A+k}:{A+k+1}], v[{A+k}:{A+k+1}], v[{RT+m}:{RT+m+1}]")
        if self.o.get('cst'): self.stamp(21)
        ONE = 192
        for k in range(4): a(f"v_mov_b32 v{ONE+k}, 0x3f803f80")
        def opnd(base): return lambda j: base + 4*((j >> 1) & 1) + 2*(j >> 2) + (j & 1)
        for t in range(2):
            self.phi(K + 16*t, E, opnd(K + 16*t))
            for j in range(8): a(f"v_cvt_pk_bf16_f32 v{opnd(PV + 8*t)(j)}, v{V+16*t+2*j}, v{V+16*t+2*j+1}")
            a("s_nop 1")
            for h in range(2):
                for (D, B) in ((S + 4*h, PV + 8*t + 4*h), (ZZ + 4*h, ONE)):
                    c = "0" if t == 0 else f"v[{D}:{D+3}]"
                    a(f"v_mfma_f32_16x16x32_bf16 v[{D}:{D+3}], v[{K+16*t+4*h}:{K+16*t+4*h+3}], v[{B}:{B+3}], {c}")
        if self.o.get('cst'): self.stamp(22)
        if self.o.get('rel_att', 1) == -2: self.release()
        even = f"s[{sEX}:{sEX+1}]"; upper = "s[66:67]"
        Z = 186; X = V; Y = V + 16
        a(f"v_mov_b32 v{X+3}, s{sTAG}\nv_mov_b32 v{X+7}, s{sTAG}\nv_mov_b32 v{X+11}, s{sTAG}\ns_nop 4")
        self.al()
        for k in range(4): a(f"v_cndmask_b32 v{ZZ+k}, v{ZZ+4+k}, v{ZZ+k}, {even}")
        for k in range(6): a(f"v_cndmask_b32 v{X+k+k//3}, v{S+6+k}, v{S+k}, {upper}")
        a(f"ds_write_b128 v249, v[{X}:{X+3}]\nds_write_b128 v249, v[{X+4}:{X+7}] offset:1024")
        for k in range(6): a(f"v_cndmask_b32 v{Z+k}, v{S+k}, v{S+6+k}, {upper}")
        if self.o.get('cst'): self.stamp(23)
        a(f"s_mov_b32 s{sSPIN}, 0")
        a.label("L_x1")
        a(f"ds_read_b128 v[{Y}:{Y+3}], v250\nds_read_b128 v[{Y+4}:{Y+7}], v250 offset:1024\ns_add_u32 s{sSPIN}, s{sSPIN}, 1\ns_waitcnt lgkmcnt(0)")
        a(f"v_cmp_ne_u32 vcc, s{sTAG}, v{Y+3}\nv_cmp_ne_u32 s[68:69], s{sTAG}, v{Y+7}\ns_cmp_gt_u32 s{sSPIN}, 0x40000\ns_cbranch_scc1 L_x1d\ns_or_b64 vcc, vcc, s[68:69]\ns_cbranch_vccnz L_x1")
        a.label("L_x1d")
        for k in range(6): a(f"v_add_f32 v{Z+k}, v{Z+k}, v{Y+k+k//3}")
        for k in range(3): a(f"v_cvt_pk_bf16_f32 v{X+8+k}, v{Z+2*k}, v{Z+2*k+1}")
        a(f"buffer_store_dwordx4 v[{X+8}:{X+11}], v{vL16}, s[{S_WS}:{S_WS+3}], s70 offen sc1")
        self.stamp(11)
        if self.o.get('rel_att', 1) == 0: self.release()
        self.al()
        for k in range(0, 32, 2):
            st = T + 10 + 2*(k // 8); j = k % 8
            a(f"v_pk_fma_f32 v[{Q+k}:{Q+k+1}], v[{st}:{st+1}], v[{QCS+j}:{QCS+j+1}], v[{Q+k}:{Q+k+1}] op_sel_hi:[0,1,1] neg_lo:[1,0,0] neg_hi:[1,0,0]")
        for k in range(0, 32, 2):
            st = 6 + 2*(k // 8)
            a(f"v_pk_mul_f32 v[{Q+k}:{Q+k+1}], v[{Q+k}:{Q+k+1}], v[{st}:{st+1}] op_sel_hi:[1,0]")
        for t in range(2): self.phi(Q + 16*t, E, Q + 16*t)
        if self.o.get('rel_att', 1) == 1: self.release()
        if self.o.get('cst'): self.stamp(24)
        if self.o.get('noatt'):
            for a_ in range(4): a(f"buffer_store_dwordx4 v[{Q+4*a_}:{Q+4*a_+3}], v{vCO[a_]}, s[{S_WS}:{S_WS+3}], s71 offen sc1")
            a("s_waitcnt vmcnt(0)"); self.flag(vm, sFL, 0); self.release(112); a("s_branch L_cdone")
        G = 116; S = K; U = K + 12
        a(f"s_mov_b32 s{sT5}, 0")
        if self.o.get('pollwait'):
            self.spin_lds("b2d", 254, 9, 96)
        if self.o.get('inc', 0):
            for k in range(12): a(f"v_mov_b32 v{S+k}, 0")
            a(f"s_mov_b32 s72, 0xffff\ns_lshl_b32 s73, s{sRB}, 12")
            if self.o.get('chprio', 3): a(f"s_setprio {self.o.get('chprio', 3)}")
            if self.o.get('cst'): self.stamp(28)
            a.label("L_kv_pass")
            for p in range(16):
                a(f"s_bitcmp0_b32 s72, {p}\ns_cbranch_scc1 L_kv_l{p}")
                a(f"s_add_u32 s{sT2}, s73, {2048*p}\ns_and_b32 s{sT2}, s{sT2}, 0x7800\ns_add_u32 s{sT2}, s{sT2}, s{sKB}")
                a(f"buffer_load_dwordx4 v[{G+4*p}:{G+4*p+3}], v{vL16}, s[{S_WS}:{S_WS+3}], s{sT2} offen sc1")
                a.label(f"L_kv_l{p}")
            if self.o.get('hold2') == 1: self.release(112)
            a(f"s_add_u32 s{sT5}, s{sT5}, 1\ns_waitcnt vmcnt(0)")
            for p in range(16):
                src = G + 4*p; d = S + 6*(p & 1)
                a(f"s_bitcmp0_b32 s72, {p}\ns_cbranch_scc1 L_kv_a{p}\nv_cmp_ne_u32 vcc, s{sTAG}, v{src+3}\ns_cbranch_vccnz L_kv_a{p}")
                for k in range(3): a(f"v_lshlrev_b32 v{U+2*k}, 16, v{src+k}\nv_and_b32 v{U+2*k+1}, 0xffff0000, v{src+k}")
                for k in range(6): a(f"v_add_f32 v{d+k}, v{d+k}, v{U+k}")
                a(f"s_bitset0_b32 s72, {p}")
                a.label(f"L_kv_a{p}")
            a(f"s_cmp_eq_u32 s72, 0\ns_cbranch_scc1 L_kv_ok\ns_cmp_gt_u32 s{sT5}, 0x4000\ns_cbranch_scc1 L_kv_ok\ns_sleep {self.o.get('sleep3', 1)}\ns_branch L_kv_pass")
            a.label("L_kv_ok")
            if self.o.get('cst'): self.stamp(25); a(f"v_writelane_b32 v252, s{sT5}, 30")
        else:
            if self.o.get('optim', 0): a("s_branch L_kv_go")
            a.label("L_kv_gather")
            self.spin_global("kv", 253, 9, sKB, 12)
            a.label("L_kv_go")
            if self.o.get('chprio', 3): a(f"s_setprio {self.o.get('chprio', 3)}")
            if self.o.get('cst'): self.stamp(28)
            vg = VM(a)
            for p in range(16):
                if p % 2 == 0: a(f"s_lshl1_add_u32 s{sT2}, s{sRB}, {p}\ns_and_b32 s{sT2}, s{sT2}, 14\ns_lshl_b32 s{sT2}, s{sT2}, 11\ns_add_u32 s{sT2}, s{sT2}, s{sKB}")
                off = " offset:2048" if p % 2 else ""
                a(f"buffer_load_dwordx4 v[{G+4*p}:{G+4*p+3}], v{vL16}, s[{S_WS}:{S_WS+3}], s{sT2} offen{off} sc1"); vg.issue(f"kvg{p}")
            if self.o.get('rel_att', 1) == 3: self.release()
            if self.o.get('hold2') == 1: self.release(112)
            for p in range(0, 16, 2):
                vg.wait(f"kvg{p+1}")
                for h2 in range(2):
                    d = S + 6*h2 if p == 0 else U + 6*h2; src = G + 4*(p + h2)
                    for k in range(3): a(f"v_lshlrev_b32 v{d+2*k}, 16, v{src+k}\nv_and_b32 v{d+2*k+1}, 0xffff0000, v{src+k}")
                if p:
                    for k in range(0, 12, 2): a(f"v_pk_add_f32 v[{S+k}:{S+k+1}], v[{S+k}:{S+k+1}], v[{U+k}:{U+k+1}]")
                    a(f"v_bfi_b32 v3, v{G+4*p+3}, v{G+4*p+7}, 0\nv_or3_b32 v5, v5, v{G+4*p+3}, v{G+4*p+7}\nv_and_b32 v9, v9, v3")
                else:
                    a(f"v_and_b32 v9, v{G+3}, v{G+7}\nv_or_b32 v5, v{G+3}, v{G+7}")
            if self.o.get('cst'): self.stamp(25); a(f"v_writelane_b32 v252, s{sT5}, 30")
            a(f"v_cmp_ne_u32 vcc, s{sTAG}, v9\nv_cmp_ne_u32 s[68:69], s{sTAG}, v5\ns_nop 1\ns_or_b64 vcc, vcc, s[68:69]")
            a(f"s_cbranch_vccz L_kv_ok\ns_add_u32 s{sT5}, s{sT5}, 1\ns_cmp_gt_u32 s{sT5}, 64\ns_cbranch_scc0 L_kv_gather")
            a.label("L_kv_ok")
        vm.drained()
        if self.o.get('hold2') == 2: self.release(112)
        self.stamp(12)
        for k in range(0, 6, 2): a(f"v_pk_add_f32 v[{S+k}:{S+k+1}], v[{S+k}:{S+k+1}], v[{S+6+k}:{S+7+k}]")
        for k in range(3): a(f"v_cvt_pk_bf16_f32 v{X+k}, v{S+2*k}, v{S+2*k+1}")
        a(f"ds_write_b128 v249, v[{X}:{X+3}] offset:2048\ns_mov_b32 s{sSPIN}, 0")
        a.label("L_x2")
        a(f"ds_read_b128 v[{Y}:{Y+3}], v250 offset:2048\ns_add_u32 s{sSPIN}, s{sSPIN}, 1\ns_waitcnt lgkmcnt(0)")
        a(f"v_cmp_ne_u32 vcc, s{sTAG}, v{Y+3}\ns_cmp_gt_u32 s{sSPIN}, 0x40000\ns_cbranch_scc1 L_x2d\ns_cbranch_vccnz L_x2")
        a.label("L_x2d")
        if self.o.get('cst'): self.stamp(26)
        if self.o.get('hold2') == 4: self.release(112)
        W = K + 24
        for k in range(3): a(f"v_cndmask_b32 v{W+k}, v{X+k}, v{Y+k}, {upper}\nv_cndmask_b32 v{W+3+k}, v{Y+k}, v{X+k}, {upper}")
        def pq(a_, h): r = Q + 16*(a_ >> 1) + 4*(a_ & 1) + 2*h; return f"v[{r}:{r+1}]"
        NUM, DEN, R = 116, 148, 180
        a("s_nop 1")
        for k in range(2): a(f"v_mov_b32_dpp v{W+6+k}, v{W+4+k} quad_perm:[1,0,3,2] row_mask:0xf bank_mask:0xf")
        for k in range(2): a(f"v_cndmask_b32 v{S+k}, v{W+6+k}, v{W+4+k}, {even}\nv_cndmask_b32 v{S+2+k}, v{W+4+k}, v{W+6+k}, {even}")
        a("s_nop 1")
        for a_ in range(4):
            for h in range(2): a(f"v_mfma_f32_16x16x16_bf16 v[{DEN+8*a_+4*h}:{DEN+8*a_+4*h+3}], v[{S+2*h}:{S+2*h+1}], {pq(a_, h)}, 0")
        for a_ in range(4):
            for h in range(2): a(f"v_mfma_f32_16x16x16_bf16 v[{NUM+8*a_+4*h}:{NUM+8*a_+4*h+3}], v[{W+2*h}:{W+2*h+1}], {pq(a_, h)}, 0")
        for k in range(8): a(f"v_add_f32 v{R+2*k}, v{T+8}, v{DEN+4*k}")
        for k in range(8): a(f"v_rcp_f32 v{R+2*k}, v{R+2*k}")
        for a_ in range(4):
            d = V + 4*a_
            for h in range(2):
                N = NUM + 8*a_ + 4*h; r = R + 4*a_ + 2*h
                if self.o.get('opk', 0):
                    for k in (0, 2): a(f"v_pk_mul_f32 v[{N+k}:{N+k+1}], v[{N+k}:{N+k+1}], v[{r}:{r+1}] op_sel_hi:[1,0]")
                else:
                    for k in range(4): a(f"v_mul_f32 v{N+k}, v{r}, v{N+k}")
            for j in range(4): a(f"v_cvt_pk_bf16_f32 v{d+j}, v{NUM+8*a_+2*j}, v{NUM+8*a_+2*j+1}")
            a(f"buffer_store_dwordx4 v[{d}:{d+3}], v{vCO[a_]}, s[{S_WS}:{S_WS+3}], s71 offen sc1"); vm.issue("o")
            if self.o.get('onop'): a(f"s_nop {self.o['onop']}")
        if self.o.get('hold2') == 3: self.release(112)
        if self.o.get('cst'): self.stamp(27)
        vm.wait("o")
        self.flag(vm, sFL, 0)
        self.stamp(13)

    def c_main(self):
        a = self.a; vm = VM(a)
        a.label("L_C")
        if self.o['pf']: vm.issue("codepf")
        self.c_prologue(vm)
        self.stamp(1)
        a(f"s_cmp_lt_u32 s{sG}, 8\ns_cbranch_scc1 L_Catt")
        if self.o.get('short', 0):
            a(f"s_cmp_ge_u32 s{sG}, 11\ns_cselect_b32 s{sT0}, s{sC}, 0\ns_cmp_eq_u32 s{sT0}, 0\ns_cbranch_scc1 L_Cfull")
            self.c_kloop(False, True)
            a("s_branch L_Cepi")
            a.label("L_Cfull")
        self.c_kloop(False)
        a.label("L_Cepi")
        self.c_epi_mlp(vm.copy())
        a.label("L_Catt")
        a(f"s_lshl1_add_u32 s{sT0}, s{sC}, s{sR2}\ns_xor_b32 s{sT1}, s{sT0}, 1")
        a(f"s_mul_i32 s{sT2}, s{sT0}, 3072\ns_add_u32 s{sT2}, s{sT2}, {L_KV}\nv_add_u32 v249, s{sT2}, v{vL16}")
        a(f"s_mul_i32 s{sT2}, s{sT1}, 3072\ns_add_u32 s{sT2}, s{sT2}, {L_KV}\nv_add_u32 v250, s{sT2}, v{vL16}")
        a(f"s_lshl1_add_u32 s{sT0}, s{sG}, s{sC}\ns_lshl_b32 s{sKB}, s{sT0}, 15\ns_lshl_b32 s{sT0}, s{sR2}, 10\ns_add_u32 s{sKB}, s{sKB}, s{sT0}\ns_add_u32 s{sKB}, s{sKB}, {WS_KVP}")
        a(f"s_mov_b32 s{sEX}, 0x55555555\ns_mov_b32 s{sEX+1}, 0x55555555\ns_sub_u32 s66, 0, s{sR2}\ns_mov_b32 s67, s66")
        a(f"s_lshl_b32 s70, s{sRB}, 11\ns_add_u32 s70, s70, s{sKB}")
        a(f"s_lshl1_add_u32 s71, s{sG}, s{sC}\ns_lshl_b32 s71, s71, 10\ns_add_u32 s71, s71, {44*1024}\ns_add_u32 s71, s71, s{sA2B}")
        a(f"v_and_b32 v253, 15, v{vL}\nv_lshlrev_b32 v253, 11, v253\nv_and_b32 v254, 3, v{vL}\nv_lshlrev_b32 v254, 2, v254\nv_add_u32 v254, {L_FL}, v254")
        self.c_kloop(True); self.c_epi_att(vm.copy())
        a(f"s_cmp_lg_u32 s2, 0\ns_cbranch_scc1 L_cdone\ns_cmp_lg_u32 s{sW}, 0\ns_cbranch_scc1 L_cdone")
        a(f"v_lshlrev_b32 v7, 10, v{vL}")
        for k in range(4):
            a(f"s_mov_b32 s{sT0}, {WS_CSP + 65536*k}")
            self.spin_global(f"ep{k}", 7, 9, sT0, 12)
        a(f"s_mov_b32 s{sT0}, {WS_EPOCH}")
        self.flag(VM(a), sT0, 0)
        a.label("L_cdone")
        self.stamp(14)
        self.final_addr(VM(a), 11, 13)

    def final(self):
        a = self.a
        a.label("L_final")
        a(f"s_waitcnt vmcnt(0)\nv_xor_b32 v19, 16, v{vRR}\nv_mov_b32 v92, {f2u(LN2):#x}")
        for k in range(4):
            a(f"v_lshlrev_b32 v{84+2*k}, 16, v{XRES+k}\nv_and_b32 v{84+2*k+1}, 0xffff0000, v{XRES+k}")
        a("s_waitcnt lgkmcnt(0)")
        if self.o.get('tst'): self.stamp(46)
        a("s_barrier")
        if self.o.get('tst'): self.stamp(47)
        R, X = 20, 84
        for kq in range(4):
            a(f"ds_read_b128 v[{R+8*kq}:{R+8*kq+3}], v{vRR} offset:{2048*kq}\nds_read_b128 v[{R+8*kq+4}:{R+8*kq+7}], v19 offset:{2048*kq}")
        for kq in range(1, 4):
            a(f"s_waitcnt lgkmcnt({6-2*kq})")
            for k in range(0, 8, 2): a(f"v_pk_add_f32 v[{R+k}:{R+k+1}], v[{R+k}:{R+k+1}], v[{R+8*kq+k}:{R+8*kq+k+1}]")
        for k in range(0, 8, 2): a(f"v_pk_fma_f32 v[{X+k}:{X+k+1}], v[{R+k}:{R+k+1}], v[{X+8}:{X+9}], v[{X+k}:{X+k+1}] op_sel_hi:[1,0,1]")
        for k in range(0, 8, 2): a(f"v_cvt_pk_bf16_f32 v{R+k//2}, v{X+k}, v{X+k+1}")
        a(f"buffer_store_dwordx4 v[{R}:{R+3}], v{vXO}, s[{S_OUT}:{S_OUT+3}], s{sRES} offen {self.o.get('outsc', 'sc1').replace('_', ' ')}")
        if self.stamps:
            if self.o.get('tst'): self.stamp(48)
            a("s_waitcnt vmcnt(0)")
            self.stamp(17); self.rstamp(19)
            a(f"v_writelane_b32 v252, s96, 0\nv_writelane_b32 v252, s96, 18")
            a(f"s_lshl_b32 s{sT0}, s2, 3\ns_add_u32 s{sT0}, s{sT0}, s{sW}\ns_lshl_b32 s{sT0}, s{sT0}, 8\ns_add_u32 s{sT0}, s{sT0}, {WS_STAMP}")
            a(f"v_lshlrev_b32 v14, 2, v{vL}\nbuffer_store_dword v252, v14, s[{S_WS}:{S_WS+3}], s{sT0} offen")

    def build(self):
        a = self.a
        a.label("L_code0")
        self.entry()
        self.l_main()
        self.c_main()
        self.final()
        if self.o.get('probe'):
            wg, w, k = self.o['probe']
            a(f"s_cmp_lg_u32 s2, {wg}\ns_cbranch_scc1 L_end\ns_cmp_lg_u32 s{sW}, {w}\ns_cbranch_scc1 L_end")
            a(f"v_readlane_b32 s{sT1}, v252, {k}\ns_nop 3\ns_add_u32 s{sT1}, s{sT1}, 2500\ns_mov_b32 s{sSPIN}, 0")
            a.label("L_hold")
            a(f"s_memrealtime s[{sSTAMP}:{sSTAMP+1}]\ns_add_u32 s{sSPIN}, s{sSPIN}, 1\ns_waitcnt lgkmcnt(0)\ns_sub_u32 s{sT0}, s{sSTAMP}, s{sT1}")
            a(f"s_cmp_gt_u32 s{sSPIN}, 100000\ns_cbranch_scc1 L_end\ns_cmp_lt_i32 s{sT0}, 0\ns_cbranch_scc1 L_hold")
        a.label("L_end")
        a("s_endpgm")
        a.label("L_codeend")
        t = single(a.text(), 256, 512, LDS_BYTES, 256, 102, 256)
        k = t.index('.amdgcn_target')
        return t[:k] + DOC + t[k:]

if __name__ == "__main__":
    out = sys.argv[1] if len(sys.argv) > 1 else "k.s"
    stamps = "stamps" in sys.argv[2:]
    opts = {}
    for kv in sys.argv[2:]:
        if "=" in kv:
            k, v = kv.split("="); opts[k] = eval(v)
    open(out, "w").write(Gen(stamps, opts).build())
```
